```python
import torch

def _softmax(x, axis=-1):
    return torch.softmax(x, dim=axis)
def _gelu(x):
    return torch.nn.functional.gelu(x, approximate="tanh")
def _silu(x):
    return torch.nn.functional.silu(x)
def _sigmoid(x):
    return torch.sigmoid(x)
def _layernorm(x, axis=-1, eps=1e-5):
    m = x.mean(dim=axis, keepdim=True)
    v = x.var(dim=axis, keepdim=True, unbiased=False)
    return (x - m) / torch.sqrt(v + eps)
def _scatter_add(tgt, idx, src, axis=0):
    return tgt.clone().index_add_(axis, idx, src)
def _segment_sum(src, seg, n):
    out = torch.zeros((n,) + src.shape[1:], dtype=src.dtype)
    return out.index_add_(0, seg, src)
def _pad(x, pw):
    flat = tuple(v for pair in reversed(pw) for v in pair)
    return torch.nn.functional.pad(x, flat)

kernel_name = 'sequential_preLN__sliding_block__glu_gated_geglu__prompt'

def setup_inputs():

    _w = (lambda a: (lambda t: t.to(torch.bfloat16) if t.is_floating_point() else t)(torch.as_tensor(a)))
    def _A_setup():
        B, S, D = 1, 2048, 640
        return {
            "x": _w((lambda *s: torch.randn(*s, dtype=torch.bfloat16) * 0.05)(B, S, D)),
            "wqkv": _w((lambda *s: torch.randn(*s, dtype=torch.bfloat16) * 0.05)(D, 3 * D)),
            "wo": _w((lambda *s: torch.randn(*s, dtype=torch.bfloat16) * 0.05)(D, D)),
        }
    _A_in = _A_setup()

    def _B_setup():
        B, S, Dm, Df = 1, 2048, 640, 1536
        return {
            "x": _w((lambda *s: torch.randn(*s, dtype=torch.bfloat16) * 0.05)(B, S, Dm)),
            "w_gate": _w((lambda *s: torch.randn(*s, dtype=torch.bfloat16) * 0.8)(Dm, Df) * (Dm ** -0.5)),
            "w_up": _w((lambda *s: torch.randn(*s, dtype=torch.bfloat16) * 0.8)(Dm, Df) * (Dm ** -0.5)),
            "w_down": _w((lambda *s: torch.randn(*s, dtype=torch.bfloat16) * 0.8)(Df, Dm) * (Df ** -0.5)),
        }
    _B_in = _B_setup()

    return {
        "A_x": _A_in["x"],
        "A_wqkv": _A_in["wqkv"],
        "A_wo": _A_in["wo"],
        "B_x": _B_in["x"],
        "B_w_gate": _B_in["w_gate"],
        "B_w_up": _B_in["w_up"],
        "B_w_down": _B_in["w_down"],
    }

def reference(A_x, A_wqkv, A_wo, B_x, B_w_gate, B_w_up, B_w_down):
    def _A_ref(x, wqkv, wo):
        B, S, D = x.shape
        H = 32; Dh = D // H; W = 256
        qkv = (lambda x, *d: x.permute(*d))((x @ wqkv).reshape(B, S, 3, H, Dh), 2, 0, 3, 1, 4)
        q, k, v = qkv[0], qkv[1], qkv[2]
        scores = torch.einsum("bhqd,bhkd->bhqk", q, k) * (Dh ** -0.5)
        idx = torch.arange(S)
        mask = (idx[:, None] - idx[None, :] >= 0) & (idx[:, None] - idx[None, :] < W)
        scores = torch.where(mask[None, None], scores, -1e9)
        p = _softmax(scores, axis=-1)
        o = torch.einsum("bhqk,bhkd->bhqd", p, v)
        return (lambda x, *d: x.permute(*d))(o, 0, 2, 1, 3).reshape(B, S, D) @ wo

    def _B_ref(x, w_gate, w_up, w_down):
        g = torch.einsum("bsd,df->bsf", x, w_gate)
        u = torch.einsum("bsd,df->bsf", x, w_up)
        h = _gelu(g) * u
        return torch.einsum("bsf,fd->bsd", h, w_down)

    x = A_x
    h = x + _A_ref(_layernorm(x, axis=-1), A_wqkv, A_wo)
    h2 = h + _B_ref(_layernorm(h, axis=-1), B_w_gate, B_w_up, B_w_down)
    return h2
```

```python
import re

TRANS = ("v_exp_f32", "v_log_f32", "v_rcp_f32", "v_rsq_f32", "v_sqrt_f32", "v_sin_f32", "v_cos_f32")

def _regs(tok):
    tok = tok.strip()
    tok = re.sub(r"^-", "", tok)
    m = re.match(r"^abs\((.*)\)$", tok)
    if m: tok = m.group(1)
    m = re.match(r"^\|(.*)\|$", tok)
    if m: tok = m.group(1)
    m = re.match(r"^([vsa])(\d+)$", tok)
    if m: return {(m.group(1), int(m.group(2)))}
    m = re.match(r"^([vsa])\[(\d+):(\d+)\]$", tok)
    if m: return {(m.group(1), i) for i in range(int(m.group(2)), int(m.group(3)) + 1)}
    if tok in ("vcc", "vcc_lo", "vcc_hi"): return {("vcc", 0)}
    if tok in ("exec", "exec_lo", "exec_hi"): return {("exec", 0)}
    if tok == "m0": return {("m0", 0)}
    return set()

class Ins:
    __slots__ = ("op", "kind", "wr", "rd", "ws", "passes", "A", "B", "C", "D", "text", "stdata", "dpp")

class Emitter:
    def __init__(self):
        self.lines = []
        self.hist = []
        self.vm = []
        self.lg = []
        self.nlabel = 0
        self.count = 0

    def raw(self, s): self.lines.append(s)
    def comment(self, s): self.lines.append("  ; " + s)
    def label(self, name):
        self.flush()
        self.lines.append(name + ":")
    def newlabel(self, p="L"):
        self.nlabel += 1
        return f"{p}_{self.nlabel}"

    def _parse(self, text):
        t = text.split(";")[0].strip()
        sp = t.split(None, 1)
        op = sp[0]
        rest = sp[1] if len(sp) > 1 else ""
        ops = [o.strip() for o in re.split(r",(?![^\[]*\])", rest)] if rest else []
        mods = ""
        if ops:
            parts = ops[-1].split(None, 1)
            if len(parts) > 1:
                ops[-1] = parts[0]; mods = parts[1]
        I = Ins(); I.op = op; I.text = text; I.wr = set(); I.rd = set(); I.ws = 1; I.passes = 0
        I.A = I.B = I.C = I.D = set(); I.stdata = set(); I.dpp = False
        R = [_regs(o) for o in ops]
        if op == "s_nop":
            I.kind = "nop"; I.ws = int(ops[0]) + 1
        elif op.startswith("v_mfma"):
            I.kind = "mfma"; I.D, I.A, I.B, I.C = R[0], R[1], R[2], R[3]
            I.passes = 8 if "32x32" in op else 4
            I.wr = set(I.D); I.rd = I.A | I.B | I.C
        elif op.startswith("v_"):
            I.kind = "valu"
            if op.startswith("v_dot"): I.kind = "dot"
            if op in TRANS or any(op == x + "_e32" for x in TRANS): I.kind = "trans"
            if "dpp" in op or "row_" in mods or "quad_perm" in mods: I.dpp = True
            if op.startswith("v_permlane") and "swap" in op:
                I.wr = R[0] | R[1]; I.rd = R[0] | R[1]
            elif op.startswith("v_cmp"):
                I.wr = R[0]; I.rd = set().union(*R[1:])
            elif op in ("v_add_co_u32", "v_sub_co_u32"):
                I.wr = R[0] | R[1]; I.rd = set().union(*R[2:])
            elif op in ("v_addc_co_u32",):
                I.wr = R[0] | R[1]; I.rd = set().union(*R[2:])
            else:
                I.wr = R[0]; I.rd = set().union(*R[1:]) if len(R) > 1 else set()
                if op.startswith("v_fmac") or op.startswith("v_dot2c") or op.startswith("v_pk_fmac"):
                    I.rd |= R[0]
        elif op.startswith("ds_"):
            I.kind = "ds"
            if op.startswith("ds_read") or op.startswith("ds_bpermute") or op.startswith("ds_swizzle"):
                I.wr = R[0]; I.rd = set().union(*R[1:])
            else:
                I.rd = set().union(*R)
        elif op.startswith("buffer_") or op.startswith("global_"):
            I.kind = "vmem"
            islds = (" lds" in (" " + mods)) or op.startswith("global_load_lds")
            if "load" in op and not islds:
                I.wr = R[0]; I.rd = set().union(*R[1:])
            else:
                I.rd = set().union(*R) if R else set()
                if islds: I.rd |= {("m0", 0)}
                if "store" in op and ("x4" in op or "x3" in op):
                    I.stdata = R[0] if op.startswith("buffer_") else R[1]
        elif op.startswith("s_"):
            I.kind = "salu"
            if op.startswith("s_cmp") or op.startswith("s_cbranch") or op in ("s_branch", "s_barrier", "s_waitcnt", "s_endpgm", "s_sleep", "s_setprio"):
                I.rd = set().union(*R) if R else set()
            else:
                I.wr = R[0] if R else set(); I.rd = set().union(*R[1:]) if len(R) > 1 else set()
        else:
            raise ValueError("unknown op " + text)
        return I

    @staticmethod
    def _need(P, C):
        n = 0
        vw = {r for r in P.wr if r[0] in "va"}
        sw = {r for r in P.wr if r[0] in ("s", "vcc")}
        isvalu = lambda X: X.kind in ("valu", "trans", "dot")
        if isvalu(P):
            if C.kind == "mfma" and (vw & C.rd): n = max(n, 3 if P.kind == "dot" else 2)
            if P.kind == "trans" and isvalu(C) and (vw & (C.rd | C.wr)): n = max(n, 1)
            if P.kind == "trans" and C.kind in ("ds", "vmem") and (vw & C.rd): n = max(n, 1)
            if P.kind == "dot" and (vw & (C.rd | C.wr)):
                if C.op == P.op and C.kind == "dot":
                    srcs = C.rd - C.wr
                    if vw & srcs: n = max(n, 3)
                else: n = max(n, 3)
            if isvalu(C) and C.op.startswith("v_permlane") and (vw & C.rd): n = max(n, 2)
            if isvalu(C) and C.dpp and (vw & C.rd): n = max(n, 2)
            if C.op.startswith("v_readfirstlane") or C.op.startswith("v_readlane"):
                if vw & C.rd: n = max(n, 1)
            if sw:
                if isvalu(C) and (sw & C.rd): n = max(n, 2)
                if C.op.startswith("v_readlane") and (sw & C.rd): n = max(n, 4)
                if C.kind == "vmem" and (sw & C.rd): n = max(n, 5)
                if C.kind == "salu" and (sw & C.rd): n = max(n, 2)
                if C.op.startswith("s_cbranch_vcc") and ("vcc", 0) in sw: n = max(n, 5)
        if P.kind == "mfma":
            big = 12 if P.passes == 8 else 8
            if C.kind == "mfma":
                if P.D & (C.A | C.B): n = max(n, big)
                if P.D & C.C:
                    if P.D == C.C and P.passes == C.passes: pass
                    else: n = max(n, 10 if P.passes == 8 else 6)
                elif P.D & C.D:
                    n = max(n, 10 if P.passes == 8 else 6)
            elif isvalu(C):
                if P.D & (C.rd | C.wr): n = max(n, big)
                if P.C & C.wr: n = max(n, 7 if P.passes == 8 else 3)
            elif C.kind in ("ds", "vmem"):
                if P.D & (C.rd | C.wr): n = max(n, big)
        if P.kind == "salu" and ("m0", 0) in P.wr and C.kind in ("vmem", "ds") and ("m0", 0) in C.rd: n = max(n, 1)
        if P.kind == "vmem" and P.stdata and (P.stdata & C.wr): n = max(n, 2)
        if P.kind == "salu" and ("exec", 0) in P.wr and C.kind == "mfma": n = max(n, 1)
        return n

    def i(self, text, tag=None):
        I = self._parse(text)
        dist = 0; need = 0
        for P in reversed(self.hist):
            r = self._need(P, I) - dist
            if r > need: need = r
            dist += P.ws
            if dist > 20: break
        while need > 0:
            k = min(need, 16)
            N = self._parse(f"s_nop {k-1}")
            self.lines.append(f"  s_nop {k-1}"); self.hist.append(N); self.count += 1
            need -= k
        self.lines.append("  " + text); self.count += 1
        self.hist.append(I)
        if len(self.hist) > 40: self.hist = self.hist[-30:]
        if I.kind == "vmem": self.vm.append(tag)
        if I.kind == "ds": self.lg.append(tag)
        return I

    def flush(self):
        dist = 0; need = 0
        for P in reversed(self.hist):
            if P.kind == "mfma": m = 12 if P.passes == 8 else 8
            elif P.kind in ("valu", "trans", "dot"):
                m = 5 if any(r[0] in ("s", "vcc") for r in P.wr) else 3
            elif P.kind == "vmem" and P.stdata: m = 2
            elif P.kind == "salu" and (("m0", 0) in P.wr or ("exec", 0) in P.wr): m = 1
            else: m = 0
            need = max(need, m - dist)
            dist += P.ws
            if dist > 20: break
        if need > 0:
            self.lines.append(f"  s_nop {need-1}"); self.count += 1
        self.hist = []

    def branch(self, text):
        self.i(text) if False else None
        I = self._parse(text)
        self.flush()
        self.lines.append("  " + text); self.count += 1

    def wait_vm(self, tag=None):
        if tag is None: n = 0
        else:
            idx = max([k for k, t in enumerate(self.vm) if t == tag], default=-1)
            if idx < 0: return
            n = len(self.vm) - 1 - idx
        self.i(f"s_waitcnt vmcnt({min(n,63)})")
        self.vm = self.vm[len(self.vm) - n:] if n else []
    def wait_lg(self, tag=None):
        if tag is None: n = 0
        else:
            idx = max([k for k, t in enumerate(self.lg) if t == tag], default=-1)
            if idx < 0: return
            n = len(self.lg) - 1 - idx
        self.i(f"s_waitcnt lgkmcnt({min(n,15)})")
        self.lg = self.lg[len(self.lg) - n:] if n else []
    def text(self): return "\n".join(self.lines) + "\n"

def v(n, cnt=1): return f"v{n}" if cnt == 1 else f"v[{n}:{n+cnt-1}]"
def s(n, cnt=1): return f"s{n}" if cnt == 1 else f"s[{n}:{n+cnt-1}]"
```

```python
from emit import *

NAME = "sequential_preLN__sliding_block__glu_gated_geglu__prompt"
QKV = 0x0
OF  = 0x800000
HF  = 0xB00000
HHF = 0x1000000
W3F = 0x1800000
W4F = 0x1A00000
W5F = 0x1E00000
FLG = 0x2000000
WS_BYTES = 0x2100000

SRD_X, SRD_W1, SRD_WS, SRD_OUT, SRD_T0, SRD_T1 = 24, 28, 32, 36, 40, 44
P_X, P_W1, P_WO, P_WG, P_WU, P_WD, P_OUT, P_DBG, P_WS = 4, 6, 8, 12, 14, 16, 18, 20, 22
SC = " sc1"

def srd(E, d, p, nbytes):
    E.i(f"s_mov_b32 s{d}, s{p}")
    E.i(f"s_and_b32 s{d+1}, s{p+1}, 0xffff")
    E.i(f"s_mov_b32 s{d+2}, {nbytes}")
    E.i(f"s_mov_b32 s{d+3}, 0x20000")

def prologue(E, kname):
    E.raw(f".globl {kname}\n.p2align 8\n.type {kname},@function\n{kname}:")
    E.i("s_cmp_ge_u32 s2, 256")
    E.branch(f"s_cbranch_scc1 {kname}_exit")
    E.i("s_load_dwordx16 s[4:19], s[0:1], 0")
    E.i("s_load_dwordx4 s[20:23], s[0:1], 64")
    E.i("v_and_b32 v1, 63, v0")
    E.i("v_lshrrev_b32 v2, 6, v0")
    E.i("v_readfirstlane_b32 s3, v2")
    E.i("s_waitcnt lgkmcnt(0)")
    srd(E, SRD_X, P_X, 2621440)
    srd(E, SRD_W1, P_W1, 2457600)
    srd(E, SRD_WS, P_WS, WS_BYTES)
    srd(E, SRD_OUT, P_OUT, 2621440)

def epilogue(E, kname):
    E.i("s_waitcnt vmcnt(0) lgkmcnt(0)"); E.vm = []; E.lg = []
    E.label(f"{kname}_exit")
    E.raw("  s_endpgm")

def kd(kname):
    return f""".section .rodata,"a"
.p2align 6
.amdhsa_kernel {kname}
  .amdhsa_next_free_vgpr 256
  .amdhsa_next_free_sgpr 102
  .amdhsa_accum_offset 256
  .amdhsa_group_segment_fixed_size 0
  .amdhsa_kernarg_size 80
  .amdhsa_user_sgpr_count 2
  .amdhsa_user_sgpr_kernarg_segment_ptr 1
  .amdhsa_system_sgpr_workgroup_id_x 1
.end_amdhsa_kernel
.text
"""

def s0_block(E, sB, scr_s, uniq):
    L4, L5, LG, LD = [f"s0_{x}_{uniq}" for x in ("w4", "w5", "go35", "done")]
    E.i("v_lshrrev_b32 v2, 3, v1")
    E.i("v_and_b32 v3, 7, v1")
    E.i("v_lshlrev_b32 v3, 4, v3")
    E.i("v_lshrrev_b32 v4, 4, v1")
    E.i("v_bfe_u32 v5, v1, 2, 2")
    E.i("v_and_b32 v6, 3, v1")
    E.i("v_lshlrev_b32 v10, 4, v1")
    E.i(f"s_cmp_ge_u32 s{sB}, 1160"); E.branch(f"s_cbranch_scc1 {L5}")
    E.i(f"s_cmp_ge_u32 s{sB}, 200"); E.branch(f"s_cbranch_scc1 {L4}")
    srd(E, SRD_T0, P_WO, 819200)
    E.i(f"s_mov_b32 s48, s{sB}")
    E.i("s_mov_b32 s49, 20"); E.i(f"s_mov_b32 s50, {W3F}")
    E.branch(f"s_branch {LG}")
    E.label(L5)
    srd(E, SRD_T0, P_WD, 1966080)
    E.i(f"s_sub_u32 s48, s{sB}, 1160")
    E.i("s_mov_b32 s49, 48"); E.i(f"s_mov_b32 s50, {W5F}")
    E.label(LG)
    E.i("s_mul_i32 s51, s48, 6554"); E.i("s_lshr_b32 s51, s51, 16")
    E.i("s_mul_i32 s52, s51, 10"); E.i("s_sub_u32 s52, s48, s52")
    E.i("s_mul_i32 s53, s51, 40960"); E.i("s_lshl_b32 s54, s52, 7"); E.i("s_add_u32 s53, s53, s54")
    E.i("v_mul_u32_u24 v7, 1280, v2"); E.i("v_add_u32 v7, v7, v3")
    for i in range(4):
        E.i(f"s_add_u32 m0, s{scr_s}, {i*1024}")
        E.i(f"buffer_load_dwordx4 v7, s[{SRD_T0}:{SRD_T0+3}], s53 offen lds")
        if i < 3: E.i("s_add_u32 s53, s53, 10240")
    E.i("v_lshl_add_u32 v8, v4, 3, v5"); E.i("v_lshlrev_b32 v8, 7, v8"); E.i("v_lshl_add_u32 v8, v6, 3, v8")
    E.i(f"v_add_u32 v8, s{scr_s}, v8")
    E.wait_vm()
    for nt in range(4):
        for h in range(2):
            E.i(f"ds_read_b64_tr_b16 v[{12+4*nt+2*h}:{13+4*nt+2*h}], v8 offset:{h*512+nt*32}")
    for nt in range(4):
        E.i(f"s_lshl_b32 s54, s52, 2"); E.i(f"s_add_u32 s54, s54, {nt}")
        E.i("s_mul_i32 s55, s54, 52"); E.i("s_lshr_b32 s55, s55, 8")
        E.i("s_mul_i32 s56, s55, 5"); E.i("s_sub_u32 s56, s54, s56")
        E.i("s_mul_i32 s55, s55, s49"); E.i("s_add_u32 s55, s55, s51"); E.i("s_mul_i32 s55, s55, 5"); E.i("s_add_u32 s55, s55, s56")
        E.i("s_lshl_b32 s55, s55, 10"); E.i("s_add_u32 s55, s55, s50")
        if nt == 0: E.wait_lg()
        E.i(f"buffer_store_dwordx4 v[{12+4*nt}:{15+4*nt}], v10, s[{SRD_WS}:{SRD_WS+3}], s55 offen{SC}")
    E.branch(f"s_branch {LD}")
    E.label(L4)
    E.vm = []; E.lg = []
    srd(E, SRD_T0, P_WG, 1966080)
    srd(E, SRD_T1, P_WU, 1966080)
    E.i(f"s_sub_u32 s48, s{sB}, 200")
    E.i("s_mul_i32 s51, s48, 2731"); E.i("s_lshr_b32 s51, s51, 16")
    E.i("s_mul_i32 s52, s51, 24"); E.i("s_sub_u32 s52, s48, s52")
    E.i("s_mul_i32 s53, s51, 49152"); E.i("s_lshl_b32 s54, s52, 7"); E.i("s_add_u32 s53, s53, s54")
    E.i("s_add_u32 s54, s53, 24576")
    E.i("v_mul_u32_u24 v7, 3072, v2"); E.i("v_add_u32 v7, v7, v3")
    for i in range(4):
        E.i(f"s_add_u32 m0, s{scr_s}, {i*1024}")
        sr = SRD_T0 if i < 2 else SRD_T1
        E.i(f"buffer_load_dwordx4 v7, s[{sr}:{sr+3}], s{53 + (i&1)} offen lds")
    E.i("v_lshrrev_b32 v8, 1, v4"); E.i("v_lshl_add_u32 v8, v8, 3, v5"); E.i("v_lshlrev_b32 v8, 7, v8")
    E.i("v_and_b32 v9, 1, v4"); E.i("v_lshl_add_u32 v8, v9, 11, v8")
    E.i("v_and_b32 v9, 1, v6"); E.i("v_lshl_add_u32 v8, v9, 4, v8")
    E.i("v_lshrrev_b32 v9, 1, v6"); E.i("v_lshl_add_u32 v8, v9, 3, v8")
    E.i(f"v_add_u32 v8, s{scr_s}, v8")
    E.wait_vm()
    for nt in range(4):
        for h in range(2):
            E.i(f"ds_read_b64_tr_b16 v[{12+4*nt+2*h}:{13+4*nt+2*h}], v8 offset:{h*512+nt*32}")
    for nt in range(4):
        E.i(f"s_lshl_b32 s54, s52, 2"); E.i(f"s_add_u32 s54, s54, {nt}")
        E.i("s_mul_i32 s55, s54, 171"); E.i("s_lshr_b32 s55, s55, 9")
        E.i("s_mul_i32 s56, s55, 3"); E.i("s_sub_u32 s56, s54, s56")
        E.i("s_mul_i32 s55, s55, 40"); E.i("s_add_u32 s55, s55, s51"); E.i("s_mul_i32 s55, s55, 3"); E.i("s_add_u32 s55, s55, s56")
        E.i("s_lshl_b32 s55, s55, 10"); E.i(f"s_add_u32 s55, s55, {W4F}")
        if nt == 0: E.wait_lg()
        E.i(f"buffer_store_dwordx4 v[{12+4*nt}:{15+4*nt}], v10, s[{SRD_WS}:{SRD_WS+3}], s55 offen{SC}")
    E.label(LD)
    E.vm = []; E.lg = []

def k_s0(E, kname):
    prologue(E, kname)
    E.i("s_lshl_b32 s64, s2, 3"); E.i("s_add_u32 s64, s64, s3")
    E.i("s_cmp_ge_u32 s64, 1640"); E.branch(f"s_cbranch_scc1 {kname}_exit")
    E.i("s_lshl_b32 s65, s3, 12")
    s0_block(E, 64, 65, "a")
    epilogue(E, kname)

XA, WR, MISC = 0, 81920, 147456
def k_s1(E, kname):
    prologue(E, kname)
    E.i("s_cmp_ge_u32 s2, 240"); E.branch(f"s_cbranch_scc1 {kname}_exit")
    E.i("s_and_b32 s48, s2, 7"); E.i("s_lshr_b32 s49, s2, 3")
    E.i("s_and_b32 s50, s48, 1"); E.i("s_mul_i32 s50, s50, 30"); E.i("s_add_u32 s50, s50, s49")
    E.i("s_lshr_b32 s51, s50, 2")
    E.i("s_and_b32 s52, s50, 3")
    E.i("s_lshr_b32 s53, s48, 1"); E.i("s_lshl_b32 s53, s53, 2"); E.i("s_add_u32 s53, s53, s52")
    E.i("s_mul_i32 s54, s52, 5"); E.i("s_lshr_b32 s54, s54, 1")
    sCT, sRB, sRHO = 51, 53, 54
    E.i("s_and_b32 s55, s3, 3"); E.i("s_lshr_b32 s56, s3, 2")
    sC, sMT = 55, 56
    E.i("s_lshl_b32 s57, s56, 1"); E.i("s_add_u32 s57, s57, s55"); E.i("s_and_b32 s57, s57, 3")
    sROT = 57
    vXo, vWo = 2, 3
    E.i("v_lshrrev_b32 v4, 3, v1"); E.i("s_lshl_b32 s58, s3, 3"); E.i("v_add_u32 v4, s58, v4")
    E.i("v_bfe_u32 v5, v4, 1, 3"); E.i("v_and_b32 v6, 7, v1"); E.i("v_xor_b32 v5, v5, v6")
    E.i("v_mul_u32_u24 v4, 1280, v4"); E.i(f"v_lshl_add_u32 v{vXo}, v5, 4, v4")
    E.i("v_lshrrev_b32 v4, 4, v1")
    E.i("v_lshlrev_b32 v5, 2, v4"); E.i("v_and_b32 v6, 15, v1"); E.i("v_xor_b32 v5, v5, v6")
    E.i("v_add_u32 v4, s58, v4")
    E.i("v_mul_u32_u24 v4, 3840, v4"); E.i(f"v_lshl_add_u32 v{vWo}, v5, 4, v4")
    sXbase, sWbase = 59, 60
    E.i(f"s_mul_i32 s{sXbase}, s{sRB}, 81920")
    E.i(f"s_lshl_b32 s{sWbase}, s{sCT}, 8")
    sLX, sLW = 61, 62
    E.i(f"s_lshl_b32 s{sLX}, s3, 10"); E.i(f"s_lshl_b32 s{sLW}, s3, 11"); E.i(f"s_add_u32 s{sLW}, s{sLW}, {WR}")
    def chunk_of(p, dst):
        E.i(f"s_add_u32 s{dst}, s{sRHO}, {p}"); E.i(f"s_cmp_ge_u32 s{dst}, 10"); E.i(f"s_cselect_b32 s63, 10, 0"); E.i(f"s_sub_u32 s{dst}, s{dst}, s63")
    def dma_x(p, phase):
        chunk_of(p, 64)
        E.i("s_lshl_b32 s64, s64, 7"); E.i(f"s_add_u32 s64, s64, s{sXbase}")
        if phase: E.i("s_add_u32 s64, s64, 1310720")
        E.i(f"s_add_u32 m0, s{sLX}, {XA + p*8192}")
        E.i(f"buffer_load_dwordx4 v{vXo}, s[{SRD_X}:{SRD_X+3}], s64 offen lds", tag=("x", phase, p))
    def dma_w(p):
        chunk_of(p, 64)
        E.i("s_mul_i32 s64, s64, 245760"); E.i(f"s_add_u32 s64, s64, s{sWbase}"); E.i("s_add_u32 s65, s64, 15360")
        for i in range(2):
            E.i(f"s_add_u32 m0, s{sLW}, {(p%4)*16384 + i*1024}")
            E.i(f"buffer_load_dwordx4 v{vWo}, s[{SRD_W1}:{SRD_W1+3}], s{64+i} offen lds", tag=("w", p))
    for p in range(4):
        dma_x(p, 0); dma_w(p)
    for p in range(4, 10): dma_x(p, 0)
    vXa = [4, 5, 6, 7]; vWa = [8, 9, 10, 11]
    E.i("v_and_b32 v12, 31, v1"); E.i(f"s_lshl_b32 s63, s{sMT}, 5"); E.i("v_add_u32 v12, s63, v12")
    E.i("v_bfe_u32 v13, v12, 1, 3"); E.i("v_lshrrev_b32 v14, 5, v1"); E.i("v_xor_b32 v13, v13, v14")
    E.i("v_lshlrev_b32 v12, 7, v12"); E.i("v_lshl_add_u32 v12, v13, 4, v12")
    E.i("v_bfe_u32 v13, v1, 2, 2")
    E.i("v_lshrrev_b32 v14, 5, v1"); E.i("v_lshl_add_u32 v14, v14, 3, v13"); E.i("v_lshlrev_b32 v14, 8, v14")
    E.i(f"v_xor_b32 v13, s{sC}, v13"); E.i("v_lshl_add_u32 v14, v13, 6, v14")
    E.i("v_bfe_u32 v13, v1, 4, 1"); E.i("v_lshl_add_u32 v14, v13, 5, v14")
    E.i("v_and_b32 v13, 3, v1"); E.i("v_lshl_add_u32 v14, v13, 3, v14")
    E.i(f"v_add_u32 v14, {WR}, v14")
    for sp in range(4):
        E.i(f"s_add_u32 s63, s{sROT}, {sp}"); E.i("s_and_b32 s63, s63, 3")
        E.i("s_lshl_b32 s64, s63, 5"); E.i(f"v_xor_b32 v{vXa[sp]}, s64, v12")
        E.i("s_lshl_b32 s64, s63, 12"); E.i(f"v_add_u32 v{vWa[sp]}, s64, v14")
    vAW = [16, 17, 18, 19]; vCO = [20, 21]
    ASM = MISC
    E.i("v_lshrrev_b32 v12, 5, v1")
    E.i(f"s_lshl_b32 s63, s{sC}, 3"); E.i("v_add_u32 v12, s63, v12")
    E.i(f"s_lshl_b32 s64, s{sCT}, 5")
    E.i("v_bfe_u32 v22, v1, 4, 1"); E.i(f"s_lshl_b32 s63, s{sMT}, 1"); E.i("v_add_u32 v22, s63, v22")
    E.i("v_lshlrev_b32 v22, 12, v22")
    E.i("v_and_b32 v23, 15, v1")
    for a in range(4):
        E.i(f"v_add_u32 v13, {2*a}, v12")
        E.i("v_add_u32 v14, s64, v13")
        E.i("v_mul_u32_u24 v15, 0xcccd, v14"); E.i("v_lshrrev_b32 v15, 18, v15")
        E.i("v_mul_u32_u24 v15, 5, v15"); E.i("v_sub_u32 v15, v14, v15")
        E.i("v_and_b32 v15, 2, v15"); E.i("v_lshlrev_b32 v15, 2, v15"); E.i("v_xor_b32 v15, v15, v23")
        E.i("v_lshl_add_u32 v13, v13, 7, v22"); E.i("v_lshl_add_u32 v13, v15, 3, v13")
        E.i(f"v_add_u32 v{vAW[a]}, {ASM}, v13")
    for i in range(2):
        E.i(f"s_lshl_b32 s63, s3, 1"); E.i(f"s_add_u32 s63, s63, {i}"); E.i("s_and_b32 s63, s63, 3"); E.i("s_lshl_b32 s63, s63, 3"); E.i("s_add_u32 s63, s63, s64")
        E.i("v_lshrrev_b32 v13, 3, v1"); E.i("v_add_u32 v14, s63, v13")
        E.i("v_mul_u32_u24 v15, 0xcccd, v14"); E.i("v_lshrrev_b32 v15, 18, v15")
        E.i("v_mul_u32_u24 v13, 5, v15"); E.i("v_sub_u32 v13, v14, v13")
        E.i("s_mov_b32 s65, 81920"); E.i("v_mul_lo_u32 v15, v15, s65")
        E.i("v_lshl_add_u32 v15, v13, 7, v15")
        E.i("v_and_b32 v13, 7, v1"); E.i(f"v_lshl_add_u32 v{vCO[i]}, v13, 4, v15")
    sCOoff = 66
    E.i(f"s_lshl_b32 s{sCOoff}, s{sRB}, 2"); E.i("s_lshr_b32 s63, s3, 1"); E.i(f"s_add_u32 s{sCOoff}, s{sCOoff}, s63"); E.i(f"s_mul_i32 s{sCOoff}, s{sCOoff}, 640")
    vCR = 22
    E.i(f"v_lshlrev_b32 v{vCR}, 4, v1"); E.i("s_lshl_b32 s63, s3, 11"); E.i(f"s_add_u32 s63, s63, {ASM}"); E.i(f"v_add_u32 v{vCR}, s63, v{vCR}")
    ST = WR + 3*16384
    CSA = ST + 4096
    vST_W, vST_R, vCS_W, vCS_R = 23, 24, 25, 26
    E.i("v_and_b32 v12, 31, v1"); E.i("v_lshlrev_b32 v13, 5, v12"); E.i(f"s_lshl_b32 s63, s{sMT}, 10"); E.i(f"s_add_u32 s63, s63, {ST}")
    E.i(f"v_add_u32 v{vST_R}, s63, v13"); E.i(f"s_lshl_b32 s63, s{sC}, 3"); E.i(f"v_add_u32 v{vST_W}, s63, v{vST_R}")
    E.i(f"s_lshl_b32 s63, s{sC}, 8"); E.i(f"s_add_u32 s63, s63, {CSA}"); E.i(f"s_lshl_b32 s64, s{sMT}, 7"); E.i("s_add_u32 s64, s64, s63")
    E.i("v_lshlrev_b32 v13, 2, v12"); E.i(f"v_add_u32 v{vCS_W}, s64, v13")
    E.i("v_lshrrev_b32 v13, 5, v1"); E.i("v_lshlrev_b32 v13, 4, v13"); E.i(f"v_add_u32 v{vCS_R}, s63, v13")
    sONE = 67
    E.i(f"s_mov_b32 s{sONE}, 0x3f803f80")
    ACC = 32; XF = 48; CS = 64; WF = 96
    SX, SXX, CSP = 28, 29, 30
    SX2, SXX2, CSP2 = 80, 81, 82
    for ph in range(2):
        for r in range(16): E.i(f"v_mov_b32 v{ACC+r}, 0")
        for r in (SX, SXX, SX2, SXX2): E.i(f"v_mov_b32 v{r}, 0")
        if ph == 0:
            for r in (CSP, CSP2): E.i(f"v_mov_b32 v{r}, 0")
        for p in range(10):
            if ph == 0:
                E.wait_vm(("w", p)) if p >= 4 else E.wait_vm(("w", p))
                E.wait_vm(("x", 0, p))
            else:
                E.wait_vm(("x", 1, p))
            E.i("s_barrier")
            if ph == 0:
                if 1 <= p <= 6: dma_w(p + 3)
                if p >= 1: dma_x(p - 1, 1)
            if p == 5:
                for sp in range(4): E.i(f"v_add_u32 v{vXa[sp]}, 40960, v{vXa[sp]}")
            for sp in range(4):
                wf = WF + (p*4 + sp)*4
                if ph == 0:
                    E.i(f"ds_read_b64_tr_b16 v[{wf}:{wf+1}], v{vWa[sp]} offset:{(p%4)*16384}", tag=("r", sp))
                    E.i(f"ds_read_b64_tr_b16 v[{wf+2}:{wf+3}], v{vWa[sp]} offset:{(p%4)*16384+1024}", tag=("r", sp))
                E.i(f"ds_read_b128 v[{XF+4*sp}:{XF+4*sp+3}], v{vXa[sp]} offset:{(p%5)*8192}", tag=("r", sp))
            for sp in range(4):
                wf = WF + (p*4 + sp)*4
                E.wait_lg(("r", sp))
                E.i(f"v_mfma_f32_32x32x16_bf16 v[{ACC}:{ACC+15}], v[{wf}:{wf+3}], v[{XF+4*sp}:{XF+4*sp+3}], v[{ACC}:{ACC+15}]")
                if sp == 0:
                    for q in range(4):
                        E.i(f"v_dot2c_f32_bf16 v{SX if q&1 else SX2}, s{sONE}, v{XF+q}")
                        E.i(f"v_dot2c_f32_bf16 v{SXX if q&1 else SXX2}, v{XF+q}, v{XF+q}")
                if ph == 0 and sp < 2:
                    for q in range(4):
                        E.i(f"v_dot2c_f32_bf16 v{CSP if q&1 else CSP2}, s{sONE}, v{wf+q}")
        for sp in range(4): E.i(f"v_subrev_u32 v{vXa[sp]}, 40960, v{vXa[sp]}")
        E.i(f"v_add_f32 v{SX}, v{SX}, v{SX2}"); E.i(f"v_add_f32 v{SXX}, v{SXX}, v{SXX2}")
        E.i(f"v_mov_b32 v{SX2}, v{SX}"); E.i(f"v_mov_b32 v{SXX2}, v{SXX}")
        E.i(f"v_permlane32_swap_b32 v{SX}, v{SX2}"); E.i(f"v_permlane32_swap_b32 v{SXX}, v{SXX2}")
        E.i(f"v_add_f32 v{SX}, v{SX}, v{SX2}"); E.i(f"v_add_f32 v{SXX}, v{SXX}, v{SXX2}")
        E.i(f"ds_write_b64 v{vST_W}, v[{SX}:{SXX}]")
        if ph == 0:
            E.i(f"v_add_f32 v{CSP}, v{CSP}, v{CSP2}"); E.i(f"v_mov_b32 v{CSP2}, v{CSP}")
            E.i(f"v_permlane32_swap_b32 v{CSP}, v{CSP2}"); E.i(f"v_add_f32 v{CSP}, v{CSP}, v{CSP2}")
            E.i(f"ds_write_b32 v{vCS_W}, v{CSP}")
        E.wait_lg()
        E.i("s_barrier")
        if ph == 0: dma_x(9, 1)
        E.i(f"ds_read_b128 v[{XF}:{XF+3}], v{vST_R}"); E.i(f"ds_read_b128 v[{XF+4}:{XF+7}], v{vST_R} offset:16")
        if ph == 0:
            for a in range(4):
                E.i(f"ds_read_b128 v[{CS+4*a}:{CS+4*a+3}], v{vCS_R} offset:{a*32}")
                E.i(f"ds_read_b128 v[{84+4*(a&1)}:{87+4*(a&1)}], v{vCS_R} offset:{a*32+128}") if a < 2 else None
            E.wait_lg()
            for a in range(2):
                for b in range(4): E.i(f"v_add_f32 v{CS+4*a+b}, v{CS+4*a+b}, v{84+4*a+b}")
            for a in range(2, 4):
                E.i(f"ds_read_b128 v[{84+4*(a&1)}:{87+4*(a&1)}], v{vCS_R} offset:{a*32+128}")
            E.wait_lg()
            for a in range(2, 4):
                for b in range(4): E.i(f"v_add_f32 v{CS+4*a+b}, v{CS+4*a+b}, v{84+4*(a&1)+b}")
        E.wait_lg()
        E.i(f"v_add_f32 v{SX}, v{XF}, v{XF+2}"); E.i(f"v_add_f32 v{SX2}, v{XF+4}, v{XF+6}"); E.i(f"v_add_f32 v{SX}, v{SX}, v{SX2}")
        E.i(f"v_add_f32 v{SXX}, v{XF+1}, v{XF+3}"); E.i(f"v_add_f32 v{SXX2}, v{XF+5}, v{XF+7}"); E.i(f"v_add_f32 v{SXX}, v{SXX}, v{SXX2}")
        E.i(f"v_mul_f32 v{SX}, 0xbacccccd, v{SX}")
        E.i(f"v_mul_f32 v{SXX}, 0x3acccccd, v{SXX}")
        E.i(f"v_fma_f32 v{SXX}, -v{SX}, v{SX}, v{SXX}")
        E.i(f"v_max_f32 v{SXX}, 0, v{SXX}")
        E.i(f"v_add_f32 v{SXX}, 0x3727c5ac, v{SXX}")
        E.i(f"v_rsq_f32 v{SXX}, v{SXX}")
        for r in range(16):
            E.i(f"v_fma_f32 v{ACC+r}, v{SX}, v{CS+r}, v{ACC+r}")
        for r in range(16):
            E.i(f"v_mul_f32 v{ACC+r}, v{SXX}, v{ACC+r}")
        for a in range(4):
            E.i(f"v_cvt_pk_bf16_f32 v{XF+2*a}, v{ACC+4*a}, v{ACC+4*a+1}")
            E.i(f"v_cvt_pk_bf16_f32 v{XF+2*a+1}, v{ACC+4*a+2}, v{ACC+4*a+3}")
        for a in range(4):
            E.i(f"ds_write_b64 v{vAW[a]}, v[{XF+2*a}:{XF+2*a+1}]")
        E.wait_lg()
        E.i("s_barrier")
        for i in range(2):
            E.i(f"ds_read_b128 v[{84+4*i}:{87+4*i}], v{vCR} offset:{i*1024}")
        E.wait_lg()
        if ph: E.i(f"s_add_u32 s{sCOoff}, s{sCOoff}, 40960")
        for i in range(2):
            E.i(f"buffer_store_dwordx4 v[{84+4*i}:{87+4*i}], v{vCO[i]}, s[{SRD_WS}:{SRD_WS+3}], s{sCOoff} offen{SC}", tag="st")
    epilogue(E, kname)

def build(stages):
    E = Emitter()
    hdr = []
    body = []
    for nm, fn, lds in stages:
        kname = f"{nm}_kernel"
        hdr.append(f"; @launch kernel={kname} grid=(256,1,1) block=(512,1,1) lds={lds}")
        E = Emitter()
        fn(E, kname)
        body.append(E.text() + kd(kname))
    return "\n".join(hdr) + '\n.amdgcn_target "amdgcn-amd-amdhsa--gfx950"\n.text\n' + "".join(body)

if __name__ == "__main__":
    import sys
    txt = build([("s0", k_s0, 32768), ("s1", k_s1, 163840)])
    open(sys.argv[1] if len(sys.argv) > 1 else "v1.s", "w").write(txt)
```

```python
from kern1 import *

NEG = 0xff800000
def k_s2(E, kname):
    prologue(E, kname)
    KVB = 0; OA = 102400
    E.i("s_and_b32 s48, s2, 7"); E.i("s_lshr_b32 s49, s2, 3")
    E.i("s_lshl_b32 s50, s48, 1"); E.i("s_lshr_b32 s51, s49, 4"); E.i("s_add_u32 s50, s50, s51")
    E.i("s_and_b32 s51, s49, 15"); E.i("s_lshl_b32 s51, s51, 2")
    sHP, sTB = 50, 51
    E.i("s_lshr_b32 s52, s3, 2"); E.i("s_and_b32 s53, s3, 3")
    sE, sU = 52, 53
    E.i("s_bfe_u32 s54, s3, 0x10001")
    E.i("s_lshl_b32 s54, s54, 5"); E.i("s_add_u32 s54, s54, 32"); E.i(f"s_lshl_b32 s55, s{sHP}, 1"); E.i("s_add_u32 s54, s54, s55"); E.i(f"s_add_u32 s54, s54, s{sE}")
    E.i("s_mul_i32 s54, s54, 81920")
    E.i(f"s_add_u32 s{SRD_T0}, s{P_WS}, s54"); E.i(f"s_addc_u32 s{SRD_T0+1}, s{P_WS+1}, 0"); E.i(f"s_and_b32 s{SRD_T0+1}, s{SRD_T0+1}, 0xffff")
    E.i(f"s_mov_b32 s{SRD_T0+2}, 81920"); E.i(f"s_mov_b32 s{SRD_T0+3}, 0x20000")
    E.i("s_mul_i32 s56, s3, 6400")
    E.i("s_and_b32 s57, s3, 1"); E.i("s_mul_i32 s57, s57, 6400")
    vQ, vG4 = 2, 3
    E.i("v_and_b32 v2, 15, v1"); E.i("v_lshrrev_b32 v3, 4, v1")
    E.i("v_and_b32 v4, 2, v3"); E.i("v_lshlrev_b32 v4, 2, v4"); E.i("v_xor_b32 v4, v4, v2"); E.i("v_lshlrev_b32 v4, 3, v4"); E.i("v_lshl_add_u32 v4, v3, 7, v4")
    E.i("v_lshlrev_b32 v5, 3, v2"); E.i("v_add_u32 v5, 512, v5")
    vLO1, vLO2 = 4, 5
    vK1, vK2, vV0, vV1 = 6, 7, 8, 9
    E.i(f"s_mul_i32 s58, s{sE}, 25600"); E.i(f"s_mul_i32 s59, s{sU}, 640"); E.i("s_add_u32 s58, s58, s59"); E.i(f"s_add_u32 s58, s58, {KVB}")
    E.i(f"v_add_u32 v{vK1}, s58, v{vLO1}"); E.i(f"v_add_u32 v{vK2}, s58, v{vLO2}")
    E.i("v_lshrrev_b32 v10, 2, v1"); E.i("v_and_b32 v11, 3, v1")
    E.i("v_and_b32 v12, 2, v11"); E.i("v_lshlrev_b32 v12, 2, v12"); E.i("v_xor_b32 v12, v12, v10"); E.i("v_lshlrev_b32 v12, 3, v12"); E.i("v_lshl_add_u32 v12, v11, 7, v12")
    E.i("s_add_u32 s58, s58, 12800")
    E.i(f"v_add_u32 v{vV0}, s58, v12")
    E.i("v_lshlrev_b32 v12, 3, v10"); E.i("v_add_u32 v12, 512, v12"); E.i(f"v_add_u32 v{vV1}, s58, v12")
    MF, ML = 12, 16
    E.i("v_lshlrev_b32 v10, 2, v3")
    E.i(f"v_mov_b32 v11, {NEG:#x}")
    for r in range(4):
        E.i(f"v_add_u32 v20, {r}, v10")
        E.i("v_cmp_gt_u32 vcc, v20, v2")
        E.i(f"v_cndmask_b32 v{MF+r}, v11, 0, vcc")
        E.i(f"v_cndmask_b32 v{ML+r}, 0, v11, vcc")
    ONES = 20
    for r in range(4): E.i(f"v_mov_b32 v{ONES+r}, 0x3f803f80")
    vW1, vW2, vCO, vCR = 24, 25, 26, 27
    E.i(f"s_mul_i32 s58, s{sE}, 5")
    E.i("v_add_u32 v10, s58, v3")
    E.i("v_lshrrev_b32 v11, 1, v10"); E.i("v_and_b32 v10, 1, v10"); E.i("v_lshlrev_b32 v11, 8, v11"); E.i("v_lshl_add_u32 v11, v10, 3, v11"); E.i("v_lshl_add_u32 v11, v2, 4, v11")
    E.i(f"s_mul_i32 s59, s{sU}, 1280"); E.i(f"s_add_u32 s59, s59, {OA}")
    E.i(f"v_add_u32 v{vW1}, s59, v11")
    E.i("s_add_u32 s58, s58, 4"); E.i("s_lshr_b32 s60, s58, 1"); E.i("s_and_b32 s58, s58, 1"); E.i("s_lshl_b32 s60, s60, 8"); E.i("s_lshl_b32 s58, s58, 3"); E.i("s_add_u32 s60, s60, s58"); E.i("s_add_u32 s60, s60, s59")
    E.i("v_lshlrev_b32 v11, 4, v2"); E.i(f"v_add_u32 v{vW2}, s60, v11")
    E.i("v_mul_u32_u24 v10, 0xcccd, v0"); E.i("v_lshrrev_b32 v10, 22, v10")
    E.i("v_mul_u32_u24 v11, 80, v10"); E.i("v_sub_u32 v11, v0, v11"); E.i("v_mul_u32_u24 v10, 20480, v10"); E.i(f"v_lshl_add_u32 v{vCO}, v11, 4, v10")
    E.i(f"v_lshlrev_b32 v{vCR}, 4, v0"); E.i(f"v_add_u32 v{vCR}, {OA}, v{vCR}")
    sC = 62
    E.i(f"s_mov_b32 s{sC}, 0x3ea52b73")
    import struct, math
    cval = struct.unpack("<I", struct.pack("<f", (20 ** -0.5) * math.log2(math.e)))[0]
    E.lines[-1] = f"  s_mov_b32 s{sC}, {cval:#x}"
    QF = 28; O0 = 32; O1 = 36; LL = 40; M0_, M1_ = 44, 45; S = 48; KF = 116
    vD = 46
    for ph in range(2):
        if ph: E.i(f"s_add_u32 s{sTB}, s{sTB}, 64")
        E.i(f"s_sub_u32 s58, s{sTB}, 16"); E.i("s_mul_i32 s58, s58, 640"); E.i("s_add_u32 s58, s58, s57")
        E.i(f"v_lshlrev_b32 v{vD}, 4, v1"); E.i(f"v_add_u32 v{vD}, s58, v{vD}")
        for i in range(7):
            E.i(f"s_add_u32 m0, s56, {KVB + i*1024}")
            if i == 6: E.i("s_mov_b64 exec, 0xffff")
            E.i(f"buffer_load_dwordx4 v{vD}, s[{SRD_T0}:{SRD_T0+3}], 0 offen{SC} lds")
            if i < 6: E.i(f"v_add_u32 v{vD}, 1024, v{vD}")
        E.i("s_mov_b64 exec, -1")
        E.i(f"s_lshl_b32 s58, s{sHP}, 1"); E.i(f"s_add_u32 s58, s58, s{sE}"); E.i("s_mul_i32 s58, s58, 81920")
        E.i(f"s_add_u32 s59, s{sTB}, s{sU}"); E.i("s_mul_i32 s60, s59, 640"); E.i("s_add_u32 s58, s58, s60")
        E.i(f"v_mov_b32 v{QF+2}, 0"); E.i(f"v_mov_b32 v{QF+3}, 0")
        E.i(f"buffer_load_dwordx2 v[{QF}:{QF+1}], v{vLO1}, s[{SRD_WS}:{SRD_WS+3}], s58 offen{SC}")
        E.i("s_mov_b64 exec, 0xffff")
        E.i(f"buffer_load_dwordx2 v[{QF+2}:{QF+3}], v{vLO2}, s[{SRD_WS}:{SRD_WS+3}], s58 offen{SC}")
        E.i("s_mov_b64 exec, -1")
        E.wait_vm()
        E.i("s_barrier")
        for t in range(17):
            E.i(f"ds_read_b64 v[{KF+4*t}:{KF+4*t+1}], v{vK1} offset:{t*640}", tag=("k", t))
            E.i(f"ds_read_b64 v[{KF+4*t+2}:{KF+4*t+3}], v{vK2} offset:{t*640}", tag=("k", t))
            if t >= 5:
                tt = t - 5
                E.wait_lg(("k", tt))
                c = f"v[{MF}:{MF+3}]" if tt == 0 else "0"
                E.i(f"v_mfma_f32_16x16x32_bf16 v[{S+4*tt}:{S+4*tt+3}], v[{KF+4*tt}:{KF+4*tt+3}], v[{QF}:{QF+3}], {c}")
        for tt in range(12, 17):
            E.wait_lg(("k", tt))
            c = f"v[{ML}:{ML+3}]" if tt == 16 else "0"
            E.i(f"v_mfma_f32_16x16x32_bf16 v[{S+4*tt}:{S+4*tt+3}], v[{KF+4*tt}:{KF+4*tt+3}], v[{QF}:{QF+3}], {c}")
        for k in range(9):
            for dt in range(2):
                for h in range(2):
                    t = 2*k + h
                    r = KF + 8*k + 4*dt + 2*h
                    if t <= 16:
                        E.i(f"ds_read_b64_tr_b16 v[{r}:{r+1}], v{vV1 if dt else vV0} offset:{t*640}", tag=("v", k))
                    else:
                        E.i(f"v_mov_b32 v{r}, 0"); E.i(f"v_mov_b32 v{r+1}, 0")
        Lok = E.newlabel(kname + "_ok")
        for t in range(16):
            E.i(f"s_cmp_ge_u32 s59, {16 - t}")
            E.branch(f"s_cbranch_scc1 {Lok}")
            for r in range(4): E.i(f"v_mov_b32 v{S+4*t+r}, {NEG:#x}")
        E.label(Lok)
        E.i(f"v_max_f32 v{M0_}, v{S}, v{S+1}"); E.i(f"v_max_f32 v{M1_}, v{S+2}, v{S+3}")
        for j in range(4, 68, 4):
            E.i(f"v_max3_f32 v{M0_}, v{S+j}, v{S+j+1}, v{M0_}"); E.i(f"v_max3_f32 v{M1_}, v{S+j+2}, v{S+j+3}, v{M1_}")
        E.i(f"v_max_f32 v{M0_}, v{M0_}, v{M1_}")
        E.i(f"v_mov_b32 v{M1_}, v{M0_}"); E.i(f"v_permlane16_swap_b32 v{M0_}, v{M1_}"); E.i(f"v_max_f32 v{M0_}, v{M0_}, v{M1_}")
        E.i(f"v_mov_b32 v{M1_}, v{M0_}"); E.i(f"v_permlane32_swap_b32 v{M0_}, v{M1_}"); E.i(f"v_max_f32 v{M0_}, v{M0_}, v{M1_}")
        E.i(f"v_mul_f32 v{M0_}, s{sC}, v{M0_}")
        for r in range(12): E.i(f"v_mov_b32 v{O0+r}, 0")
        for k in range(9):
            n = 8 if k < 8 else 4
            b = S + 8*k
            for j in range(n): E.i(f"v_fma_f32 v{b+j}, v{b+j}, s{sC}, -v{M0_}")
            for j in range(n): E.i(f"v_exp_f32 v{b+j}, v{b+j}")
            for j in range(n // 2): E.i(f"v_cvt_pk_bf16_f32 v{b+j}, v{b+2*j}, v{b+2*j+1}")
            if k == 8:
                E.i(f"v_mov_b32 v{b+2}, 0"); E.i(f"v_mov_b32 v{b+3}, 0")
            E.wait_lg(("v", k))
            vf = KF + 8*k
            E.i(f"v_mfma_f32_16x16x32_bf16 v[{O0}:{O0+3}], v[{vf}:{vf+3}], v[{b}:{b+3}], v[{O0}:{O0+3}]")
            E.i(f"v_mfma_f32_16x16x32_bf16 v[{O1}:{O1+3}], v[{vf+4}:{vf+7}], v[{b}:{b+3}], v[{O1}:{O1+3}]")
            E.i(f"v_mfma_f32_16x16x32_bf16 v[{LL}:{LL+3}], v[{ONES}:{ONES+3}], v[{b}:{b+3}], v[{LL}:{LL+3}]")
        E.i(f"v_rcp_f32 v{M0_}, v{LL}")
        for r in range(8): E.i(f"v_mul_f32 v{O0+r}, v{O0+r}, v{M0_}")
        E.i(f"v_cvt_pk_bf16_f32 v{O0}, v{O0}, v{O0+1}"); E.i(f"v_cvt_pk_bf16_f32 v{O0+1}, v{O0+2}, v{O0+3}")
        E.i(f"v_cvt_pk_bf16_f32 v{O1}, v{O1}, v{O1+1}"); E.i(f"v_cvt_pk_bf16_f32 v{O1+1}, v{O1+2}, v{O1+3}")
        E.i(f"ds_write_b64 v{vW1}, v[{O0}:{O0+1}]")
        E.i("s_mov_b64 exec, 0xffff")
        E.i(f"ds_write_b64 v{vW2}, v[{O1}:{O1+1}]")
        E.i("s_mov_b64 exec, -1")
        E.wait_lg()
        E.i("s_barrier")
        Lsk = E.newlabel(kname + "_sk")
        E.i("s_cmp_ge_u32 s3, 5"); E.branch(f"s_cbranch_scc1 {Lsk}")
        E.i(f"ds_read_b128 v[{O0}:{O0+3}], v{vCR}")
        E.i(f"s_mul_i32 s58, s{sTB}, 20480"); E.i(f"s_mul_i32 s60, s{sHP}, 1280"); E.i("s_add_u32 s58, s58, s60"); E.i(f"s_add_u32 s58, s58, {OF}")
        E.wait_lg()
        E.i(f"buffer_store_dwordx4 v[{O0}:{O0+3}], v{vCO}, s[{SRD_WS}:{SRD_WS+3}], s58 offen{SC}")
        E.wait_vm()
        E.label(Lsk)
        E.vm = []; E.lg = []
    epilogue(E, kname)

def k_skinny(E, kname, which):
    prologue(E, kname)
    s3 = which == 3
    E.i("s_and_b32 s48, s2, 7"); E.i("s_lshr_b32 s49, s2, 3")
    E.i("s_lshr_b32 s50, s48, 1"); E.i("s_lshl_b32 s50, s50, 3"); E.i("s_lshr_b32 s51, s49, 2"); E.i("s_add_u32 s50, s50, s51")
    E.i("s_and_b32 s51, s48, 1"); E.i("s_lshl_b32 s51, s51, 2"); E.i("s_and_b32 s52, s49, 3"); E.i("s_add_u32 s51, s51, s52")
    sRB, sCT = 50, 51
    Ks = 20 if s3 else 48
    NK = 3 if s3 else 6
    sK0 = 52
    if s3:
        E.i("s_mul_i32 s52, s3, 3"); E.i("s_lshl_b32 s53, s3, 1"); E.i("s_add_u32 s53, s53, 4"); E.i("s_cmp_ge_u32 s3, 4"); E.i("s_cselect_b32 s52, s53, s52")
    else:
        E.i("s_mul_i32 s52, s3, 6")
    vL16 = 2
    E.i("v_lshlrev_b32 v2, 4, v1")
    WFR = 128; ACC = 16; AF = 56
    E.i(f"s_mul_i32 s53, s{sCT}, {Ks}"); E.i(f"s_add_u32 s53, s53, s{sK0}"); E.i("s_mul_i32 s53, s53, 5120"); E.i(f"s_add_u32 s53, s53, {W3F if s3 else W5F}")
    for k in range(NK):
        for nt in range(5):
            r = WFR + (k*5 + nt)*4
            off = (k*5+nt)*1024
            if off and off % 4096 == 0: E.i("s_add_u32 s53, s53, 4096")
            E.i(f"buffer_load_dwordx4 v[{r}:{r+3}], v{vL16}, s[{SRD_WS}:{SRD_WS+3}], s53 offen offset:{off % 4096}{SC}")
    vA = 3
    if s3: E.i(f"v_mov_b32 v{vA}, v{vL16}")
    else:
        E.i("v_lshrrev_b32 v4, 4, v1"); E.i("v_and_b32 v5, 15, v1"); E.i("v_lshlrev_b32 v4, 9, v4"); E.i(f"v_lshl_add_u32 v{vA}, v5, 4, v4")
    vPW, vPR, vXR = 6, 7, 8
    E.i("s_mul_i32 s53, s3, 10240"); E.i(f"v_add_u32 v{vPW}, s53, v{vL16}")
    E.i("v_bfe_u32 v4, v1, 4, 1"); E.i("v_mul_u32_u24 v4, 5120, v4"); E.i("v_lshrrev_b32 v5, 5, v1"); E.i("v_lshl_add_u32 v4, v5, 9, v4")
    E.i("v_and_b32 v9, 15, v1"); E.i("v_lshl_add_u32 v4, v9, 4, v4"); E.i("s_lshl_b32 s53, s3, 10"); E.i(f"v_add_u32 v{vPR}, s53, v4")
    E.i("v_and_b32 v4, 31, v1"); E.i("v_mul_u32_u24 v4, 1280, v4"); E.i("v_lshl_add_u32 v4, v5, 4, v4"); E.i("s_lshl_b32 s53, s3, 5"); E.i(f"v_add_u32 v{vXR}, s53, v4")
    RES = 104
    for ph in range(2):
        if ph: E.i(f"s_add_u32 s{sRB}, s{sRB}, 32")
        if s3:
            E.i(f"s_mul_i32 s53, s{sRB}, 40960"); E.i(f"s_lshl_b32 s54, s{sK0}, 10"); E.i("s_add_u32 s53, s53, s54"); E.i(f"s_add_u32 s53, s53, {OF}")
            E.i("s_add_u32 s54, s53, 20480")
            for k in range(NK):
                for u in range(2):
                    r = AF + (k*2+u)*4
                    E.i(f"buffer_load_dwordx4 v[{r}:{r+3}], v{vA}, s[{SRD_WS}:{SRD_WS+3}], s{53+u} offen offset:{k*1024}{SC}", tag=("a", k))
        else:
            E.i(f"s_mul_i32 s53, s{sRB}, 98304"); E.i(f"s_lshl_b32 s54, s{sK0}, 11"); E.i("s_add_u32 s53, s53, s54"); E.i(f"s_add_u32 s53, s53, {HHF}")
            for k in range(NK):
                if k and k % 2 == 0: E.i("s_add_u32 s53, s53, 4096")
                for u in range(2):
                    r = AF + (k*2+u)*4
                    E.i(f"buffer_load_dwordx4 v[{r}:{r+3}], v{vA}, s[{SRD_WS}:{SRD_WS+3}], s53 offen offset:{(k%2)*2048 + u*256}{SC}", tag=("a", k))
        E.i(f"s_mul_i32 s55, s{sRB}, 40960"); E.i(f"s_mul_i32 s56, s{sCT}, 160"); E.i("s_add_u32 s55, s55, s56")
        E.i(f"s_mul_i32 s56, s{sRB}, 40960"); E.i(f"s_mul_i32 s57, s{sCT}, 5120"); E.i("s_add_u32 s56, s56, s57"); E.i("s_lshl_b32 s57, s3, 10"); E.i("s_add_u32 s56, s56, s57"); E.i(f"s_add_u32 s56, s56, {HF}")
        if s3: E.i(f"buffer_load_dwordx4 v[{RES}:{RES+3}], v{vXR}, s[{SRD_X}:{SRD_X+3}], s55 offen", tag="res")
        else:  E.i(f"buffer_load_dwordx4 v[{RES}:{RES+3}], v{vL16}, s[{SRD_WS}:{SRD_WS+3}], s56 offen{SC}", tag="res")
        Lk = None
        for k in range(NK):
            if s3 and k == 2:
                Lk = E.newlabel(kname + "_k2")
                E.i("s_cmp_ge_u32 s3, 4"); E.branch(f"s_cbranch_scc1 {Lk}")
            E.wait_vm(("a", k))
            for u in range(2):
                for nt in range(5):
                    a = ACC + (u*5+nt)*4; wf = WFR + (k*5+nt)*4; af = AF + (k*2+u)*4
                    c = "0" if k == 0 else f"v[{a}:{a+3}]"
                    E.i(f"v_mfma_f32_16x16x32_bf16 v[{a}:{a+3}], v[{wf}:{wf+3}], v[{af}:{af+3}], {c}")
        if Lk: E.label(Lk)
        for j in range(10):
            E.i(f"ds_write_b128 v{vPW}, v[{ACC+4*j}:{ACC+4*j+3}] offset:{j*1024}")
        E.wait_lg(); E.wait_vm()
        E.i("s_barrier")
        Lsk = E.newlabel(kname + "_sk")
        E.i("s_cmp_ge_u32 s3, 5"); E.branch(f"s_cbranch_scc1 {Lsk}")
        T = 16
        for half in range(2):
            for w in range(4):
                ww = half*4 + w
                off = ww*10240
                base = vPR
                if off + 256 > 65535:
                    pass
                for g in range(2):
                    o = off + g*256
                    if o > 65535:
                        E.i(f"v_add_u32 v9, 40960, v{vPR}");
                        E.i(f"ds_read_b128 v[{T+8+(w*2+g)*4}:{T+11+(w*2+g)*4}], v9 offset:{o-40960}")
                    else:
                        E.i(f"ds_read_b128 v[{T+8+(w*2+g)*4}:{T+11+(w*2+g)*4}], v{vPR} offset:{o}")
            E.wait_lg()
            for j in range(8):
                g, b = j // 4, j % 4
                srcs = [T + 8 + (w*2+g)*4 + b for w in range(4)]
                if half == 0:
                    E.i(f"v_add_f32 v{T+j}, v{srcs[0]}, v{srcs[1]}")
                else:
                    E.i(f"v_add_f32 v{T+j}, v{T+j}, v{srcs[0]}"); E.i(f"v_add_f32 v{T+j}, v{T+j}, v{srcs[1]}")
                E.i(f"v_add_f32 v{T+j}, v{T+j}, v{srcs[2]}"); E.i(f"v_add_f32 v{T+j}, v{T+j}, v{srcs[3]}")
        for j in range(4):
            E.i(f"v_lshlrev_b32 v9, 16, v{RES+j}"); E.i(f"v_add_f32 v{T+2*j}, v{T+2*j}, v9")
            E.i(f"v_and_b32 v9, 0xffff0000, v{RES+j}"); E.i(f"v_add_f32 v{T+2*j+1}, v{T+2*j+1}, v9")
        for j in range(4): E.i(f"v_cvt_pk_bf16_f32 v{12+j}, v{T+2*j}, v{T+2*j+1}")
        if s3: E.i(f"buffer_store_dwordx4 v[12:15], v{vL16}, s[{SRD_WS}:{SRD_WS+3}], s56 offen{SC}")
        else:  E.i(f"buffer_store_dwordx4 v[12:15], v{vXR}, s[{SRD_OUT}:{SRD_OUT+3}], s55 offen")
        E.wait_vm()
        E.label(Lsk)
        E.vm = []; E.lg = []
        E.i("s_barrier")
    epilogue(E, kname)

def k_s4(E, kname):
    prologue(E, kname)
    SCR = 122880
    E.i("s_and_b32 s48, s2, 7"); E.i("s_lshr_b32 s49, s2, 3")
    E.i("s_lshr_b32 s50, s48, 2"); E.i("s_lshl_b32 s50, s50, 2"); E.i("s_lshr_b32 s51, s49, 3"); E.i("s_add_u32 s50, s50, s51")
    E.i("s_and_b32 s51, s48, 3"); E.i("s_lshl_b32 s51, s51, 3"); E.i("s_and_b32 s52, s49, 7"); E.i("s_add_u32 s51, s51, s52")
    sRB, sCG = 50, 51
    E.i("s_and_b32 s52, s3, 3"); E.i("s_lshr_b32 s53, s3, 2")
    sMT, sE = 52, 53
    vL16 = 2
    E.i("v_lshlrev_b32 v2, 4, v1")
    E.i(f"s_mul_i32 s54, s{sCG}, 122880"); E.i(f"s_add_u32 s54, s54, {W4F}"); E.i("s_mul_i32 s55, s3, 15360"); E.i("s_add_u32 s54, s54, s55")
    for i in range(15):
        E.i(f"s_add_u32 m0, s55, {i*1024}")
        E.i(f"buffer_load_dwordx4 v{vL16}, s[{SRD_WS}:{SRD_WS+3}], s54 offen{SC} lds")
        E.i("s_add_u32 s54, s54, 1024")
    sONE = 56
    E.i(f"s_mov_b32 s{sONE}, 0x3f803f80")
    E.wait_vm(); E.i("s_barrier")
    CSP = SCR + 32768
    CSF = CSP + 6144
    STA = CSF + 512
    STA = CSP
    E.i(f"v_add_u32 v3, s55, v{vL16}")
    for i in range(15): E.i(f"ds_read_b128 v[{16+4*i}:{19+4*i}], v3 offset:{i*1024}")
    for t in range(3): E.i(f"v_mov_b32 v{8+t}, 0")
    E.wait_lg()
    for i in range(15):
        for q in range(4): E.i(f"v_dot2c_f32_bf16 v{8 + i%3}, s{sONE}, v{16+4*i+q}")
    E.i("v_lshlrev_b32 v3, 2, v1"); E.i("s_mul_i32 s54, s3, 768"); E.i(f"s_add_u32 s54, s54, {CSP}"); E.i("v_add_u32 v3, s54, v3")
    for t in range(3): E.i(f"ds_write_b32 v3, v{8+t} offset:{t*256}")
    E.wait_lg(); E.i("s_barrier")
    Lc = E.newlabel(kname + "_cs")
    E.i("s_cmp_ge_u32 s3, 3"); E.branch(f"s_cbranch_scc1 {Lc}")
    E.i("v_lshlrev_b32 v3, 2, v1"); E.i("s_lshl_b32 s54, s3, 8"); E.i(f"s_add_u32 s54, s54, {CSP}"); E.i("v_add_u32 v3, s54, v3")
    for w in range(8): E.i(f"ds_read_b32 v{16+w}, v3 offset:{w*768}")
    E.wait_lg()
    for w in range(1, 8): E.i(f"v_add_f32 v16, v16, v{16+w}")
    E.i("v_mov_b32 v17, v16"); E.i("v_permlane32_swap_b32 v16, v17"); E.i("v_add_f32 v16, v16, v17")
    E.i("v_and_b32 v3, 31, v1"); E.i("v_lshlrev_b32 v3, 2, v3"); E.i("s_lshl_b32 s54, s3, 7"); E.i(f"s_add_u32 s54, s54, {CSF}"); E.i("v_add_u32 v3, s54, v3")
    E.i("ds_write_b32 v3, v16")
    E.wait_lg()
    E.label(Lc)
    E.i("s_barrier")
    vWB, vXW, vCSR, vSTW, vSTR = 3, 4, 5, 6, 7
    E.i(f"s_mul_i32 s54, s{sE}, 61440"); E.i(f"v_add_u32 v{vWB}, s54, v{vL16}")
    E.i(f"s_lshl_b32 s54, s{sMT}, 13"); E.i(f"s_add_u32 s54, s54, {SCR}"); E.i(f"v_add_u32 v{vXW}, s54, v{vL16}")
    E.i("v_lshrrev_b32 v8, 5, v1"); E.i("v_lshlrev_b32 v8, 4, v8"); E.i(f"v_add_u32 v{vCSR}, {CSF}, v8")
    E.i("v_and_b32 v8, 31, v1"); E.i("v_lshlrev_b32 v8, 3, v8"); E.i(f"s_lshl_b32 s54, s{sMT}, 8"); E.i(f"s_add_u32 s54, s54, {STA}"); E.i("v_add_u32 v8, s54, v8")
    E.i(f"s_lshl_b32 s54, s{sE}, 10"); E.i(f"v_add_u32 v{vSTW}, s54, v8"); E.i("s_xor_b32 s54, s54, 1024"); E.i(f"v_add_u32 v{vSTR}, s54, v8")
    SX, SXX, SX2, SXX2 = 8, 9, 10, 11
    ACC = 16; WF = 64; AF = 96
    K1, K2 = 58, 59
    import struct
    f2u = lambda x: struct.unpack("<I", struct.pack("<f", x))[0]
    k1 = -2.0 * 0.7978845608028654 * 1.4426950408889634
    E.i(f"s_mov_b32 s{K1}, {f2u(k1):#x}"); E.i(f"s_mov_b32 s{K2}, {f2u(k1*0.044715):#x}")
    for ph in range(2):
        if ph: E.i(f"s_add_u32 s{sRB}, s{sRB}, 8")
        E.i(f"s_lshl_b32 s54, s{sRB}, 2"); E.i(f"s_add_u32 s54, s54, s{sMT}")
        sTB = 60
        E.i(f"s_mov_b32 s{sTB}, s54")
        E.i("s_mul_i32 s54, s54, 40960"); E.i(f"s_mul_i32 s55, s{sE}, 20480"); E.i("s_add_u32 s54, s54, s55"); E.i(f"s_add_u32 s54, s54, {HF}")
        for i in range(20):
            if i and i % 4 == 0: E.i("s_add_u32 s54, s54, 4096")
            E.i(f"buffer_load_dwordx4 v[{AF+4*i}:{AF+4*i+3}], v{vL16}, s[{SRD_WS}:{SRD_WS+3}], s54 offen offset:{(i%4)*1024}{SC}", tag=("a", i))
        for r in (SX, SXX, SX2, SXX2): E.i(f"v_mov_b32 v{r}, 0")
        def rd(i):
            for t in range(3):
                r = WF + (i%2)*12 + 4*t
                E.i(f"ds_read_b128 v[{r}:{r+3}], v{vWB} offset:{(i*3+t)*1024}", tag=("w", i))
        rd(0)
        for i in range(20):
            if i + 1 < 20: rd(i + 1)
            E.wait_vm(("a", i)); E.wait_lg(("w", i))
            for t in range(3):
                r = WF + (i%2)*12 + 4*t; a = ACC + 16*t
                c = "0" if i == 0 else f"v[{a}:{a+15}]"
                E.i(f"v_mfma_f32_32x32x16_bf16 v[{a}:{a+15}], v[{r}:{r+3}], v[{AF+4*i}:{AF+4*i+3}], {c}")
                qs = [(0, 1, 2), (3,), ()][t] if False else None
            for q in range(4):
                E.i(f"v_dot2c_f32_bf16 v{SX if q&1 else SX2}, s{sONE}, v{AF+4*i+q}")
                E.i(f"v_dot2c_f32_bf16 v{SXX if q&1 else SXX2}, v{AF+4*i+q}, v{AF+4*i+q}")
        E.i(f"v_add_f32 v{SX}, v{SX}, v{SX2}"); E.i(f"v_add_f32 v{SXX}, v{SXX}, v{SXX2}")
        E.i(f"v_mov_b32 v{SX2}, v{SX}"); E.i(f"v_mov_b32 v{SXX2}, v{SXX}")
        E.i(f"v_permlane32_swap_b32 v{SX}, v{SX2}"); E.i(f"v_permlane32_swap_b32 v{SXX}, v{SXX2}")
        E.i(f"v_add_f32 v{SX}, v{SX}, v{SX2}"); E.i(f"v_add_f32 v{SXX}, v{SXX}, v{SXX2}")
        E.i(f"ds_write_b64 v{vSTW}, v[{SX}:{SXX}]")
        Le1, Lj = E.newlabel(kname + "_e1"), E.newlabel(kname + "_j")
        TMP = AF
        def stats():
            E.i(f"v_add_f32 v{SX}, v{SX}, v{SX2}"); E.i(f"v_add_f32 v{SXX}, v{SXX}, v{SXX2}")
            E.i(f"v_mul_f32 v{SX}, 0xbacccccd, v{SX}"); E.i(f"v_mul_f32 v{SXX}, 0x3acccccd, v{SXX}")
            E.i(f"v_fma_f32 v{SXX}, -v{SX}, v{SX}, v{SXX}"); E.i(f"v_max_f32 v{SXX}, 0, v{SXX}"); E.i(f"v_add_f32 v{SXX}, 0x3727c5ac, v{SXX}"); E.i(f"v_rsq_f32 v{SXX}, v{SXX}")
        def fin(t):
            a = ACC + 16*t; C = TMP + 32; G = TMP + 48
            for q in range(4): E.i(f"ds_read_b128 v[{C+4*q}:{C+4*q+3}], v{vCSR} offset:{t*128 + q*32}")
            E.wait_lg()
            for r in range(16): E.i(f"v_fma_f32 v{a+r}, v{SX}, v{C+r}, v{a+r}")
            for r in range(16): E.i(f"v_mul_f32 v{a+r}, v{SXX}, v{a+r}")
            for r in range(8): E.i(f"v_mul_f32 v{G+r}, v{a+r}, v{a+r}")
            E.i(f"v_mov_b32 v{G+8}, s{K1}")
            for r in range(8): E.i(f"v_fma_f32 v{G+r}, v{G+r}, s{K2}, v{G+8}")
            for r in range(8): E.i(f"v_mul_f32 v{G+r}, v{G+r}, v{a+r}")
            for r in range(8): E.i(f"v_exp_f32 v{G+r}, v{G+r}")
            for r in range(8): E.i(f"v_add_f32 v{G+r}, 1.0, v{G+r}")
            for r in range(8): E.i(f"v_rcp_f32 v{G+r}, v{G+r}")
            for r in range(8): E.i(f"v_mul_f32 v{a+r}, v{a+r}, v{a+8+r}")
            for r in range(8): E.i(f"v_mul_f32 v{a+r}, v{a+r}, v{G+r}")
            for r in range(4): E.i(f"v_cvt_pk_bf16_f32 v{a+8+r}, v{a+2*r}, v{a+2*r+1}")
            E.i(f"s_mul_i32 s54, s{sTB}, 98304"); E.i(f"s_mul_i32 s55, s{sCG}, 3072"); E.i("s_add_u32 s54, s54, s55"); E.i(f"s_add_u32 s54, s54, {HHF}")
            E.i(f"buffer_store_dwordx4 v[{a+8}:{a+11}], v{vL16}, s[{SRD_WS}:{SRD_WS+3}], s54 offen offset:{t*1024}{SC}")
        E.i(f"s_cmp_eq_u32 s{sE}, 1"); E.branch(f"s_cbranch_scc1 {Le1}")
        E.wait_lg(); E.i("s_barrier")
        for j in range(8): E.i(f"ds_read_b128 v[{TMP+4*j}:{TMP+4*j+3}], v{vXW} offset:{j*1024}")
        E.i(f"ds_read_b64 v[{SX2}:{SXX2}], v{vSTR}")
        E.wait_lg()
        for j in range(4): E.i(f"ds_write_b128 v{vXW}, v[{ACC+32+4*j}:{ACC+35+4*j}] offset:{j*1024}")
        E.wait_lg(); E.i("s_barrier")
        for r in range(32): E.i(f"v_add_f32 v{ACC+r}, v{ACC+r}, v{TMP+r}")
        stats(); fin(0); fin(1)
        E.branch(f"s_branch {Lj}")
        E.label(Le1); E.lg = []
        for j in range(8): E.i(f"ds_write_b128 v{vXW}, v[{ACC+4*j}:{ACC+4*j+3}] offset:{j*1024}")
        E.wait_lg(); E.i("s_barrier")
        E.i(f"ds_read_b64 v[{SX2}:{SXX2}], v{vSTR}")
        E.wait_lg(); E.i("s_barrier")
        for j in range(4): E.i(f"ds_read_b128 v[{TMP+4*j}:{TMP+4*j+3}], v{vXW} offset:{j*1024}")
        E.wait_lg()
        for r in range(16): E.i(f"v_add_f32 v{ACC+32+r}, v{ACC+32+r}, v{TMP+r}")
        stats(); fin(2)
        E.label(Lj)
        E.i("s_waitcnt vmcnt(0) lgkmcnt(0)"); E.vm = []; E.lg = []
        E.i("s_barrier")
    epilogue(E, kname)

if __name__ == "__main__":
    import sys
    txt = build([("s0", k_s0, 32768), ("s1", k_s1, 163840), ("s2", k_s2, 110592), ("s3", lambda E, k: k_skinny(E, k, 3), 81920),
                 ("s4", k_s4, 163840), ("s5", lambda E, k: k_skinny(E, k, 5), 81920)])
    open(sys.argv[1] if len(sys.argv) > 1 else "v1.s", "w").write(txt)
```

```python
import re

TRANS = ("v_exp_f32", "v_log_f32", "v_rcp_f32", "v_rsq_f32", "v_sqrt_f32", "v_sin_f32", "v_cos_f32")

def _regs(tok):
    tok = tok.strip()
    tok = re.sub(r"^-", "", tok)
    m = re.match(r"^abs\((.*)\)$", tok)
    if m: tok = m.group(1)
    m = re.match(r"^\|(.*)\|$", tok)
    if m: tok = m.group(1)
    m = re.match(r"^([vsa])(\d+)$", tok)
    if m: return {(m.group(1), int(m.group(2)))}
    m = re.match(r"^([vsa])\[(\d+):(\d+)\]$", tok)
    if m: return {(m.group(1), i) for i in range(int(m.group(2)), int(m.group(3)) + 1)}
    if tok in ("vcc", "vcc_lo", "vcc_hi"): return {("vcc", 0)}
    if tok in ("exec", "exec_lo", "exec_hi"): return {("exec", 0)}
    if tok == "m0": return {("m0", 0)}
    return set()

class Ins:
    __slots__ = ("op", "kind", "wr", "rd", "ws", "passes", "A", "B", "C", "D", "text", "stdata", "dpp")

class Emitter:
    def __init__(self):
        self.lines = []
        self.hist = []
        self.vm = []
        self.lg = []
        self.nlabel = 0
        self.count = 0
        self.bgq = []
        self.bg_period = 0
        self.bg_acc = 0
        self.bg_lock = 0

    def raw(self, s): self.lines.append(s)
    def comment(self, s): self.lines.append("  ; " + s)
    def label(self, name):
        self.flush()
        self.lines.append(name + ":")
    def newlabel(self, p="L"):
        self.nlabel += 1
        return f"{p}_{self.nlabel}"

    def _parse(self, text):
        t = text.split(";")[0].strip()
        sp = t.split(None, 1)
        op = sp[0]
        rest = sp[1] if len(sp) > 1 else ""
        ops = [o.strip() for o in re.split(r",(?![^\[]*\])", rest)] if rest else []
        mods = ""
        if ops:
            parts = ops[-1].split(None, 1)
            if len(parts) > 1:
                ops[-1] = parts[0]; mods = parts[1]
        I = Ins(); I.op = op; I.text = text; I.wr = set(); I.rd = set(); I.ws = 1; I.passes = 0
        I.A = I.B = I.C = I.D = set(); I.stdata = set(); I.dpp = False
        R = [_regs(o) for o in ops]
        if op == "s_nop":
            I.kind = "nop"; I.ws = int(ops[0]) + 1
        elif op.startswith("v_mfma"):
            I.kind = "mfma"; I.D, I.A, I.B, I.C = R[0], R[1], R[2], R[3]
            I.passes = 8 if "32x32" in op else 4
            I.wr = set(I.D); I.rd = I.A | I.B | I.C
        elif op.startswith("v_"):
            I.kind = "valu"
            if op.startswith("v_dot"): I.kind = "dot"
            if op in TRANS or any(op == x + "_e32" for x in TRANS): I.kind = "trans"
            if "dpp" in op or "row_" in mods or "quad_perm" in mods: I.dpp = True
            if op.startswith("v_permlane") and "swap" in op:
                I.wr = R[0] | R[1]; I.rd = R[0] | R[1]
            elif op.startswith("v_cmp"):
                I.wr = R[0]; I.rd = set().union(*R[1:])
            elif op in ("v_add_co_u32", "v_sub_co_u32"):
                I.wr = R[0] | R[1]; I.rd = set().union(*R[2:])
            elif op in ("v_addc_co_u32",):
                I.wr = R[0] | R[1]; I.rd = set().union(*R[2:])
            else:
                I.wr = R[0]; I.rd = set().union(*R[1:]) if len(R) > 1 else set()
                if op.startswith("v_fmac") or op.startswith("v_dot2c") or op.startswith("v_pk_fmac"):
                    I.rd |= R[0]
        elif op.startswith("ds_"):
            I.kind = "ds"
            if op.startswith("ds_read") or op.startswith("ds_bpermute") or op.startswith("ds_swizzle"):
                I.wr = R[0]; I.rd = set().union(*R[1:])
            else:
                I.rd = set().union(*R)
        elif op.startswith("buffer_") or op.startswith("global_"):
            I.kind = "vmem"
            islds = (" lds" in (" " + mods)) or op.startswith("global_load_lds")
            if "load" in op and not islds:
                I.wr = R[0]; I.rd = set().union(*R[1:])
            else:
                I.rd = set().union(*R) if R else set()
                if islds: I.rd |= {("m0", 0)}
                if "store" in op and ("x4" in op or "x3" in op):
                    I.stdata = R[0] if op.startswith("buffer_") else R[1]
        elif op.startswith("s_"):
            I.kind = "salu"
            if op.startswith("s_cmp") or op.startswith("s_cbranch") or op in ("s_branch", "s_barrier", "s_waitcnt", "s_endpgm", "s_sleep", "s_setprio"):
                I.rd = set().union(*R) if R else set()
            else:
                I.wr = R[0] if R else set(); I.rd = set().union(*R[1:]) if len(R) > 1 else set()
        else:
            raise ValueError("unknown op " + text)
        return I

    @staticmethod
    def _need(P, C):
        n = 0
        vw = {r for r in P.wr if r[0] in "va"}
        sw = {r for r in P.wr if r[0] in ("s", "vcc")}
        isvalu = lambda X: X.kind in ("valu", "trans", "dot")
        if isvalu(P):
            if C.kind == "mfma" and (vw & C.rd): n = max(n, 3 if P.kind == "dot" else 2)
            if P.kind == "trans" and isvalu(C) and (vw & (C.rd | C.wr)): n = max(n, 1)
            if P.kind == "trans" and C.kind in ("ds", "vmem") and (vw & C.rd): n = max(n, 1)
            if P.kind == "dot" and (vw & (C.rd | C.wr)):
                if C.op == P.op and C.kind == "dot":
                    srcs = C.rd - C.wr
                    if vw & srcs: n = max(n, 3)
                else: n = max(n, 3)
            if isvalu(C) and C.op.startswith("v_permlane") and (vw & C.rd): n = max(n, 2)
            if isvalu(C) and C.dpp and (vw & C.rd): n = max(n, 2)
            if C.op.startswith("v_readfirstlane") or C.op.startswith("v_readlane"):
                if vw & C.rd: n = max(n, 1)
            if sw:
                if isvalu(C) and (sw & C.rd): n = max(n, 2)
                if C.op.startswith("v_readlane") and (sw & C.rd): n = max(n, 4)
                if C.kind == "vmem" and (sw & C.rd): n = max(n, 5)
                if C.kind == "salu" and (sw & C.rd): n = max(n, 2)
                if C.op.startswith("s_cbranch_vcc") and ("vcc", 0) in sw: n = max(n, 5)
        if P.kind == "mfma":
            big = 12 if P.passes == 8 else 8
            if C.kind == "mfma":
                if P.D & (C.A | C.B): n = max(n, big)
                if P.D & C.C:
                    if P.D == C.C and P.passes == C.passes: pass
                    else: n = max(n, 10 if P.passes == 8 else 6)
                elif P.D & C.D:
                    n = max(n, 10 if P.passes == 8 else 6)
            elif isvalu(C):
                if P.D & (C.rd | C.wr): n = max(n, big)
                if P.C & C.wr: n = max(n, 7 if P.passes == 8 else 3)
            elif C.kind in ("ds", "vmem"):
                if P.D & (C.rd | C.wr): n = max(n, big)
        if P.kind == "salu" and ("m0", 0) in P.wr and C.kind in ("vmem", "ds") and ("m0", 0) in C.rd: n = max(n, 1)
        if P.kind == "vmem" and P.stdata and (P.stdata & C.wr): n = max(n, 2)
        if P.kind == "salu" and ("exec", 0) in P.wr and C.kind == "mfma": n = max(n, 1)
        return n

    def i(self, text, tag=None):
        I = self._parse(text)
        dist = 0; need = 0
        for P in reversed(self.hist):
            r = self._need(P, I) - dist
            if r > need: need = r
            dist += P.ws
            if dist > 20: break
        while need > 0:
            k = min(need, 16)
            N = self._parse(f"s_nop {k-1}")
            self.lines.append(f"  s_nop {k-1}"); self.hist.append(N); self.count += 1
            need -= k
        self.lines.append("  " + text); self.count += 1
        self.hist.append(I)
        if len(self.hist) > 40: self.hist = self.hist[-30:]
        if I.kind == "vmem": self.vm.append(tag)
        if I.kind == "ds": self.lg.append(tag)
        if self.bg_period and not self.bg_lock:
            cost = {"mfma": 4 * I.passes, "trans": 8, "valu": 4, "dot": 8}.get(I.kind, 2)
            self.bg_acc += cost
            if self.bg_acc >= self.bg_period and I.kind in ("mfma", "trans", "valu") and self.bgq and not ({("vcc", 0)} & I.wr) and not any(r[0] == "s" for r in I.wr):
                self.bg_acc = 0
                self.bg_pop()
        return I

    def bg_push(self, tag, fn): self.bgq.append((tag, fn))
    def bg_pop(self, n=1):
        for _ in range(n):
            if not self.bgq: return
            tag, fn = self.bgq.pop(0)
            self.bg_lock += 1
            fn()
            self.bg_lock -= 1
    def bg_flush(self, tag=None):
        if tag is None: n = len(self.bgq)
        else: n = max([k + 1 for k, (t, _) in enumerate(self.bgq) if t == tag], default=0)
        self.bg_pop(n)

    def flush(self):
        dist = 0; need = 0
        for P in reversed(self.hist):
            if P.kind == "mfma": m = 12 if P.passes == 8 else 8
            elif P.kind in ("valu", "trans", "dot"):
                m = 5 if any(r[0] in ("s", "vcc") for r in P.wr) else 3
            elif P.kind == "vmem" and P.stdata: m = 2
            elif P.kind == "salu" and (("m0", 0) in P.wr or ("exec", 0) in P.wr): m = 1
            else: m = 0
            need = max(need, m - dist)
            dist += P.ws
            if dist > 20: break
        if need > 0:
            self.lines.append(f"  s_nop {need-1}"); self.count += 1
        self.hist = []

    def branch(self, text):
        self.i(text) if False else None
        I = self._parse(text)
        self.flush()
        self.lines.append("  " + text); self.count += 1

    def mark(self, tag):
        self.vm.append(("@", tag))
    def wait_vm(self, tag=None):
        ismark = lambda t: isinstance(t, tuple) and len(t) == 2 and t[0] == "@"
        if tag is not None: self.bg_flush(tag)
        if tag is None:
            n = 0; rest = []
        else:
            idx = max([k for k, t in enumerate(self.vm) if t == tag or t == ("@", tag)], default=-1)
            if idx < 0: return
            rest = self.vm[idx+1:]
            n = sum(1 for t in rest if not ismark(t))
        self.i(f"s_waitcnt vmcnt({min(n,63)})")
        self.vm = rest
    def wait_lg(self, tag=None):
        if tag is None: n = 0
        else:
            idx = max([k for k, t in enumerate(self.lg) if t == tag], default=-1)
            if idx < 0: return
            n = len(self.lg) - 1 - idx
        self.i(f"s_waitcnt lgkmcnt({min(n,15)})")
        self.lg = self.lg[len(self.lg) - n:] if n else []
    def text(self): return "\n".join(self.lines) + "\n"

def v(n, cnt=1): return f"v{n}" if cnt == 1 else f"v[{n}:{n+cnt-1}]"
def s(n, cnt=1): return f"s{n}" if cnt == 1 else f"s[{n}:{n+cnt-1}]"
```

```python
import struct, math, sys, os
from emit import *

NAME = "sequential_preLN__sliding_block__glu_gated_geglu__prompt"
KN = NAME + "_kernel"
QKV = 0x0
OF  = 0x800000
HF  = OF + 2621440
HHF = HF + 2621440
HSTB = HHF + 6291456
CLR0 = HF
W3F = 0x1800000
W4F = 0x1A00000
W5F = 0x1E00000
CS1 = 0x2008000
CSW = 0x2000000
FLG = 0x2010000
STAMP = 0x2040000
WS_BYTES = 0x2100000
SRD_X, SRD_W1, SRD_WS, SRD_OUT, SRD_T0, SRD_T1, SRD_DBG = 24, 28, 32, 36, 40, 44, 48
P_X, P_W1, P_WO, P_WG, P_WU, P_WD, P_OUT, P_DBG, P_WS = 4, 6, 8, 12, 14, 16, 18, 20, 22
SC = " sc1"
NEG = 0xff800000
f2u = lambda x: struct.unpack("<I", struct.pack("<f", x))[0]
class CFG:
    stamps = False
    dbgst = False
OPT = set(os.environ.get('OPT', '').split(','))
WSR = f"s[{SRD_WS}:{SRD_WS+3}]"
sONE, sRETRY, sM1, sNONCE, sT0 = 94, 95, 93, 92, 91
S0SCR, MISC = 131072, 159744
SCR = 122880
RETRY_MAX = 20000
BGP = int(os.environ.get("BGP", "80"))

DBG_MAP = {2:1, 5:2, 8:3, 9:4, 12:5, 13:6, 16:7, 19:8, 22:9, 23:10, 29:11, 32:12, 40:13, 44:14, 1:15}
def stamp(E, idx, vr, wave=0):
    if CFG.dbgst:
        if idx not in DBG_MAP or wave != 0: return
        L = E.newlabel("stamp")
        E.bg_lock += 1
        E.i("s_lshl_b32 s98, s2, 3"); E.i("s_or_b32 s98, s98, s3"); E.i(f"s_cmp_lg_u32 s98, {37*8}"); E.branch(f"s_cbranch_scc1 {L}")
        E.i("s_memrealtime s[96:97]"); E.raw("  s_waitcnt lgkmcnt(0)")
        E.i(f"s_sub_u32 s96, s96, s{sT0}")
        E.i("s_mov_b64 exec, 1"); E.i(f"v_mov_b32 v{vr}, s96")
        E.raw(f"  buffer_store_dword v{vr}, off, s[{SRD_DBG}:{SRD_DBG+3}], 0 offset:{4*DBG_MAP[idx]}")
        E.i("s_mov_b64 exec, -1")
        E.label(L); E.bg_lock -= 1
        return
    if not CFG.stamps: return
    L = E.newlabel("stamp")
    E.bg_lock += 1
    E.i(f"s_cmp_lg_u32 s3, {wave}"); E.branch(f"s_cbranch_scc1 {L}")
    E.i("s_memrealtime s[96:97]")
    E.i("s_lshl_b32 s98, s2, 9"); E.i(f"s_add_u32 s98, s98, {STAMP + idx*8}")
    E.raw("  s_waitcnt lgkmcnt(0)")
    E.i("s_mov_b64 exec, 1")
    E.i(f"v_mov_b32 v{vr}, s96")
    E.raw(f"  buffer_store_dword v{vr}, off, {WSR}, s98")
    if "clk" in OPT:
        E.i("s_memtime s[96:97]"); E.raw("  s_waitcnt lgkmcnt(0)"); E.i(f"v_mov_b32 v{vr}, s96")
        E.raw(f"  buffer_store_dword v{vr}, off, {WSR}, s98 offset:4")
    E.i("s_mov_b64 exec, -1")
    E.label(L)
    E.bg_lock -= 1

def srd(E, d, p, nbytes):
    E.i(f"s_mov_b32 s{d}, s{p}")
    E.i(f"s_and_b32 s{d+1}, s{p+1}, 0xffff")
    E.i(f"s_mov_b32 s{d+2}, {nbytes}")
    E.i(f"s_mov_b32 s{d+3}, 0x20000")

def maxtree(E, dst, regs, first):
    regs = list(regs)
    if first:
        a = regs.pop(0); b = regs.pop(0); c = regs.pop(0) if regs else b
        E.i(f"v_max3_u32 v{dst}, v{a}, v{b}, v{c}")
    while regs:
        a = regs.pop(0); b = regs.pop(0) if regs else a
        E.i(f"v_max3_u32 v{dst}, v{a}, v{b}, v{dst}")

class side:
    def __init__(s, E): s.E = E
    def __enter__(s):
        s.sv = (list(s.E.vm), list(s.E.lg)); s.E.bg_lock += 1
    def __exit__(s, *a):
        s.E.vm, s.E.lg = s.sv; s.E.bg_lock -= 1

def retry_tail(E, Lok, Lback, reissue, sleep=4):
    E.i(f"s_add_u32 s{sRETRY}, s{sRETRY}, 1"); E.i(f"s_cmp_gt_u32 s{sRETRY}, {RETRY_MAX}")
    E.branch(f"s_cbranch_scc1 {Lok}")
    E.i(f"s_sleep {sleep}")
    E.i("s_waitcnt vmcnt(0) lgkmcnt(0)")
    reissue()
    E.i("s_waitcnt vmcnt(0)")
    E.branch(f"s_branch {Lback}")

def check_retry(E, vM, Lback, reissue):
    Lok = E.newlabel("ok")
    E.i(f"v_cmp_eq_u32 vcc, -1, v{vM}")
    E.branch(f"s_cbranch_vccz {Lok}")
    with side(E): retry_tail(E, Lok, Lback, reissue)
    E.label(Lok)

def checkpoint(E, vM, Lh):
    E.i(f"v_cmp_eq_u32 vcc, -1, v{vM}")
    E.branch(f"s_cbranch_vccnz {Lh}")

def handler(E, Lh, Lback, reissue):
    Lok = E.newlabel("ok")
    E.branch(f"s_branch {Lok}")
    E.label(Lh)
    with side(E): retry_tail(E, Lok, Lback, reissue)
    E.label(Lok)

def nonce_issue(E, vr):
    E.i(f"buffer_load_dword v{vr}, off, s[{SRD_DBG}:{SRD_DBG+3}], 0{SC}", tag="nonce")
def nonce_get(E, vr):
    L, Lok = E.newlabel("nchk"), E.newlabel("nok")
    E.wait_vm("nonce")
    E.label(L)
    E.i(f"v_readfirstlane_b32 s{sNONCE}, v{vr}")
    E.i(f"s_cmp_lg_u32 s{sNONCE}, 0")
    E.branch(f"s_cbranch_scc1 {Lok}")
    with side(E): retry_tail(E, Lok, L, lambda: nonce_issue(E, vr), 8)
    E.label(Lok)

def flag_issue(E, vr, which, quad=False):
    E.bg_lock += 1
    E.i(f"v_bfe_u32 v{vr}, v1, 2, {4 if quad else 3}"); E.i(f"v_lshlrev_b32 v{vr}, 7, v{vr}")
    E.i(f"v_and_b32 v{vr+1}, 3, v1"); E.i(f"v_lshl_add_u32 v{vr}, v{vr+1}, 4, v{vr}")
    if quad: E.i("s_and_b32 s52, s3, 3"); E.i("s_lshl_b32 s52, s52, 11")
    else: E.i("s_lshl_b32 s52, s3, 10")
    E.i(f"s_add_u32 s52, s52, {FLG + 4*which}")
    E.i(f"buffer_load_dword v{vr}, v{vr}, {WSR}, s52 offen{SC}", tag="flag")
    E.bg_lock -= 1
def flag_check(E, vr, which, quad=False):
    if "noflag" in OPT: return
    L, Lok = E.newlabel("fchk"), E.newlabel("fok")
    E.wait_vm("flag")
    E.label(L)
    E.i(f"v_cmp_ne_u32 vcc, s{sNONCE}, v{vr}")
    E.branch(f"s_cbranch_vccz {Lok}")
    with side(E): retry_tail(E, Lok, L, lambda: flag_issue(E, vr, which, quad))
    E.label(Lok)
def flag_check_n(E, vr, which):
    E.vm = ["flag"]
    flag_check(E, vr, which)
    E.vm = []
def flag_set(E, which, vr):
    L = E.newlabel("fset")
    E.i("s_cmp_lg_u32 s3, 7"); E.branch(f"s_cbranch_scc1 {L}")
    with side(E):
        E.i("s_mov_b64 exec, 1")
        E.i(f"v_mov_b32 v{vr}, s{sNONCE}")
        E.i("s_lshr_b32 s52, s2, 2"); E.i("s_lshl_b32 s52, s52, 7"); E.i("s_and_b32 s53, s2, 3"); E.i("s_lshl_b32 s53, s53, 4"); E.i("s_add_u32 s52, s52, s53"); E.i(f"s_add_u32 s52, s52, {FLG + 4*which}")
        E.i(f"buffer_store_dword v{vr}, off, {WSR}, s52{SC}")
        E.i("s_mov_b64 exec, -1")
    E.label(L)

def stats_math(E, SX, SXX):
    E.i(f"v_mul_f32 v{SX}, 0xbacccccd, v{SX}")
    E.i(f"v_mul_f32 v{SXX}, 0x3acccccd, v{SXX}")
    E.i(f"v_fma_f32 v{SXX}, -v{SX}, v{SX}, v{SXX}")
    E.i(f"v_max_f32 v{SXX}, 0, v{SXX}")
    E.i(f"v_add_f32 v{SXX}, 0x3727c5ac, v{SXX}")
    E.i(f"v_rsq_f32 v{SXX}, v{SXX}")

sHD, sTB2, sKVo, sQo, sOo = 80, 81, 82, 83, 84
vD2, vLO1, vLO2 = 93, 94, 95
def s2_scalars(E):
    E.i("s_and_b32 s52, s2, 7"); E.i("s_lshr_b32 s53, s2, 3")
    E.i(f"s_lshl_b32 s{sHD}, s52, 2"); E.i("s_lshr_b32 s54, s53, 3"); E.i(f"s_add_u32 s{sHD}, s{sHD}, s54")
    E.i(f"s_and_b32 s{sTB2}, s53, 7"); E.i(f"s_lshl_b32 s{sTB2}, s{sTB2}, 3")
    E.i("s_lshr_b32 s54, s3, 2"); E.i("s_lshl_b32 s54, s54, 5"); E.i("s_add_u32 s54, s54, 32"); E.i(f"s_add_u32 s54, s54, s{sHD}")
    E.i("s_mul_i32 s54, s54, 81920")
    E.i(f"s_add_u32 s{SRD_T1}, s{P_WS}, s54"); E.i(f"s_addc_u32 s{SRD_T1+1}, s{P_WS+1}, 0"); E.i(f"s_and_b32 s{SRD_T1+1}, s{SRD_T1+1}, 0xffff")
    E.i(f"s_mov_b32 s{SRD_T1+2}, 81920"); E.i(f"s_mov_b32 s{SRD_T1+3}, 0x20000")
    E.i(f"s_and_b32 s{sKVo}, s3, 3"); E.i(f"s_mul_i32 s{sKVo}, s{sKVo}, 3840")
    E.i(f"s_add_u32 s54, s{sTB2}, s3")
    E.i(f"s_mul_i32 s{sQo}, s{sHD}, 81920"); E.i("s_mul_i32 s55, s54, 640"); E.i(f"s_add_u32 s{sQo}, s{sQo}, s55")
    E.i(f"s_mul_i32 s{sOo}, s54, 20480"); E.i(f"s_mul_i32 s55, s{sHD}, 640"); E.i(f"s_add_u32 s{sOo}, s{sOo}, s55"); E.i(f"s_add_u32 s{sOo}, s{sOo}, {OF}")
    E.i(f"s_add_u32 s{sOo+1}, s{sOo}, {64*20480}")
def s2_laneoffs(E, d1, d2, t0, t1):
    E.i(f"v_and_b32 v{t0}, 15, v1"); E.i(f"v_lshrrev_b32 v{t1}, 4, v1")
    E.i(f"v_and_b32 v{d1}, 2, v{t1}"); E.i(f"v_lshlrev_b32 v{d1}, 2, v{d1}"); E.i(f"v_xor_b32 v{d1}, v{d1}, v{t0}"); E.i(f"v_lshlrev_b32 v{d1}, 3, v{d1}"); E.i(f"v_lshl_add_u32 v{d1}, v{t1}, 7, v{d1}")
    E.i(f"v_lshlrev_b32 v{d2}, 3, v{t0}"); E.i(f"v_add_u32 v{d2}, 512, v{d2}")
NKV = 6
def s2_loads(E, PF, ph, vD, l1, l2):
    E.bg_lock += 1
    E.i(f"s_add_u32 s52, s{sTB2}, {64*ph - 16}"); E.i("s_mul_i32 s52, s52, 640"); E.i(f"s_add_u32 s52, s52, s{sKVo}")
    E.i(f"v_add_u32 v{vD}, s52, v2")
    for r in (12, 13, 14, 15, 18, 19): E.i(f"v_mov_b32 v{PF+r}, 0")
    for i in range(4):
        if i == 3: E.i("s_mov_b32 exec_hi, 0xffff")
        E.i(f"buffer_load_dwordx4 v[{PF+4*i}:{PF+4*i+3}], v{vD}, s[{SRD_T1}:{SRD_T1+3}], 0 offen{SC}", tag=("kv", ph))
        if i < 3: E.i(f"v_add_u32 v{vD}, 1024, v{vD}")
    E.i(f"s_add_u32 s52, s{sQo}, {40960*ph}")
    E.i("s_mov_b64 exec, 0xffff")
    E.i(f"buffer_load_dwordx2 v[{PF+18}:{PF+19}], v{l2}, {WSR}, s52 offen{SC}", tag=("kv", ph))
    E.i("s_mov_b64 exec, -1")
    E.i(f"buffer_load_dwordx2 v[{PF+16}:{PF+17}], v{l1}, {WSR}, s52 offen{SC}", tag=("kv", ph))
    E.bg_lock -= 1

def o_clears(E, vm1, vt, deltas):
    E.i(f"v_lshrrev_b32 v{vt}, 1, v2")
    for d in deltas:
        for ph in range(2):
            E.i(f"s_sub_u32 s52, s{sOo+ph}, {d}")
            E.i(f"buffer_store_dwordx2 v[{vm1}:{vm1+1}], v{vt}, {WSR}, s52 offen{SC}", tag="oclr")
            E.i("s_mov_b64 exec, 0xffff")
            E.i(f"buffer_store_dwordx2 v[{vm1}:{vm1+1}], v{vt}, {WSR}, s52 offen offset:512{SC}", tag="oclr")
            E.i("s_mov_b64 exec, -1")

def s0_decode(E, rnd, Lskip):
    E.i(f"s_mov_b32 s55, s3")
    E.i("s_mul_i32 s52, s2, 7"); E.i("s_add_u32 s52, s52, s55"); E.i("s_min_u32 s52, s52, 1639")
    E.i("s_lshl_b32 s55, s55, 12"); E.i(f"s_add_u32 s55, s55, {S0SCR}")

def s0_issue(E, vt, rnd):
    if "nos0" in OPT: return
    L, L4, L5, LG = [E.newlabel(x) for x in ("s0i", "s0i4", "s0i5", "s0ig")]
    with side(E):
        s0_decode(E, rnd, L)
        E.i(f"v_lshrrev_b32 v{vt}, 3, v1"); E.i(f"v_and_b32 v{vt+1}, 7, v1")
        E.i("s_cmp_ge_u32 s52, 680"); E.branch(f"s_cbranch_scc1 {L4}")
        E.i("s_cmp_ge_u32 s52, 200"); E.branch(f"s_cbranch_scc1 {L5}")
        srd(E, SRD_T0, P_WO, 819200)
        E.branch(f"s_branch {LG}")
        E.label(L5)
        srd(E, SRD_T0, P_WD, 1966080); E.i("s_sub_u32 s52, s52, 200")
        E.label(LG)
        E.i("s_mul_i32 s87, s52, 6554"); E.i("s_lshr_b32 s87, s87, 16")
        E.i("s_mul_i32 s88, s87, 10"); E.i("s_sub_u32 s88, s52, s88")
        E.i("s_mul_i32 s53, s87, 40960"); E.i("s_lshl_b32 s54, s88, 7"); E.i("s_add_u32 s53, s53, s54")
        E.i(f"v_mul_u32_u24 v{vt}, 1280, v{vt}"); E.i(f"v_lshl_add_u32 v{vt}, v{vt+1}, 4, v{vt}")
        for i in range(4):
            E.i(f"s_add_u32 m0, s55, {i*1024}")
            E.i(f"buffer_load_dwordx4 v{vt}, s[{SRD_T0}:{SRD_T0+3}], s53 offen lds")
            if i < 3: E.i("s_add_u32 s53, s53, 10240")
        E.branch(f"s_branch {L}")
        E.label(L4)
        E.i("s_sub_u32 s52, s52, 680")
        E.i("s_mul_i32 s87, s52, 2731"); E.i("s_lshr_b32 s87, s87, 16")
        E.i("s_mul_i32 s88, s87, 24"); E.i("s_sub_u32 s88, s52, s88")
        E.i("s_mul_i32 s53, s87, 49152"); E.i("s_lshl_b32 s54, s88, 7"); E.i("s_add_u32 s53, s53, s54"); E.i("s_add_u32 s54, s53, 24576")
        E.i(f"v_mul_u32_u24 v{vt}, 3072, v{vt}"); E.i(f"v_lshl_add_u32 v{vt}, v{vt+1}, 4, v{vt}")
        for m, p in enumerate((P_WG, P_WU)):
            srd(E, SRD_T0, p, 1966080)
            for i in range(2):
                E.i(f"s_add_u32 m0, s55, {(2*m+i)*1024}")
                E.i(f"buffer_load_dwordx4 v{vt}, s[{SRD_T0}:{SRD_T0+3}], s{53+i} offen lds")
    E.label(L)
    E.vm += [("s0dma", rnd)] * 4

def s0_finish(E, F, vt, rnd):
    if "nos0" in OPT: return
    E.wait_vm(("s0dma", rnd))
    L, L4, L5, LG, LS = [E.newlabel(x) for x in ("s0f", "s0f4", "s0f5", "s0fg", "s0fs")]
    with side(E):
        s0_decode(E, rnd, L)
        E.i(f"v_bfe_u32 v{vt+1}, v1, 2, 2")
        E.i("s_cmp_ge_u32 s52, 680"); E.branch(f"s_cbranch_scc1 {L4}")
        E.i("s_cmp_ge_u32 s52, 200"); E.branch(f"s_cbranch_scc1 {L5}")
        E.i("s_mov_b32 s89, 20"); E.i(f"s_mov_b32 s90, {W3F}")
        E.branch(f"s_branch {LG}")
        E.label(L5)
        E.i("s_sub_u32 s52, s52, 200"); E.i("s_mov_b32 s89, 48"); E.i(f"s_mov_b32 s90, {W5F}")
        E.label(LG)
        E.i("s_mul_i32 s87, s52, 6554"); E.i("s_lshr_b32 s87, s87, 16")
        E.i("s_mul_i32 s88, s87, 10"); E.i("s_sub_u32 s88, s52, s88")
        E.i(f"v_lshrrev_b32 v{vt}, 4, v1"); E.i(f"v_lshl_add_u32 v{vt}, v{vt}, 3, v{vt+1}"); E.i(f"v_lshlrev_b32 v{vt}, 7, v{vt}")
        E.i(f"v_and_b32 v{vt+1}, 3, v1"); E.i(f"v_lshl_add_u32 v{vt}, v{vt+1}, 3, v{vt}")
        for nt in range(4):
            E.i(f"s_lshl_b32 s52, s88, 2"); E.i(f"s_add_u32 s52, s52, {nt}")
            E.i("s_mul_i32 s53, s52, 52"); E.i("s_lshr_b32 s53, s53, 8")
            E.i("s_mul_i32 s54, s53, 5"); E.i("s_sub_u32 s54, s52, s54")
            E.i("s_mul_i32 s53, s53, s89"); E.i("s_add_u32 s53, s53, s87"); E.i("s_mul_i32 s53, s53, 5"); E.i("s_add_u32 s53, s53, s54")
            E.i("s_lshl_b32 s53, s53, 10"); E.i(f"s_add_u32 s{96+nt}, s53, s90")
        E.branch(f"s_branch {LS}")
        E.label(L4)
        E.i("s_sub_u32 s52, s52, 680")
        E.i("s_mul_i32 s87, s52, 2731"); E.i("s_lshr_b32 s87, s87, 16")
        E.i("s_mul_i32 s88, s87, 24"); E.i("s_sub_u32 s88, s52, s88")
        E.i(f"v_lshrrev_b32 v{vt}, 5, v1"); E.i(f"v_lshl_add_u32 v{vt}, v{vt}, 3, v{vt+1}"); E.i(f"v_lshlrev_b32 v{vt}, 7, v{vt}")
        E.i(f"v_bfe_u32 v{vt+1}, v1, 4, 1"); E.i(f"v_lshl_add_u32 v{vt}, v{vt+1}, 11, v{vt}")
        E.i(f"v_and_b32 v{vt+1}, 1, v1"); E.i(f"v_lshl_add_u32 v{vt}, v{vt+1}, 4, v{vt}")
        E.i(f"v_bfe_u32 v{vt+1}, v1, 1, 1"); E.i(f"v_lshl_add_u32 v{vt}, v{vt+1}, 3, v{vt}")
        for nt in range(4):
            E.i(f"s_lshl_b32 s52, s88, 2"); E.i(f"s_add_u32 s52, s52, {nt}")
            E.i("s_mul_i32 s53, s52, 171"); E.i("s_lshr_b32 s53, s53, 9")
            E.i("s_mul_i32 s54, s53, 3"); E.i("s_sub_u32 s54, s52, s54")
            E.i("s_mul_i32 s53, s53, 40"); E.i("s_add_u32 s53, s53, s87"); E.i("s_mul_i32 s53, s53, 3"); E.i("s_add_u32 s53, s53, s54")
            E.i("s_lshl_b32 s53, s53, 10"); E.i(f"s_add_u32 s{96+nt}, s53, {W4F}")
        E.label(LS)
        E.i(f"v_add_u32 v{vt}, s55, v{vt}")
        for nt in range(4):
            for h in range(2):
                E.i(f"ds_read_b64_tr_b16 v[{F+4*nt+2*h}:{F+1+4*nt+2*h}], v{vt} offset:{h*512+nt*32}")
        E.i("s_waitcnt lgkmcnt(0)")
        for nt in range(4):
            E.i(f"buffer_store_dwordx4 v[{F+4*nt}:{F+3+4*nt}], v2, {WSR}, s{96+nt} offen{SC}")
    E.label(L)
    E.vm += ["s0st"] * 4

def colsum_task(E, nld, lanes48, stride, F, A):
    for r in range(8): E.i(f"v_mov_b32 v{A+r}, 0")
    for j in range(nld):
        E.wait_vm(("c", F, j))
        for q in range(4):
            E.i(f"v_lshlrev_b32 v{8+q}, 16, v{F+4*j+q}"); E.i(f"v_and_b32 v{F+4*j+q}, 0xffff0000, v{F+4*j+q}")
        for q in range(4):
            E.i(f"v_add_f32 v{A+2*q}, v{A+2*q}, v{8+q}"); E.i(f"v_add_f32 v{A+1+2*q}, v{A+1+2*q}, v{F+4*j+q}")

def idle(E):
    E.bg_period = 0
    E.i("s_sub_u32 s60, s2, 240")
    E.i("v_lshrrev_b32 v3, 4, v1"); E.i("v_and_b32 v4, 15, v1"); E.i("v_mul_u32_u24 v3, 3840, v3"); E.i("v_lshl_add_u32 v3, v4, 4, v3")
    E.i("s_min_u32 s61, s60, 14"); E.i("s_lshl_b32 s61, s61, 8"); E.i("s_mul_i32 s62, s3, 307200"); E.i("s_add_u32 s61, s61, s62")
    for j in range(20):
        E.i(f"buffer_load_dwordx4 v[{16+4*j}:{19+4*j}], v3, s[{SRD_W1}:{SRD_W1+3}], s61 offen", tag=("c", 16, j))
        E.i("s_add_u32 s61, s61, 15360")
    nonce_issue(E, 15)
    E.i("v_lshlrev_b32 v5, 7, v1")
    E.flush()
    E.i("s_getpc_b64 s[70:71]")
    E.raw("L_pc:")
    E.i(f"s_sub_u32 s70, s70, L_pc-{KN}"); E.i("s_subb_u32 s71, s71, 0")
    E.i("s_lshl_b32 s72, s3, 13"); E.i("v_add_u32 v6, s72, v5")
    E.i(f"v_min_u32 v6, L_end_of_code-{KN}-4, v6"); E.i("v_and_b32 v6, 0xfffffffc, v6")
    E.i("global_load_dword v7, v6, s[70:71]")
    Lu, Lg = E.newlabel("csu"), E.newlabel("csg")
    E.i("s_cmp_ge_u32 s60, 8"); E.branch(f"s_cbranch_scc1 {Lu}")
    srd(E, SRD_T0, P_WG, 1966080); E.branch(f"s_branch {Lg}")
    E.label(Lu); srd(E, SRD_T0, P_WU, 1966080)
    E.label(Lg)
    E.i("v_cmp_lt_u32 vcc, 23, v1"); E.i("v_cndmask_b32 v3, 0, 1, vcc")
    E.i("v_mul_u32_u24 v4, 24, v3"); E.i("v_sub_u32 v4, v1, v4"); E.i("v_mul_u32_u24 v3, 3072, v3"); E.i("v_lshl_add_u32 v3, v4, 4, v3")
    E.i("s_and_b32 s61, s60, 7"); E.i("s_mul_i32 s61, s61, 384"); E.i("s_mul_i32 s62, s3, 245760"); E.i("s_add_u32 s61, s61, s62")
    colsum_task(E, 20, False, 0, 16, 248)
    E.i("v_lshlrev_b32 v8, 5, v0")
    E.i("ds_write_b128 v8, v[248:251]"); E.i("ds_write_b128 v8, v[252:255] offset:16")
    def t2_loads():
        E.i("s_mov_b32 exec_hi, 0xffff")
        for j in range(38):
            E.i(f"buffer_load_dwordx4 v[{96+4*j}:{99+4*j}], v3, s[{SRD_T0}:{SRD_T0+3}], s61 offen", tag=("c", 96, j))
            E.i("s_add_u32 s61, s61, 6144")
        for j in range(2):
            E.i(f"buffer_load_dwordx4 v[{88+4*j}:{91+4*j}], v3, s[{SRD_T0}:{SRD_T0+3}], s61 offen", tag=("c", 88, j))
            E.i("s_add_u32 s61, s61, 6144")
        E.i("s_mov_b64 exec, -1")
    nonce_get(E, 15)
    E.wait_lg(); E.i("s_barrier")
    Ls = E.newlabel("cs1s")
    E.i("s_cmp_lg_u32 s3, 7"); E.branch(f"s_cbranch_scc1 {Ls}")
    with side(E):
        E.i("v_lshlrev_b32 v8, 2, v1")
        for ps in range(2):
            for w in range(8):
                for h in range(4): E.i(f"ds_read_b32 v{16+32*ps+4*w+h}, v8 offset:{w*2048 + h*512 + ps*256}")
        E.i("s_waitcnt lgkmcnt(0)")
        st = 16
        while st >= 1:
            for j in range(st):
                E.i(f"v_add_f32 v{16+j}, v{16+j}, v{16+j+st}"); E.i(f"v_add_f32 v{48+j}, v{48+j}, v{48+j+st}")
            st //= 2
        E.i("s_min_u32 s52, s60, 14"); E.i("s_lshl_b32 s52, s52, 9"); E.i(f"s_add_u32 s52, s52, {CS1}")
        E.i(f"buffer_store_dword v16, v8, {WSR}, s52 offen{SC}")
        E.i(f"buffer_store_dword v48, v8, {WSR}, s52 offen offset:256{SC}")
        E.i("s_waitcnt vmcnt(0)")
        flag_set(E, 0, 15)
        stamp(E, 52, 31, wave=7)
    E.label(Ls)
    E.i("s_barrier")
    E.vm = []
    t2_loads()
    s0_issue(E, 8, 0)
    for r in range(8): E.i(f"v_mov_b32 v{16+r}, 0")
    for F, n in ((96, 38), (88, 2)):
        for j in range(n):
            E.wait_vm(("c", F, j))
            for q in range(4):
                E.i(f"v_lshlrev_b32 v{8+q}, 16, v{F+4*j+q}"); E.i(f"v_and_b32 v{F+4*j+q}, 0xffff0000, v{F+4*j+q}")
            for q in range(4):
                E.i(f"v_add_f32 v{16+2*q}, v{16+2*q}, v{8+q}"); E.i(f"v_add_f32 v{17+2*q}, v{17+2*q}, v{F+4*j+q}")
    E.i("v_lshlrev_b32 v8, 5, v0")
    E.i("ds_write_b128 v8, v[16:19] offset:16384"); E.i("ds_write_b128 v8, v[20:23] offset:16400")
    E.wait_lg(); E.i("s_barrier")
    Ls = E.newlabel("css")
    E.i("s_cmp_ge_u32 s3, 3"); E.branch(f"s_cbranch_scc1 {Ls}")
    with side(E):
        E.i("v_lshlrev_b32 v8, 2, v0")
        for w in range(8):
            for h in range(2): E.i(f"ds_read_b32 v{16+2*w+h}, v8 offset:{16384 + w*2048 + h*768}")
        E.i("s_waitcnt lgkmcnt(0)")
        for j in range(1, 16): E.i(f"v_add_f32 v16, v16, v{16+j}")
        E.i("s_and_b32 s61, s60, 7"); E.i("s_mul_i32 s61, s61, 192"); E.i("v_add_u32 v8, s61, v0")
        E.i("v_lshrrev_b32 v9, 4, v8"); E.i("v_lshlrev_b32 v9, 5, v9")
        E.i("v_bfe_u32 v10, v8, 2, 1"); E.i("v_lshl_add_u32 v9, v10, 3, v9")
        E.i("v_bfe_u32 v10, v8, 3, 1"); E.i("v_lshl_add_u32 v9, v10, 2, v9")
        E.i("v_and_b32 v10, 3, v8"); E.i("v_add_u32 v9, v9, v10"); E.i("v_lshlrev_b32 v9, 2, v9")
        E.i("s_lshr_b32 s61, s60, 3"); E.i("s_lshl_b32 s61, s61, 6"); E.i(f"s_add_u32 s61, s61, {CSW}")
        E.i(f"buffer_store_dword v16, v9, {WSR}, s61 offen{SC}")
    E.label(Ls)
    s2_scalars(E)
    for r in range(4): E.i(f"v_mov_b32 v{80+r}, -1")
    o_clears(E, 80, 84, [0])
    flag_issue(E, 90, 0)
    flag_check(E, 90, 0)
    stamp(E, 1, 31)

def s1(E):
    E.i("s_and_b32 s52, s2, 7"); E.i("s_lshr_b32 s53, s2, 3")
    E.i("s_and_b32 s54, s52, 1"); E.i("s_mul_i32 s54, s54, 30"); E.i("s_add_u32 s54, s54, s53")
    sCT, sRB, sRHO, sC, sMT = 56, 57, 58, 59, 60
    E.i(f"s_lshr_b32 s{sCT}, s54, 2")
    E.i("s_and_b32 s55, s54, 3")
    E.i(f"s_lshr_b32 s{sRB}, s52, 1"); E.i(f"s_lshl_b32 s{sRB}, s{sRB}, 2"); E.i(f"s_add_u32 s{sRB}, s{sRB}, s55")
    E.i(f"s_mul_i32 s{sRHO}, s55, 5"); E.i(f"s_lshr_b32 s{sRHO}, s{sRHO}, 1")
    vXo, vWo = 3, 4
    E.i("v_lshrrev_b32 v5, 3, v1"); E.i("s_lshl_b32 s52, s3, 3"); E.i("v_add_u32 v5, s52, v5")
    E.i("v_bfe_u32 v6, v5, 1, 3"); E.i("v_and_b32 v7, 7, v1"); E.i("v_xor_b32 v6, v6, v7")
    E.i("v_mul_u32_u24 v5, 1280, v5"); E.i(f"v_lshl_add_u32 v{vXo}, v6, 4, v5")
    E.i("v_lshrrev_b32 v5, 4, v1")
    E.i("v_lshlrev_b32 v6, 2, v5"); E.i("v_and_b32 v7, 15, v1"); E.i("v_xor_b32 v6, v6, v7")
    E.i("v_add_u32 v5, s52, v5")
    E.i("v_mul_u32_u24 v5, 3840, v5"); E.i(f"v_lshl_add_u32 v{vWo}, v6, 4, v5")
    sXb, sWb, sLX, sLW = 62, 63, 64, 65
    E.i(f"s_mul_i32 s{sXb}, s{sRB}, 81920")
    E.i(f"s_lshl_b32 s{sWb}, s{sCT}, 8")
    E.i(f"s_lshl_b32 s{sLX}, s3, 10"); E.i(f"s_lshl_b32 s{sLW}, s3, 11"); E.i(f"s_add_u32 s{sLW}, s{sLW}, 16384")
    sCH = 66
    def chunk(p):
        E.i(f"s_add_u32 s{sCH+p}, s{sRHO}, {p}")
        if p >= 3:
            E.i(f"s_cmp_ge_u32 s{sCH+p}, 10"); E.i("s_cselect_b32 s52, 10, 0"); E.i(f"s_sub_u32 s{sCH+p}, s{sCH+p}, s52")
    PK = 176
    def dma(p, i, other=0):
        sl = (p % 4) * 32768
        parked = 4 <= p <= 6
        dst = f"v[{PK+16*(p-4)+4*i}:{PK+16*(p-4)+4*i+3}], " if parked else ""
        sfx = "" if parked else " lds"
        if i < 2:
            E.i(f"s_lshl_b32 s100, s{sCH+p}, 7"); E.i(f"s_add_u32 s100, s100, s{sXb}")
            if i or other: E.i(f"s_add_u32 s100, s100, {i*1310720 + other*32*1280}")
            if not parked: E.i(f"s_add_u32 m0, s{sLX}, {sl + i*8192 + other*4096}")
            E.i(f"buffer_load_dwordx4 {dst}v{vXo}, s[{SRD_X}:{SRD_X+3}], s100 offen{sfx}", tag=("c", p))
        else:
            E.i(f"s_mul_i32 s100, s{sCH+p}, 245760"); E.i(f"s_add_u32 s100, s100, s{sWb}")
            if i == 3 or other: E.i(f"s_add_u32 s100, s100, {(i-2)*15360 + other*32*3840}")
            if not parked: E.i(f"s_add_u32 m0, s{sLW}, {sl + (i-2)*1024 + other*8192}")
            E.i(f"buffer_load_dwordx4 {dst}v{vWo}, s[{SRD_W1}:{SRD_W1+3}], s100 offen{sfx}", tag=("c", p))
    for p in range(2):
        chunk(p)
        for i in range(4): dma(p, i)
    for p in range(2, 10): chunk(p)
    E.i("s_barrier")
    for i in range(4): dma(2, i)
    vPX, vPWW = 108 + 0, 109
    E.i(f"s_and_b32 s{sC}, s3, 3"); E.i(f"s_lshr_b32 s{sMT}, s3, 2")
    vXa = [[5, 6, 7, 8], [112, 113, 114, 115]]; vWa = [[9, 10, 11, 12], [116, 117, 118, 119]]; vQO = [16, 17, 18, 19]
    E.i("v_and_b32 v20, 31, v1"); E.i(f"s_lshl_b32 s52, s{sMT}, 5"); E.i("v_add_u32 v20, s52, v20")
    E.i("v_bfe_u32 v21, v20, 1, 3"); E.i("v_lshrrev_b32 v22, 5, v1"); E.i("v_xor_b32 v21, v21, v22")
    E.i("v_lshlrev_b32 v20, 7, v20"); E.i("v_lshl_add_u32 v20, v21, 4, v20")
    E.i("v_bfe_u32 v21, v1, 2, 2")
    E.i("v_lshrrev_b32 v22, 5, v1"); E.i("v_lshl_add_u32 v22, v22, 3, v21"); E.i("v_lshlrev_b32 v22, 8, v22")
    E.i(f"v_xor_b32 v21, s{sC}, v21"); E.i("v_lshl_add_u32 v22, v21, 6, v22")
    E.i("v_bfe_u32 v21, v1, 4, 1"); E.i("v_lshl_add_u32 v22, v21, 5, v22")
    E.i("v_and_b32 v21, 3, v1"); E.i("v_lshl_add_u32 v22, v21, 3, v22")
    E.i(f"v_add_u32 v22, 16384, v22")
    for sp in range(4):
        E.i(f"s_add_u32 s52, s{sC}, {sp}"); E.i("s_and_b32 s52, s52, 3")
        E.i("s_lshl_b32 s53, s52, 5"); E.i(f"v_xor_b32 v{vXa[0][sp]}, s53, v20"); E.i(f"v_add_u32 v{vXa[1][sp]}, 65536, v{vXa[0][sp]}")
        E.i("s_lshl_b32 s53, s52, 12"); E.i(f"v_add_u32 v{vWa[0][sp]}, s53, v22"); E.i(f"v_add_u32 v{vWa[1][sp]}, 65536, v{vWa[0][sp]}")
    E.i("v_lshrrev_b32 v20, 5, v1")
    E.i(f"s_lshl_b32 s52, s{sC}, 3"); E.i(f"s_lshl_b32 s53, s{sCT}, 5"); E.i("s_add_u32 s52, s52, s53"); E.i("v_add_u32 v20, s52, v20")
    E.i("v_bfe_u32 v21, v1, 4, 1"); E.i(f"s_lshl_b32 s52, s{sMT}, 1"); E.i("v_add_u32 v21, s52, v21"); E.i("v_mul_u32_u24 v21, 640, v21")
    E.i("v_and_b32 v22, 15, v1")
    E.i("s_mov_b32 s52, 81920")
    for a in range(4):
        E.i(f"v_add_u32 v23, {2*a}, v20")
        E.i("v_mul_u32_u24 v24, 0xcccd, v23"); E.i("v_lshrrev_b32 v24, 18, v24")
        E.i("v_mul_u32_u24 v25, 5, v24"); E.i("v_sub_u32 v25, v23, v25")
        E.i("v_mul_lo_u32 v24, v24, s52"); E.i("v_add_u32 v24, v24, v21"); E.i("v_lshl_add_u32 v24, v25, 7, v24")
        E.i("v_and_b32 v25, 2, v25"); E.i("v_lshlrev_b32 v25, 2, v25"); E.i("v_xor_b32 v25, v25, v22")
        E.i(f"v_lshl_add_u32 v{vQO[a]}, v25, 3, v24")
    sQO = 76
    E.i(f"s_mul_i32 s{sQO}, s{sRB}, 2560"); E.i(f"s_add_u32 s{sQO+1}, s{sQO}, 40960")
    M1 = 120
    for r in range(4): E.i(f"v_mov_b32 v{M1+r}, -1")
    ST = 65536; CSL = 65536 + 4096
    vST_W, vST_R, vCS_R = 23, 24, 25
    E.i("v_and_b32 v20, 31, v1"); E.i("v_lshlrev_b32 v21, 6, v20"); E.i(f"s_lshl_b32 s52, s{sMT}, 11"); E.i(f"s_add_u32 s52, s52, {ST}")
    E.i(f"v_add_u32 v{vST_R}, s52, v21"); E.i(f"s_lshl_b32 s52, s{sC}, 4"); E.i(f"v_add_u32 v{vST_W}, s52, v{vST_R}")
    E.i("v_lshrrev_b32 v21, 5, v1"); E.i("v_lshlrev_b32 v21, 4, v21"); E.i(f"s_lshl_b32 s52, s{sC}, 7"); E.i(f"s_add_u32 s52, s52, {CSL}"); E.i(f"v_add_u32 v{vCS_R}, s52, v21")
    s2_scalars(E)
    for ph2 in range(2):
        for a_ in range(4): E.i(f"buffer_store_dwordx2 v[{M1}:{M1+1}], v{vQO[a_]}, {WSR}, s{sQO+ph2} offen{SC}", tag="clr")
    o_clears(E, M1, 125, [0])
    nonce_issue(E, 124)
    E.i("s_barrier")
    for i in range(4): dma(3, i)
    for i in range(4): dma(4, i)
    for p in (5, 6):
        for i in range(4): E.bg_push(("c", p), lambda p=p, i=i: dma(p, i))
    vPX, vPWW = 172, 173
    E.i(f"v_add_u32 v{vPX}, s{sLX}, v2"); E.i(f"v_add_u32 v{vPWW}, s{sLW}, v2")
    E.i(f"v_add_u32 v174, 65536, v{vPX}"); E.i(f"v_add_u32 v175, 65536, v{vPWW}")
    stamp(E, 1, 31)
    ACC = [32, 48]; WFr = 64; XFr = [80, 96]
    SS = [28, 29, 30, 31]; SS2 = [20, 21, 22, 26]
    TX = [128 + i for i in range(16)]
    for r in SS + SS2: E.i(f"v_mov_b32 v{r}, 0")
    ks = [(p, sp) for p in range(10) for sp in range(4)]
    def rd(idx):
        p, sp = ks[idx]
        hi = (p % 4) // 2; off = (p % 2) * 32768
        wf = WFr + 4*sp
        E.i(f"ds_read_b64_tr_b16 v[{wf}:{wf+1}], v{vWa[hi][sp]} offset:{off}", tag=("r", idx))
        E.i(f"ds_read_b64_tr_b16 v[{wf+2}:{wf+3}], v{vWa[hi][sp]} offset:{off+1024}", tag=("r", idx))
        for h in range(2):
            E.i(f"ds_read_b128 v[{XFr[h]+4*sp}:{XFr[h]+4*sp+3}], v{vXa[hi][sp]} offset:{off + h*8192}", tag=("r", idx))
    D = 2
    E.wait_vm(("c", 0)); E.i("s_barrier")
    stamp(E, 44, 27)
    E.bg_period = BGP1
    for idx in range(D): rd(idx)
    work = []; pwq = []
    for idx, (p, sp) in enumerate(ks):
        if sp == 2 and p < 9:
            if p + 1 <= 3 or p + 1 >= 7: E.wait_vm(("c", p + 1))
            if 4 <= p + 1 <= 6: E.wait_lg("pw")
            if p == F0_SET: nonce_get(E, 124)
            if p == F0_CHK: flag_check(E, 126, 0)
            E.i("s_barrier")
            if p in (2, 5, 8): stamp(E, 45 + p//3, 27)
            if p == F0_SET: flag_set(E, 0, 27)
            if 1 <= p <= 3:
                pc = p + 3; sl = (pc % 4) * 32768
                for i in range(4):
                    base = ((vPX, vPWW), (174, 175))[sl >= 65536][i >= 2]
                    off = (sl % 65536) + (i*8192 if i < 2 else (i-2)*1024)
                    r = PK + 16*(pc-4) + 4*i
                    pwq.append((pc, f"ds_write_b128 v{base}, v[{r}:{r+3}] offset:{off}"))
            if p == F0_CHK - 1: flag_issue(E, 126, 0)
            if p == F0_CHK:
                E.i("v_lshrrev_b32 v13, 2, v2"); E.i(f"s_lshl_b32 s52, s{sCT}, 9"); E.i(f"s_add_u32 s52, s52, {CS1}")
                E.i(f"buffer_load_dword v126, v13, {WSR}, s52 offen{SC}", tag="cs1")
                E.i(f"buffer_load_dword v127, v13, {WSR}, s52 offen offset:256{SC}", tag="cs1")
            if 4 <= p <= 6:
                for i in range(4): dma(p + 3, i)
            if p == 3: s0_issue(E, 14, 0)
        wf = WFr + 4*sp
        E.wait_lg(("r", idx))
        for h in range(2):
            c = "0" if idx == 0 else f"v[{ACC[h]}:{ACC[h]+15}]"
            E.i(f"v_mfma_f32_32x32x16_bf16 v[{ACC[h]}:{ACC[h]+15}], v[{wf}:{wf+3}], v[{XFr[h]+4*sp}:{XFr[h]+4*sp+3}], {c}")
            if sp == 0 and "nostat" not in OPT:
                for q in range(4):
                    E.i(f"v_lshlrev_b32 v{TX[8*h+2*q]}, 16, v{XFr[h]+q}"); E.i(f"v_and_b32 v{TX[8*h+2*q+1]}, 0xffff0000, v{XFr[h]+q}")
                for q in range(8):
                    sx = (SS if q & 1 else SS2)[2*h]; sxx = (SS if q & 1 else SS2)[2*h+1]
                    work.append(f"v_add_f32 v{sx}, v{sx}, v{TX[8*h+q]}")
                    work.append(f"v_fmac_f32 v{sxx}, v{TX[8*h+q]}, v{TX[8*h+q]}")
            else:
                n = 6 if sp < 3 else len(work) if h == 1 else 4
                for _ in range(min(n, len(work))): E.i(work.pop(0))
            if h == 0 and idx + D < len(ks): rd(idx + D)
            if h == 1 and pwq:
                pc, t_ = pwq.pop(0)
                E.wait_vm(("c", pc)); E.i(t_, tag="pw")
    E.wait_vm("cs1")
    E.i(f"v_add_u32 v13, {CSL}, v13"); E.i("ds_write_b32 v13, v126"); E.i("ds_write_b32 v13, v127 offset:256")
    stamp(E, 2, 27)
    E.bg_flush()
    for j in range(4): E.i(f"v_add_f32 v{SS[j]}, v{SS[j]}, v{SS2[j]}")
    for j in range(4): E.i(f"v_mov_b32 v{SS2[j]}, v{SS[j]}")
    for j in range(4): E.i(f"v_permlane32_swap_b32 v{SS[j]}, v{SS2[j]}")
    for j in range(4): E.i(f"v_add_f32 v{SS[j]}, v{SS[j]}, v{SS2[j]}")
    E.i(f"ds_write_b128 v{vST_W}, v[28:31]")
    E.wait_lg()
    E.i("s_barrier")
    for j in range(4): E.i(f"ds_read_b128 v[{80+4*j}:{83+4*j}], v{vST_R} offset:{16*j}")
    CS = 64
    for a in range(4): E.i(f"ds_read_b128 v[{CS+4*a}:{CS+4*a+3}], v{vCS_R} offset:{a*32}")
    E.wait_lg()
    for j in range(4):
        E.i(f"v_add_f32 v{80+j}, v{80+j}, v{84+j}"); E.i(f"v_add_f32 v{88+j}, v{88+j}, v{92+j}"); E.i(f"v_add_f32 v{SS[j]}, v{80+j}, v{88+j}")
    for h in range(2):
        SX, SXX = SS[2*h], SS[2*h+1]
        stats_math(E, SX, SXX)
        for a in range(4):
            A_ = ACC[h] + 4*a
            for b in range(4): E.i(f"v_fma_f32 v{A_+b}, v{SX}, v{CS+4*a+b}, v{A_+b}")
            for b in range(4): E.i(f"v_mul_f32 v{A_+b}, v{SXX}, v{A_+b}")
            o = 96 + 8*h + 2*a
            E.i(f"v_cvt_pk_bf16_f32 v{o}, v{A_}, v{A_+1}")
            E.i(f"v_cvt_pk_bf16_f32 v{o+1}, v{A_+2}, v{A_+3}")
            E.i(f"v_min_u32 v{o}, s{sM1}, v{o}"); E.i(f"v_min_u32 v{o+1}, s{sM1}, v{o+1}")
            E.i(f"buffer_store_dwordx2 v[{o}:{o+1}], v{vQO[a]}, {WSR}, s{sQO+h} offen{SC}", tag="st")
    stamp(E, 5, 27)
    assert not E.bgq
F0_SET, F0_CHK = 2, 7
BGP1 = int(os.environ.get("BGP1", "70"))
```

```python
from k7a import *

sRB3, sCT3, sCG4, sRB4 = 86, 87, 88, 89
W3R = 156; A3 = [68, 108]; ACC3 = 28
W5P1 = 168
AFR = 88
W5reg = lambda j: (W5P1 + 4*j) if j < 22 else (AFR + 48 + 4*(j-22))
A5 = [lambda f: AFR + 4*f, lambda f: (56 + 4*f) if f < 8 else (AFR + 4*(f-8))]
vA3 = 3
S2B_AT = int(os.environ.get("S2B_AT", "5"))
S3A_AT = int(os.environ.get("S3A_AT", "6"))

def late_scalars(E):
    E.i("s_and_b32 s52, s2, 7"); E.i("s_lshr_b32 s53, s2, 3")
    E.i(f"s_lshr_b32 s{sRB3}, s52, 1"); E.i(f"s_lshl_b32 s{sRB3}, s{sRB3}, 3"); E.i("s_lshr_b32 s54, s53, 2"); E.i(f"s_add_u32 s{sRB3}, s{sRB3}, s54")
    E.i(f"s_and_b32 s{sCT3}, s52, 1"); E.i(f"s_lshl_b32 s{sCT3}, s{sCT3}, 2"); E.i("s_and_b32 s54, s53, 3"); E.i(f"s_add_u32 s{sCT3}, s{sCT3}, s54")
    E.i(f"s_lshr_b32 s{sRB4}, s52, 2"); E.i(f"s_lshl_b32 s{sRB4}, s{sRB4}, 2"); E.i("s_lshr_b32 s54, s53, 3"); E.i(f"s_add_u32 s{sRB4}, s{sRB4}, s54")
    E.i(f"s_and_b32 s{sCG4}, s52, 3"); E.i(f"s_lshl_b32 s{sCG4}, s{sCG4}, 3"); E.i("s_and_b32 s54, s53, 7"); E.i(f"s_add_u32 s{sCG4}, s{sCG4}, s54")

def ld_unit(E, r, sbase, j, tag, vaddr=2, unit=1024):
    off = j * unit
    if off < 4096:
        E.i(f"buffer_load_dwordx4 v[{r}:{r+3}], v{vaddr}, {WSR}, s{sbase} offen offset:{off}{SC}", tag=tag)
    else:
        E.i(f"s_add_u32 s100, s{sbase}, {off - off % 4096}")
        E.i(f"buffer_load_dwordx4 v[{r}:{r+3}], v{vaddr}, {WSR}, s100 offen offset:{off % 4096}{SC}", tag=tag)

sWP, sW4, sW5, sA3, sA4, sA5, sHS, sHH = 56, 57, 59, 60, 62, 63, 65, 66
def bases(E):
    E.i(f"s_mul_i32 s{sW5}, s{sCT3}, 245760"); E.i("s_mul_i32 s53, s3, 30720"); E.i(f"s_add_u32 s{sW5}, s{sW5}, s53"); E.i(f"s_add_u32 s{sW5}, s{sW5}, {W5F}")
    E.i(f"s_mul_i32 s52, s{sCT3}, 102400"); E.i("s_mul_i32 s53, s3, 25600"); E.i("s_add_u32 s52, s52, s53"); E.i(f"s_add_u32 s52, s52, {W3F}")
    E.i(f"s_sub_u32 s53, s{sW5}, 3072")
    E.i("s_cmp_lt_u32 s3, 4"); E.i(f"s_cselect_b32 s{sWP}, s52, s53")
    E.i(f"s_mul_i32 s{sW4}, s{sCG4}, 122880"); E.i(f"s_add_u32 s{sW4}, s{sW4}, {W4F}"); E.i(f"s_lshl_b32 s{sW4+1}, s3, 10"); E.i(f"s_add_u32 s{sW4}, s{sW4}, s{sW4+1}")
    E.i(f"s_mul_i32 s{sA3}, s{sRB3}, 40960"); E.i("s_and_b32 s53, s3, 3"); E.i("s_mul_i32 s53, s53, 5120"); E.i(f"s_add_u32 s{sA3}, s{sA3}, s53"); E.i(f"s_add_u32 s{sA3}, s{sA3}, {OF}")
    E.i(f"s_add_u32 s{sA3+1}, s{sA3}, {64*20480}")
    E.i("s_lshr_b32 s52, s3, 2"); E.i("s_lshl_b32 s52, s52, 3"); E.i(f"s_add_u32 s52, s52, s{sRB4}"); E.i("s_lshl_b32 s52, s52, 2"); E.i("s_and_b32 s53, s3, 3"); E.i("s_add_u32 s52, s52, s53")
    E.i(f"s_mul_i32 s{sA4}, s52, 40960"); E.i(f"s_add_u32 s{sA4}, s{sA4}, {HF}")
    E.i(f"s_lshl_b32 s{sHS}, s52, 11"); E.i(f"s_add_u32 s{sHS}, s{sHS}, {HSTB}")
    E.i(f"s_mul_i32 s{sHH}, s52, 98304"); E.i(f"s_mul_i32 s53, s{sCG4}, 3072"); E.i(f"s_add_u32 s{sHH}, s{sHH}, s53"); E.i(f"s_add_u32 s{sHH}, s{sHH}, {HHF}")
    E.i(f"s_mul_i32 s{sA5}, s{sRB3}, 98304"); E.i("s_mul_i32 s53, s3, 12288"); E.i(f"s_add_u32 s{sA5}, s{sA5}, s53"); E.i(f"s_add_u32 s{sA5}, s{sA5}, {HHF}")
    E.i(f"s_add_u32 s{sA5+1}, s{sA5}, {32*98304}")

def w4_unit(E, base):
    E.i(f"s_add_u32 m0, s{sW4+1}, {base*1024}"); E.i(f"s_add_u32 s100, s{sW4}, {base*1024}")
    E.i(f"buffer_load_dwordx4 v2, {WSR}, s100 offen{SC} lds", tag="w4")

def a3_load(E, ph, k, u, h):
    r = A3[ph] + (2*k + u)*4 + 2*h
    off = u*20480 + k*1024 + h*128
    E.i(f"s_add_u32 s100, s{sA3+ph}, {off - off % 4096}")
    E.i(f"buffer_load_dwordx2 v[{r}:{r+1}], v{vA3}, {WSR}, s100 offen offset:{off % 4096}{SC}", tag=("a3", ph, k))
def a3_all(E, ph):
    for k in range(5):
        for u in range(2):
            for h in range(2): a3_load(E, ph, k, u, h)

def s2(E):
    KV = [122880, 92160]
    PF = [96, 136]
    stamp(E, 6, 31)
    s0_finish(E, 144, 14, 0)
    L1, L2, K1, K2, V0, V1 = 4, 5, 6, 7, 8, 9
    MF, ML, ONES, QF, O0 = 12, 16, 20, 24, 28
    vO, vW, M0_, M1_, vD = 10, 11, 32, 33, 34
    KF = 36; O1, LL = 60, 64; S = 68
    M1R = 132
    s2_laneoffs(E, L1, L2, 24, 25)
    E.i("v_and_b32 v24, 15, v1"); E.i("v_lshrrev_b32 v25, 4, v1")
    E.i("s_mul_i32 s52, s3, 640"); E.i(f"s_add_u32 s52, s52, {KV[0]}")
    E.i(f"v_add_u32 v{K1}, s52, v{L1}"); E.i(f"v_add_u32 v{K2}, s52, v{L2}")
    E.i("v_lshrrev_b32 v26, 2, v1"); E.i("v_and_b32 v27, 3, v1")
    E.i("v_and_b32 v28, 2, v27"); E.i("v_lshlrev_b32 v28, 2, v28"); E.i("v_xor_b32 v28, v28, v26"); E.i("v_lshlrev_b32 v28, 3, v28"); E.i("v_lshl_add_u32 v28, v27, 7, v28")
    E.i("s_add_u32 s52, s52, 15360")
    E.i(f"v_add_u32 v{V0}, s52, v28")
    E.i("v_lshlrev_b32 v28, 3, v26"); E.i("v_add_u32 v28, 512, v28"); E.i(f"v_add_u32 v{V1}, s52, v28")
    E.i("v_lshlrev_b32 v26, 2, v25"); E.i(f"v_mov_b32 v27, {NEG:#x}")
    for r in range(4):
        E.i(f"v_add_u32 v28, {r}, v26")
        E.i("v_cmp_gt_u32 vcc, v28, v24")
        E.i(f"v_cndmask_b32 v{MF+r}, v27, 0, vcc")
        E.i(f"v_cndmask_b32 v{ML+r}, 0, v27, vcc")
    for r in range(4): E.i(f"v_mov_b32 v{ONES+r}, s{sONE}")
    E.i(f"v_lshlrev_b32 v{vO}, 3, v1")
    E.i("s_mul_i32 s52, s3, 3840"); E.i(f"s_add_u32 s52, s52, {KV[0]}"); E.i(f"v_add_u32 v{vW}, s52, v2")
    sC = 78
    E.i(f"s_mov_b32 s{sC}, {f2u((20 ** -0.5) * math.log2(math.e)):#x}")
    late_scalars(E); bases(E)
    E.i(f"v_lshlrev_b32 v{vA3}, 8, v25"); E.i(f"v_lshl_add_u32 v{vA3}, v24, 3, v{vA3}")
    E.wait_vm()
    E.i("s_barrier")
    flag_set(E, 1, 35)
    stamp(E, 10, 35)
    s2_loads(E, PF[0], 0, vD, L1, L2); s2_loads(E, PF[1], 1, vD, L1, L2)
    CLRQ = []
    for t in range(3): CLRQ.append(lambda t=t: E.i(f"buffer_store_dwordx4 v[{M1R}:{M1R+3}], v2, {WSR}, s{sHH} offen offset:{t*1024}{SC}", tag="clr3"))
    E.i(f"s_mul_i32 s69, s{sRB3}, 40960"); E.i(f"s_mul_i32 s53, s{sCT3}, 5120"); E.i("s_add_u32 s69, s69, s53"); E.i(f"s_add_u32 s69, s69, {HF}")
    E.i("s_mul_i32 s53, s3, 640"); E.i("s_add_u32 s69, s69, s53"); E.i(f"s_add_u32 s70, s69, {32*40960}")
    E.i(f"s_lshl_b32 s71, s{sRB3}, 11"); E.i(f"s_lshl_b32 s53, s{sCT3}, 8"); E.i("s_add_u32 s71, s71, s53"); E.i("s_and_b32 s53, s3, 1"); E.i("s_lshl_b32 s53, s53, 16"); E.i("s_add_u32 s71, s71, s53"); E.i(f"s_add_u32 s71, s71, {HSTB}")
    def hclr(sr, lanes):
        E.i(f"s_mov_b32 exec_hi, {(1 << (lanes-32)) - 1 if lanes > 32 else 0:#x}")
        if lanes < 32: E.i(f"s_mov_b32 exec_lo, {(1 << lanes) - 1:#x}")
        E.i(f"buffer_store_dwordx4 v[{M1R}:{M1R+3}], v2, {WSR}, s{sr} offen{SC}", tag="clr3")
        E.i("s_mov_b64 exec, -1")
    CLRQ += [lambda: hclr(69, 40), lambda: hclr(70, 40), lambda: hclr(71, 16)]
    E.bg_period = BGP
    for ph in range(2):
        P = PF[ph]
        Lb = E.newlabel("s2v")
        E.wait_vm(("kv", ph))
        E.label(Lb)
        E.bg_lock += 1
        maxtree(E, M0_, range(P, P+20), True)
        check_retry(E, M0_, Lb, lambda: s2_loads(E, P, ph, vD, L1, L2))
        E.bg_lock -= 1
        stamp(E, 7 + 4*ph, 35)
        E.bg_lock += 1
        for i in range(4):
            if i == 3: E.i("s_mov_b32 exec_hi, 0xffff")
            E.i(f"ds_write_b128 v{vW}, v[{P+4*i}:{P+4*i+3}] offset:{i*1024}")
        E.i("s_mov_b64 exec, -1")
        E.bg_lock -= 1
        for r in range(4): E.i(f"v_mov_b32 v{QF+r}, v{P+16+r}")
        if ph == 1: E.wait_vm("clr3")
        else:
            flag_issue(E, 126, 1); flag_check(E, 126, 1)
        E.wait_lg()
        E.i("s_barrier")
        if ph == 1: flag_set(E, 2, 35)
        stamp(E, 8 + 4*ph, 35)
        if ph == 0:
            E.bg_lock += 1
            for r in range(4): E.i(f"v_mov_b32 v{M1R+r}, -1")
            for f_ in CLRQ: f_()
            E.bg_lock -= 1
            for j in range(25): E.bg_push("wp", lambda j=j: ld_unit(E, W3R + 4*j, sWP, j, "wp"))
            for g in range(11): E.bg_push("w4", lambda g=g: w4_unit(E, 2 + 8*g))
        NB = 6
        def rdk(t):
            r = KF + 4*(t % NB)
            E.i(f"ds_read_b64 v[{r}:{r+1}], v{K1} offset:{t*640}", tag=("k", t))
            E.i(f"ds_read_b64 v[{r+2}:{r+3}], v{K2} offset:{t*640}", tag=("k", t))
        for t in range(NB - 1): rdk(t)
        for t in range(17):
            if t + NB - 1 < 17: rdk(t + NB - 1)
            E.wait_lg(("k", t))
            r = KF + 4*(t % NB)
            c = f"v[{MF}:{MF+3}]" if t == 0 else (f"v[{ML}:{ML+3}]" if t == 16 else "0")
            E.i(f"v_mfma_f32_16x16x32_bf16 v[{S+4*t}:{S+4*t+3}], v[{r}:{r+3}], v[{QF}:{QF+3}], {c}")
        def rdv(k):
            for dt in range(2):
                for h in range(2):
                    t = min(2*k + h, 16); r = KF + 8*(k % 3) + 4*dt + 2*h
                    E.i(f"ds_read_b64_tr_b16 v[{r}:{r+1}], v{V1 if dt else V0} offset:{t*640}", tag=("v", k))
        for k in range(3): rdv(k)
        if ph == 0:
            Lok = E.newlabel("s2ok")
            E.bg_lock += 1
            E.i(f"s_add_u32 s52, s{sTB2}, s3")
            for t in range(16):
                E.i(f"s_cmp_ge_u32 s52, {16 - t}")
                E.branch(f"s_cbranch_scc1 {Lok}")
                for r in range(4): E.i(f"v_mov_b32 v{S+4*t+r}, {NEG:#x}")
            E.label(Lok)
            E.bg_lock -= 1
        E.i(f"v_max_f32 v{M0_}, v{S}, v{S+1}"); E.i(f"v_max_f32 v{M1_}, v{S+2}, v{S+3}")
        for j in range(4, 68, 4):
            E.i(f"v_max3_f32 v{M0_}, v{S+j}, v{S+j+1}, v{M0_}"); E.i(f"v_max3_f32 v{M1_}, v{S+j+2}, v{S+j+3}, v{M1_}")
        E.i(f"v_max_f32 v{M0_}, v{M0_}, v{M1_}")
        E.i(f"v_mov_b32 v{M1_}, v{M0_}"); E.i(f"v_permlane16_swap_b32 v{M0_}, v{M1_}"); E.i(f"v_max_f32 v{M0_}, v{M0_}, v{M1_}")
        E.i(f"v_mov_b32 v{M1_}, v{M0_}"); E.i(f"v_permlane32_swap_b32 v{M0_}, v{M1_}"); E.i(f"v_max_f32 v{M0_}, v{M0_}, v{M1_}")
        E.i(f"v_mul_f32 v{M0_}, s{sC}, v{M0_}")
        for k in range(9):
            n = 8 if k < 8 else 4
            b = S + 8*k
            if ph == 1 and k == S3A_AT:
                Lg = E.newlabel("a3g")
                E.i("s_cmp_ge_u32 s3, 4"); E.branch(f"s_cbranch_scc1 {Lg}")
                with side(E): a3_all(E, 0)
                E.label(Lg)
                E.mark("a3A")
            for j in range(n): E.i(f"v_fma_f32 v{b+j}, v{b+j}, s{sC}, -v{M0_}")
            for j in range(n): E.i(f"v_exp_f32 v{b+j}, v{b+j}")
            for j in range(n // 2): E.i(f"v_cvt_pk_bf16_f32 v{b+j}, v{b+2*j}, v{b+2*j+1}")
            if k == 8:
                E.i(f"v_mov_b32 v{b+2}, 0"); E.i(f"v_mov_b32 v{b+3}, 0")
            E.wait_lg(("v", k))
            vf = KF + 8*(k % 3)
            for (a, src) in ((O0, f"v[{vf}:{vf+3}]"), (O1, f"v[{vf+4}:{vf+7}]"), (LL, f"v[{ONES}:{ONES+3}]")):
                c = "0" if k == 0 else f"v[{a}:{a+3}]"
                E.i(f"v_mfma_f32_16x16x32_bf16 v[{a}:{a+3}], {src}, v[{b}:{b+3}], {c}")
            if k + 3 < 9: rdv(k + 3)
        stamp(E, 9 + 4*ph, 35)
        E.bg_lock += 1
        E.i(f"v_rcp_f32 v{M0_}, v{LL}")
        for r in range(4): E.i(f"v_mul_f32 v{O0+r}, v{O0+r}, v{M0_}")
        for r in range(4): E.i(f"v_mul_f32 v{O1+r}, v{O1+r}, v{M0_}")
        E.i(f"v_cvt_pk_bf16_f32 v{O0}, v{O0}, v{O0+1}"); E.i(f"v_cvt_pk_bf16_f32 v{O0+1}, v{O0+2}, v{O0+3}")
        E.i(f"v_cvt_pk_bf16_f32 v{O0+2}, v{O1}, v{O1+1}"); E.i(f"v_cvt_pk_bf16_f32 v{O0+3}, v{O1+2}, v{O1+3}")
        for r in range(4): E.i(f"v_min_u32 v{O0+r}, s{sM1}, v{O0+r}")
        E.i(f"buffer_store_dwordx2 v[{O0}:{O0+1}], v{vO}, {WSR}, s{sOo+ph} offen{SC}", tag="st")
        E.i("s_mov_b64 exec, 0xffff")
        E.i(f"buffer_store_dwordx2 v[{O0+2}:{O0+3}], v{vO}, {WSR}, s{sOo+ph} offen offset:512{SC}", tag="st")
        E.i("s_mov_b64 exec, -1")
        E.bg_lock -= 1
        if ph == 0:
            for r in (K1, K2, V0, V1, vW): E.i(f"v_subrev_u32 v{r}, {KV[0]-KV[1]}, v{r}")
    E.bg_flush()

def final_sum(E, vPR, nslots, T, off0, vt):
    for half in range(nslots // 4):
        for w in range(4):
            off = off0 + (half*4 + w)*10240
            for g in range(2):
                o = off + g*256
                r = T + 8 + (w*2+g)*4
                if o > 65535:
                    E.i(f"v_add_u32 v{vt}, 40960, v{vPR}"); E.i(f"ds_read_b128 v[{r}:{r+3}], v{vt} offset:{o-40960}")
                else:
                    E.i(f"ds_read_b128 v[{r}:{r+3}], v{vPR} offset:{o}")
        E.wait_lg()
        for j in range(8):
            g, b = j // 4, j % 4
            sr = [T + 8 + (w*2+g)*4 + b for w in range(4)]
            E.i(f"v_add_f32 v{sr[0]}, v{sr[0]}, v{sr[1]}"); E.i(f"v_add_f32 v{sr[2]}, v{sr[2]}, v{sr[3]}")
            if half == 0: E.i(f"v_add_f32 v{T+j}, v{sr[0]}, v{sr[2]}")
            else:
                E.i(f"v_add_f32 v{T+j}, v{T+j}, v{sr[0]}"); E.i(f"v_add_f32 v{T+j}, v{T+j}, v{sr[2]}")

def add_res_pack(E, T, RES, OUT, vt, clamp):
    for j in range(4):
        E.i(f"v_lshlrev_b32 v{vt}, 16, v{RES+j}"); E.i(f"v_add_f32 v{T+2*j}, v{T+2*j}, v{vt}")
        E.i(f"v_and_b32 v{vt}, 0xffff0000, v{RES+j}"); E.i(f"v_add_f32 v{T+2*j+1}, v{T+2*j+1}, v{vt}")
    for j in range(4):
        E.i(f"v_cvt_pk_bf16_f32 v{OUT+j}, v{T+2*j}, v{T+2*j+1}")
        if clamp: E.i(f"v_min_u32 v{OUT+j}, s{sM1}, v{OUT+j}")

def lane_pr(E, dst, t0, t1):
    E.i(f"v_bfe_u32 v{t0}, v1, 4, 1"); E.i(f"v_mul_u32_u24 v{t0}, 5120, v{t0}"); E.i(f"v_lshrrev_b32 v{t1}, 5, v1"); E.i(f"v_lshl_add_u32 v{t0}, v{t1}, 9, v{t0}")
    E.i(f"v_and_b32 v{t1}, 15, v1"); E.i(f"v_lshl_add_u32 v{dst}, v{t1}, 4, v{t0}")
def lane_xr(E, dst, t0, t1):
    E.i(f"v_and_b32 v{t0}, 31, v1"); E.i(f"v_mul_u32_u24 v{t0}, 1280, v{t0}"); E.i(f"v_lshrrev_b32 v{t1}, 5, v1"); E.i(f"v_lshl_add_u32 v{dst}, v{t1}, 4, v{t0}")

def a4_load(E, i):
    ld_unit(E, AFR + 4*(i % 20), sA4, i, ("a4", i))

AUXB = 0
CSF = 2048
WF4 = 64
def w4_first(E):
    E.i(f"s_sub_u32 s52, s{sW4}, s{sW4+1}")
    for t in range(3): ld_unit(E, WF4 + 4*t, 52, t, "w40")
def s3(E):
    stamp(E, 14, 35)
    LG1, LJ = E.newlabel("s3g1"), E.newlabel("s3j")
    vm0 = list(E.vm)
    E.i("s_cmp_ge_u32 s3, 4"); E.branch(f"s_cbranch_scc1 {LG1}")
    vPW, vM = 4, 5
    E.i("s_mul_i32 s52, s3, 10240"); E.i(f"s_add_u32 s52, s52, {SCR}"); E.i(f"v_add_u32 v{vPW}, s52, v2")
    for ph in range(2):
        Lb = E.newlabel("s3v")
        if ph == 0: E.wait_vm("wp"); E.wait_vm("a3A")
        else: E.wait_vm("w4")
        E.label(Lb)
        for k in range(5):
            if ph == 1: E.wait_vm(("a3", 1, k))
            for u in range(2):
                af = A3[ph] + (2*k+u)*4
                for nt in range(5):
                    a = ACC3 + (u*5+nt)*4; wf = W3R + (k*5+nt)*4
                    c = "0" if k == 0 else f"v[{a}:{a+3}]"
                    E.i(f"v_mfma_f32_16x16x32_bf16 v[{a}:{a+3}], v[{wf}:{wf+3}], v[{af}:{af+3}], {c}")
                maxtree(E, vM, range(af, af+4), k == 0 and u == 0)
        check_retry(E, vM, Lb, lambda: a3_all(E, ph))
        stamp(E, 15 + 3*ph, 6)
        if ph == 0: a3_all(E, 1)
        else:
            for i in range(S4_FIRST): a4_load(E, i)
        E.i("s_barrier")
        for j in range(10): E.i(f"ds_write_b128 v{vPW}, v[{ACC3+4*j}:{ACC3+4*j+3}] offset:{j*1024}")
        E.wait_lg()
        if ph == 1: w4_first(E)
        E.i("s_barrier")
        stamp(E, 16 + 3*ph, 6)
    for i in range(S4_FIRST, 20): a4_load(E, i)
    for j in range(22): E.bg_push(("w5", j), lambda j=j: ld_unit(E, W5reg(j), sW5, j, ("w5", j)))
    g0q = E.bgq; E.bgq = []
    g0vm = list(E.vm)
    E.i("s_barrier")
    s4(E, 0, g0q)
    g0end = list(E.vm)
    E.branch(f"s_branch {LJ}")
    E.label(LG1)
    E.vm = vm0; E.lg = []
    vPR, vXR, T, RES = 4, 5, 40, 88
    E.i(f"s_sub_u32 s{sW4}, s{sW4}, 4096"); E.i(f"s_sub_u32 s{sW4+1}, s{sW4+1}, 4096")
    lane_pr(E, vPR, 6, 7); lane_xr(E, vXR, 6, 7)
    E.i(f"v_add_u32 v{vPR}, s{sW4+1}, v{vPR}"); E.i(f"v_add_u32 v{vPR}, {SCR}, v{vPR}")
    E.i(f"s_lshr_b32 s52, s{sW4+1}, 5"); E.i(f"v_add_u32 v{vXR}, s52, v{vXR}")
    E.i(f"s_mul_i32 s52, s{sRB3}, 40960"); E.i(f"s_mul_i32 s53, s{sCT3}, 160"); E.i("s_add_u32 s52, s52, s53"); E.i("s_add_u32 s53, s52, 1310720")
    for ph in range(2):
        E.i(f"buffer_load_dwordx4 v[{RES+8*ph}:{RES+8*ph+3}], v{vXR}, s[{SRD_X}:{SRD_X+3}], s{52+ph} offen", tag="res")
        E.i(f"buffer_load_dwordx4 v[{RES+8*ph+4}:{RES+8*ph+7}], v{vXR}, s[{SRD_X}:{SRD_X+3}], s{52+ph} offen offset:128", tag="res")
    E.i("v_lshlrev_b32 v6, 2, v1"); E.i(f"s_mul_i32 s52, s{sCG4}, 384"); E.i(f"s_add_u32 s52, s52, {CSW}")
    E.i(f"buffer_load_dword v36, v6, {WSR}, s52 offen{SC}", tag="cs")
    E.i(f"buffer_load_dword v37, v6, {WSR}, s52 offen offset:256{SC}", tag="cs")
    flag_issue(E, 38, 2, True)
    sHW = 67
    E.i(f"s_mul_i32 s{sHW}, s{sRB3}, 40960"); E.i(f"s_mul_i32 s53, s{sCT3}, 5120"); E.i(f"s_add_u32 s{sHW}, s{sHW}, s53"); E.i(f"s_add_u32 s{sHW}, s{sHW}, s{sW4+1}"); E.i(f"s_add_u32 s{sHW}, s{sHW}, {HF}")
    E.i(f"s_add_u32 s{sHW+1}, s{sHW}, {32*40960}")
    E.i("s_barrier")
    for i in range(7): w4_unit(E, 90 + 4*i)
    Lq = E.newlabel("w4q"); E.i("s_cmp_ge_u32 s3, 6"); E.branch(f"s_cbranch_scc1 {Lq}")
    with side(E): w4_unit(E, 118)
    E.label(Lq)
    E.mark("w4")
    flag_check(E, 38, 2, True)
    for ph in range(2):
        E.i("s_barrier")
        stamp(E, 17 + 3*ph, 6, wave=4)
        E.wait_vm("res")
        for unit in range(2):
            Lu = None
            if unit == 1:
                Lu = E.newlabel("fin4"); E.i("s_cmp_lg_u32 s3, 4"); E.branch(f"s_cbranch_scc1 {Lu}")
                cm = side(E); cm.__enter__()
            final_sum(E, vPR, 4, T, unit*4096, 6)
            add_res_pack(E, T, RES + 8*ph + 4*unit, 84, 6, True)
            if unit == 0: E.i(f"buffer_store_dwordx4 v[84:87], v2, {WSR}, s{sHW+ph} offen{SC}", tag="st")
            else:
                E.i(f"s_add_u32 s52, s{sHW+ph}, 4096"); E.i(f"buffer_store_dwordx4 v[84:87], v2, {WSR}, s52 offen{SC}")
            if unit == 0:
                E.i(f"v_add_f32 v8, v{T}, v{T+1}"); E.i(f"v_mul_f32 v9, v{T}, v{T}"); E.i(f"v_mul_f32 v11, v{T+1}, v{T+1}"); E.i(f"v_add_f32 v10, v{T+2}, v{T+3}")
                for j in range(2, 8): E.i(f"v_fmac_f32 v{9 if j&1 else 11}, v{T+j}, v{T+j}")
                for j in range(4, 8): E.i(f"v_add_f32 v{8 if j&1 else 10}, v{8 if j&1 else 10}, v{T+j}")
            else:
                for j in range(8):
                    E.i(f"v_fmac_f32 v{9 if j&1 else 11}, v{T+j}, v{T+j}"); E.i(f"v_add_f32 v{8 if j&1 else 10}, v{8 if j&1 else 10}, v{T+j}")
                cm.__exit__(); E.label(Lu)
        E.i("v_add_f32 v8, v8, v10"); E.i("v_add_f32 v9, v9, v11")
        E.i("v_mov_b32 v10, v8"); E.i("v_mov_b32 v11, v9")
        E.i("v_permlane32_swap_b32 v8, v10"); E.i("v_permlane32_swap_b32 v9, v11")
        E.i("v_add_f32 v8, v8, v10"); E.i("v_add_f32 v9, v9, v11")
        E.i("v_and_b32 v12, 31, v1"); E.i("v_lshlrev_b32 v12, 3, v12"); E.i(f"s_lshr_b32 s52, s{sW4+1}, 2"); E.i(f"s_add_u32 s52, s52, {AUXB + ph*1024}"); E.i("v_add_u32 v10, s52, v12")
        E.i("ds_write_b64 v10, v[8:9]")
        if ph == 1:
            E.wait_vm("cs"); E.wait_vm("w4")
            E.i(f"v_lshlrev_b32 v10, 2, v1"); E.i(f"ds_write_b32 v10, v36 offset:{CSF}"); E.i(f"ds_write_b32 v10, v37 offset:{CSF+256}")
            w4_first(E)
        E.wait_lg()
        stamp(E, 34 + ph, 6, wave=4)
        E.i("s_barrier")
        Ls = E.newlabel("hst")
        E.i("s_cmp_lg_u32 s3, 7"); E.branch(f"s_cbranch_scc1 {Ls}")
        with side(E):
            E.i(f"v_add_u32 v10, {AUXB + ph*1024}, v12")
            for j in range(4): E.i(f"ds_read_b64 v[{40+2*j}:{41+2*j}], v10 offset:{j*256}")
            E.i("s_waitcnt lgkmcnt(0)")
            for j in range(1, 4):
                E.i(f"v_add_f32 v40, v40, v{40+2*j}"); E.i(f"v_add_f32 v41, v41, v{41+2*j}")
            E.i(f"v_min_u32 v40, s{sM1}, v40"); E.i(f"v_min_u32 v41, s{sM1}, v41")
            E.i(f"s_lshl_b32 s52, s{sRB3}, 11"); E.i(f"s_lshl_b32 s53, s{sCT3}, 8"); E.i("s_add_u32 s52, s52, s53"); E.i(f"s_add_u32 s52, s52, {HSTB + ph*32*2048}")
            E.i("s_mov_b32 exec_hi, 0")
            E.i(f"buffer_store_dwordx2 v[40:41], v12, {WSR}, s52 offen{SC}")
            E.i("s_mov_b64 exec, -1")
        E.label(Ls)
    s4(E, 1, [])
    E.label(LJ)
    E.vm = ["st"]; E.lg = []
S4_FIRST = 5
WP_FIRST = int(os.environ.get("WP_FIRST", "6"))
WP_SECOND = int(os.environ.get("WP_SECOND", "4"))

vA5 = 7
def a5_load(E, ph, f):
    k, u = f // 2, f % 2
    r = A5[ph](f); off = k*2048 + u*256
    E.i(f"s_add_u32 s100, s{sA5+ph}, {off - off % 4096}")
    E.i(f"buffer_load_dwordx4 v[{r}:{r+3}], v{vA5}, {WSR}, s100 offen offset:{off % 4096}{SC}", tag=("a5", ph, f))

def probe(E, sbase, shift, n, va, vd):
    L, Lok = E.newlabel("prb"), E.newlabel("prbok")
    E.bg_lock += 1
    E.i(f"v_min_u32 v{va}, {n-1}, v1"); E.i(f"v_lshlrev_b32 v{va}, {shift}, v{va}")
    E.label(L)
    E.i(f"buffer_load_dword v{vd}, v{va}, {WSR}, s{sbase} offen offset:12{SC}")
    E.i("s_waitcnt vmcnt(0)"); E.vm = []
    E.i(f"v_cmp_eq_u32 vcc, -1, v{vd}")
    E.branch(f"s_cbranch_vccz {Lok}")
    E.i(f"s_add_u32 s{sRETRY}, s{sRETRY}, 1"); E.i(f"s_cmp_gt_u32 s{sRETRY}, {RETRY_MAX}")
    E.branch(f"s_cbranch_scc0 {L}")
    E.label(Lok)
    E.bg_lock -= 1

def s4(E, g, q0):
    vWB, vWB2, vCSR, vM = 3, 4, 6, 5
    ST = 8; SX, SXX = 8, 9
    ACC = 16; WF = WF4
    stamp(E, 21 if g == 0 else 24, 15, wave=4*g)
    if g == 0: E.i("s_setprio 1")
    E.i(f"v_add_u32 v{vWB2}, 61440, v2")
    E.i("v_lshrrev_b32 v8, 5, v1"); E.i("v_lshlrev_b32 v8, 4, v8"); E.i(f"v_add_u32 v{vCSR}, {CSF}, v8")
    E.i("v_lshrrev_b32 v8, 4, v1"); E.i("v_and_b32 v9, 15, v1"); E.i("v_lshlrev_b32 v8, 9, v8"); E.i(f"v_lshl_add_u32 v{vA5}, v9, 4, v8")
    K1, K2 = 78, 79
    k1 = -2.0 * 0.7978845608028654 * 1.4426950408889634
    E.i(f"s_mov_b32 s{K1}, {f2u(k1):#x}"); E.i(f"s_mov_b32 s{K2}, {f2u(k1*0.044715):#x}")
    def st_loads():
        E.i(f"v_lshrrev_b32 v{ST+6}, 1, v2")
        for i in range(4):
            E.i(f"buffer_load_dwordx2 v[{ST+2*i}:{ST+2*i+1}], v{ST+6}, {WSR}, s{sHS} offen offset:{i*512}{SC}", tag="hst")
    if g == 1:
        probe(E, sA4, 10, 40, 8, 9)
        for i in range(20): a4_load(E, i)
    Lb = E.newlabel("s4v"); Lh = E.newlabel("s4h")
    E.label(Lb)
    E.bg_period = 0
    def rd(i):
        for t in range(3):
            r = WF + (i%2)*12 + 4*t
            o = (i*3+t)*1024
            if o < 61440: E.i(f"ds_read_b128 v[{r}:{r+3}], v2 offset:{o}", tag=("w", i))
            else: E.i(f"ds_read_b128 v[{r}:{r+3}], v{vWB2} offset:{o-61440}", tag=("w", i))
    sched = [[] for _ in range(41)]
    for i in range(20, 40): sched[i - 19].append(lambda i=i: a4_load(E, i))
    q = list(q0)
    for n, (tg, fn) in enumerate(q): sched[min(21 + n, 40)].append(fn)
    if g == 1:
        for f in range(12): sched[21 + f].append(lambda f=f: a5_load(E, 0, f))
        for n in range(22, 30): sched[33 + n - 22].append(lambda n=n: ld_unit(E, W5reg(n), sW5, n, ("w5", n)))
    sched[30].append(st_loads)
    for i in range(40):
        if i + 1 < 40: rd(i + 1)
        E.wait_vm(("a4", i))
        if i == 0: E.wait_vm("w40")
        else: E.wait_lg(("w", i))
        af = AFR + 4*(i % 20)
        ops = list(sched[i])
        for t in range(3):
            r = WF + (i%2)*12 + 4*t; a = ACC + 16*t
            c = "0" if i == 0 else f"v[{a}:{a+15}]"
            E.i(f"v_mfma_f32_32x32x16_bf16 v[{a}:{a+15}], v[{r}:{r+3}], v[{af}:{af+3}], {c}")
            if t == 0: maxtree(E, vM, range(af, af+4), i == 0)
            if ops: ops.pop(0)()
        for o in ops: o()
        if i % 5 == 4 or i == 0: checkpoint(E, vM, Lh)
    def reissue():
        for i in range(20): a4_load(E, i)
        w4_first(E)
    handler(E, Lh, Lb, reissue)
    stamp(E, 22 if g == 0 else 25, 87, wave=4*g)
    for o in sched[40]: E.bg_push("x", o)
    if g == 0:
        for n in range(22, 30): E.bg_push(("w5", n), lambda n=n: ld_unit(E, W5reg(n), sW5, n, ("w5", n)))
    E.bg_period = BGP
    Ls = E.newlabel("s4st")
    E.wait_vm("hst")
    E.label(Ls)
    E.bg_lock += 1
    maxtree(E, vM, range(ST, ST+8), True)
    check_retry(E, vM, Ls, st_loads)
    E.bg_lock -= 1
    E.i(f"v_add_f32 v{ST}, v{ST}, v{ST+2}"); E.i(f"v_add_f32 v{ST+1}, v{ST+1}, v{ST+3}")
    E.i(f"v_add_f32 v{ST+4}, v{ST+4}, v{ST+6}"); E.i(f"v_add_f32 v{ST+5}, v{ST+5}, v{ST+7}")
    E.i(f"v_add_f32 v{ST}, v{ST}, v{ST+4}"); E.i(f"v_add_f32 v{ST+1}, v{ST+1}, v{ST+5}")
    E.i(f"v_mov_b32 v{ST+2}, v{ST}"); E.i(f"v_mov_b32 v{ST+3}, v{ST+1}")
    E.i(f"v_permlane32_swap_b32 v{ST}, v{ST+2}"); E.i(f"v_permlane32_swap_b32 v{ST+1}, v{ST+3}")
    E.i(f"v_add_f32 v{ST}, v{ST}, v{ST+2}"); E.i(f"v_add_f32 v{ST+1}, v{ST+1}, v{ST+3}")
    stats_math(E, SX, SXX)
    E.i(f"v_mov_b32 v10, s{K1}")
    for t in range(3):
        a = ACC + 16*t; C = WF; G = WF + 16
        for q_ in range(4): E.i(f"ds_read_b128 v[{C+4*q_}:{C+4*q_+3}], v{vCSR} offset:{t*128 + q_*32}")
        E.wait_lg()
        for r in range(16): E.i(f"v_fma_f32 v{a+r}, v{SX}, v{C+r}, v{a+r}")
        for r in range(16): E.i(f"v_mul_f32 v{a+r}, v{SXX}, v{a+r}")
        for r in range(8): E.i(f"v_mul_f32 v{G+r}, v{a+r}, v{a+r}")
        for r in range(8): E.i(f"v_fma_f32 v{G+r}, v{G+r}, s{K2}, v10")
        for r in range(8): E.i(f"v_mul_f32 v{G+r}, v{G+r}, v{a+r}")
        for r in range(8): E.i(f"v_exp_f32 v{G+r}, v{G+r}")
        for r in range(8): E.i(f"v_mul_f32 v{a+r}, v{a+r}, v{a+8+r}")
        for r in range(8): E.i(f"v_add_f32 v{G+r}, 1.0, v{G+r}")
        for r in range(8): E.i(f"v_rcp_f32 v{G+r}, v{G+r}")
        for r in range(8): E.i(f"v_mul_f32 v{a+r}, v{a+r}, v{G+r}")
        for r in range(4):
            E.i(f"v_cvt_pk_bf16_f32 v{a+8+r}, v{a+2*r}, v{a+2*r+1}"); E.i(f"v_min_u32 v{a+8+r}, s{sM1}, v{a+8+r}")
        E.i(f"buffer_store_dwordx4 v[{a+8}:{a+11}], v2, {WSR}, s{sHH} offen offset:{t*1024}{SC}", tag="st")
    E.bg_flush()
    if g == 0:
        E.i("s_setprio 0")
        probe(E, sA5, 9, 24, 8, 9)
        for f in range(12): a5_load(E, 0, f)
    stamp(E, 23 if g == 0 else 26, 87, wave=4*g)
G1_SLEEP = int(os.environ.get("G1_SLEEP", "8"))
G0_SLEEP = int(os.environ.get("G0_SLEEP", "8"))

def s5(E):
    ACC = 16; vPW, vPR, vM, XR = 3, 4, 6, 15
    E.bg_period = 0
    lane_pr(E, vPR, 12, 13); lane_xr(E, XR, 12, 13)
    E.i("s_lshl_b32 s52, s3, 10"); E.i(f"v_add_u32 v{vPR}, s52, v{vPR}"); E.i("s_lshl_b32 s52, s3, 5"); E.i(f"v_add_u32 v{XR}, s52, v{XR}")
    E.i("s_mul_i32 s52, s3, 10240"); E.i(f"v_add_u32 v{vPW}, s52, v2")
    for ph in range(2):
        E.i(f"s_mul_i32 s52, s{sRB3}, 40960"); E.i(f"s_mul_i32 s53, s{sCT3}, 5120"); E.i("s_add_u32 s52, s52, s53"); E.i("s_min_u32 s53, s3, 4"); E.i("s_lshl_b32 s53, s53, 10"); E.i("s_add_u32 s52, s52, s53"); E.i(f"s_add_u32 s52, s52, {HF + ph*32*40960}")
        if ph == 0: E.i("s_waitcnt vmcnt(0)"); E.vm = []
        E.i(f"buffer_load_dwordx4 v[8:11], v2, {WSR}, s52 offen{SC}", tag="res")
        Lb = E.newlabel("s5v")
        E.label(Lb)
        for k in range(6):
            E.wait_vm(("a5", ph, 2*k+1))
            for u in range(2):
                af = A5[ph](2*k+u)
                for nt in range(5):
                    a = ACC + (u*5+nt)*4; wf = W5reg(k*5+nt)
                    c = "0" if k == 0 else f"v[{a}:{a+3}]"
                    E.i(f"v_mfma_f32_16x16x32_bf16 v[{a}:{a+3}], v[{wf}:{wf+3}], v[{af}:{af+3}], {c}")
                maxtree(E, vM, range(af, af+4), k == 0 and u == 0)
        def reissue():
            for f in range(12): a5_load(E, ph, f)
        check_retry(E, vM, Lb, reissue)
        stamp(E, 28 + 3*ph, 12)
        if ph == 0:
            E.i("s_barrier")
            for f in range(12): a5_load(E, 1, f)
        for j in range(10): E.i(f"ds_write_b128 v{vPW}, v[{ACC+4*j}:{ACC+4*j+3}] offset:{j*1024}")
        E.wait_lg()
        E.i("s_barrier")
        stamp(E, 29 + 3*ph, 12)
        Lsk = E.newlabel("s5sk")
        E.wait_vm("res")
        E.i("s_cmp_ge_u32 s3, 5"); E.branch(f"s_cbranch_scc1 {Lsk}")
        with side(E):
            final_sum(E, vPR, 8, ACC, 0, 12)
            add_res_pack(E, ACC, 8, ACC + 8, 12, False)
            E.i(f"s_mul_i32 s52, s{sRB3}, 40960"); E.i(f"s_mul_i32 s53, s{sCT3}, 160"); E.i("s_add_u32 s52, s52, s53")
            if ph: E.i("s_add_u32 s52, s52, 1310720")
            E.i(f"buffer_store_dwordx4 v[{ACC+8}:{ACC+11}], v{XR}, s[{SRD_OUT}:{SRD_OUT+3}], s52 offen")
        E.label(Lsk)
        stamp(E, 30 + 3*ph, 12)
        if ph == 0:
            E.i(f"v_add_u32 v{vPW}, 81920, v{vPW}"); E.i(f"v_add_u32 v{vPR}, 81920, v{vPR}")

def build():
    E = Emitter()
    E.raw(f".globl {KN}\n.p2align 8\n.type {KN},@function\n{KN}:")
    E.i("s_cmp_ge_u32 s2, 256")
    E.branch("s_cbranch_scc1 L_exit")
    E.i("s_load_dwordx16 s[4:19], s[0:1], 0")
    E.i("s_load_dwordx4 s[20:23], s[0:1], 64")
    E.i("s_memrealtime s[96:97]")
    E.i("v_and_b32 v1, 63, v0")
    E.i("v_lshrrev_b32 v2, 6, v0")
    E.i("v_readfirstlane_b32 s3, v2")
    E.i("v_lshlrev_b32 v2, 4, v1")
    E.i(f"s_mov_b32 s{sONE}, 0x3f803f80"); E.i(f"s_mov_b32 s{sRETRY}, 0"); E.i(f"s_mov_b32 s{sM1}, 0xfffffffe")
    E.i("s_waitcnt lgkmcnt(0)")
    E.i(f"s_mov_b32 s{sT0}, s96")
    srd(E, SRD_X, P_X, 2621440)
    srd(E, SRD_W1, P_W1, 2457600)
    srd(E, SRD_WS, P_WS, WS_BYTES)
    srd(E, SRD_OUT, P_OUT, 2621440)
    srd(E, SRD_DBG, P_DBG, 256)
    stamp(E, 0, 31)
    E.i("s_lshl_b32 s52, s2, 3"); E.i("s_or_b32 s52, s52, s3"); E.i("s_cmp_lg_u32 s52, 2047"); E.branch("s_cbranch_scc1 L_nonce_done")
    E.i(f"s_or_b32 s52, s{sT0}, 1"); E.i("s_mov_b64 exec, 1"); E.i("v_mov_b32 v3, s52")
    E.raw(f"  buffer_store_dword v3, off, s[{SRD_DBG}:{SRD_DBG+3}], 0{SC}")
    E.i("s_mov_b64 exec, -1")
    E.label("L_nonce_done")
    E.i("s_cmp_ge_u32 s2, 240"); E.branch("s_cbranch_scc1 L_idle")
    s1(E)
    E.branch("s_branch L_s2")
    E.label("L_idle")
    E.vm = []; E.lg = []
    idle(E)
    E.label("L_s2")
    E.vm = [("s0dma", 0)] + ["st"]*8; E.lg = []
    s2(E)
    s3(E)
    s5(E)
    E.i("s_waitcnt vmcnt(0) lgkmcnt(0)")
    stamp(E, 40, 31)
    E.label("L_exit")
    E.raw("  s_endpgm")
    E.raw("L_end_of_code:")
    hdr = f"; @launch grid=(256,1,1) block=(512,1,1) lds=163840\n.amdgcn_target \"amdgcn-amd-amdhsa--gfx950\"\n.text\n"
    kd = f""".section .rodata,"a"
.p2align 6
.amdhsa_kernel {KN}
  .amdhsa_next_free_vgpr 256
  .amdhsa_next_free_sgpr 102
  .amdhsa_accum_offset 256
  .amdhsa_group_segment_fixed_size 0
  .amdhsa_kernarg_size 80
  .amdhsa_user_sgpr_count 2
  .amdhsa_user_sgpr_kernarg_segment_ptr 1
  .amdhsa_system_sgpr_workgroup_id_x 1
.end_amdhsa_kernel
"""
    return hdr + E.text() + kd

if __name__ == "__main__":
    mode = sys.argv[2] if len(sys.argv) > 2 else ""
    CFG.stamps = mode == "stamps"; CFG.dbgst = mode == "dbg"
    open(sys.argv[1], "w").write(build())
```

```python
import re

TRANS = ("v_exp_f32", "v_log_f32", "v_rcp_f32", "v_rsq_f32", "v_sqrt_f32", "v_sin_f32", "v_cos_f32")

def _regs(tok):
    tok = tok.strip()
    tok = re.sub(r"^-", "", tok)
    m = re.match(r"^abs\((.*)\)$", tok)
    if m: tok = m.group(1)
    m = re.match(r"^\|(.*)\|$", tok)
    if m: tok = m.group(1)
    m = re.match(r"^([vsa])(\d+)$", tok)
    if m: return {(m.group(1), int(m.group(2)))}
    m = re.match(r"^([vsa])\[(\d+):(\d+)\]$", tok)
    if m: return {(m.group(1), i) for i in range(int(m.group(2)), int(m.group(3)) + 1)}
    if tok in ("vcc", "vcc_lo", "vcc_hi"): return {("vcc", 0)}
    if tok in ("exec", "exec_lo", "exec_hi"): return {("exec", 0)}
    if tok == "m0": return {("m0", 0)}
    return set()

class Ins:
    __slots__ = ("op", "kind", "wr", "rd", "ws", "passes", "A", "B", "C", "D", "text", "stdata", "dpp")

class Emitter:
    def __init__(self):
        self.lines = []
        self.hist = []
        self.vm = []
        self.lg = []
        self.nlabel = 0
        self.count = 0
        self.bgq = []
        self.bg_period = 0
        self.bg_acc = 0
        self.bg_lock = 0

    def raw(self, s): self.lines.append(s)
    def comment(self, s): self.lines.append("  ; " + s)
    def label(self, name):
        self.flush()
        self.lines.append(name + ":")
    def newlabel(self, p="L"):
        self.nlabel += 1
        return f"{p}_{self.nlabel}"

    def _parse(self, text):
        t = text.split(";")[0].strip()
        sp = t.split(None, 1)
        op = sp[0]
        rest = sp[1] if len(sp) > 1 else ""
        ops = [o.strip() for o in re.split(r",(?![^\[]*\])", rest)] if rest else []
        mods = ""
        if ops:
            parts = ops[-1].split(None, 1)
            if len(parts) > 1:
                ops[-1] = parts[0]; mods = parts[1]
        I = Ins(); I.op = op; I.text = text; I.wr = set(); I.rd = set(); I.ws = 1; I.passes = 0
        I.A = I.B = I.C = I.D = set(); I.stdata = set(); I.dpp = False
        R = [_regs(o) for o in ops]
        if op == "s_nop":
            I.kind = "nop"; I.ws = int(ops[0]) + 1
        elif op.startswith("v_mfma"):
            I.kind = "mfma"; I.D, I.A, I.B, I.C = R[0], R[1], R[2], R[3]
            I.passes = 8 if "32x32" in op else 4
            I.wr = set(I.D); I.rd = I.A | I.B | I.C
        elif op.startswith("v_"):
            I.kind = "valu"
            if op.startswith("v_dot"): I.kind = "dot"
            if op in TRANS or any(op == x + "_e32" for x in TRANS): I.kind = "trans"
            if "dpp" in op or "row_" in mods or "quad_perm" in mods: I.dpp = True
            if op.startswith("v_permlane") and "swap" in op:
                I.wr = R[0] | R[1]; I.rd = R[0] | R[1]
            elif op.startswith("v_cmp"):
                I.wr = R[0]; I.rd = set().union(*R[1:])
            elif op in ("v_add_co_u32", "v_sub_co_u32"):
                I.wr = R[0] | R[1]; I.rd = set().union(*R[2:])
            elif op in ("v_addc_co_u32",):
                I.wr = R[0] | R[1]; I.rd = set().union(*R[2:])
            else:
                I.wr = R[0]; I.rd = set().union(*R[1:]) if len(R) > 1 else set()
                if op.startswith("v_fmac") or op.startswith("v_dot2c") or op.startswith("v_pk_fmac"):
                    I.rd |= R[0]
        elif op.startswith("ds_"):
            I.kind = "ds"
            if op.startswith("ds_read") or op.startswith("ds_bpermute") or op.startswith("ds_swizzle") or "_rtn" in op:
                I.wr = R[0]; I.rd = set().union(*R[1:])
            else:
                I.rd = set().union(*R)
        elif op.startswith("buffer_") or op.startswith("global_"):
            I.kind = "vmem"
            islds = (" lds" in (" " + mods)) or op.startswith("global_load_lds")
            if "load" in op and not islds:
                I.wr = R[0]; I.rd = set().union(*R[1:])
            else:
                I.rd = set().union(*R) if R else set()
                if islds: I.rd |= {("m0", 0)}
                if "store" in op and ("x4" in op or "x3" in op):
                    I.stdata = R[0] if op.startswith("buffer_") else R[1]
        elif op.startswith("s_"):
            I.kind = "salu"
            if op.startswith("s_cmp") or op.startswith("s_cbranch") or op in ("s_branch", "s_barrier", "s_waitcnt", "s_endpgm", "s_sleep", "s_setprio"):
                I.rd = set().union(*R) if R else set()
            else:
                I.wr = R[0] if R else set(); I.rd = set().union(*R[1:]) if len(R) > 1 else set()
        else:
            raise ValueError("unknown op " + text)
        return I

    @staticmethod
    def _need(P, C):
        n = 0
        vw = {r for r in P.wr if r[0] in "va"}
        sw = {r for r in P.wr if r[0] in ("s", "vcc")}
        isvalu = lambda X: X.kind in ("valu", "trans", "dot")
        if isvalu(P):
            if C.kind == "mfma" and (vw & C.rd): n = max(n, 3 if P.kind == "dot" else 2)
            if P.kind == "trans" and isvalu(C) and (vw & (C.rd | C.wr)): n = max(n, 1)
            if P.kind == "trans" and C.kind in ("ds", "vmem") and (vw & C.rd): n = max(n, 1)
            if P.kind == "dot" and (vw & (C.rd | C.wr)):
                if C.op == P.op and C.kind == "dot":
                    srcs = C.rd - C.wr
                    if vw & srcs: n = max(n, 3)
                else: n = max(n, 3)
            if isvalu(C) and C.op.startswith("v_permlane") and (vw & C.rd): n = max(n, 2)
            if isvalu(C) and C.dpp and (vw & C.rd): n = max(n, 2)
            if C.op.startswith("v_readfirstlane") or C.op.startswith("v_readlane"):
                if vw & C.rd: n = max(n, 1)
            if sw:
                if isvalu(C) and (sw & C.rd): n = max(n, 2)
                if C.op.startswith("v_readlane") and (sw & C.rd): n = max(n, 4)
                if C.kind == "vmem" and (sw & C.rd): n = max(n, 5)
                if C.kind == "salu" and (sw & C.rd): n = max(n, 2)
                if C.op.startswith("s_cbranch_vcc") and ("vcc", 0) in sw: n = max(n, 5)
        if P.kind == "mfma":
            big = 12 if P.passes == 8 else 8
            if C.kind == "mfma":
                if P.D & (C.A | C.B): n = max(n, big)
                if P.D & C.C:
                    if P.D == C.C and P.passes == C.passes: pass
                    else: n = max(n, 10 if P.passes == 8 else 6)
                elif P.D & C.D:
                    n = max(n, 10 if P.passes == 8 else 6)
            elif isvalu(C):
                if P.D & (C.rd | C.wr): n = max(n, big)
                if P.C & C.wr: n = max(n, 7 if P.passes == 8 else 3)
            elif C.kind in ("ds", "vmem"):
                if P.D & (C.rd | C.wr): n = max(n, big)
        if P.kind == "salu" and ("m0", 0) in P.wr and C.kind in ("vmem", "ds") and ("m0", 0) in C.rd: n = max(n, 1)
        if P.kind == "vmem" and P.stdata and (P.stdata & C.wr): n = max(n, 2)
        if P.kind == "salu" and ("exec", 0) in P.wr and C.kind == "mfma": n = max(n, 1)
        return n

    def i(self, text, tag=None):
        I = self._parse(text)
        dist = 0; need = 0
        for P in reversed(self.hist):
            r = self._need(P, I) - dist
            if r > need: need = r
            dist += P.ws
            if dist > 20: break
        while need > 0:
            k = min(need, 16)
            N = self._parse(f"s_nop {k-1}")
            self.lines.append(f"  s_nop {k-1}"); self.hist.append(N); self.count += 1
            need -= k
        self.lines.append("  " + text); self.count += 1
        self.hist.append(I)
        if len(self.hist) > 40: self.hist = self.hist[-30:]
        if I.kind == "vmem": self.vm.append(tag)
        if I.kind == "ds": self.lg.append(tag)
        if self.bg_period and not self.bg_lock:
            cost = {"mfma": 4 * I.passes, "trans": 8, "valu": 4, "dot": 8}.get(I.kind, 2)
            self.bg_acc += cost
            if self.bg_acc >= self.bg_period and I.kind in ("mfma", "trans", "valu") and self.bgq and not ({("vcc", 0)} & I.wr) and not any(r[0] == "s" for r in I.wr):
                self.bg_acc = 0
                self.bg_pop()
        return I

    def bg_push(self, tag, fn): self.bgq.append((tag, fn))
    def bg_pop(self, n=1):
        for _ in range(n):
            if not self.bgq: return
            tag, fn = self.bgq.pop(0)
            self.bg_lock += 1
            fn()
            self.bg_lock -= 1
    def bg_flush(self, tag=None):
        if tag is None: n = len(self.bgq)
        else: n = max([k + 1 for k, (t, _) in enumerate(self.bgq) if t == tag], default=0)
        self.bg_pop(n)

    def flush(self):
        dist = 0; need = 0
        for P in reversed(self.hist):
            if P.kind == "mfma": m = 12 if P.passes == 8 else 8
            elif P.kind in ("valu", "trans", "dot"):
                m = 5 if any(r[0] in ("s", "vcc") for r in P.wr) else 3
            elif P.kind == "vmem" and P.stdata: m = 2
            elif P.kind == "salu" and (("m0", 0) in P.wr or ("exec", 0) in P.wr): m = 1
            else: m = 0
            need = max(need, m - dist)
            dist += P.ws
            if dist > 20: break
        if need > 0:
            self.lines.append(f"  s_nop {need-1}"); self.count += 1
        self.hist = []

    def branch(self, text):
        self.i(text) if False else None
        I = self._parse(text)
        self.flush()
        self.lines.append("  " + text); self.count += 1

    def branch_nf(self, text):
        self.i(text)
    def pad_label(self, name):
        self.label(name)
        self.lines.append("  s_nop 15"); self.count += 1

    def mark(self, tag):
        self.vm.append(("@", tag))
    def wait_vm(self, tag=None):
        ismark = lambda t: isinstance(t, tuple) and len(t) == 2 and t[0] == "@"
        if tag is not None: self.bg_flush(tag)
        if tag is None:
            n = 0; rest = []
        else:
            idx = max([k for k, t in enumerate(self.vm) if t == tag or t == ("@", tag)], default=-1)
            if idx < 0: return
            rest = self.vm[idx+1:]
            n = sum(1 for t in rest if not ismark(t))
        self.i(f"s_waitcnt vmcnt({min(n,63)})")
        self.vm = rest
    def wait_lg(self, tag=None):
        if tag is None: n = 0
        else:
            idx = max([k for k, t in enumerate(self.lg) if t == tag], default=-1)
            if idx < 0: return
            n = len(self.lg) - 1 - idx
        self.i(f"s_waitcnt lgkmcnt({min(n,15)})")
        self.lg = self.lg[len(self.lg) - n:] if n else []
    def text(self): return "\n".join(self.lines) + "\n"

def v(n, cnt=1): return f"v{n}" if cnt == 1 else f"v[{n}:{n+cnt-1}]"
def s(n, cnt=1): return f"s{n}" if cnt == 1 else f"s[{n}:{n+cnt-1}]"
```

```python
import struct, math, sys, os
from emit import *

NAME = "sequential_preLN__sliding_block__glu_gated_geglu__prompt"
KN = NAME + "_kernel"
QKV = 0x0
OF  = 0x800000
HF  = OF + 2621440
HHF = HF + 2621440
HSTB = HHF + 6291456
CLR0 = HF
W3F = 0x1800000
W4F = 0x1A00000
W5F = 0x1E00000
CS1 = 0x2080000
CSP4 = 0x1780000
CSW = 0x2000000
FLG = 0x2010000
STAMP = 0x2040000
WS_BYTES = 0x2100000
SRD_X, SRD_W1, SRD_WS, SRD_OUT, SRD_T0, SRD_T1, SRD_DBG = 24, 28, 32, 36, 40, 44, 48
P_X, P_W1, P_WO, P_WG, P_WU, P_WD, P_OUT, P_DBG, P_WS = 4, 6, 8, 12, 14, 16, 18, 20, 22
SC = " sc1"
NEG = 0xff800000
f2u = lambda x: struct.unpack("<I", struct.pack("<f", x))[0]
class CFG:
    stamps = False
    dbgst = False
OPT = set(os.environ.get('OPT', '').split(','))
WSR = f"s[{SRD_WS}:{SRD_WS+3}]"
sONE, sRETRY, sM1, sNONCE, sT0 = 94, 95, 93, 92, 91
S0SCR, MISC = 131072, 159744
SCR = 122880
RETRY_MAX = 20000
BGP = int(os.environ.get("BGP", "80"))

DBG_MAP = {1:1, 44:2, 2:3, 5:4, 10:5, 8:6, 12:7, 13:8, 16:9, 19:10, 21:11, 22:12, 23:13, 29:14, 40:15}
def stamp(E, idx, vr, wave=0):
    if CFG.dbgst:
        if idx not in DBG_MAP or wave != 0: return
        L = E.newlabel("stamp")
        E.bg_lock += 1
        E.i("s_lshl_b32 s98, s2, 3"); E.i("s_or_b32 s98, s98, s3"); E.i(f"s_cmp_lg_u32 s98, {37*8}"); E.branch(f"s_cbranch_scc1 {L}")
        E.i("s_memrealtime s[96:97]"); E.raw("  s_waitcnt lgkmcnt(0)")
        E.i(f"s_sub_u32 s96, s96, s{sT0}")
        E.i("s_mov_b64 exec, 1"); E.i(f"v_mov_b32 v{vr}, s96")
        E.raw(f"  buffer_store_dword v{vr}, off, s[{SRD_DBG}:{SRD_DBG+3}], 0 offset:{4*DBG_MAP[idx]}")
        E.i("s_mov_b64 exec, -1")
        E.label(L); E.bg_lock -= 1
        return
    if not CFG.stamps: return
    L = E.newlabel("stamp")
    E.bg_lock += 1
    E.i(f"s_cmp_lg_u32 s3, {wave}"); E.branch(f"s_cbranch_scc1 {L}")
    E.i("s_memrealtime s[96:97]")
    E.i("s_lshl_b32 s98, s2, 9"); E.i(f"s_add_u32 s98, s98, {STAMP + idx*8}")
    E.raw("  s_waitcnt lgkmcnt(0)")
    E.i("s_mov_b64 exec, 1")
    E.i(f"v_mov_b32 v{vr}, s96")
    E.raw(f"  buffer_store_dword v{vr}, off, {WSR}, s98")
    if "clk" in OPT:
        E.i("s_memtime s[96:97]"); E.raw("  s_waitcnt lgkmcnt(0)"); E.i(f"v_mov_b32 v{vr}, s96")
        E.raw(f"  buffer_store_dword v{vr}, off, {WSR}, s98 offset:4")
    E.i("s_mov_b64 exec, -1")
    E.label(L)
    E.bg_lock -= 1

def srd(E, d, p, nbytes):
    E.i(f"s_mov_b32 s{d}, s{p}")
    E.i(f"s_and_b32 s{d+1}, s{p+1}, 0xffff")
    E.i(f"s_mov_b32 s{d+2}, {nbytes}")
    E.i(f"s_mov_b32 s{d+3}, 0x20000")

def maxtree(E, dst, regs, first):
    regs = list(regs)
    if first:
        a = regs.pop(0); b = regs.pop(0); c = regs.pop(0) if regs else b
        E.i(f"v_max3_u32 v{dst}, v{a}, v{b}, v{c}")
    while regs:
        a = regs.pop(0); b = regs.pop(0) if regs else a
        E.i(f"v_max3_u32 v{dst}, v{a}, v{b}, v{dst}")

class side:
    def __init__(s, E): s.E = E
    def __enter__(s):
        s.sv = (list(s.E.vm), list(s.E.lg)); s.E.bg_lock += 1
    def __exit__(s, *a):
        s.E.vm, s.E.lg = s.sv; s.E.bg_lock -= 1

def retry_tail(E, Lok, Lback, reissue, sleep=4):
    E.i(f"s_add_u32 s{sRETRY}, s{sRETRY}, 1"); E.i(f"s_cmp_gt_u32 s{sRETRY}, {RETRY_MAX}")
    E.branch(f"s_cbranch_scc1 {Lok}")
    E.i(f"s_sleep {sleep}")
    E.i("s_waitcnt vmcnt(0) lgkmcnt(0)")
    reissue()
    E.i("s_waitcnt vmcnt(0)")
    E.branch(f"s_branch {Lback}")

def check_retry(E, vM, Lback, reissue):
    Lok = E.newlabel("ok")
    E.i(f"v_cmp_eq_u32 vcc, -1, v{vM}")
    E.branch(f"s_cbranch_vccz {Lok}")
    with side(E): retry_tail(E, Lok, Lback, reissue)
    E.label(Lok)

def checkpoint(E, vM, Lh):
    E.i(f"v_cmp_eq_u32 vcc, -1, v{vM}")
    E.branch_nf(f"s_cbranch_vccnz {Lh}")

def handler(E, Lh, Lback, reissue):
    Lok = E.newlabel("ok")
    E.branch(f"s_branch {Lok}")
    E.pad_label(Lh)
    with side(E): retry_tail(E, Lok, Lback, reissue)
    E.label(Lok)

def nonce_issue(E, vr):
    E.i(f"buffer_load_dword v{vr}, off, s[{SRD_DBG}:{SRD_DBG+3}], 0{SC}", tag="nonce")
def nonce_get(E, vr):
    L, Lok = E.newlabel("nchk"), E.newlabel("nok")
    E.wait_vm("nonce")
    E.label(L)
    E.i(f"v_readfirstlane_b32 s{sNONCE}, v{vr}")
    E.i(f"s_cmp_lg_u32 s{sNONCE}, 0")
    E.branch(f"s_cbranch_scc1 {Lok}")
    with side(E): retry_tail(E, Lok, L, lambda: nonce_issue(E, vr), 8)
    E.label(Lok)

def flag_issue(E, vr, which, quad=False):
    E.bg_lock += 1
    E.i(f"v_bfe_u32 v{vr}, v1, 2, {4 if quad else 3}"); E.i(f"v_lshlrev_b32 v{vr}, 7, v{vr}")
    E.i(f"v_and_b32 v{vr+1}, 3, v1"); E.i(f"v_lshl_add_u32 v{vr}, v{vr+1}, 4, v{vr}")
    if quad: E.i("s_and_b32 s52, s3, 3"); E.i("s_lshl_b32 s52, s52, 11")
    else: E.i("s_lshl_b32 s52, s3, 10")
    E.i(f"s_add_u32 s52, s52, {FLG + 4*which}")
    E.i(f"buffer_load_dword v{vr}, v{vr}, {WSR}, s52 offen{SC}", tag="flag")
    E.bg_lock -= 1
def flag_check(E, vr, which, quad=False):
    if "noflag" in OPT: return
    L, Lok = E.newlabel("fchk"), E.newlabel("fok")
    E.wait_vm("flag")
    E.label(L)
    E.i(f"v_cmp_ne_u32 vcc, s{sNONCE}, v{vr}")
    E.branch(f"s_cbranch_vccz {Lok}")
    with side(E): retry_tail(E, Lok, L, lambda: flag_issue(E, vr, which, quad))
    E.label(Lok)
def flag_check_n(E, vr, which):
    E.vm = ["flag"]
    flag_check(E, vr, which)
    E.vm = []
def flag_set(E, which, vr):
    L = E.newlabel("fset")
    E.i("s_cmp_lg_u32 s3, 7"); E.branch(f"s_cbranch_scc1 {L}")
    with side(E):
        E.i("s_mov_b64 exec, 1")
        E.i(f"v_mov_b32 v{vr}, s{sNONCE}")
        E.i("s_lshr_b32 s52, s2, 2"); E.i("s_lshl_b32 s52, s52, 7"); E.i("s_and_b32 s53, s2, 3"); E.i("s_lshl_b32 s53, s53, 4"); E.i("s_add_u32 s52, s52, s53"); E.i(f"s_add_u32 s52, s52, {FLG + 4*which}")
        E.i(f"buffer_store_dword v{vr}, off, {WSR}, s52{SC}")
        E.i("s_mov_b64 exec, -1")
    E.label(L)

def stats_math(E, SX, SXX):
    E.i(f"v_mul_f32 v{SX}, 0xbacccccd, v{SX}")
    E.i(f"v_mul_f32 v{SXX}, 0x3acccccd, v{SXX}")
    E.i(f"v_fma_f32 v{SXX}, -v{SX}, v{SX}, v{SXX}")
    E.i(f"v_max_f32 v{SXX}, 0, v{SXX}")
    E.i(f"v_add_f32 v{SXX}, 0x3727c5ac, v{SXX}")
    E.i(f"v_rsq_f32 v{SXX}, v{SXX}")

sHD, sTB2, sKVo, sQo, sOo, sTQ = 80, 81, 82, 83, 84, 79
vD2, vLO1, vLO2 = 93, 94, 95
def s2_scalars(E):
    E.i("s_and_b32 s52, s2, 7"); E.i("s_lshr_b32 s53, s2, 3")
    E.i(f"s_lshl_b32 s{sHD}, s52, 2"); E.i("s_lshr_b32 s54, s53, 3"); E.i(f"s_add_u32 s{sHD}, s{sHD}, s54")
    E.i(f"s_and_b32 s{sTB2}, s53, 7"); E.i(f"s_lshl_b32 s{sTB2}, s{sTB2}, 3")
    E.i("s_lshr_b32 s54, s3, 2"); E.i("s_lshl_b32 s54, s54, 5"); E.i("s_add_u32 s54, s54, 32"); E.i(f"s_add_u32 s54, s54, s{sHD}")
    E.i("s_mul_i32 s54, s54, 81920")
    E.i(f"s_add_u32 s{SRD_T1}, s{P_WS}, s54"); E.i(f"s_addc_u32 s{SRD_T1+1}, s{P_WS+1}, 0"); E.i(f"s_and_b32 s{SRD_T1+1}, s{SRD_T1+1}, 0xffff")
    E.i(f"s_mov_b32 s{SRD_T1+2}, 81920"); E.i(f"s_mov_b32 s{SRD_T1+3}, 0x20000")
    E.i(f"s_and_b32 s{sKVo}, s3, 3"); E.i(f"s_mul_i32 s{sKVo}, s{sKVo}, 3840")
    E.i("s_lshr_b32 s54, s3, 2"); E.i("s_lshl_b32 s54, s54, 6"); E.i("s_and_b32 s55, s3, 3"); E.i("s_lshl_b32 s55, s55, 1"); E.i("s_add_u32 s54, s54, s55"); E.i(f"s_add_u32 s{sTQ}, s54, s{sTB2}")
    E.i(f"s_mul_i32 s{sQo}, s{sHD}, 81920"); E.i(f"s_mul_i32 s55, s{sTQ}, 640"); E.i(f"s_add_u32 s{sQo}, s{sQo}, s55")
    E.i(f"s_mul_i32 s{sOo}, s{sTQ}, 20480"); E.i(f"s_add_u32 s{sOo}, s{sOo}, {OF}")
    E.i(f"s_add_u32 s{sOo+1}, s{sOo}, {64*20480}")
def s2_laneoffs(E, d1, d2, t0, t1):
    E.i(f"v_and_b32 v{t0}, 15, v1"); E.i(f"v_lshrrev_b32 v{t1}, 4, v1")
    E.i(f"v_and_b32 v{d1}, 2, v{t1}"); E.i(f"v_lshlrev_b32 v{d1}, 2, v{d1}"); E.i(f"v_xor_b32 v{d1}, v{d1}, v{t0}"); E.i(f"v_lshlrev_b32 v{d1}, 3, v{d1}"); E.i(f"v_lshl_add_u32 v{d1}, v{t1}, 7, v{d1}")
    E.i(f"v_lshlrev_b32 v{d2}, 3, v{t0}"); E.i(f"v_add_u32 v{d2}, 512, v{d2}")
NKV = 6
def s2_loads(E, QR, ph, vD, l1, l2, ldsbase):
    E.bg_lock += 1
    E.i(f"s_add_u32 s52, s{sTB2}, {64*ph - 16}"); E.i("s_mul_i32 s52, s52, 640"); E.i(f"s_add_u32 s52, s52, s{sKVo}")
    E.i(f"v_add_u32 v{vD}, s52, v2")
    E.i("s_mul_i32 s53, s3, 3840")
    for i in range(4):
        E.i(f"s_add_u32 m0, s53, {ldsbase + i*1024}")
        if i == 3: E.i("s_mov_b32 exec_hi, 0xffff")
        E.i(f"buffer_load_dwordx4 v{vD}, s[{SRD_T1}:{SRD_T1+3}], 0 offen{SC} lds", tag=("kv", ph))
        if i < 3: E.i(f"v_add_u32 v{vD}, 1024, v{vD}")
    E.i("s_mov_b64 exec, -1")
    E.bg_lock -= 1

def o_clears(E, vm1, vt, deltas):
    E.i(f"v_lshrrev_b32 v{vt}, 1, v2")
    for d in deltas:
        for ph in range(2):
            E.i(f"s_sub_u32 s52, s{sOo+ph}, {d}")
            E.i(f"buffer_store_dwordx2 v[{vm1}:{vm1+1}], v{vt}, {WSR}, s52 offen{SC}", tag="oclr")
            E.i("s_mov_b64 exec, 0xffff")
            E.i(f"buffer_store_dwordx2 v[{vm1}:{vm1+1}], v{vt}, {WSR}, s52 offen offset:512{SC}", tag="oclr")
            E.i("s_mov_b64 exec, -1")

NB_IDLE = int(os.environ.get("NB_IDLE", "0"))
N_IDLE_BLOCKS = 128 * NB_IDLE
NB_BUSY = -(-(1640 - N_IDLE_BLOCKS) // 240)
def s0_decode(E, rnd, Lskip):
    if rnd is None:
        E.i(f"s_cmp_ge_u32 s3, {NB_BUSY}"); E.branch(f"s_cbranch_scc1 {Lskip}")
        E.i(f"s_mul_i32 s52, s2, {NB_BUSY}"); E.i("s_add_u32 s52, s52, s3"); E.i(f"s_add_u32 s52, s52, {N_IDLE_BLOCKS}"); E.i("s_min_u32 s52, s52, 1639")
        E.i("s_lshl_b32 s55, s3, 12"); E.i(f"s_add_u32 s55, s55, {S0SCR}")
    else:
        E.i(f"s_add_u32 s52, s60, {128*rnd}")
        E.i("s_lshl_b32 s55, s3, 14"); E.i(f"s_add_u32 s55, s55, {(rnd % 4) * 4096}")

def s0_issue(E, vt, rnd):
    if "nos0" in OPT: return
    L, L4, L5, LG = [E.newlabel(x) for x in ("s0i", "s0i4", "s0i5", "s0ig")]
    with side(E):
        s0_decode(E, rnd, L)
        E.i(f"v_lshrrev_b32 v{vt}, 3, v1"); E.i(f"v_and_b32 v{vt+1}, 7, v1")
        E.i("s_cmp_ge_u32 s52, 680"); E.branch(f"s_cbranch_scc1 {L4}")
        E.i("s_cmp_ge_u32 s52, 200"); E.branch(f"s_cbranch_scc1 {L5}")
        srd(E, SRD_T0, P_WO, 819200)
        E.i("s_mul_i32 s87, s52, 6554"); E.i("s_lshr_b32 s87, s87, 16")
        E.i("s_mul_i32 s88, s87, 10"); E.i("s_sub_u32 s88, s52, s88"); E.i("s_lshl_b32 s54, s88, 7")
        E.i("s_cmp_ge_u32 s87, 16"); E.branch(f"s_cbranch_scc1 {LG}")
        E.i("s_mul_i32 s53, s87, 51200"); E.i("s_add_u32 s53, s53, s54")
        E.i(f"v_mul_u32_u24 v{vt}, 1280, v{vt}"); E.i(f"v_lshl_add_u32 v{vt}, v{vt+1}, 4, v{vt}")
        for i in range(4):
            E.i(f"s_add_u32 m0, s55, {i*1024}"); E.i(f"s_add_u32 s54, s53, {(20*(i>>1) + 8*(i&1))*1280}")
            E.i(f"buffer_load_dwordx4 v{vt}, s[{SRD_T0}:{SRD_T0+3}], s54 offen lds")
        E.branch(f"s_branch {L}")
        E.label(LG)
        E.i("s_sub_u32 s53, s87, 16"); E.i("s_mul_i32 s53, s53, 204800"); E.i("s_add_u32 s53, s53, s54"); E.i("s_add_u32 s53, s53, 20480")
        E.i(f"v_lshlrev_b32 v{vt+1}, 4, v{vt+1}")
        E.i(f"v_and_b32 v{vt}, 3, v{vt}"); E.i(f"v_mul_u32_u24 v{vt}, 1280, v{vt}"); E.i(f"v_add_u32 v{vt+1}, v{vt+1}, v{vt}")
        E.i(f"v_lshrrev_b32 v{vt}, 5, v1"); E.i(f"v_mul_u32_u24 v{vt}, 25600, v{vt}"); E.i(f"v_add_u32 v{vt}, v{vt}, v{vt+1}")
        for i in range(4):
            E.i(f"s_add_u32 m0, s55, {i*1024}")
            E.i(f"buffer_load_dwordx4 v{vt}, s[{SRD_T0}:{SRD_T0+3}], s53 offen lds")
            if i < 3: E.i("s_add_u32 s53, s53, 51200")
        E.branch(f"s_branch {L}")
        E.label(L5)
        srd(E, SRD_T0, P_WD, 1966080); E.i("s_sub_u32 s52, s52, 200")
        E.i("s_mul_i32 s87, s52, 6554"); E.i("s_lshr_b32 s87, s87, 16")
        E.i("s_mul_i32 s88, s87, 10"); E.i("s_sub_u32 s88, s52, s88")
        E.i("s_mul_i32 s53, s87, 40960"); E.i("s_lshl_b32 s54, s88, 7"); E.i("s_add_u32 s53, s53, s54")
        E.i(f"v_mul_u32_u24 v{vt}, 1280, v{vt}"); E.i(f"v_lshl_add_u32 v{vt}, v{vt+1}, 4, v{vt}")
        for i in range(4):
            E.i(f"s_add_u32 m0, s55, {i*1024}")
            E.i(f"buffer_load_dwordx4 v{vt}, s[{SRD_T0}:{SRD_T0+3}], s53 offen lds")
            if i < 3: E.i("s_add_u32 s53, s53, 10240")
        E.branch(f"s_branch {L}")
        E.label(L4)
        E.i("s_sub_u32 s52, s52, 680")
        E.i("s_mul_i32 s87, s52, 2731"); E.i("s_lshr_b32 s87, s87, 16")
        E.i("s_mul_i32 s88, s87, 24"); E.i("s_sub_u32 s88, s52, s88")
        E.i("s_mul_i32 s53, s87, 49152"); E.i("s_lshl_b32 s54, s88, 7"); E.i("s_add_u32 s53, s53, s54"); E.i("s_add_u32 s54, s53, 24576")
        E.i(f"v_mul_u32_u24 v{vt}, 3072, v{vt}"); E.i(f"v_lshl_add_u32 v{vt}, v{vt+1}, 4, v{vt}")
        for m, p in enumerate((P_WG, P_WU)):
            srd(E, SRD_T0, p, 1966080)
            for i in range(2):
                E.i(f"s_add_u32 m0, s55, {(2*m+i)*1024}")
                E.i(f"buffer_load_dwordx4 v{vt}, s[{SRD_T0}:{SRD_T0+3}], s{53+i} offen lds")
    E.label(L)
    if rnd is None: E.mark(("s0dma", rnd))
    else: E.vm += [("s0dma", rnd)] * 4

def s0_finish(E, F, vt, rnd):
    if "nos0" in OPT: return
    E.wait_vm(("s0dma", rnd))
    L, L4, L5, LG, LS = [E.newlabel(x) for x in ("s0f", "s0f4", "s0f5", "s0fg", "s0fs")]
    with side(E):
        s0_decode(E, rnd, L)
        E.i("s_mov_b32 s86, 0")
        E.i(f"v_bfe_u32 v{vt+1}, v1, 2, 2")
        E.i("s_cmp_ge_u32 s52, 680"); E.branch(f"s_cbranch_scc1 {L4}")
        E.i("s_cmp_ge_u32 s52, 200"); E.branch(f"s_cbranch_scc1 {L5}")
        E.i("s_mov_b32 s89, 20"); E.i(f"s_mov_b32 s90, {W3F}")
        E.i("s_mul_i32 s87, s52, 6554"); E.i("s_lshr_b32 s87, s87, 16")
        E.i("s_mul_i32 s88, s87, 10"); E.i("s_sub_u32 s88, s52, s88")
        E.i("s_lshr_b32 s53, s87, 2"); E.i("s_add_u32 s53, s53, s87")
        E.i("s_sub_u32 s54, s87, 16"); E.i("s_mul_i32 s54, s54, 5"); E.i("s_add_u32 s54, s54, 4")
        E.i("s_cmp_ge_u32 s87, 16"); E.i("s_cselect_b32 s87, s54, s53")
        E.branch(f"s_branch {LG}")
        E.label(L5)
        E.i("s_sub_u32 s52, s52, 200"); E.i("s_mov_b32 s89, 48"); E.i(f"s_mov_b32 s90, {W5F}")
        E.i("s_mul_i32 s87, s52, 6554"); E.i("s_lshr_b32 s87, s87, 16")
        E.i("s_mul_i32 s88, s87, 10"); E.i("s_sub_u32 s88, s52, s88")
        E.label(LG)
        E.i(f"v_lshrrev_b32 v{vt}, 4, v1"); E.i(f"v_lshl_add_u32 v{vt}, v{vt}, 3, v{vt+1}"); E.i(f"v_lshlrev_b32 v{vt}, 7, v{vt}")
        E.i(f"v_and_b32 v{vt+1}, 3, v1"); E.i(f"v_lshl_add_u32 v{vt}, v{vt+1}, 3, v{vt}")
        for nt in range(4):
            E.i(f"s_lshl_b32 s52, s88, 2"); E.i(f"s_add_u32 s52, s52, {nt}")
            E.i("s_mul_i32 s53, s52, 52"); E.i("s_lshr_b32 s53, s53, 8")
            E.i("s_mul_i32 s54, s53, 5"); E.i("s_sub_u32 s54, s52, s54")
            E.i("s_mul_i32 s53, s53, s89"); E.i("s_add_u32 s53, s53, s87"); E.i("s_mul_i32 s53, s53, 5"); E.i("s_add_u32 s53, s53, s54")
            E.i("s_lshl_b32 s53, s53, 10"); E.i(f"s_add_u32 s{96+nt}, s53, s90")
        E.branch(f"s_branch {LS}")
        E.label(L4)
        E.i("s_sub_u32 s52, s52, 680")
        E.i("s_mul_i32 s87, s52, 2731"); E.i("s_lshr_b32 s87, s87, 16")
        E.i("s_mul_i32 s88, s87, 24"); E.i("s_sub_u32 s88, s52, s88")
        E.i(f"v_lshrrev_b32 v{vt}, 5, v1"); E.i(f"v_lshl_add_u32 v{vt}, v{vt}, 3, v{vt+1}"); E.i(f"v_lshlrev_b32 v{vt}, 7, v{vt}")
        E.i(f"v_bfe_u32 v{vt+1}, v1, 4, 1"); E.i(f"v_lshl_add_u32 v{vt}, v{vt+1}, 11, v{vt}")
        E.i(f"v_and_b32 v{vt+1}, 1, v1"); E.i(f"v_lshl_add_u32 v{vt}, v{vt+1}, 4, v{vt}")
        E.i(f"v_bfe_u32 v{vt+1}, v1, 1, 1"); E.i(f"v_lshl_add_u32 v{vt}, v{vt+1}, 3, v{vt}")
        for nt in range(4):
            E.i(f"s_lshl_b32 s52, s88, 2"); E.i(f"s_add_u32 s52, s52, {nt}")
            E.i("s_mul_i32 s53, s52, 171"); E.i("s_lshr_b32 s53, s53, 9")
            E.i("s_mul_i32 s54, s53, 3"); E.i("s_sub_u32 s54, s52, s54")
            E.i("s_mul_i32 s53, s53, 40"); E.i("s_add_u32 s53, s53, s87"); E.i("s_mul_i32 s53, s53, 3"); E.i("s_add_u32 s53, s53, s54")
            E.i("s_lshl_b32 s53, s53, 10"); E.i(f"s_add_u32 s{96+nt}, s53, {W4F}")
        E.i("s_mov_b32 s86, 1")
        E.label(LS)
        E.i(f"v_add_u32 v{vt}, s55, v{vt}")
        for nt in range(4):
            for h in range(2):
                E.i(f"ds_read_b64_tr_b16 v[{F+4*nt+2*h}:{F+1+4*nt+2*h}], v{vt} offset:{h*512+nt*32}")
        E.i("s_waitcnt lgkmcnt(0)")
        for nt in range(4):
            E.i(f"buffer_store_dwordx4 v[{F+4*nt}:{F+3+4*nt}], v2, {WSR}, s{96+nt} offen{SC}")
        E.i("s_cmp_eq_u32 s86, 0"); E.branch(f"s_cbranch_scc1 {L}")
        for nt in range(4): E.i(f"v_mov_b32 v{F+16+nt}, 0")
        for q in range(4):
            for nt in range(4): E.i(f"v_dot2c_f32_bf16 v{F+16+nt}, s{sONE}, v{F+4*nt+q}")
        for pr in range(2):
            a_, b_ = F+16+2*pr, F+17+2*pr
            E.i(f"v_permlane32_swap_b32 v{a_}, v{b_}")
            E.i(f"v_add_f32 v{a_}, v{a_}, v{b_}")
        E.i(f"v_lshlrev_b32 v{vt}, 2, v1"); E.i("s_lshl_b32 s52, s88, 9"); E.i("s_mul_i32 s53, s87, 12288"); E.i("s_add_u32 s52, s52, s53"); E.i(f"s_add_u32 s52, s52, {CSP4}")
        for pr in range(2):
            E.i(f"buffer_store_dword v{F+16+2*pr}, v{vt}, {WSR}, s52 offen offset:{pr*256}{SC}")
    E.label(L)
    if rnd is not None: E.vm += ["s0st"] * 4

def code_touch(E, kname, endlabel):
    E.i("v_lshlrev_b32 v5, 7, v1")
    E.flush()
    E.i("s_getpc_b64 s[70:71]")
    E.raw(f"L_pc_{kname}:")
    E.i(f"s_sub_u32 s70, s70, L_pc_{kname}-ka_kernel"); E.i("s_subb_u32 s71, s71, 0")
    E.i("s_lshl_b32 s72, s3, 13"); E.i("v_add_u32 v6, s72, v5")
    E.i(f"v_min_u32 v6, {endlabel}-ka_kernel-4, v6"); E.i("v_and_b32 v6, 0xfffffffc, v6")
    E.i("global_load_dword v7, v6, s[70:71]")

def idle(E):
    E.bg_period = 0
    E.i("s_sub_u32 s60, s2, 240"); E.i("s_lshl_b32 s60, s60, 3"); E.i("s_add_u32 s60, s60, s3")
    code_touch(E, "a", "L_end_of_code")
    for n in range(min(4, NB_IDLE)): s0_issue(E, 8, n)
    for n in range(NB_IDLE):
        s0_finish(E, 32 + 32*(n % 2), 10, n)
        if n + 4 < NB_IDLE: s0_issue(E, 8, n + 4)
    for r in range(4): E.i(f"v_mov_b32 v{20+r}, -1")
    E.i("s_mul_i32 s61, s60, 91136"); E.i(f"s_add_u32 s61, s61, {OF}")
    E.i("s_mov_b32 s62, 0")
    E.label("L_clr")
    for j in range(4): E.i(f"buffer_store_dwordx4 v[20:23], v2, {WSR}, s61 offen offset:{j*1024}{SC}")
    E.i("s_add_u32 s61, s61, 4096"); E.i("s_add_u32 s62, s62, 1"); E.i("s_cmp_lt_u32 s62, 22")
    E.branch("s_cbranch_scc1 L_clr")
    E.i(f"buffer_store_dwordx4 v[20:23], v2, {WSR}, s61 offen{SC}")
    stamp(E, 1, 31)

def ka_tail(E):
    return
    for r in range(4): E.i(f"v_mov_b32 v{20+r}, -1")
    E.i("s_lshl_b32 s52, s2, 3"); E.i("s_add_u32 s52, s52, s3"); E.i("s_mul_i32 s52, s52, 5760"); E.i(f"s_add_u32 s52, s52, {OF}"); E.i("s_add_u32 s53, s52, 4096")
    for t in range(5): E.i(f"buffer_store_dwordx4 v[20:23], v2, {WSR}, s{52 + t//4} offen offset:{(t%4)*1024}{SC}")
    E.i("s_mov_b32 exec_hi, 0xff")
    E.i(f"buffer_store_dwordx4 v[20:23], v2, {WSR}, s53 offen offset:1024{SC}")
    E.i("s_mov_b64 exec, -1")

def s1(E):
    E.i("s_and_b32 s52, s2, 7"); E.i("s_lshr_b32 s53, s2, 3")
    E.i("s_and_b32 s54, s52, 1"); E.i("s_mul_i32 s54, s54, 30"); E.i("s_add_u32 s54, s54, s53")
    sCT, sRB, sRHO, sC, sMT = 56, 57, 58, 59, 60
    E.i(f"s_lshr_b32 s{sCT}, s54, 2")
    E.i("s_and_b32 s55, s54, 3")
    E.i(f"s_lshr_b32 s{sRB}, s52, 1"); E.i(f"s_lshl_b32 s{sRB}, s{sRB}, 2"); E.i(f"s_add_u32 s{sRB}, s{sRB}, s55")
    if "rotl" in OPT:
        E.i(f"s_mul_i32 s{sRHO}, s55, 5"); E.i(f"s_lshr_b32 s{sRHO}, s{sRHO}, 1"); E.i("s_lshr_b32 s61, s52, 1")
    else:
        E.i(f"s_lshr_b32 s{sRHO}, s52, 1"); E.i(f"s_mul_i32 s{sRHO}, s{sRHO}, 5"); E.i(f"s_lshr_b32 s{sRHO}, s{sRHO}, 1")
        E.i("s_and_b32 s53, s52, 1"); E.i("s_mul_i32 s53, s53, 5"); E.i(f"s_add_u32 s{sRHO}, s{sRHO}, s53")
        E.i(f"s_cmp_ge_u32 s{sRHO}, 10"); E.i("s_cselect_b32 s53, 10, 0"); E.i(f"s_sub_u32 s{sRHO}, s{sRHO}, s53")
        E.i("s_mov_b32 s61, s55")
    E.i(f"s_and_b32 s{sC}, s3, 3"); E.i(f"s_lshr_b32 s{sMT}, s3, 2")
    vQO = [16, 17, 18, 19]
    vXo, vWo = 3, 4
    E.i("v_lshrrev_b32 v5, 3, v1"); E.i("s_lshl_b32 s52, s3, 3"); E.i("v_add_u32 v5, s52, v5")
    E.i("v_bfe_u32 v6, v5, 1, 3"); E.i("v_and_b32 v7, 7, v1"); E.i("v_xor_b32 v6, v6, v7")
    E.i("v_mul_u32_u24 v5, 1280, v5"); E.i(f"v_lshl_add_u32 v{vXo}, v6, 4, v5")
    E.i("v_lshrrev_b32 v5, 4, v1")
    E.i("v_lshlrev_b32 v6, 2, v5"); E.i("v_and_b32 v7, 15, v1"); E.i("v_xor_b32 v6, v6, v7")
    E.i("v_add_u32 v5, s52, v5")
    E.i("v_mul_u32_u24 v5, 3840, v5"); E.i(f"v_lshl_add_u32 v{vWo}, v6, 4, v5")
    sXb, sWb, sLX, sLW = 62, 63, 64, 65
    E.i(f"s_mul_i32 s{sXb}, s{sRB}, 81920")
    E.i(f"s_lshl_b32 s{sWb}, s{sCT}, 8")
    E.i(f"s_lshl_b32 s{sLX}, s3, 10"); E.i(f"s_lshl_b32 s{sLW}, s3, 11"); E.i(f"s_add_u32 s{sLW}, s{sLW}, 16384")
    sCH = 66
    def chunk(p):
        E.i(f"s_add_u32 s{sCH+p}, s{sRHO}, {p}")
        if p >= 3:
            E.i(f"s_cmp_ge_u32 s{sCH+p}, 10"); E.i("s_cselect_b32 s52, 10, 0"); E.i(f"s_sub_u32 s{sCH+p}, s{sCH+p}, s52")
    PK = 176
    def dma(p, i, other=0):
        sl = (p % 4) * 32768
        parked = 4 <= p < 4 + NPARK
        dst = f"v[{PK+16*(p-4)+4*i}:{PK+16*(p-4)+4*i+3}], " if parked else ""
        sfx = "" if parked else " lds"
        if i < 2:
            E.i(f"s_lshl_b32 s100, s{sCH+p}, 7"); E.i(f"s_add_u32 s100, s100, s{sXb}")
            if i or other: E.i(f"s_add_u32 s100, s100, {i*1310720 + other*32*1280}")
            if not parked: E.i(f"s_add_u32 m0, s{sLX}, {sl + i*8192 + other*4096}")
            E.i(f"buffer_load_dwordx4 {dst}v{vXo}, s[{SRD_X}:{SRD_X+3}], s100 offen{sfx}", tag=("c", p))
        else:
            E.i(f"s_mul_i32 s100, s{sCH+p}, 245760"); E.i(f"s_add_u32 s100, s100, s{sWb}")
            if i == 3 or other: E.i(f"s_add_u32 s100, s100, {(i-2)*15360 + other*32*3840}")
            if not parked: E.i(f"s_add_u32 m0, s{sLW}, {sl + (i-2)*1024 + other*8192}")
            E.i(f"buffer_load_dwordx4 {dst}v{vWo}, s[{SRD_W1}:{SRD_W1+3}], s100 offen{sfx}", tag=("c", p))
    for p in range(2):
        chunk(p)
        for i in range(4): dma(p, i)
    for p in range(2, 10): chunk(p)
    E.i("s_barrier")
    for p in (2, 3):
        for i in range(4): dma(p, i)
    nonce_issue(E, 124)
    if S0_ISS < 0: s0_issue(E, 14, None)
    vPX, vPWW = 108 + 0, 109
    E.i(f"s_and_b32 s{sC}, s3, 3"); E.i(f"s_lshr_b32 s{sMT}, s3, 2")
    vXa = [[5, 6, 7, 8], [112, 113, 114, 115]]; vWa = [[9, 10, 11, 12], [116, 117, 118, 119]]; vQO = [16, 17, 18, 19]
    E.i("v_and_b32 v20, 31, v1"); E.i(f"s_lshl_b32 s52, s{sMT}, 5"); E.i("v_add_u32 v20, s52, v20")
    E.i("v_bfe_u32 v21, v20, 1, 3"); E.i("v_lshrrev_b32 v22, 5, v1"); E.i("v_xor_b32 v21, v21, v22")
    E.i("v_lshlrev_b32 v20, 7, v20"); E.i("v_lshl_add_u32 v20, v21, 4, v20")
    E.i("v_bfe_u32 v21, v1, 2, 2")
    E.i("v_lshrrev_b32 v22, 5, v1"); E.i("v_lshl_add_u32 v22, v22, 3, v21"); E.i("v_lshlrev_b32 v22, 8, v22")
    E.i(f"v_xor_b32 v21, s{sC}, v21"); E.i("v_lshl_add_u32 v22, v21, 6, v22")
    E.i("v_bfe_u32 v21, v1, 4, 1"); E.i("v_lshl_add_u32 v22, v21, 5, v22")
    E.i("v_and_b32 v21, 3, v1"); E.i("v_lshl_add_u32 v22, v21, 3, v22")
    E.i(f"v_add_u32 v22, 16384, v22")
    for sp in range(4):
        E.i(f"s_add_u32 s52, s{sC}, {sp}"); E.i("s_and_b32 s52, s52, 3")
        E.i("s_lshl_b32 s53, s52, 5"); E.i(f"v_xor_b32 v{vXa[0][sp]}, s53, v20"); E.i(f"v_add_u32 v{vXa[1][sp]}, 65536, v{vXa[0][sp]}")
        E.i("s_lshl_b32 s53, s52, 12"); E.i(f"v_add_u32 v{vWa[0][sp]}, s53, v22"); E.i(f"v_add_u32 v{vWa[1][sp]}, 65536, v{vWa[0][sp]}")
    E.i("v_lshrrev_b32 v20, 5, v1")
    E.i(f"s_lshl_b32 s52, s{sC}, 3"); E.i(f"s_lshl_b32 s53, s{sCT}, 5"); E.i("s_add_u32 s52, s52, s53"); E.i("v_add_u32 v20, s52, v20")
    E.i("v_bfe_u32 v21, v1, 4, 1"); E.i(f"s_lshl_b32 s52, s{sMT}, 1"); E.i("v_add_u32 v21, s52, v21"); E.i("v_mul_u32_u24 v21, 640, v21")
    E.i("v_and_b32 v22, 15, v1")
    E.i("s_mov_b32 s52, 81920")
    for a in range(4):
        E.i(f"v_add_u32 v23, {2*a}, v20")
        E.i("v_mul_u32_u24 v24, 0xcccd, v23"); E.i("v_lshrrev_b32 v24, 18, v24")
        E.i("v_mul_u32_u24 v25, 5, v24"); E.i("v_sub_u32 v25, v23, v25")
        E.i("v_mul_lo_u32 v24, v24, s52"); E.i("v_add_u32 v24, v24, v21"); E.i("v_lshl_add_u32 v24, v25, 7, v24")
        E.i("v_and_b32 v25, 2, v25"); E.i("v_lshlrev_b32 v25, 2, v25"); E.i("v_xor_b32 v25, v25, v22")
        E.i(f"v_lshl_add_u32 v{vQO[a]}, v25, 3, v24")
    sQO = 76
    E.i(f"s_mul_i32 s{sQO}, s{sRB}, 2560"); E.i(f"s_add_u32 s{sQO+1}, s{sQO}, 40960")
    M1 = 120
    for r in range(4): E.i(f"v_mov_b32 v{M1+r}, -1")
    ST = 65536; CSL = 65536 + 4096
    vST_W, vST_R, vCS_R = 23, 24, 25
    E.i("v_and_b32 v20, 31, v1"); E.i("v_lshlrev_b32 v21, 6, v20"); E.i(f"s_lshl_b32 s52, s{sMT}, 11"); E.i(f"s_add_u32 s52, s52, {ST}")
    E.i(f"v_add_u32 v{vST_R}, s52, v21"); E.i(f"s_lshl_b32 s52, s{sC}, 4"); E.i(f"v_add_u32 v{vST_W}, s52, v{vST_R}")
    E.i("v_lshrrev_b32 v21, 5, v1"); E.i("v_lshlrev_b32 v21, 4, v21"); E.i(f"s_lshl_b32 s52, s{sC}, 7"); E.i(f"s_add_u32 s52, s52, {CSL}"); E.i(f"v_add_u32 v{vCS_R}, s52, v21")
    for p in range(4, 4 + NPARK):
        for i in range(4): E.bg_push(("c", p), lambda p=p, i=i: dma(p, i))
    E.bg_pop(4)
    sGRP = 61
    E.i(f"s_lshl_b32 s52, s{sMT}, 2"); E.i(f"s_add_u32 s{sGRP}, s{sGRP}, s52")
    vPX, vPWW = 172, 173
    E.i(f"v_add_u32 v{vPX}, s{sLX}, v2"); E.i(f"v_add_u32 v{vPWW}, s{sLW}, v2")
    E.i(f"v_add_u32 v174, 65536, v{vPX}"); E.i(f"v_add_u32 v175, 65536, v{vPWW}")
    stamp(E, 1, 31)
    ACC = [32, 48]; WFr = 64; XFr = [80, 96]
    SS = [28, 29, 30, 31]; SS2 = [20, 21, 22, 26]
    TX = [128 + i for i in range(16)]
    for r in SS + SS2: E.i(f"v_mov_b32 v{r}, 0")
    ks = [(p, sp) for p in range(10) for sp in range(4)]
    def rd(idx):
        p, sp = ks[idx]
        hi = (p % 4) // 2; off = (p % 2) * 32768
        wf = WFr + 4*sp
        E.i(f"ds_read_b64_tr_b16 v[{wf}:{wf+1}], v{vWa[hi][sp]} offset:{off}", tag=("r", idx))
        E.i(f"ds_read_b64_tr_b16 v[{wf+2}:{wf+3}], v{vWa[hi][sp]} offset:{off+1024}", tag=("r", idx))
        for h in range(2):
            E.i(f"ds_read_b128 v[{XFr[h]+4*sp}:{XFr[h]+4*sp+3}], v{vXa[hi][sp]} offset:{off + h*8192}", tag=("r", idx))
    D = 2
    def cs1_loads():
        E.bg_lock += 1
        E.i("v_and_b32 v13, 31, v1"); E.i("v_lshlrev_b32 v13, 3, v13"); E.i("v_lshrrev_b32 v14, 5, v1"); E.i("v_mul_u32_u24 v14, 76800, v14"); E.i("v_add_u32 v13, v13, v14")
        E.i(f"s_lshl_b32 s52, s{sCT}, 10"); E.i(f"s_add_u32 s52, s52, {CS1}"); E.i(f"s_lshl_b32 s53, s{sC}, 8"); E.i("s_add_u32 s52, s52, s53")
        for j in range(5):
            E.i(f"buffer_load_dwordx2 v[{144+2*j}:{145+2*j}], v13, {WSR}, s52 offen{SC}", tag="cs1")
            E.i("s_add_u32 s52, s52, 15360")
        E.bg_lock -= 1
    def loop(g):
        E.wait_vm(("c", 0))
        E.i("s_barrier")
        stamp(E, 44, 27)
        E.bg_period = BGP1
        for idx in range(D): rd(idx)
        work = []; pwq = []; dq = []; dskip = 0
        for idx, (p, sp) in enumerate(ks):
            if sp == 2 and p < 9:
                if p + 1 <= 3 or p + 1 >= 4 + NPARK: E.wait_vm(("c", p + 1))
                if 4 <= p + 1 < 4 + NPARK: E.wait_lg("pw")
                if p == 2: nonce_get(E, 124)
                E.i("s_barrier")
                if p == 3 and g == 0:
                    Lc = E.newlabel("csst")
                    E.i(f"s_cmp_ge_u32 s{sGRP}, 3"); E.branch(f"s_cbranch_scc1 {Lc}")
                    with side(E):
                        E.i("v_add_f32 v120, v120, v121"); E.i("v_mov_b32 v121, v120"); E.i("v_permlane32_swap_b32 v120, v121"); E.i("v_add_f32 v120, v120, v121")
                        E.i("v_and_b32 v122, 31, v1"); E.i("v_lshlrev_b32 v122, 3, v122"); E.i(f"v_mov_b32 v121, s{sNONCE}")
                        E.i(f"s_add_u32 s52, s{sRHO}, s{sGRP}")
                        E.i(f"s_mul_i32 s52, s52, 15360"); E.i(f"s_lshl_b32 s53, s{sCT}, 10"); E.i("s_add_u32 s52, s52, s53"); E.i(f"s_lshl_b32 s53, s{sC}, 8"); E.i("s_add_u32 s52, s52, s53"); E.i(f"s_add_u32 s52, s52, {CS1}")
                        E.i("s_mov_b32 exec_hi, 0")
                        E.i(f"buffer_store_dwordx2 v[120:121], v122, {WSR}, s52 offen{SC}")
                        E.i("s_mov_b64 exec, -1")
                    E.label(Lc)
                if p in (2, 5, 8): stamp(E, 45 + p//3, 27)
                if 1 <= p <= NPARK:
                    pc = p + 3; sl = (pc % 4) * 32768
                    for i in range(4):
                        base = ((vPX, vPWW), (174, 175))[sl >= 65536][i >= 2]
                        off = (sl % 65536) + (i*8192 if i < 2 else (i-2)*1024)
                        r = PK + 16*(pc-4) + 4*i
                        pwq.append((pc, f"ds_write_b128 v{base}, v[{r}:{r+3}] offset:{off}"))
                if p == F0_CHK: cs1_loads()
                if NPARK < p <= 6:
                    for i in range(4): dq.append(lambda p=p, i=i: dma(p + 3, i))
                    dskip = 0 if g == 0 else 4
                if p == S0_ISS: s0_issue(E, 14, None)
            wf = WFr + 4*sp
            E.wait_lg(("r", idx))
            for h in range(2):
                c = "0" if idx == 0 else f"v[{ACC[h]}:{ACC[h]+15}]"
                E.i(f"v_mfma_f32_32x32x16_bf16 v[{ACC[h]}:{ACC[h]+15}], v[{wf}:{wf+3}], v[{XFr[h]+4*sp}:{XFr[h]+4*sp+3}], {c}")
                if sp == 0 and "nostat" not in OPT:
                    for q in range(4):
                        E.i(f"v_lshlrev_b32 v{TX[8*h+2*q]}, 16, v{XFr[h]+q}"); E.i(f"v_and_b32 v{TX[8*h+2*q+1]}, 0xffff0000, v{XFr[h]+q}")
                    for q in range(8):
                        sx = (SS if q & 1 else SS2)[2*h]; sxx = (SS if q & 1 else SS2)[2*h+1]
                        work.append(f"v_add_f32 v{sx}, v{sx}, v{TX[8*h+q]}")
                        work.append(f"v_fmac_f32 v{sxx}, v{TX[8*h+q]}, v{TX[8*h+q]}")
                else:
                    n = 6 if sp < 3 else len(work) if h == 1 else 4
                    for _ in range(min(n, len(work))): E.i(work.pop(0))
                if h == 1 and p < 3 and g == 0:
                    Lc = E.newlabel("csp")
                    E.i(f"s_cmp_lg_u32 s{sGRP}, {p}"); E.branch(f"s_cbranch_scc1 {Lc}")
                    with side(E):
                        if sp == 0: E.i("v_mov_b32 v120, 0"); E.i("v_mov_b32 v121, 0")
                        for q in range(4): E.i(f"v_dot2c_f32_bf16 v{120 + (q&1)}, s{sONE}, v{wf+q}")
                    E.label(Lc)
                if h == 0 and idx + D < len(ks): rd(idx + D)
                if dq:
                    if dskip: dskip -= 1
                    else: dq.pop(0)()
                if h == 1 and pwq:
                    pc, t_ = pwq.pop(0)
                    E.wait_vm(("c", pc)); E.i(t_, tag="pw")
    LG1, LJ = E.newlabel("s1G1"), E.newlabel("s1J")
    vm0 = list(E.vm); q0 = list(E.bgq)
    E.i("s_cmp_ge_u32 s3, 4"); E.branch(f"s_cbranch_scc1 {LG1}")
    loop(0)
    E.branch(f"s_branch {LJ}")
    E.label(LG1)
    E.vm = vm0; E.lg = []; E.bgq = q0
    loop(1)
    E.label(LJ)
    if "rep1" in OPT:
        for variant in range(3):
            E.i("s_waitcnt vmcnt(0) lgkmcnt(0)"); E.i("s_barrier"); stamp(E, 53 + 2*variant, 27); E.lg = []
            for idx in range(D): rd(idx)
            for idx, (p, sp) in enumerate(ks):
                if sp == 2 and p < 9 and variant != 1: E.i("s_barrier")
                wf = WFr + 4*sp
                E.wait_lg(("r", idx))
                for h in range(2):
                    E.i(f"v_mfma_f32_32x32x16_bf16 v[{192+16*h}:{192+16*h+15}], v[{wf}:{wf+3}], v[{XFr[h]+4*sp}:{XFr[h]+4*sp+3}], v[{192+16*h}:{192+16*h+15}]")
                    if variant == 2:
                        for q in range(6): E.i(f"v_fmac_f32 v{TX[q]}, v{TX[8+q]}, v{TX[8+q]}")
                    if h == 0 and idx + D < len(ks): rd(idx + D)
            E.i("s_barrier"); stamp(E, 54 + 2*variant, 27)
    E.wait_vm("cs1")
    Lc, Lok = E.newlabel("cs1c"), E.newlabel("cs1ok")
    E.label(Lc)
    for j in range(5): E.i(f"v_xor_b32 v{145+2*j}, s{sNONCE}, v{145+2*j}")
    E.i("v_or3_b32 v145, v145, v147, v149"); E.i("v_or3_b32 v145, v145, v151, v153")
    E.i("v_cmp_ne_u32 vcc, 0, v145")
    E.branch(f"s_cbranch_vccz {Lok}")
    with side(E): retry_tail(E, Lok, Lc, cs1_loads)
    E.label(Lok)
    E.i("v_add_f32 v144, v144, v146"); E.i("v_add_f32 v148, v148, v150"); E.i("v_add_f32 v144, v144, v152"); E.i("v_add_f32 v144, v144, v148")
    E.i("v_mov_b32 v145, v144"); E.i("v_permlane32_swap_b32 v144, v145"); E.i("v_add_f32 v144, v144, v145")
    E.i("v_and_b32 v13, 31, v1"); E.i("v_lshlrev_b32 v13, 2, v13"); E.i(f"s_lshl_b32 s52, s{sC}, 7"); E.i(f"s_add_u32 s52, s52, {CSL}"); E.i("v_add_u32 v13, s52, v13")
    E.i("ds_write_b32 v13, v144")
    stamp(E, 2, 27)
    E.bg_flush()
    for j in range(4): E.i(f"v_add_f32 v{SS[j]}, v{SS[j]}, v{SS2[j]}")
    for j in range(4): E.i(f"v_mov_b32 v{SS2[j]}, v{SS[j]}")
    for j in range(4): E.i(f"v_permlane32_swap_b32 v{SS[j]}, v{SS2[j]}")
    for j in range(4): E.i(f"v_add_f32 v{SS[j]}, v{SS[j]}, v{SS2[j]}")
    E.i(f"ds_write_b128 v{vST_W}, v[28:31]")
    E.wait_lg()
    E.i("s_barrier")
    for j in range(4): E.i(f"ds_read_b128 v[{80+4*j}:{83+4*j}], v{vST_R} offset:{16*j}")
    CS = 64
    for a in range(4): E.i(f"ds_read_b128 v[{CS+4*a}:{CS+4*a+3}], v{vCS_R} offset:{a*32}")
    E.wait_lg()
    for j in range(4):
        E.i(f"v_add_f32 v{80+j}, v{80+j}, v{84+j}"); E.i(f"v_add_f32 v{88+j}, v{88+j}, v{92+j}"); E.i(f"v_add_f32 v{SS[j]}, v{80+j}, v{88+j}")
    for h in range(2):
        SX, SXX = SS[2*h], SS[2*h+1]
        stats_math(E, SX, SXX)
        E.i(f"s_cmp_lt_u32 s{sCT}, 5"); E.i(f"s_cselect_b32 s52, {f2u((20 ** -0.5) * math.log2(math.e)):#x}, 1.0")
        E.i(f"v_mul_f32 v{SXX}, s52, v{SXX}")
        for a in range(4):
            A_ = ACC[h] + 4*a
            for b in range(4): E.i(f"v_fma_f32 v{A_+b}, v{SX}, v{CS+4*a+b}, v{A_+b}")
            for b in range(4): E.i(f"v_mul_f32 v{A_+b}, v{SXX}, v{A_+b}")
            o = 96 + 8*h + 2*a
            E.i(f"v_cvt_pk_bf16_f32 v{o}, v{A_}, v{A_+1}")
            E.i(f"v_cvt_pk_bf16_f32 v{o+1}, v{A_+2}, v{A_+3}")
            E.i(f"buffer_store_dwordx2 v[{o}:{o+1}], v{vQO[a]}, {WSR}, s{sQO+h} offen{SC}", tag="st")
    stamp(E, 5, 27)
    s0_finish(E, 224, 14, None)
    assert not E.bgq
S0_ISS = int(os.environ.get('S0_ISS', '-1'))
F0_SET, F0_CHK = 4, int(os.environ.get('F0_CHK', '7'))
NPARK = int(os.environ.get('NPARK', '0'))
BGP1 = int(os.environ.get("BGP1", "70"))
```

```python
from k16a import *

sRB3, sCT3, sCG4, sRB4 = 86, 87, 88, 89
W3R = 156; A3 = [68, 108]; ACC3 = 28
W5P1 = 168
AFR = 88
W5reg = lambda j: (W5P1 + 4*j) if j < 22 else (AFR + 48 + 4*(j-22))
A5 = [lambda f: AFR + 4*f, lambda f: (56 + 4*f) if f < 8 else (AFR + 4*(f-8))]
vA3 = 3
S2B_AT = int(os.environ.get("S2B_AT", "5"))
S3A_AT = int(os.environ.get("S3A_AT", "6"))

def late_scalars(E):
    E.i("s_and_b32 s52, s2, 7"); E.i("s_lshr_b32 s53, s2, 3")
    E.i(f"s_lshr_b32 s{sRB3}, s52, 1"); E.i(f"s_lshl_b32 s{sRB3}, s{sRB3}, 3"); E.i("s_lshr_b32 s54, s53, 2"); E.i(f"s_add_u32 s{sRB3}, s{sRB3}, s54")
    E.i(f"s_and_b32 s{sCT3}, s52, 1"); E.i(f"s_lshl_b32 s{sCT3}, s{sCT3}, 2"); E.i("s_and_b32 s54, s53, 3"); E.i(f"s_add_u32 s{sCT3}, s{sCT3}, s54")
    E.i(f"s_lshr_b32 s{sRB4}, s52, 2"); E.i(f"s_lshl_b32 s{sRB4}, s{sRB4}, 2"); E.i("s_lshr_b32 s54, s53, 3"); E.i(f"s_add_u32 s{sRB4}, s{sRB4}, s54")
    E.i(f"s_and_b32 s{sCG4}, s52, 3"); E.i(f"s_lshl_b32 s{sCG4}, s{sCG4}, 3"); E.i("s_and_b32 s54, s53, 7"); E.i(f"s_add_u32 s{sCG4}, s{sCG4}, s54")

def ld_unit(E, r, sbase, j, tag, vaddr=2, unit=1024):
    off = j * unit
    if off < 4096:
        E.i(f"buffer_load_dwordx4 v[{r}:{r+3}], v{vaddr}, {WSR}, s{sbase} offen offset:{off}{SC}", tag=tag)
    else:
        E.i(f"s_add_u32 s100, s{sbase}, {off - off % 4096}")
        E.i(f"buffer_load_dwordx4 v[{r}:{r+3}], v{vaddr}, {WSR}, s100 offen offset:{off % 4096}{SC}", tag=tag)

sWP, sW4, sW5, sA3, sA4, sA5, sHS, sHH = 56, 57, 59, 60, 62, 63, 65, 66
def bases(E):
    E.i(f"s_mul_i32 s{sW5}, s{sCT3}, 245760"); E.i("s_mul_i32 s53, s3, 30720"); E.i(f"s_add_u32 s{sW5}, s{sW5}, s53"); E.i(f"s_add_u32 s{sW5}, s{sW5}, {W5F}")
    E.i(f"s_mul_i32 s52, s{sCT3}, 102400"); E.i("s_mul_i32 s53, s3, 25600"); E.i("s_add_u32 s52, s52, s53"); E.i(f"s_add_u32 s52, s52, {W3F}")
    E.i(f"s_sub_u32 s53, s{sW5}, 3072")
    E.i("s_cmp_lt_u32 s3, 4"); E.i(f"s_cselect_b32 s{sWP}, s52, s53")
    E.i(f"s_mul_i32 s{sW4}, s{sCG4}, 122880"); E.i(f"s_add_u32 s{sW4}, s{sW4}, {W4F}"); E.i(f"s_lshl_b32 s{sW4+1}, s3, 10"); E.i(f"s_add_u32 s{sW4}, s{sW4}, s{sW4+1}")
    E.i(f"s_mul_i32 s{sA3}, s{sRB3}, 40960"); E.i(f"s_add_u32 s{sA3}, s{sA3}, {OF}")
    E.i("s_and_b32 s53, s3, 3"); E.i("s_lshl_b32 s72, s53, 12"); E.i("s_lshl_b32 s73, s53, 10"); E.i("s_add_u32 s73, s73, 16384")
    E.i(f"s_add_u32 s{sA3+1}, s{sA3}, {64*20480}")
    E.i("s_lshr_b32 s52, s3, 2"); E.i("s_xor_b32 s52, s52, 1"); E.i("s_lshl_b32 s52, s52, 3"); E.i(f"s_add_u32 s52, s52, s{sRB4}"); E.i("s_lshl_b32 s52, s52, 2"); E.i("s_and_b32 s53, s3, 3"); E.i("s_add_u32 s52, s52, s53")
    E.i(f"s_mul_i32 s{sA4}, s52, 40960"); E.i(f"s_add_u32 s{sA4}, s{sA4}, {HF}")
    E.i(f"s_lshl_b32 s{sHS}, s52, 11"); E.i(f"s_add_u32 s{sHS}, s{sHS}, {HSTB}")
    E.i(f"s_mul_i32 s{sHH}, s52, 98304"); E.i(f"s_mul_i32 s53, s{sCG4}, 3072"); E.i(f"s_add_u32 s{sHH}, s{sHH}, s53"); E.i(f"s_add_u32 s{sHH}, s{sHH}, {HHF}")
    E.i(f"s_mul_i32 s{sA5}, s{sRB3}, 98304"); E.i("s_mul_i32 s53, s3, 12288"); E.i(f"s_add_u32 s{sA5}, s{sA5}, s53"); E.i(f"s_add_u32 s{sA5}, s{sA5}, {HHF}")
    E.i(f"s_add_u32 s{sA5+1}, s{sA5}, {32*98304}")

def w4_unit(E, base):
    E.i(f"s_add_u32 m0, s{sW4+1}, {base*1024}"); E.i(f"s_add_u32 s100, s{sW4}, {base*1024}")
    E.i(f"buffer_load_dwordx4 v2, {WSR}, s100 offen{SC} lds", tag="w4")

def a3_all(E, ph):
    for k in range(5):
        for u in range(2):
            r = A3[ph] + (2*k + u)*4
            if k < 4:
                E.i(f"s_add_u32 s100, s{sA3+ph}, s72")
                if u: E.i("s_add_u32 s100, s100, 20480")
                E.i(f"buffer_load_dwordx4 v[{r}:{r+3}], v2, {WSR}, s100 offen offset:{k*1024}{SC}", tag=("a3", ph, k))
            else:
                E.i(f"s_add_u32 s100, s{sA3+ph}, s73")
                if u: E.i("s_add_u32 s100, s100, 20480")
                for h in range(2):
                    E.i(f"buffer_load_dwordx2 v[{r+2*h}:{r+2*h+1}], v{vA3}, {WSR}, s100 offen offset:{h*128}{SC}", tag=("a3", ph, k))

def probe(E, setup, va, vd, loads=None, sleep=2):
    L, Lok = E.newlabel("prb"), E.newlabel("prbok")
    E.bg_lock += 1
    setup()
    E.label(L)
    E.i(f"buffer_load_dword v{vd}, v{va}, {WSR}, s101 offen{SC}", tag="probe")
    if loads: loads()
    E.wait_vm("probe")
    E.i(f"v_cmp_eq_u32 vcc, -1, v{vd}")
    E.branch(f"s_cbranch_vccz {Lok}")
    E.i(f"s_sleep {sleep}")
    E.i(f"s_add_u32 s{sRETRY}, s{sRETRY}, 1"); E.i(f"s_cmp_gt_u32 s{sRETRY}, {RETRY_MAX}")
    E.branch(f"s_cbranch_scc0 {L}")
    E.label(Lok)
    E.bg_lock -= 1
def probe_o(E, ph, va, vd, loads=None):
    def st():
        E.i(f"v_and_b32 v{va}, 7, v1"); E.i(f"v_lshlrev_b32 v{va}, 7, v{va}"); E.i(f"v_bfe_u32 v{vd}, v1, 3, 1"); E.i(f"v_mul_u32_u24 v{vd}, 20480, v{vd}"); E.i(f"v_add_u32 v{va}, v{va}, v{vd}")
        E.i(f"s_add_u32 s101, s{sA3+ph}, s73")
    probe(E, st, va, vd, loads)
def probe_h(E, va, vd, loads=None):
    def st():
        E.i(f"v_and_b32 v{va}, 7, v1"); E.i(f"v_mul_u32_u24 v{va}, 5120, v{va}"); E.i(f"s_add_u32 s101, s{sA4}, 4096")
    probe(E, st, va, vd, loads)
def probe_hh(E, ph, va, vd, loads=None, sleep=2):
    def st():
        E.i(f"v_and_b32 v{va}, 3, v1"); E.i(f"v_mul_u32_u24 v{va}, 3072, v{va}"); E.i(f"s_add_u32 s101, s{sA5+ph}, 2048")
    probe(E, st, va, vd, loads, sleep)

CNT = 2816
def gwait(E, idx, target, va, vt):
    L, Lok = E.newlabel("gw"), E.newlabel("gwok")
    E.bg_lock += 1
    E.i(f"v_mov_b32 v{va}, {CNT + 4*idx}")
    E.label(L)
    E.i(f"ds_read_b32 v{vt}, v{va}")
    E.i("s_waitcnt lgkmcnt(0)"); E.lg = []
    E.i(f"v_readfirstlane_b32 s52, v{vt}")
    E.i(f"s_cmp_ge_u32 s52, {target}")
    E.branch(f"s_cbranch_scc1 {Lok}")
    E.i(f"s_add_u32 s{sRETRY}, s{sRETRY}, 1"); E.i(f"s_cmp_gt_u32 s{sRETRY}, {RETRY_MAX*50}")
    E.branch(f"s_cbranch_scc0 {L}")
    E.label(Lok)
    E.bg_lock -= 1
def garrive(E, idx, va, vt):
    E.bg_lock += 1
    E.i("s_waitcnt lgkmcnt(0)"); E.lg = []
    E.i(f"v_mov_b32 v{va}, {CNT + 4*idx}"); E.i(f"v_mov_b32 v{vt}, 1")
    E.i("s_mov_b64 exec, 1")
    E.i(f"ds_add_u32 v{va}, v{vt}")
    E.i("s_mov_b64 exec, -1")
    E.bg_lock -= 1
GB = [0, 0]
def gbar(E, g, va, vt):
    GB[g] += 1
    garrive(E, g, va, vt); gwait(E, g, 4*GB[g], va, vt)

ONESL = 2688
def s2(E):
    KV = [122880, 92160]
    stamp(E, 6, 31)
    vD = 34
    s2_scalars(E)
    s2_loads(E, 0, 0, vD, 0, 0, KV[0]); s2_loads(E, 0, 1, vD, 0, 0, KV[1])
    LO, LO4, K1, K2, VA, VS, vO1, vO2, M0_, M1_ = 4, 5, 6, 7, 8, 9, 10, 11, 32, 33
    QF = 12; BM = 20; KF = 36; VF = 52; PP = 68; S = [84, 100]; NM = 116; OA = 132
    E.i("v_and_b32 v24, 15, v1"); E.i("v_bfe_u32 v25, v1, 4, 1"); E.i("v_lshrrev_b32 v26, 5, v1")
    E.i("v_mul_u32_u24 v27, 640, v25")
    E.i("v_lshlrev_b32 v28, 3, v26"); E.i("v_xor_b32 v28, v28, v24"); E.i(f"v_lshl_add_u32 v{LO}, v28, 3, v27"); E.i(f"v_lshl_add_u32 v{LO}, v26, 8, v{LO}")
    E.i(f"v_lshl_add_u32 v{LO4}, v24, 3, v27"); E.i(f"v_add_u32 v{LO4}, 512, v{LO4}")
    for r in range(4, 8): E.i(f"v_mov_b32 v{QF+r}, 0")
    E.i(f"buffer_load_dwordx2 v[{QF}:{QF+1}], v{LO}, {WSR}, s{sQo} offen", tag="q")
    E.i(f"buffer_load_dwordx2 v[{QF+2}:{QF+3}], v{LO}, {WSR}, s{sQo} offen offset:128", tag="q")
    E.i("s_mov_b32 exec_hi, 0")
    E.i(f"buffer_load_dwordx2 v[{QF+4}:{QF+5}], v{LO4}, {WSR}, s{sQo} offen", tag="q")
    E.i("s_mov_b64 exec, -1")
    E.i("s_barrier")
    late_scalars(E); bases(E)
    E.i(f"v_lshrrev_b32 v36, 1, v2"); E.i("s_mul_i32 s52, s3, 61440"); E.i(f"s_mul_i32 s53, s{sCG4}, 384"); E.i("s_add_u32 s52, s52, s53"); E.i(f"s_add_u32 s52, s52, {CSP4}")
    for j in range(5):
        E.i(f"buffer_load_dwordx2 v[{140+2*j}:{141+2*j}], v36, {WSR}, s52 offen", tag="cs")
        E.i("s_add_u32 s52, s52, 12288")
    E.i("s_and_b32 s52, s3, 3"); E.i("s_mul_i32 s52, s52, 1280"); E.i("s_lshr_b32 s53, s3, 2"); E.i(f"s_mul_i32 s53, s53, {KV[0]-KV[1]}"); E.i(f"s_add_u32 s52, s52, {KV[0]}"); E.i("s_sub_u32 s52, s52, s53")
    E.i(f"v_add_u32 v{K1}, s52, v{LO}"); E.i(f"v_add_u32 v{K2}, s52, v{LO4}")
    E.i("v_bfe_u32 v27, v1, 2, 2"); E.i("v_lshl_add_u32 v27, v26, 2, v27")
    E.i("v_and_b32 v28, 3, v1")
    E.i("v_lshlrev_b32 v29, 7, v28"); E.i("v_lshl_add_u32 v29, v27, 3, v29")
    E.i("v_and_b32 v30, 2, v28"); E.i("v_lshlrev_b32 v30, 5, v30")
    E.i("v_lshlrev_b32 v31, 3, v27"); E.i("v_add_u32 v31, 512, v31")
    E.i("v_cmp_eq_u32 vcc, 1, v25")
    E.i("v_cndmask_b32 v29, v29, v31, vcc"); E.i("v_cndmask_b32 v30, v30, 0, vcc")
    E.i("s_add_u32 s52, s52, 15360")
    E.i("v_add_u32 v29, s52, v29")
    E.i("v_cmp_ne_u32 s[54:55], 0, v28"); E.i("s_and_b64 vcc, vcc, s[54:55]")
    E.i(f"v_mov_b32 v31, {ONESL}"); E.i("v_cndmask_b32 v29, v29, v31, vcc")
    E.i(f"v_mov_b32 v31, 640"); E.i(f"v_cndmask_b32 v{VS}, v31, 0, vcc")
    VA2 = 35
    E.i(f"v_add_u32 v{VA}, v29, v30"); E.i("v_xor_b32 v30, 64, v30"); E.i(f"v_add_u32 v{VA2}, v29, v30")
    E.i("v_mul_u32_u24 v27, 20480, v25"); E.i(f"v_lshl_add_u32 v{vO2}, v24, 3, v27"); E.i(f"v_lshl_add_u32 v{vO1}, v24, 4, v27"); E.i(f"v_lshl_add_u32 v{vO1}, v26, 8, v{vO1}")
    E.i("v_lshrrev_b32 v27, 4, v1"); E.i(f"v_lshlrev_b32 v{vA3}, 8, v27"); E.i(f"v_lshl_add_u32 v{vA3}, v24, 3, v{vA3}")
    MS = [4,6,8,10,12,14,16,18,20,22,28,30,40,42,44,46]
    E.i("v_and_b32 v27, 31, v1"); E.i("v_lshlrev_b32 v28, 2, v26"); E.i("v_sub_u32 v27, v27, v28")
    Lw = E.newlabel("wp0")
    E.i("s_cmp_ge_u32 s3, 4"); E.branch(f"s_cbranch_scc1 {Lw}")
    with side(E):
        for j in range(WP_PRE): ld_unit(E, W3R + 4*j, sWP, j, "wp")
        E.i(f"s_waitcnt vmcnt({WP_PRE})")
        E.branch(f"s_branch {Lw}_j")
    E.label(Lw)
    with side(E):
        E.i(f"s_sub_u32 s{sW4}, s{sW4}, 4096"); E.i(f"s_sub_u32 s{sW4+1}, s{sW4+1}, 4096")
        for u_ in range(3, 3 + 4*W4_PRE, 4): w4_unit(E, u_)
        E.i(f"s_waitcnt vmcnt({W4_PRE})")
    E.label(f"{Lw}_j")
    E.vm = []
    E.i("v_mov_b32 v28, 0xffff"); E.i("v_mov_b32 v29, 0xffff0000")
    for r in range(16):
        E.i(f"v_cmp_le_i32 s[{MS[r]}:{MS[r]+1}], {8*(r//4) + r%4}, v27")
    for j in range(8):
        E.i(f"v_cndmask_b32 v30, 0, v28, s[{MS[2*j]}:{MS[2*j]+1}]"); E.i(f"v_cndmask_b32 v31, 0, v29, s[{MS[2*j+1]}:{MS[2*j+1]+1}]")
        E.i(f"v_or_b32 v{BM+j}, v30, v31")
    CSS = 153600
    for j in range(1, 5):
        E.i(f"v_add_f32 v140, v140, v{140+2*j}"); E.i(f"v_add_f32 v141, v141, v{141+2*j}")
    E.i("s_lshl_b32 s52, s3, 9"); E.i(f"s_add_u32 s52, s52, {CSS}"); E.i("v_add_u32 v37, s52, v36")
    E.i("ds_write_b64 v37, v[140:141]")
    E.i("v_mov_b32 v142, 0"); E.i("v_mov_b32 v143, 0"); E.i(f"v_mov_b32 v37, {CNT}"); E.i("ds_write_b64 v37, v[142:143]"); E.i("ds_write_b64 v37, v[142:143] offset:8")
    E.i(f"v_mov_b32 v142, s{sONE}"); E.i("v_and_b32 v37, 31, v1"); E.i("v_lshlrev_b32 v37, 2, v37"); E.i(f"ds_write_b32 v37, v142 offset:{ONESL}")
    for r in (KF+6, KF+7, KF+14, KF+15): E.i(f"v_mov_b32 v{r}, 0")
    E.wait_lg()
    stamp(E, 7, 30)
    E.i("s_barrier")
    Lw = E.newlabel("g1pre")
    E.i("s_cmp_ge_u32 s3, 4"); E.branch(f"s_cbranch_scc1 {Lw}")
    E.i("s_setprio 2")
    E.branch(f"s_branch {Lw}_j")
    E.label(Lw)
    with side(E):
        for u_ in list(range(3 + 4*W4_PRE, 87, 4)) + [86]: w4_unit(E, u_)
        Lcs = E.newlabel("csf")
        E.i("s_cmp_lg_u32 s3, 7"); E.branch(f"s_cbranch_scc1 {Lcs}")
        E.i(f"v_lshrrev_b32 v30, 1, v2"); E.i(f"v_add_u32 v31, {CSS}, v30")
        for w in range(8): E.i(f"ds_read_b64 v[{84+2*w}:{85+2*w}], v31 offset:{w*512}")
        E.i("s_waitcnt lgkmcnt(0)")
        for w in range(1, 8):
            E.i(f"v_add_f32 v84, v84, v{84+2*w}"); E.i(f"v_add_f32 v85, v85, v{85+2*w}")
        E.i(f"ds_write_b64 v30, v[84:85] offset:{CSF}")
        garrive(E, 2, 30, 31)
        E.label(Lcs)
    E.label(f"{Lw}_j")
    stamp(E, 8, 30); stamp(E, 10, 30, wave=4)
    order = [0, 8, 7, 6, 5, 4, 3, 2, 1]
    def rdk(n):
        b = order[n]; r = KF + 8*(n % 2)
        E.i(f"ds_read2_b64 v[{r}:{r+3}], v{K1} offset0:{(b*1280//8) % 256} offset1:{(b*1280//8 + 16) % 256}", tag=("k", n)) if b*1280//8 + 16 < 256 else (
            E.i(f"ds_read_b64 v[{r}:{r+1}], v{K1} offset:{b*1280}", tag=("k", n)), E.i(f"ds_read_b64 v[{r+2}:{r+3}], v{K1} offset:{b*1280+128}", tag=("k", n)))
        E.i(f"ds_read_b64 v[{r+4}:{r+5}], v{K2} offset:{b*1280}", tag=("k", n))
    def weave(big, small):
        nb = len(big); per = -(-len(small) // max(nb, 1))
        for f in big:
            f()
            for _ in range(per):
                if small: E.i(small.pop(0))
        while small: E.i(small.pop(0))
    def qk_parts(n, c):
        r = KF + 8*(n % 2); d = S[n % 2]
        def a():
            E.wait_lg(("k", n))
            E.i(f"v_mfma_f32_32x32x16_bf16 v[{d}:{d+15}], v[{r}:{r+3}], v[{QF}:{QF+3}], {c}")
        def b_():
            E.i(f"v_mfma_f32_32x32x16_bf16 v[{d}:{d+15}], v[{r+4}:{r+7}], v[{QF+4}:{QF+7}], v[{d}:{d+15}]")
            if n + 2 < 9: rdk(n + 2)
        return [a, b_]
    pads = []
    def exit_if_invalid(b, target):
        Lp = E.newlabel("pad"); pads.append((Lp, target))
        E.i(f"s_cmp_lt_u32 s{sTQ}, {16 - 2*b}"); E.branch_nf(f"s_cbranch_scc1 {Lp}")
    def merge():
        Lf = E.newlabel("fv"); pads.append((Lf, None))
        E.i(f"s_cmp_lt_u32 s{sTQ}, 16"); E.branch_nf(f"s_cbranch_scc1 {Lf}")
        E.raw(f"{Lf}_r:")
        for r in range(16): E.i(f"v_cndmask_b32 v{S[1]+r}, v{S[0]+r}, v{S[1]+r}, s[{MS[r]}:{MS[r]+1}]")
    if "rep2" in OPT:
        E.i("s_mov_b32 s77, 0"); E.label("L_rep2")
    Lp1 = E.newlabel("p1done")
    rdk(0); rdk(1)
    for f in qk_parts(0, "0") + qk_parts(1, "0"): f()
    merge()
    for n in range(1, 9):
        d = S[n % 2]
        if n >= 2: exit_if_invalid(order[n], Lp1)
        sm = []
        for j in range(0, 16, 4):
            if n == 1 and j == 0:
                sm += [f"v_max_f32 v{M0_}, v{d}, v{d+1}", f"v_max_f32 v{M1_}, v{d+2}, v{d+3}"]
            else:
                sm += [f"v_max3_f32 v{M0_}, v{d+j}, v{d+j+1}, v{M0_}", f"v_max3_f32 v{M1_}, v{d+j+2}, v{d+j+3}, v{M1_}"]
        weave(qk_parts(n + 1, "0") if n + 1 < 9 else [], sm)
    E.label(Lp1)
    E.i("s_waitcnt lgkmcnt(0)"); E.lg = []
    rdk(0); rdk(1)
    E.i(f"v_max_f32 v{M0_}, v{M0_}, v{M1_}")
    E.i(f"v_mov_b32 v{M1_}, v{M0_}"); E.i(f"v_permlane32_swap_b32 v{M0_}, v{M1_}"); E.i(f"v_max_f32 v{M0_}, v{M0_}, v{M1_}")
    for r in range(16): E.i(f"v_sub_f32 v{NM+r}, 0, v{M0_}")
    vT1, vT2 = 30, 31
    def rdv(b, slot):
        for ks in range(2):
            tb = 2*b + ks
            E.i(f"v_mad_u32_u24 v{vT1}, v{VS}, {tb}, v{VA}"); E.i(f"v_mad_u32_u24 v{vT2}, v{VS}, {tb}, v{VA2}")
            r = VF + 8*slot + 4*ks
            E.i(f"ds_read_b64_tr_b16 v[{r}:{r+1}], v{vT1}", tag=("v", b)); E.i(f"ds_read_b64_tr_b16 v[{r+2}:{r+3}], v{vT2}", tag=("v", b))
    def pv_parts(b, slot, P, first, nxt=None):
        def mk(ks):
            def f():
                if ks == 0: E.wait_lg(("v", b))
                r = VF + 8*slot + 4*ks
                c = "0" if (first and ks == 0) else f"v[{OA}:{OA+15}]"
                E.i(f"v_mfma_f32_32x32x16_bf16 v[{OA}:{OA+15}], v[{r}:{r+3}], v[{P+4*ks}:{P+4*ks+3}], {c}")
                if ks == 1 and nxt is not None: rdv(nxt, slot)
            return f
        return [mk(0), mk(1)]
    nm = f"v[{NM}:{NM+15}]"
    Lp2 = E.newlabel("p2done")
    PF0 = 148
    for f in qk_parts(0, nm) + qk_parts(1, nm): f()
    rdv(0, 0); rdv(8, 1)
    merge()
    pend = []
    tails = []
    for n in range(1, 9):
        d = S[n % 2]; b = order[n]; P = PP + 8*(n % 2)
        if n >= 2:
            Lt = E.newlabel("p2t"); tails.append((Lt, n - 1))
            exit_if_invalid(b, Lt)
        sm = [f"v_exp_f32 v{d+j}, v{d+j}" for j in range(16)]
        weave((qk_parts(n + 1, nm) if n + 1 < 9 else []) + pend, sm)
        for j in range(8): E.i(f"v_cvt_pk_bf16_f32 v{P+j}, v{d+2*j}, v{d+2*j+1}")
        if n == 1:
            for j in range(8): E.i(f"v_bfi_b32 v{PF0+j}, v{BM+j}, 0, v{P+j}")
            for j in range(8): E.i(f"v_and_b32 v{P+j}, v{BM+j}, v{P+j}")
            pend = pv_parts(0, 0, PF0, True, order[2]) + pv_parts(8, 1, P, False, order[3])
        else:
            pend = pv_parts(b, n % 2, P, False, order[n + 2] if n + 2 < 9 else None)
    for f in pend: f()
    E.branch(f"s_branch {Lp2}")
    for Lp, target in pads:
        E.pad_label(Lp)
        if target is None:
            for r in range(16): E.i(f"v_mov_b32 v{S[0]+r}, {NEG:#x}")
            E.branch(f"s_branch {Lp}_r")
        else: E.branch(f"s_branch {target}")
    for Lt, m in tails:
        E.label(Lt)
        E.i("s_waitcnt lgkmcnt(0)"); E.lg = []
        P = PP + 8*(m % 2)
        parts = (pv_parts(0, 0, PF0, True) + pv_parts(8, 1, P, False)) if m == 1 else pv_parts(order[m], m % 2, P, False)
        for f in parts: f()
        E.branch(f"s_branch {Lp2}")
    E.label(Lp2)
    if "rep2" in OPT:
        E.i("s_waitcnt lgkmcnt(0)"); E.lg = []
        E.i("s_cmp_eq_u32 s77, 1"); E.branch("s_cbranch_scc1 L_rep2_done")
        stamp(E, 12, 30); stamp(E, 13, 30, wave=4)
        E.i("s_barrier"); stamp(E, 37, 30)
        E.i("s_mov_b32 s77, 1"); E.branch("s_branch L_rep2")
        E.label("L_rep2_done")
    stamp(E, 9, 30); stamp(E, 11, 30, wave=4)
    E.i("s_lshr_b32 s52, s3, 2"); E.i("s_lshl_b32 s52, s52, 2"); E.i(f"s_add_u32 s52, s52, {CNT + 8}")
    E.i("s_waitcnt lgkmcnt(0)"); E.lg = []
    E.i("v_mov_b32 v30, s52"); E.i("v_mov_b32 v31, 1"); E.i("s_mov_b64 exec, 1"); E.i("ds_add_u32 v30, v31"); E.i("s_mov_b64 exec, -1")
    E.i(f"v_rcp_f32 v{M0_}, v{OA+12}")
    for r in range(12): E.i(f"v_mul_f32 v{OA+r}, v{OA+r}, v{M0_}")
    for j in range(6): E.i(f"v_cvt_pk_bf16_f32 v{PP+j}, v{OA+2*j}, v{OA+2*j+1}")
    for j in range(6): E.i(f"v_min_u32 v{PP+j}, s{sM1}, v{PP+j}")
    E.i(f"v_permlane32_swap_b32 v{PP}, v{PP+2}"); E.i(f"v_permlane32_swap_b32 v{PP+1}, v{PP+3}")
    E.i(f"s_lshl_b32 s52, s{sHD}, 9"); E.i(f"s_add_u32 s52, s52, s{sOo}")
    E.i(f"s_lshl_b32 s53, s{sHD}, 7"); E.i(f"s_add_u32 s53, s53, s{sOo}"); E.i("s_add_u32 s53, s53, 16384")
    E.i(f"buffer_store_dwordx4 v[{PP}:{PP+3}], v{vO1}, {WSR}, s52 offen{SC}", tag="st")
    E.i("s_mov_b32 exec_hi, 0")
    E.i(f"buffer_store_dwordx2 v[{PP+4}:{PP+5}], v{vO2}, {WSR}, s53 offen{SC}", tag="st")
    E.i("s_mov_b64 exec, -1")
W4_PRE = int(os.environ.get("W4_PRE", "8"))

def final_sum(E, vPR, nslots, T, off0, vt):
    for half in range(nslots // 4):
        for w in range(4):
            off = off0 + (half*4 + w)*10240
            for g in range(2):
                o = off + g*256
                r = T + 8 + (w*2+g)*4
                if o > 65535:
                    E.i(f"v_add_u32 v{vt}, 40960, v{vPR}"); E.i(f"ds_read_b128 v[{r}:{r+3}], v{vt} offset:{o-40960}")
                else:
                    E.i(f"ds_read_b128 v[{r}:{r+3}], v{vPR} offset:{o}")
        E.wait_lg()
        for j in range(8):
            g, b = j // 4, j % 4
            sr = [T + 8 + (w*2+g)*4 + b for w in range(4)]
            E.i(f"v_add_f32 v{sr[0]}, v{sr[0]}, v{sr[1]}"); E.i(f"v_add_f32 v{sr[2]}, v{sr[2]}, v{sr[3]}")
            if half == 0: E.i(f"v_add_f32 v{T+j}, v{sr[0]}, v{sr[2]}")
            else:
                E.i(f"v_add_f32 v{T+j}, v{T+j}, v{sr[0]}"); E.i(f"v_add_f32 v{T+j}, v{T+j}, v{sr[2]}")

def add_res_pack(E, T, RES, OUT, vt, clamp):
    for j in range(4):
        E.i(f"v_lshlrev_b32 v{vt}, 16, v{RES+j}"); E.i(f"v_add_f32 v{T+2*j}, v{T+2*j}, v{vt}")
        E.i(f"v_and_b32 v{vt}, 0xffff0000, v{RES+j}"); E.i(f"v_add_f32 v{T+2*j+1}, v{T+2*j+1}, v{vt}")
    for j in range(4):
        E.i(f"v_cvt_pk_bf16_f32 v{OUT+j}, v{T+2*j}, v{T+2*j+1}")
        if clamp: E.i(f"v_min_u32 v{OUT+j}, s{sM1}, v{OUT+j}")

def lane_pr(E, dst, t0, t1):
    E.i(f"v_bfe_u32 v{t0}, v1, 4, 1"); E.i(f"v_mul_u32_u24 v{t0}, 5120, v{t0}"); E.i(f"v_lshrrev_b32 v{t1}, 5, v1"); E.i(f"v_lshl_add_u32 v{t0}, v{t1}, 9, v{t0}")
    E.i(f"v_and_b32 v{t1}, 15, v1"); E.i(f"v_lshl_add_u32 v{dst}, v{t1}, 4, v{t0}")
def lane_xr(E, dst, t0, t1):
    E.i(f"v_and_b32 v{t0}, 31, v1"); E.i(f"v_mul_u32_u24 v{t0}, 1280, v{t0}"); E.i(f"v_lshrrev_b32 v{t1}, 5, v1"); E.i(f"v_lshl_add_u32 v{dst}, v{t1}, 4, v{t0}")

def a4_load(E, i):
    ld_unit(E, AFR + 4*(i % 20), sA4, i, ("a4", i))

AUXB = 0
CSF = 2048
WF4 = 64
def w4_first(E):
    E.i(f"s_sub_u32 s52, s{sW4}, s{sW4+1}")
    for t in range(3): ld_unit(E, WF4 + 4*t, 52, t, "w40")
def s3(E):
    stamp(E, 14, 35); stamp(E, 36, 35, wave=4)
    LG1, LJ = E.newlabel("s3g1"), E.newlabel("s3j")
    E.i("s_cmp_ge_u32 s3, 4"); E.branch(f"s_cbranch_scc1 {LG1}")
    E.vm = []
    vPW, vM, vPR, vXR = 4, 5, 8, 9
    RES = 12
    T = 68
    E.i("s_mul_i32 s52, s3, 10240"); E.i(f"s_add_u32 s52, s52, {SCR}"); E.i(f"v_add_u32 v{vPW}, s52, v2")
    lane_pr(E, vPR, 6, 7); lane_xr(E, vXR, 6, 7)
    E.i(f"v_add_u32 v{vPR}, s{sW4+1}, v{vPR}"); E.i(f"v_add_u32 v{vPR}, {SCR}, v{vPR}")
    E.i(f"s_lshr_b32 s52, s{sW4+1}, 5"); E.i(f"v_add_u32 v{vXR}, s52, v{vXR}")
    E.i(f"s_mul_i32 s52, s{sRB3}, 40960"); E.i(f"s_mul_i32 s53, s{sCT3}, 160"); E.i("s_add_u32 s52, s52, s53"); E.i("s_add_u32 s53, s52, 1310720")
    for ph in range(2):
        E.i(f"buffer_load_dwordx4 v[{RES+8*ph}:{RES+8*ph+3}], v{vXR}, s[{SRD_X}:{SRD_X+3}], s{52+ph} offen", tag="res")
        E.i(f"buffer_load_dwordx4 v[{RES+8*ph+4}:{RES+8*ph+7}], v{vXR}, s[{SRD_X}:{SRD_X+3}], s{52+ph} offen offset:128", tag="res")
    for j in range(WP_PRE, 25): ld_unit(E, W3R + 4*j, sWP, j, "wp")
    sHW = 67
    E.i(f"s_mul_i32 s{sHW}, s{sRB3}, 40960"); E.i(f"s_mul_i32 s53, s{sCT3}, 5120"); E.i(f"s_add_u32 s{sHW}, s{sHW}, s53"); E.i(f"s_add_u32 s{sHW}, s{sHW}, s{sW4+1}"); E.i(f"s_add_u32 s{sHW}, s{sHW}, {HF}")
    E.i(f"s_add_u32 s{sHW+1}, s{sHW}, {32*40960}")
    for ph in range(2):
        if ph == 0: probe_o(E, 0, 6, 7, lambda: a3_all(E, 0))
        Lb = E.newlabel("s3v")
        E.label(Lb)
        for k in range(5):
            E.wait_vm(("a3", ph, k))
            for u in range(2):
                af = A3[ph] + (2*k+u)*4
                for nt in range(5):
                    a = ACC3 + (u*5+nt)*4; wf = W3R + (k*5+nt)*4
                    c = "0" if k == 0 else f"v[{a}:{a+3}]"
                    E.i(f"v_mfma_f32_16x16x32_bf16 v[{a}:{a+3}], v[{wf}:{wf+3}], v[{af}:{af+3}], {c}")
                maxtree(E, vM, range(af, af+4), k == 0 and u == 0)
        check_retry(E, vM, Lb, lambda: probe_o(E, ph, 6, 7, lambda: a3_all(E, ph)))
        stamp(E, 15 + 3*ph, 6)
        if ph == 0: gwait(E, 2, 5, 6, 7)
        else: gwait(E, 0, 4*GB[0], 6, 7)
        if ph == 1: hst(E, 0)
        for j in range(10): E.i(f"ds_write_b128 v{vPW}, v[{ACC3+4*j}:{ACC3+4*j+3}] offset:{j*1024}")
        GB[0] += 1; garrive(E, 0, 6, 7)
        if ph == 0: a3_all(E, 1)
        gwait(E, 0, 4*GB[0], 6, 7)
        stamp(E, 16 + 3*ph, 6)
        E.wait_vm("res")
        for unit in range(2):
            Lu = None
            if unit == 1:
                Lu = E.newlabel("fin4"); E.i("s_cmp_lg_u32 s3, 0"); E.branch(f"s_cbranch_scc1 {Lu}")
                cm = side(E); cm.__enter__()
            final_sum(E, vPR, 4, T, unit*4096, 6)
            add_res_pack(E, T, RES + 8*ph + 4*unit, 28, 6, True)
            if unit == 0: E.i(f"buffer_store_dwordx4 v[28:31], v2, {WSR}, s{sHW+ph} offen{SC}", tag="st")
            else:
                E.i(f"s_add_u32 s52, s{sHW+ph}, 4096"); E.i(f"buffer_store_dwordx4 v[28:31], v2, {WSR}, s52 offen{SC}")
            if unit == 0:
                E.i(f"v_add_f32 v32, v{T}, v{T+1}"); E.i(f"v_mul_f32 v33, v{T}, v{T}"); E.i(f"v_mul_f32 v35, v{T+1}, v{T+1}"); E.i(f"v_add_f32 v34, v{T+2}, v{T+3}")
                for j in range(2, 8): E.i(f"v_fmac_f32 v{33 if j&1 else 35}, v{T+j}, v{T+j}")
                for j in range(4, 8): E.i(f"v_add_f32 v{32 if j&1 else 34}, v{32 if j&1 else 34}, v{T+j}")
            else:
                for j in range(8):
                    E.i(f"v_fmac_f32 v{33 if j&1 else 35}, v{T+j}, v{T+j}"); E.i(f"v_add_f32 v{32 if j&1 else 34}, v{32 if j&1 else 34}, v{T+j}")
                cm.__exit__(); E.label(Lu)
        E.i("v_add_f32 v32, v32, v34"); E.i("v_add_f32 v33, v33, v35")
        E.i("v_mov_b32 v34, v32"); E.i("v_mov_b32 v35, v33")
        E.i("v_permlane32_swap_b32 v32, v34"); E.i("v_permlane32_swap_b32 v33, v35")
        E.i("v_add_f32 v32, v32, v34"); E.i("v_add_f32 v33, v33, v35")
        E.i("v_and_b32 v10, 31, v1"); E.i("v_lshlrev_b32 v10, 3, v10"); E.i(f"s_lshr_b32 s52, s{sW4+1}, 2"); E.i(f"s_add_u32 s52, s52, {AUXB + ph*1024}"); E.i("v_add_u32 v34, s52, v10")
        E.i("ds_write_b64 v34, v[32:33]")
        garrive(E, 0, 6, 7); GB[0] += 1
        stamp(E, 17 + 3*ph, 6)
    for j in range(W5_PRE): ld_unit(E, W5reg(j), sW5, j, ("w5", j))
    gwait(E, 0, 4*GB[0], 6, 7)
    hst(E, 1)
    G0_DONE = 4*GB[0]
    gwait(E, 1, 4, 6, 7)
    E.i(f"s_setprio {G0_PRIO}")
    q = [(("w5", j), (lambda j=j: ld_unit(E, W5reg(j), sW5, j, ("w5", j)))) for j in range(W5_PRE, 22)]
    s4(E, 1, q)
    E.branch(f"s_branch {LJ}")
    E.label(LG1)
    E.vm = []; E.lg = []
    gwait(E, 3, 4, 6, 7)
    for i in range(7): w4_unit(E, 90 + 4*i)
    w4_unit(E, 116)
    for j in range(22): ld_unit(E, W5reg(j), sW5, j, ("w5", j))
    E.wait_vm("w4")
    gbar(E, 1, 6, 7)
    s4(E, 0, [])
    gwait(E, 0, G0_DONE, 12, 13)
    E.label(LJ)
    E.vm = ["st"]; E.lg = []

def hst(E, ph):
    Ls = E.newlabel("hst")
    E.i("s_cmp_lg_u32 s3, 3"); E.branch(f"s_cbranch_scc1 {Ls}")
    with side(E):
        E.i(f"v_add_u32 v11, {AUXB + ph*1024}, v10")
        for j in range(4): E.i(f"ds_read_b64 v[{148+2*j}:{149+2*j}], v11 offset:{j*256}")
        E.i("s_waitcnt lgkmcnt(0)")
        for j in range(1, 4):
            E.i(f"v_add_f32 v148, v148, v{148+2*j}"); E.i(f"v_add_f32 v149, v149, v{149+2*j}")
        E.i(f"v_min_u32 v148, s{sM1}, v148"); E.i(f"v_min_u32 v149, s{sM1}, v149")
        E.i(f"s_lshl_b32 s52, s{sRB3}, 11"); E.i(f"s_lshl_b32 s53, s{sCT3}, 8"); E.i("s_add_u32 s52, s52, s53"); E.i(f"s_add_u32 s52, s52, {HSTB + ph*32*2048}")
        E.i("s_mov_b32 exec_hi, 0")
        E.i(f"buffer_store_dwordx2 v[148:149], v10, {WSR}, s52 offen{SC}")
        E.i("s_mov_b64 exec, -1")
    E.label(Ls)
W5_PRE = int(os.environ.get("W5_PRE", "10"))
WP_PRE = int(os.environ.get("WP_PRE", "8"))
A3B_LATE = int(os.environ.get("A3B_LATE", "1"))
A5_AT = int(os.environ.get("A5_AT", "28"))
G0_PRIO = int(os.environ.get("G0_PRIO", "0"))
S4_INIT = int(os.environ.get("S4_INIT", "8"))
S4_FIRST = 5
WP_FIRST = int(os.environ.get("WP_FIRST", "14"))
W4_S2 = int(os.environ.get("W4_S2", "10"))
F1_AT = int(os.environ.get("F1_AT", "6"))

vA5 = 7
def a5_load(E, ph, f):
    k, u = f // 2, f % 2
    r = A5[ph](f); off = k*2048 + u*256
    E.i(f"s_add_u32 s100, s{sA5+ph}, {off - off % 4096}")
    E.i(f"buffer_load_dwordx4 v[{r}:{r+3}], v{vA5}, {WSR}, s100 offen offset:{off % 4096}{SC}", tag=("a5", ph, f))

def a4_touch(E, va, vd):
    E.i(f"s_and_b32 s52, s{sCG4}, 7"); E.i("s_lshl_b32 s52, s52, 7"); E.i(f"s_add_u32 s52, s52, s{sA4}"); E.i("s_add_u32 s52, s52, 8192")
    E.i(f"v_and_b32 v{va}, 31, v1"); E.i(f"v_lshlrev_b32 v{va}, 10, v{va}")
    E.i(f"buffer_load_dword v{vd}, v{va}, {WSR}, s52 offen{SC}")

def s4(E, g, q0):
    vWB, vWB2, vCSR, vM = 3, 4, 6, 5
    ST = 8; SX, SXX = 8, 9
    ACC = 16; WF = WF4
    stamp(E, 21 if g == 0 else 24, 15, wave=4*(1-g))
    if g == 0: E.i("s_setprio 1")
    E.i(f"v_add_u32 v{vWB2}, 61440, v2")
    E.i("v_lshrrev_b32 v8, 5, v1"); E.i("v_lshlrev_b32 v8, 4, v8"); E.i(f"v_add_u32 v{vCSR}, {CSF}, v8")
    E.i("v_lshrrev_b32 v8, 4, v1"); E.i("v_and_b32 v9, 15, v1"); E.i("v_lshlrev_b32 v8, 9, v8"); E.i(f"v_lshl_add_u32 v{vA5}, v9, 4, v8")
    K1, K2 = 78, 79
    k1 = -2.0 * 0.7978845608028654 * 1.4426950408889634
    E.i(f"s_mov_b32 s{K1}, {f2u(k1):#x}"); E.i(f"s_mov_b32 s{K2}, {f2u(k1*0.044715):#x}")
    def st_loads():
        E.i(f"v_lshrrev_b32 v{ST+6}, 1, v2")
        for i in range(4):
            E.i(f"buffer_load_dwordx2 v[{ST+2*i}:{ST+2*i+1}], v{ST+6}, {WSR}, s{sHS} offen offset:{i*512}{SC}", tag="hst")
    w4_first(E)
    probe_h(E, 8, 9, lambda: [a4_load(E, i) for i in range(S4_INIT)])
    if "notouch" not in OPT: a4_touch(E, 8, 9)
    Lb = E.newlabel("s4v"); Lh = E.newlabel("s4h")
    E.label(Lb)
    E.bg_period = 0
    def rd(i):
        for t in range(3):
            r = WF + (i%2)*12 + 4*t
            o = (i*3+t)*1024
            if o < 61440: E.i(f"ds_read_b128 v[{r}:{r+3}], v2 offset:{o}", tag=("w", i))
            else: E.i(f"ds_read_b128 v[{r}:{r+3}], v{vWB2} offset:{o-61440}", tag=("w", i))
    sched = [[] for _ in range(41)]
    nxt = S4_INIT
    for i in range(40):
        for _ in range(2 if nxt < 20 else 1):
            if nxt < 40 and nxt - 20 < i:
                sched[i].append(lambda n=nxt: a4_load(E, n)); nxt += 1
    assert nxt == 40
    q = list(q0)
    for n, (tg, fn) in enumerate(q): sched[min(8 + n, 40)].append(fn)
    if g == 1:
        for f in range(12): sched[A5_AT + f if A5_AT + f < 40 else 40].append(lambda f=f: a5_load(E, 0, f))
        for n in range(22, 30): sched[33 + n - 22].append(lambda n=n: ld_unit(E, W5reg(n), sW5, n, ("w5", n)))
    sched[30].append(st_loads)
    for i in range(40):
        if i + 1 < 40: rd(i + 1)
        E.wait_vm(("a4", i))
        if i > 0: E.wait_lg(("w", i))
        af = AFR + 4*(i % 20)
        ops = list(sched[i])
        for t in range(3):
            r = WF + (i%2)*12 + 4*t; a = ACC + 16*t
            c = "0" if i == 0 else f"v[{a}:{a+15}]"
            E.i(f"v_mfma_f32_32x32x16_bf16 v[{a}:{a+15}], v[{r}:{r+3}], v[{af}:{af+3}], {c}")
            if t == 0: maxtree(E, vM, range(af, af+4), i == 0)
            if ops: ops.pop(0)()
        for o in ops: o()
        if i % 5 == 4 or i == 0: checkpoint(E, vM, Lh)
        if i in (0, 9, 19, 29): stamp(E, 53 + 5*g + (i+1)//10, 3, wave=4*(1-g))
    def reissue():
        for i in range(S4_INIT): a4_load(E, i)
        w4_first(E)
    handler(E, Lh, Lb, reissue)
    stamp(E, 22 if g == 0 else 25, 87, wave=4*(1-g))
    if g == 0: E.i("s_setprio 0")
    for o in sched[40]: E.bg_push("x", o)
    if g == 0:
        for n in range(22, 30): E.bg_push(("w5", n), lambda n=n: ld_unit(E, W5reg(n), sW5, n, ("w5", n)))
    E.bg_period = BGP
    Ls = E.newlabel("s4st")
    E.wait_vm("hst")
    E.label(Ls)
    E.bg_lock += 1
    maxtree(E, vM, range(ST, ST+8), True)
    check_retry(E, vM, Ls, st_loads)
    E.bg_lock -= 1
    E.i(f"v_add_f32 v{ST}, v{ST}, v{ST+2}"); E.i(f"v_add_f32 v{ST+1}, v{ST+1}, v{ST+3}")
    E.i(f"v_add_f32 v{ST+4}, v{ST+4}, v{ST+6}"); E.i(f"v_add_f32 v{ST+5}, v{ST+5}, v{ST+7}")
    E.i(f"v_add_f32 v{ST}, v{ST}, v{ST+4}"); E.i(f"v_add_f32 v{ST+1}, v{ST+1}, v{ST+5}")
    E.i(f"v_mov_b32 v{ST+2}, v{ST}"); E.i(f"v_mov_b32 v{ST+3}, v{ST+1}")
    E.i(f"v_permlane32_swap_b32 v{ST}, v{ST+2}"); E.i(f"v_permlane32_swap_b32 v{ST+1}, v{ST+3}")
    E.i(f"v_add_f32 v{ST}, v{ST}, v{ST+2}"); E.i(f"v_add_f32 v{ST+1}, v{ST+1}, v{ST+3}")
    stats_math(E, SX, SXX)
    E.i(f"v_mov_b32 v10, s{K1}")
    for t in range(3):
        a = ACC + 16*t; C = WF; G = WF + 16
        for q_ in range(4): E.i(f"ds_read_b128 v[{C+4*q_}:{C+4*q_+3}], v{vCSR} offset:{t*128 + q_*32}")
        E.wait_lg()
        for r in range(16): E.i(f"v_fma_f32 v{a+r}, v{SX}, v{C+r}, v{a+r}")
        for r in range(16): E.i(f"v_mul_f32 v{a+r}, v{SXX}, v{a+r}")
        for r in range(8): E.i(f"v_mul_f32 v{G+r}, v{a+r}, v{a+r}")
        for r in range(8): E.i(f"v_fma_f32 v{G+r}, v{G+r}, s{K2}, v10")
        for r in range(8): E.i(f"v_mul_f32 v{G+r}, v{G+r}, v{a+r}")
        for r in range(8): E.i(f"v_exp_f32 v{G+r}, v{G+r}")
        for r in range(8): E.i(f"v_mul_f32 v{a+r}, v{a+r}, v{a+8+r}")
        for r in range(8): E.i(f"v_add_f32 v{G+r}, 1.0, v{G+r}")
        for r in range(8): E.i(f"v_rcp_f32 v{G+r}, v{G+r}")
        for r in range(8): E.i(f"v_mul_f32 v{a+r}, v{a+r}, v{G+r}")
        for r in range(4):
            E.i(f"v_cvt_pk_bf16_f32 v{a+8+r}, v{a+2*r}, v{a+2*r+1}"); E.i(f"v_min_u32 v{a+8+r}, s{sM1}, v{a+8+r}")
        E.i(f"buffer_store_dwordx4 v[{a+8}:{a+11}], v2, {WSR}, s{sHH} offen offset:{t*1024}{SC}", tag="st")
    E.bg_flush()
    if g == 0:
        E.i("s_setprio 0")
        probe_hh(E, 0, 8, 9, None, 12)
        for f in range(12): a5_load(E, 0, f)
    stamp(E, 23 if g == 0 else 26, 87, wave=4*(1-g))
G1_SLEEP = int(os.environ.get("G1_SLEEP", "8"))
G0_SLEEP = int(os.environ.get("G0_SLEEP", "8"))

def s4_rep(E):
    ACC = 16; WF = WF4
    for variant in range(3):
        E.i("s_waitcnt vmcnt(0) lgkmcnt(0)"); E.vm = []; E.lg = []
        E.i("s_barrier"); stamp(E, 53 + 2*variant, 15)
        def rd(i):
            for t in range(3):
                r = WF + (i%2)*12 + 4*t
                o = (max(i,1)*3+t)*1024
                if o < 61440: E.i(f"ds_read_b128 v[{r}:{r+3}], v2 offset:{o}", tag=("w", i))
                else: E.i(f"ds_read_b128 v[{r}:{r+3}], v4 offset:{o-61440}", tag=("w", i))
        if variant >= 1:
            for i in range(20): a4_load(E, i)
        rd(0)
        for i in range(40):
            if i + 1 < 40: rd(i + 1)
            E.wait_vm(("a4", i)); E.wait_lg(("w", i))
            af = AFR + 4*(i % 20)
            for t in range(3):
                r = WF + (i%2)*12 + 4*t; a = ACC + 16*t
                if "m16" in OPT:
                    af2 = AFR + 4*((i+1) % 20); a2 = a + 8*(i%2)
                    E.i(f"v_mfma_f32_16x16x32_bf16 v[{a2}:{a2+3}], v[{r}:{r+3}], v[{af}:{af+3}], v[{a2}:{a2+3}]")
                    E.i(f"v_mfma_f32_16x16x32_bf16 v[{a2+4}:{a2+7}], v[{r}:{r+3}], v[{af2}:{af2+3}], v[{a2+4}:{a2+7}]")
                else:
                    E.i(f"v_mfma_f32_32x32x16_bf16 v[{a}:{a+15}], v[{r}:{r+3}], v[{af}:{af+3}], v[{a}:{a+15}]")
                if t == 0 and variant >= 1 and 1 <= i <= 20: a4_load(E, i + 19)
                if t == 1 and variant == 2 and i < 22: ld_unit(E, W5reg(i), sW5, i, ("w5", i))
        E.i("s_barrier"); stamp(E, 54 + 2*variant, 15)

def s5(E):
    ACC = 16; vPW, vPR, vM, XR = 3, 4, 6, 15
    E.bg_period = 0
    lane_pr(E, 5, 12, 13); lane_xr(E, 14, 12, 13)
    E.i("s_mul_i32 s52, s3, 10240"); E.i("s_add_u32 s52, s52, 81920"); E.i(f"v_add_u32 v{vPW}, s52, v2")
    sHB, sOB = 74, 75
    E.i(f"s_mul_i32 s{sHB}, s{sRB3}, 40960"); E.i(f"s_mul_i32 s53, s{sCT3}, 5120"); E.i(f"s_add_u32 s{sHB}, s{sHB}, s53"); E.i(f"s_add_u32 s{sHB}, s{sHB}, {HF}")
    E.i(f"s_mul_i32 s{sOB}, s{sRB3}, 40960"); E.i(f"s_mul_i32 s53, s{sCT3}, 160"); E.i(f"s_add_u32 s{sOB}, s{sOB}, s53")
    def mm(ph):
        Lb = E.newlabel("s5v")
        E.label(Lb)
        for k in range(6):
            E.wait_vm(("a5", ph, 2*k+1))
            for u in range(2):
                af = A5[ph](2*k+u)
                for nt in range(5):
                    a = ACC + (u*5+nt)*4; wf = W5reg(k*5+nt)
                    c = "0" if k == 0 else f"v[{a}:{a+3}]"
                    E.i(f"v_mfma_f32_16x16x32_bf16 v[{a}:{a+3}], v[{wf}:{wf+3}], v[{af}:{af+3}], {c}")
                maxtree(E, vM, range(af, af+4), k == 0 and u == 0)
        check_retry(E, vM, Lb, lambda: probe_hh(E, ph, 12, 13, lambda: [a5_load(E, ph, f) for f in range(12)]))
    def wr():
        for j in range(10): E.i(f"ds_write_b128 v{vPW}, v[{ACC+4*j}:{ACC+4*j+3}] offset:{j*1024}")
        E.wait_lg()
    def res_load(ph, snt, r):
        E.i(f"s_lshl_b32 s52, s{snt}, 10"); E.i(f"s_add_u32 s52, s52, s{sHB}")
        if ph: E.i(f"s_add_u32 s52, s52, {32*40960}")
        E.i(f"buffer_load_dwordx4 v[{r}:{r+3}], v2, {WSR}, s52 offen{SC}", tag="res")
    def fin(ph, snt, r, T):
        E.i(f"s_lshl_b32 s52, s{snt}, 10"); E.i(f"s_add_u32 s52, s52, {81920 if ph == 0 else 0}"); E.i(f"v_add_u32 v{vPR}, s52, v5")
        final_sum(E, vPR, 8, T, 0, 12)
        add_res_pack(E, T, r, T + 8, 12, False)
        E.i(f"s_lshl_b32 s52, s{snt}, 5"); E.i(f"s_add_u32 s52, s52, s{sOB}")
        if ph: E.i("s_add_u32 s52, s52, 1310720")
        E.i(f"buffer_store_dwordx4 v[{T+8}:{T+11}], v14, s[{SRD_OUT}:{SRD_OUT+3}], s52 offen")
    a5b = lambda: [a5_load(E, 1, f) for f in range(12)]
    LG1, LJ = E.newlabel("s5g1"), E.newlabel("s5j")
    E.i("s_waitcnt vmcnt(0)"); E.vm = []
    E.i("s_cmp_ge_u32 s3, 4"); E.branch(f"s_cbranch_scc1 {LG1}")
    mm(0); stamp(E, 28, 12)
    E.i("s_barrier")
    wr()
    E.i("s_barrier")
    stamp(E, 29, 12)
    res_load(1, 3, 8)
    probe_hh(E, 1, 12, 13, a5b)
    E.branch(f"s_branch {LJ}")
    E.label(LG1)
    E.vm = []; E.lg = []
    E.i("s_sub_u32 s76, s3, 4"); E.i("s_mov_b32 s77, 4")
    RA = AFR + 16
    mm(0); wr()
    E.i("s_barrier")
    res_load(0, 76, RA); res_load(0, 77, RA + 4); res_load(1, 77, 8)
    E.i("s_barrier")
    probe_hh(E, 1, 12, 13, a5b)
    sv = list(E.vm)
    fin(0, 76, RA, ACC)
    L4 = E.newlabel("f4"); E.i("s_cmp_lg_u32 s3, 7"); E.branch(f"s_cbranch_scc1 {L4}")
    with side(E): fin(0, 77, RA + 4, ACC)
    E.label(L4)
    E.vm = sv
    stamp(E, 30, 12, wave=4)
    E.label(LJ)
    E.i(f"v_subrev_u32 v{vPW}, 81920, v{vPW}")
    mm(1); stamp(E, 31, 12)
    wr()
    E.i("s_barrier")
    stamp(E, 32, 12)
    Lsk = E.newlabel("s5sk")
    E.i("s_cmp_ge_u32 s3, 5"); E.branch(f"s_cbranch_scc1 {Lsk}")
    with side(E): fin(1, 3, 8, ACC)
    E.label(Lsk)
    stamp(E, 33, 12)

def prologue(E, kn):
    E.raw(f".globl {kn}\n.p2align 8\n.type {kn},@function\n{kn}:")
    E.i("s_cmp_ge_u32 s2, 256")
    E.branch(f"s_cbranch_scc1 L_exit_{kn}")
    E.i("s_load_dwordx16 s[4:19], s[0:1], 0")
    E.i("s_load_dwordx4 s[20:23], s[0:1], 64")
    E.i("s_memrealtime s[96:97]")
    E.i("v_and_b32 v1, 63, v0")
    E.i("v_lshrrev_b32 v2, 6, v0")
    E.i("v_readfirstlane_b32 s3, v2")
    E.i("v_lshlrev_b32 v2, 4, v1")
    E.i(f"s_mov_b32 s{sONE}, 0x3f803f80"); E.i(f"s_mov_b32 s{sRETRY}, 0"); E.i(f"s_mov_b32 s{sM1}, 0xfffffffe")
    E.i("s_waitcnt lgkmcnt(0)")
    E.i(f"s_mov_b32 s{sT0}, s96")
    srd(E, SRD_X, P_X, 2621440)
    srd(E, SRD_W1, P_W1, 2457600)
    srd(E, SRD_WS, P_WS, WS_BYTES)
    srd(E, SRD_OUT, P_OUT, 2621440)
    srd(E, SRD_DBG, P_DBG, 256)
def kdesc(kn):
    return f""".section .rodata,"a"
.p2align 6
.amdhsa_kernel {kn}
  .amdhsa_next_free_vgpr 256
  .amdhsa_next_free_sgpr 102
  .amdhsa_accum_offset 256
  .amdhsa_group_segment_fixed_size 0
  .amdhsa_kernarg_size 80
  .amdhsa_user_sgpr_count 2
  .amdhsa_user_sgpr_kernarg_segment_ptr 1
  .amdhsa_system_sgpr_workgroup_id_x 1
.end_amdhsa_kernel
"""
def build():
    E = Emitter()
    prologue(E, "ka_kernel")
    stamp(E, 0, 31)
    E.i("s_lshl_b32 s52, s2, 3"); E.i("s_or_b32 s52, s52, s3"); E.i("s_cmp_lg_u32 s52, 2047"); E.branch("s_cbranch_scc1 L_nonce_done")
    E.i(f"s_or_b32 s52, s{sT0}, 1"); E.i("s_mov_b64 exec, 1"); E.i("v_mov_b32 v3, s52")
    E.raw(f"  buffer_store_dword v3, off, s[{SRD_DBG}:{SRD_DBG+3}], 0{SC}")
    E.i("s_mov_b64 exec, -1")
    E.label("L_nonce_done")
    E.i("s_cmp_ge_u32 s2, 240"); E.branch("s_cbranch_scc1 L_idle")
    s1(E)
    E.branch("s_branch L_tail")
    E.label("L_idle")
    E.vm = []; E.lg = []
    idle(E)
    E.label("L_tail")
    E.vm = [("s0dma", 0)] + ["st"]*8; E.lg = []
    ka_tail(E)
    if CFG.stamps:
        E.i("s_waitcnt vmcnt(0)"); stamp(E, 3, 31)
    E.label("L_exit_ka_kernel")
    E.raw("  s_endpgm")
    prologue(E, "kb_kernel")
    E.vm = []; E.lg = []; E.bg_period = 0
    s2(E)
    s3(E)
    s5(E)
    E.i("s_waitcnt vmcnt(0) lgkmcnt(0)")
    stamp(E, 40, 31)
    E.label("L_exit_kb_kernel")
    E.raw("  s_endpgm")
    E.raw("L_end_of_code:")
    hdr = ("; @launch kernel=ka_kernel grid=(256,1,1) block=(512,1,1) lds=163840\n; @launch kernel=kb_kernel grid=(256,1,1) block=(512,1,1) lds=163840\n"
           ".amdgcn_target \"amdgcn-amd-amdhsa--gfx950\"\n.text\n")
    return hdr + E.text() + kdesc("ka_kernel") + kdesc("kb_kernel")

if __name__ == "__main__":
    mode = sys.argv[2] if len(sys.argv) > 2 else ""
    CFG.stamps = mode == "stamps"; CFG.dbgst = mode == "dbg"
    open(sys.argv[1], "w").write(build())
```

```python
import struct, math, sys, os
from emit import *

NAME = "sequential_preLN__sliding_block__glu_gated_geglu__prompt"
KN = NAME + "_kernel"
QKV = 0x0
OF  = 0x800000
HF  = OF + 2621440
HHF = HF + 2621440
HSTB = HHF + 6291456
CLR0 = HF
W3F = 0x1800000
W4F = 0x1A00000
W5F = 0x1E00000
CS1 = 0x2080000
CSP4 = 0x1780000
CSW = 0x2000000
FLG = 0x2010000
STAMP = 0x2040000
WS_BYTES = 0x2100000
SRD_X, SRD_W1, SRD_WS, SRD_OUT, SRD_T0, SRD_T1, SRD_DBG = 24, 28, 32, 36, 40, 44, 48
P_X, P_W1, P_WO, P_WG, P_WU, P_WD, P_OUT, P_DBG, P_WS = 4, 6, 8, 12, 14, 16, 18, 20, 22
SC = " sc1"
NEG = 0xff800000
f2u = lambda x: struct.unpack("<I", struct.pack("<f", x))[0]
class CFG:
    stamps = False
    dbgst = False
OPT = set(os.environ.get('OPT', '').split(','))
WSR = f"s[{SRD_WS}:{SRD_WS+3}]"
sONE, sRETRY, sM1, sNONCE, sT0 = 94, 95, 93, 92, 91
S0SCR, MISC = 131072, 159744
SCR = 122880
RETRY_MAX = 20000
BGP = int(os.environ.get("BGP", "80"))

DBG_MAP = {1:1, 44:2, 2:3, 5:4, 10:5, 8:6, 12:7, 13:8, 16:9, 19:10, 21:11, 22:12, 23:13, 29:14, 40:15}
def stamp(E, idx, vr, wave=0):
    if CFG.dbgst:
        if idx not in DBG_MAP or wave != 0: return
        L = E.newlabel("stamp")
        E.bg_lock += 1
        E.i("s_lshl_b32 s98, s2, 3"); E.i("s_or_b32 s98, s98, s3"); E.i(f"s_cmp_lg_u32 s98, {37*8}"); E.branch(f"s_cbranch_scc1 {L}")
        E.i("s_memrealtime s[96:97]"); E.raw("  s_waitcnt lgkmcnt(0)")
        E.i(f"s_sub_u32 s96, s96, s{sT0}")
        E.i("s_mov_b64 exec, 1"); E.i(f"v_mov_b32 v{vr}, s96")
        E.raw(f"  buffer_store_dword v{vr}, off, s[{SRD_DBG}:{SRD_DBG+3}], 0 offset:{4*DBG_MAP[idx]}")
        E.i("s_mov_b64 exec, -1")
        E.label(L); E.bg_lock -= 1
        return
    if not CFG.stamps: return
    L = E.newlabel("stamp")
    E.bg_lock += 1
    E.i(f"s_cmp_lg_u32 s3, {wave}"); E.branch(f"s_cbranch_scc1 {L}")
    E.i("s_memrealtime s[96:97]")
    E.i("s_lshl_b32 s98, s2, 9"); E.i(f"s_add_u32 s98, s98, {STAMP + idx*8}")
    E.raw("  s_waitcnt lgkmcnt(0)")
    E.i("s_mov_b64 exec, 1")
    E.i(f"v_mov_b32 v{vr}, s96")
    E.raw(f"  buffer_store_dword v{vr}, off, {WSR}, s98")
    if "clk" in OPT:
        E.i("s_memtime s[96:97]"); E.raw("  s_waitcnt lgkmcnt(0)"); E.i(f"v_mov_b32 v{vr}, s96")
        E.raw(f"  buffer_store_dword v{vr}, off, {WSR}, s98 offset:4")
    E.i("s_mov_b64 exec, -1")
    E.label(L)
    E.bg_lock -= 1

def srd(E, d, p, nbytes):
    E.i(f"s_mov_b32 s{d}, s{p}")
    E.i(f"s_and_b32 s{d+1}, s{p+1}, 0xffff")
    E.i(f"s_mov_b32 s{d+2}, {nbytes}")
    E.i(f"s_mov_b32 s{d+3}, 0x20000")

def maxtree(E, dst, regs, first):
    regs = list(regs)
    if first:
        a = regs.pop(0); b = regs.pop(0); c = regs.pop(0) if regs else b
        E.i(f"v_max3_u32 v{dst}, v{a}, v{b}, v{c}")
    while regs:
        a = regs.pop(0); b = regs.pop(0) if regs else a
        E.i(f"v_max3_u32 v{dst}, v{a}, v{b}, v{dst}")

class side:
    def __init__(s, E): s.E = E
    def __enter__(s):
        s.sv = (list(s.E.vm), list(s.E.lg)); s.E.bg_lock += 1
    def __exit__(s, *a):
        s.E.vm, s.E.lg = s.sv; s.E.bg_lock -= 1

def retry_tail(E, Lok, Lback, reissue, sleep=4):
    E.i(f"s_add_u32 s{sRETRY}, s{sRETRY}, 1"); E.i(f"s_cmp_gt_u32 s{sRETRY}, {RETRY_MAX}")
    E.branch(f"s_cbranch_scc1 {Lok}")
    E.i(f"s_sleep {sleep}")
    E.i("s_waitcnt vmcnt(0) lgkmcnt(0)")
    reissue()
    E.i("s_waitcnt vmcnt(0)")
    E.branch(f"s_branch {Lback}")

def check_retry(E, vM, Lback, reissue):
    Lok = E.newlabel("ok")
    E.i(f"v_cmp_eq_u32 vcc, -1, v{vM}")
    E.branch(f"s_cbranch_vccz {Lok}")
    with side(E): retry_tail(E, Lok, Lback, reissue)
    E.label(Lok)

def checkpoint(E, vM, Lh):
    E.i(f"v_cmp_eq_u32 vcc, -1, v{vM}")
    E.branch_nf(f"s_cbranch_vccnz {Lh}")

def handler(E, Lh, Lback, reissue):
    Lok = E.newlabel("ok")
    E.branch(f"s_branch {Lok}")
    E.pad_label(Lh)
    with side(E): retry_tail(E, Lok, Lback, reissue)
    E.label(Lok)

def nonce_issue(E, vr):
    E.i(f"buffer_load_dword v{vr}, off, s[{SRD_DBG}:{SRD_DBG+3}], 0{SC}", tag="nonce")
def nonce_get(E, vr):
    L, Lok = E.newlabel("nchk"), E.newlabel("nok")
    E.wait_vm("nonce")
    E.label(L)
    E.i(f"v_readfirstlane_b32 s{sNONCE}, v{vr}")
    E.i(f"s_cmp_lg_u32 s{sNONCE}, 0")
    E.branch(f"s_cbranch_scc1 {Lok}")
    with side(E): retry_tail(E, Lok, L, lambda: nonce_issue(E, vr), 8)
    E.label(Lok)

def flag_issue(E, vr, which, quad=False):
    E.bg_lock += 1
    E.i(f"v_bfe_u32 v{vr}, v1, 2, {4 if quad else 3}"); E.i(f"v_lshlrev_b32 v{vr}, 7, v{vr}")
    E.i(f"v_and_b32 v{vr+1}, 3, v1"); E.i(f"v_lshl_add_u32 v{vr}, v{vr+1}, 4, v{vr}")
    if quad: E.i("s_and_b32 s52, s3, 3"); E.i("s_lshl_b32 s52, s52, 11")
    else: E.i("s_lshl_b32 s52, s3, 10")
    E.i(f"s_add_u32 s52, s52, {FLG + 4*which}")
    E.i(f"buffer_load_dword v{vr}, v{vr}, {WSR}, s52 offen{SC}", tag="flag")
    E.bg_lock -= 1
def flag_check(E, vr, which, quad=False):
    if "noflag" in OPT: return
    L, Lok = E.newlabel("fchk"), E.newlabel("fok")
    E.wait_vm("flag")
    E.label(L)
    E.i(f"v_cmp_ne_u32 vcc, s{sNONCE}, v{vr}")
    E.branch(f"s_cbranch_vccz {Lok}")
    with side(E): retry_tail(E, Lok, L, lambda: flag_issue(E, vr, which, quad))
    E.label(Lok)
def flag_check_n(E, vr, which):
    E.vm = ["flag"]
    flag_check(E, vr, which)
    E.vm = []
def flag_set(E, which, vr):
    L = E.newlabel("fset")
    E.i("s_cmp_lg_u32 s3, 7"); E.branch(f"s_cbranch_scc1 {L}")
    with side(E):
        E.i("s_mov_b64 exec, 1")
        E.i(f"v_mov_b32 v{vr}, s{sNONCE}")
        E.i("s_lshr_b32 s52, s2, 2"); E.i("s_lshl_b32 s52, s52, 7"); E.i("s_and_b32 s53, s2, 3"); E.i("s_lshl_b32 s53, s53, 4"); E.i("s_add_u32 s52, s52, s53"); E.i(f"s_add_u32 s52, s52, {FLG + 4*which}")
        E.i(f"buffer_store_dword v{vr}, off, {WSR}, s52{SC}")
        E.i("s_mov_b64 exec, -1")
    E.label(L)

def stats_math(E, SX, SXX):
    E.i(f"v_mul_f32 v{SX}, 0xbacccccd, v{SX}")
    E.i(f"v_mul_f32 v{SXX}, 0x3acccccd, v{SXX}")
    E.i(f"v_fma_f32 v{SXX}, -v{SX}, v{SX}, v{SXX}")
    E.i(f"v_max_f32 v{SXX}, 0, v{SXX}")
    E.i(f"v_add_f32 v{SXX}, 0x3727c5ac, v{SXX}")
    E.i(f"v_rsq_f32 v{SXX}, v{SXX}")

sHD, sTB2, sKVo, sQo, sOo, sTQ = 80, 81, 82, 83, 84, 79
vD2, vLO1, vLO2 = 93, 94, 95
def s2_scalars(E):
    E.i("s_and_b32 s52, s2, 7"); E.i("s_lshr_b32 s53, s2, 3")
    E.i(f"s_lshl_b32 s{sHD}, s52, 2"); E.i("s_lshr_b32 s54, s53, 3"); E.i(f"s_add_u32 s{sHD}, s{sHD}, s54")
    E.i(f"s_and_b32 s{sTB2}, s53, 7"); E.i(f"s_lshl_b32 s{sTB2}, s{sTB2}, 3")
    E.i("s_lshr_b32 s54, s3, 2"); E.i("s_lshl_b32 s54, s54, 5"); E.i("s_add_u32 s54, s54, 32"); E.i(f"s_add_u32 s54, s54, s{sHD}")
    E.i("s_mul_i32 s54, s54, 81920")
    E.i(f"s_add_u32 s{SRD_T1}, s{P_WS}, s54"); E.i(f"s_addc_u32 s{SRD_T1+1}, s{P_WS+1}, 0"); E.i(f"s_and_b32 s{SRD_T1+1}, s{SRD_T1+1}, 0xffff")
    E.i(f"s_mov_b32 s{SRD_T1+2}, 81920"); E.i(f"s_mov_b32 s{SRD_T1+3}, 0x20000")
    E.i(f"s_and_b32 s{sKVo}, s3, 3"); E.i(f"s_mul_i32 s{sKVo}, s{sKVo}, 3840")
    E.i("s_lshr_b32 s54, s3, 2"); E.i("s_lshl_b32 s54, s54, 6"); E.i("s_and_b32 s55, s3, 3"); E.i("s_lshl_b32 s55, s55, 1"); E.i("s_add_u32 s54, s54, s55"); E.i(f"s_add_u32 s{sTQ}, s54, s{sTB2}")
    E.i(f"s_mul_i32 s{sQo}, s{sHD}, 81920"); E.i(f"s_mul_i32 s55, s{sTQ}, 640"); E.i(f"s_add_u32 s{sQo}, s{sQo}, s55")
    E.i(f"s_mul_i32 s{sOo}, s{sTQ}, 20480"); E.i(f"s_add_u32 s{sOo}, s{sOo}, {OF}")
    E.i(f"s_add_u32 s{sOo+1}, s{sOo}, {64*20480}")
def s2_laneoffs(E, d1, d2, t0, t1):
    E.i(f"v_and_b32 v{t0}, 15, v1"); E.i(f"v_lshrrev_b32 v{t1}, 4, v1")
    E.i(f"v_and_b32 v{d1}, 2, v{t1}"); E.i(f"v_lshlrev_b32 v{d1}, 2, v{d1}"); E.i(f"v_xor_b32 v{d1}, v{d1}, v{t0}"); E.i(f"v_lshlrev_b32 v{d1}, 3, v{d1}"); E.i(f"v_lshl_add_u32 v{d1}, v{t1}, 7, v{d1}")
    E.i(f"v_lshlrev_b32 v{d2}, 3, v{t0}"); E.i(f"v_add_u32 v{d2}, 512, v{d2}")
NKV = 6
def s2_loads(E, QR, ph, vD, l1, l2, ldsbase):
    E.bg_lock += 1
    E.i(f"s_add_u32 s52, s{sTB2}, {64*ph - 16}"); E.i("s_mul_i32 s52, s52, 640"); E.i(f"s_add_u32 s52, s52, s{sKVo}")
    E.i(f"v_add_u32 v{vD}, s52, v2")
    E.i("s_mul_i32 s53, s3, 3840")
    for i in range(4):
        E.i(f"s_add_u32 m0, s53, {ldsbase + i*1024}")
        if i == 3: E.i("s_mov_b32 exec_hi, 0xffff")
        E.i(f"buffer_load_dwordx4 v{vD}, s[{SRD_T1}:{SRD_T1+3}], 0 offen{SC} lds", tag=("kv", ph))
        if i < 3: E.i(f"v_add_u32 v{vD}, 1024, v{vD}")
    E.i("s_mov_b64 exec, -1")
    E.bg_lock -= 1

def o_clears(E, vm1, vt, deltas):
    E.i(f"v_lshrrev_b32 v{vt}, 1, v2")
    for d in deltas:
        for ph in range(2):
            E.i(f"s_sub_u32 s52, s{sOo+ph}, {d}")
            E.i(f"buffer_store_dwordx2 v[{vm1}:{vm1+1}], v{vt}, {WSR}, s52 offen{SC}", tag="oclr")
            E.i("s_mov_b64 exec, 0xffff")
            E.i(f"buffer_store_dwordx2 v[{vm1}:{vm1+1}], v{vt}, {WSR}, s52 offen offset:512{SC}", tag="oclr")
            E.i("s_mov_b64 exec, -1")

NB_IDLE = int(os.environ.get("NB_IDLE", "0"))
N_IDLE_BLOCKS = 128 * NB_IDLE
NB_BUSY = -(-(1640 - N_IDLE_BLOCKS) // 240)
def s0_decode(E, rnd, Lskip):
    if rnd is None:
        E.i(f"s_min_u32 s55, s3, {NB_BUSY-1}")
        E.i(f"s_mul_i32 s52, s2, {NB_BUSY}"); E.i("s_add_u32 s52, s52, s55"); E.i(f"s_add_u32 s52, s52, {N_IDLE_BLOCKS}"); E.i("s_min_u32 s52, s52, 1639")
        E.i("s_lshl_b32 s55, s3, 12"); E.i(f"s_add_u32 s55, s55, {S0SCR}")
    else:
        E.i(f"s_add_u32 s52, s60, {128*rnd}")
        E.i("s_lshl_b32 s55, s3, 14"); E.i(f"s_add_u32 s55, s55, {(rnd % 4) * 4096}")

def s0_issue(E, vt, rnd):
    if "nos0" in OPT: return
    L, L4, L5, LG = [E.newlabel(x) for x in ("s0i", "s0i4", "s0i5", "s0ig")]
    with side(E):
        s0_decode(E, rnd, L)
        E.i(f"v_lshrrev_b32 v{vt}, 3, v1"); E.i(f"v_and_b32 v{vt+1}, 7, v1")
        E.i("s_cmp_ge_u32 s52, 680"); E.branch(f"s_cbranch_scc1 {L4}")
        E.i("s_cmp_ge_u32 s52, 200"); E.branch(f"s_cbranch_scc1 {L5}")
        srd(E, SRD_T0, P_WO, 819200)
        E.i("s_mul_i32 s87, s52, 6554"); E.i("s_lshr_b32 s87, s87, 16")
        E.i("s_mul_i32 s88, s87, 10"); E.i("s_sub_u32 s88, s52, s88"); E.i("s_lshl_b32 s54, s88, 7")
        E.i("s_cmp_ge_u32 s87, 16"); E.branch(f"s_cbranch_scc1 {LG}")
        E.i("s_mul_i32 s53, s87, 51200"); E.i("s_add_u32 s53, s53, s54")
        E.i(f"v_mul_u32_u24 v{vt}, 1280, v{vt}"); E.i(f"v_lshl_add_u32 v{vt}, v{vt+1}, 4, v{vt}")
        for i in range(4):
            E.i(f"s_add_u32 m0, s55, {i*1024}"); E.i(f"s_add_u32 s54, s53, {(20*(i>>1) + 8*(i&1))*1280}")
            E.i(f"buffer_load_dwordx4 v{vt}, s[{SRD_T0}:{SRD_T0+3}], s54 offen lds")
        E.branch(f"s_branch {L}")
        E.label(LG)
        E.i("s_sub_u32 s53, s87, 16"); E.i("s_mul_i32 s53, s53, 204800"); E.i("s_add_u32 s53, s53, s54"); E.i("s_add_u32 s53, s53, 20480")
        E.i(f"v_lshlrev_b32 v{vt+1}, 4, v{vt+1}")
        E.i(f"v_and_b32 v{vt}, 3, v{vt}"); E.i(f"v_mul_u32_u24 v{vt}, 1280, v{vt}"); E.i(f"v_add_u32 v{vt+1}, v{vt+1}, v{vt}")
        E.i(f"v_lshrrev_b32 v{vt}, 5, v1"); E.i(f"v_mul_u32_u24 v{vt}, 25600, v{vt}"); E.i(f"v_add_u32 v{vt}, v{vt}, v{vt+1}")
        for i in range(4):
            E.i(f"s_add_u32 m0, s55, {i*1024}")
            E.i(f"buffer_load_dwordx4 v{vt}, s[{SRD_T0}:{SRD_T0+3}], s53 offen lds")
            if i < 3: E.i("s_add_u32 s53, s53, 51200")
        E.branch(f"s_branch {L}")
        E.label(L5)
        srd(E, SRD_T0, P_WD, 1966080); E.i("s_sub_u32 s52, s52, 200")
        E.i("s_mul_i32 s87, s52, 6554"); E.i("s_lshr_b32 s87, s87, 16")
        E.i("s_mul_i32 s88, s87, 10"); E.i("s_sub_u32 s88, s52, s88")
        E.i("s_mul_i32 s53, s87, 40960"); E.i("s_lshl_b32 s54, s88, 7"); E.i("s_add_u32 s53, s53, s54")
        E.i(f"v_mul_u32_u24 v{vt}, 1280, v{vt}"); E.i(f"v_lshl_add_u32 v{vt}, v{vt+1}, 4, v{vt}")
        for i in range(4):
            E.i(f"s_add_u32 m0, s55, {i*1024}")
            E.i(f"buffer_load_dwordx4 v{vt}, s[{SRD_T0}:{SRD_T0+3}], s53 offen lds")
            if i < 3: E.i("s_add_u32 s53, s53, 10240")
        E.branch(f"s_branch {L}")
        E.label(L4)
        E.i("s_sub_u32 s52, s52, 680")
        E.i("s_mul_i32 s87, s52, 2731"); E.i("s_lshr_b32 s87, s87, 16")
        E.i("s_mul_i32 s88, s87, 24"); E.i("s_sub_u32 s88, s52, s88")
        E.i("s_mul_i32 s53, s87, 49152"); E.i("s_lshl_b32 s54, s88, 7"); E.i("s_add_u32 s53, s53, s54"); E.i("s_add_u32 s54, s53, 24576")
        E.i(f"v_mul_u32_u24 v{vt}, 3072, v{vt}"); E.i(f"v_lshl_add_u32 v{vt}, v{vt+1}, 4, v{vt}")
        for m, p in enumerate((P_WG, P_WU)):
            srd(E, SRD_T0, p, 1966080)
            for i in range(2):
                E.i(f"s_add_u32 m0, s55, {(2*m+i)*1024}")
                E.i(f"buffer_load_dwordx4 v{vt}, s[{SRD_T0}:{SRD_T0+3}], s{53+i} offen lds")
    E.label(L)
    E.vm += [("s0dma", rnd)] * 4

def s0_finish(E, F, vt, rnd):
    if "nos0" in OPT: return
    E.wait_vm(("s0dma", rnd))
    L, L4, L5, LG, LS = [E.newlabel(x) for x in ("s0f", "s0f4", "s0f5", "s0fg", "s0fs")]
    with side(E):
        s0_decode(E, rnd, L)
        E.i("s_mov_b32 s86, 0")
        E.i(f"v_bfe_u32 v{vt+1}, v1, 2, 2")
        E.i("s_cmp_ge_u32 s52, 680"); E.branch(f"s_cbranch_scc1 {L4}")
        E.i("s_cmp_ge_u32 s52, 200"); E.branch(f"s_cbranch_scc1 {L5}")
        E.i("s_mov_b32 s89, 20"); E.i(f"s_mov_b32 s90, {W3F}")
        E.i("s_mul_i32 s87, s52, 6554"); E.i("s_lshr_b32 s87, s87, 16")
        E.i("s_mul_i32 s88, s87, 10"); E.i("s_sub_u32 s88, s52, s88")
        E.i("s_lshr_b32 s53, s87, 2"); E.i("s_add_u32 s53, s53, s87")
        E.i("s_sub_u32 s54, s87, 16"); E.i("s_mul_i32 s54, s54, 5"); E.i("s_add_u32 s54, s54, 4")
        E.i("s_cmp_ge_u32 s87, 16"); E.i("s_cselect_b32 s87, s54, s53")
        E.branch(f"s_branch {LG}")
        E.label(L5)
        E.i("s_sub_u32 s52, s52, 200"); E.i("s_mov_b32 s89, 48"); E.i(f"s_mov_b32 s90, {W5F}")
        E.i("s_mul_i32 s87, s52, 6554"); E.i("s_lshr_b32 s87, s87, 16")
        E.i("s_mul_i32 s88, s87, 10"); E.i("s_sub_u32 s88, s52, s88")
        E.label(LG)
        E.i(f"v_lshrrev_b32 v{vt}, 4, v1"); E.i(f"v_lshl_add_u32 v{vt}, v{vt}, 3, v{vt+1}"); E.i(f"v_lshlrev_b32 v{vt}, 7, v{vt}")
        E.i(f"v_and_b32 v{vt+1}, 3, v1"); E.i(f"v_lshl_add_u32 v{vt}, v{vt+1}, 3, v{vt}")
        for nt in range(4):
            E.i(f"s_lshl_b32 s52, s88, 2"); E.i(f"s_add_u32 s52, s52, {nt}")
            E.i("s_mul_i32 s53, s52, 52"); E.i("s_lshr_b32 s53, s53, 8")
            E.i("s_mul_i32 s54, s53, 5"); E.i("s_sub_u32 s54, s52, s54")
            E.i("s_mul_i32 s53, s53, s89"); E.i("s_add_u32 s53, s53, s87"); E.i("s_mul_i32 s53, s53, 5"); E.i("s_add_u32 s53, s53, s54")
            E.i("s_lshl_b32 s53, s53, 10"); E.i(f"s_add_u32 s{96+nt}, s53, s90")
        E.branch(f"s_branch {LS}")
        E.label(L4)
        E.i("s_sub_u32 s52, s52, 680")
        E.i("s_mul_i32 s87, s52, 2731"); E.i("s_lshr_b32 s87, s87, 16")
        E.i("s_mul_i32 s88, s87, 24"); E.i("s_sub_u32 s88, s52, s88")
        E.i(f"v_lshrrev_b32 v{vt}, 5, v1"); E.i(f"v_lshl_add_u32 v{vt}, v{vt}, 3, v{vt+1}"); E.i(f"v_lshlrev_b32 v{vt}, 7, v{vt}")
        E.i(f"v_bfe_u32 v{vt+1}, v1, 4, 1"); E.i(f"v_lshl_add_u32 v{vt}, v{vt+1}, 11, v{vt}")
        E.i(f"v_and_b32 v{vt+1}, 1, v1"); E.i(f"v_lshl_add_u32 v{vt}, v{vt+1}, 4, v{vt}")
        E.i(f"v_bfe_u32 v{vt+1}, v1, 1, 1"); E.i(f"v_lshl_add_u32 v{vt}, v{vt+1}, 3, v{vt}")
        for nt in range(4):
            E.i(f"s_lshl_b32 s52, s88, 2"); E.i(f"s_add_u32 s52, s52, {nt}")
            E.i("s_mul_i32 s53, s52, 171"); E.i("s_lshr_b32 s53, s53, 9")
            E.i("s_mul_i32 s54, s53, 3"); E.i("s_sub_u32 s54, s52, s54")
            E.i("s_mul_i32 s53, s53, 40"); E.i("s_add_u32 s53, s53, s87"); E.i("s_mul_i32 s53, s53, 3"); E.i("s_add_u32 s53, s53, s54")
            E.i("s_lshl_b32 s53, s53, 10"); E.i(f"s_add_u32 s{96+nt}, s53, {W4F}")
        E.i("s_mov_b32 s86, 1")
        E.label(LS)
        E.i(f"v_add_u32 v{vt}, s55, v{vt}")
        for nt in range(4):
            for h in range(2):
                E.i(f"ds_read_b64_tr_b16 v[{F+4*nt+2*h}:{F+1+4*nt+2*h}], v{vt} offset:{h*512+nt*32}")
        E.i("s_waitcnt lgkmcnt(0)")
        for nt in range(4):
            E.i(f"buffer_store_dwordx4 v[{F+4*nt}:{F+3+4*nt}], v2, {WSR}, s{96+nt} offen{SC}")
        E.i("s_cmp_eq_u32 s86, 0"); E.branch(f"s_cbranch_scc1 {L}")
        for nt in range(4): E.i(f"v_mov_b32 v{F+16+nt}, 0")
        for q in range(4):
            for nt in range(4): E.i(f"v_dot2c_f32_bf16 v{F+16+nt}, s{sONE}, v{F+4*nt+q}")
        for pr in range(2):
            a_, b_ = F+16+2*pr, F+17+2*pr
            E.i(f"v_permlane32_swap_b32 v{a_}, v{b_}")
            E.i(f"v_add_f32 v{a_}, v{a_}, v{b_}")
        E.i(f"v_lshlrev_b32 v{vt}, 2, v1"); E.i("s_lshl_b32 s52, s88, 9"); E.i("s_mul_i32 s53, s87, 12288"); E.i("s_add_u32 s52, s52, s53"); E.i(f"s_add_u32 s52, s52, {CSP4}")
        for pr in range(2):
            E.i(f"buffer_store_dword v{F+16+2*pr}, v{vt}, {WSR}, s52 offen offset:{pr*256}{SC}")
    E.label(L)
    E.vm += ["s0st"] * 4

def code_touch(E, kname, endlabel):
    E.i("v_lshlrev_b32 v5, 7, v1")
    E.flush()
    E.i("s_getpc_b64 s[70:71]")
    E.raw(f"L_pc_{kname}:")
    E.i(f"s_sub_u32 s70, s70, L_pc_{kname}-ka_kernel"); E.i("s_subb_u32 s71, s71, 0")
    E.i("s_lshl_b32 s72, s3, 13"); E.i("v_add_u32 v6, s72, v5")
    E.i(f"v_min_u32 v6, {endlabel}-ka_kernel-4, v6"); E.i("v_and_b32 v6, 0xfffffffc, v6")
    E.i("global_load_dword v7, v6, s[70:71]")

def idle(E):
    E.bg_period = 0
    E.i("s_sub_u32 s60, s2, 240"); E.i("s_lshl_b32 s60, s60, 3"); E.i("s_add_u32 s60, s60, s3")
    code_touch(E, "a", "L_end_of_code")
    for n in range(min(4, NB_IDLE)): s0_issue(E, 8, n)
    for n in range(NB_IDLE):
        s0_finish(E, 32 + 32*(n % 2), 10, n)
        if n + 4 < NB_IDLE: s0_issue(E, 8, n + 4)
    for r in range(4): E.i(f"v_mov_b32 v{20+r}, -1")
    E.i("s_mul_i32 s61, s60, 40960"); E.i(f"s_add_u32 s61, s61, {OF}")
    E.i("s_mov_b32 s62, 0")
    E.label("L_clr")
    for j in range(4): E.i(f"buffer_store_dwordx4 v[20:23], v2, {WSR}, s61 offen offset:{j*1024}{SC}")
    E.i("s_add_u32 s61, s61, 4096"); E.i("s_add_u32 s62, s62, 1"); E.i("s_cmp_lt_u32 s62, 10")
    E.branch("s_cbranch_scc1 L_clr")
    E.i("s_lshl_b32 s61, s60, 10"); E.i(f"s_add_u32 s61, s61, {HSTB}")
    E.i(f"buffer_store_dwordx4 v[20:23], v2, {WSR}, s61 offen{SC}")
    E.i(f"s_mul_i32 s61, s60, {HH_IDLE*1024}"); E.i(f"s_add_u32 s61, s61, {HHF + 1920*HH_BUSY*1024}")
    for j in range(HH_IDLE):
        E.i(f"buffer_store_dwordx4 v[20:23], v2, {WSR}, s61 offen offset:{(j%4)*1024}{SC}")
        if j % 4 == 3: E.i("s_add_u32 s61, s61, 4096")
    stamp(E, 1, 31)
HH_BUSY = int(os.environ.get("HH_BUSY", "2"))
HH_IDLE = (6144 - 1920*HH_BUSY) // 128
assert 1920*HH_BUSY + 128*HH_IDLE == 6144

def ka_tail(E):
    return
    for r in range(4): E.i(f"v_mov_b32 v{20+r}, -1")
    E.i("s_lshl_b32 s52, s2, 3"); E.i("s_add_u32 s52, s52, s3"); E.i("s_mul_i32 s52, s52, 5760"); E.i(f"s_add_u32 s52, s52, {OF}"); E.i("s_add_u32 s53, s52, 4096")
    for t in range(5): E.i(f"buffer_store_dwordx4 v[20:23], v2, {WSR}, s{52 + t//4} offen offset:{(t%4)*1024}{SC}")
    E.i("s_mov_b32 exec_hi, 0xff")
    E.i(f"buffer_store_dwordx4 v[20:23], v2, {WSR}, s53 offen offset:1024{SC}")
    E.i("s_mov_b64 exec, -1")

def s1(E):
    E.i("s_and_b32 s52, s2, 7"); E.i("s_lshr_b32 s53, s2, 3")
    E.i("s_and_b32 s54, s52, 1"); E.i("s_mul_i32 s54, s54, 30"); E.i("s_add_u32 s54, s54, s53")
    sCT, sRB, sRHO, sC, sMT = 56, 57, 58, 59, 60
    E.i(f"s_lshr_b32 s{sCT}, s54, 2")
    E.i("s_and_b32 s55, s54, 3")
    E.i(f"s_lshr_b32 s{sRB}, s52, 1"); E.i(f"s_lshl_b32 s{sRB}, s{sRB}, 2"); E.i(f"s_add_u32 s{sRB}, s{sRB}, s55")
    if "rotl" in OPT:
        E.i(f"s_mul_i32 s{sRHO}, s55, 5"); E.i(f"s_lshr_b32 s{sRHO}, s{sRHO}, 1"); E.i("s_lshr_b32 s61, s52, 1")
    else:
        E.i(f"s_lshr_b32 s{sRHO}, s52, 1"); E.i(f"s_mul_i32 s{sRHO}, s{sRHO}, 5"); E.i(f"s_lshr_b32 s{sRHO}, s{sRHO}, 1")
        E.i("s_and_b32 s53, s52, 1"); E.i("s_mul_i32 s53, s53, 5"); E.i(f"s_add_u32 s{sRHO}, s{sRHO}, s53")
        E.i(f"s_cmp_ge_u32 s{sRHO}, 10"); E.i("s_cselect_b32 s53, 10, 0"); E.i(f"s_sub_u32 s{sRHO}, s{sRHO}, s53")
        E.i("s_mov_b32 s61, s55")
    E.i(f"s_and_b32 s{sC}, s3, 3"); E.i(f"s_lshr_b32 s{sMT}, s3, 2")
    vQO = [16, 17, 18, 19]
    vXo, vWo = 3, 4
    E.i("v_lshrrev_b32 v5, 3, v1"); E.i("s_lshl_b32 s52, s3, 3"); E.i("v_add_u32 v5, s52, v5")
    E.i("v_bfe_u32 v6, v5, 1, 3"); E.i("v_and_b32 v7, 7, v1"); E.i("v_xor_b32 v6, v6, v7")
    E.i("v_mul_u32_u24 v5, 1280, v5"); E.i(f"v_lshl_add_u32 v{vXo}, v6, 4, v5")
    E.i("v_lshrrev_b32 v5, 4, v1")
    E.i("v_lshlrev_b32 v6, 2, v5"); E.i("v_and_b32 v7, 15, v1"); E.i("v_xor_b32 v6, v6, v7")
    E.i("v_add_u32 v5, s52, v5")
    E.i("v_mul_u32_u24 v5, 3840, v5"); E.i(f"v_lshl_add_u32 v{vWo}, v6, 4, v5")
    sXb, sWb, sLX, sLW = 62, 63, 64, 65
    E.i(f"s_mul_i32 s{sXb}, s{sRB}, 81920")
    E.i(f"s_lshl_b32 s{sWb}, s{sCT}, 8")
    E.i(f"s_lshl_b32 s{sLX}, s3, 10"); E.i(f"s_lshl_b32 s{sLW}, s3, 11"); E.i(f"s_add_u32 s{sLW}, s{sLW}, 16384")
    sCH = 66
    def chunk(p):
        E.i(f"s_add_u32 s{sCH+p}, s{sRHO}, {p}")
        if p >= 3:
            E.i(f"s_cmp_ge_u32 s{sCH+p}, 10"); E.i("s_cselect_b32 s52, 10, 0"); E.i(f"s_sub_u32 s{sCH+p}, s{sCH+p}, s52")
    PK = 176
    def dma(p, i, other=0):
        sl = (p % 4) * 32768
        parked = 4 <= p < 4 + NPARK
        dst = f"v[{PK+16*(p-4)+4*i}:{PK+16*(p-4)+4*i+3}], " if parked else ""
        sfx = "" if parked else " lds"
        if i < 2:
            E.i(f"s_lshl_b32 s100, s{sCH+p}, 7"); E.i(f"s_add_u32 s100, s100, s{sXb}")
            if i or other: E.i(f"s_add_u32 s100, s100, {i*1310720 + other*32*1280}")
            if not parked: E.i(f"s_add_u32 m0, s{sLX}, {sl + i*8192 + other*4096}")
            E.i(f"buffer_load_dwordx4 {dst}v{vXo}, s[{SRD_X}:{SRD_X+3}], s100 offen{sfx}", tag=("c", p))
        else:
            E.i(f"s_mul_i32 s100, s{sCH+p}, 245760"); E.i(f"s_add_u32 s100, s100, s{sWb}")
            if i == 3 or other: E.i(f"s_add_u32 s100, s100, {(i-2)*15360 + other*32*3840}")
            if not parked: E.i(f"s_add_u32 m0, s{sLW}, {sl + (i-2)*1024 + other*8192}")
            E.i(f"buffer_load_dwordx4 {dst}v{vWo}, s[{SRD_W1}:{SRD_W1+3}], s100 offen{sfx}", tag=("c", p))
    for p in range(2):
        chunk(p)
        for i in range(4): dma(p, i)
    for p in range(2, 10): chunk(p)
    E.i("s_barrier")
    for p in (2, 3):
        for i in range(4): dma(p, i)
    nonce_issue(E, 124)
    if S0_ISS < 0: s0_issue(E, 14, None)
    vPX, vPWW = 108 + 0, 109
    E.i(f"s_and_b32 s{sC}, s3, 3"); E.i(f"s_lshr_b32 s{sMT}, s3, 2")
    vXa = [[5, 6, 7, 8], [112, 113, 114, 115]]; vWa = [[9, 10, 11, 12], [116, 117, 118, 119]]; vQO = [16, 17, 18, 19]
    E.i("v_and_b32 v20, 31, v1"); E.i(f"s_lshl_b32 s52, s{sMT}, 5"); E.i("v_add_u32 v20, s52, v20")
    E.i("v_bfe_u32 v21, v20, 1, 3"); E.i("v_lshrrev_b32 v22, 5, v1"); E.i("v_xor_b32 v21, v21, v22")
    E.i("v_lshlrev_b32 v20, 7, v20"); E.i("v_lshl_add_u32 v20, v21, 4, v20")
    E.i("v_bfe_u32 v21, v1, 2, 2")
    E.i("v_lshrrev_b32 v22, 5, v1"); E.i("v_lshl_add_u32 v22, v22, 3, v21"); E.i("v_lshlrev_b32 v22, 8, v22")
    E.i(f"v_xor_b32 v21, s{sC}, v21"); E.i("v_lshl_add_u32 v22, v21, 6, v22")
    E.i("v_bfe_u32 v21, v1, 4, 1"); E.i("v_lshl_add_u32 v22, v21, 5, v22")
    E.i("v_and_b32 v21, 3, v1"); E.i("v_lshl_add_u32 v22, v21, 3, v22")
    E.i(f"v_add_u32 v22, 16384, v22")
    for sp in range(4):
        E.i(f"s_add_u32 s52, s{sC}, {sp}"); E.i("s_and_b32 s52, s52, 3")
        E.i("s_lshl_b32 s53, s52, 5"); E.i(f"v_xor_b32 v{vXa[0][sp]}, s53, v20"); E.i(f"v_add_u32 v{vXa[1][sp]}, 65536, v{vXa[0][sp]}")
        E.i("s_lshl_b32 s53, s52, 12"); E.i(f"v_add_u32 v{vWa[0][sp]}, s53, v22"); E.i(f"v_add_u32 v{vWa[1][sp]}, 65536, v{vWa[0][sp]}")
    E.i("v_lshrrev_b32 v20, 5, v1")
    E.i(f"s_lshl_b32 s52, s{sC}, 3"); E.i(f"s_lshl_b32 s53, s{sCT}, 5"); E.i("s_add_u32 s52, s52, s53"); E.i("v_add_u32 v20, s52, v20")
    E.i("v_bfe_u32 v21, v1, 4, 1"); E.i(f"s_lshl_b32 s52, s{sMT}, 1"); E.i("v_add_u32 v21, s52, v21"); E.i("v_mul_u32_u24 v21, 640, v21")
    E.i("v_and_b32 v22, 15, v1")
    E.i("s_mov_b32 s52, 81920")
    for a in range(4):
        E.i(f"v_add_u32 v23, {2*a}, v20")
        E.i("v_mul_u32_u24 v24, 0xcccd, v23"); E.i("v_lshrrev_b32 v24, 18, v24")
        E.i("v_mul_u32_u24 v25, 5, v24"); E.i("v_sub_u32 v25, v23, v25")
        E.i("v_mul_lo_u32 v24, v24, s52"); E.i("v_add_u32 v24, v24, v21"); E.i("v_lshl_add_u32 v24, v25, 7, v24")
        E.i("v_and_b32 v25, 2, v25"); E.i("v_lshlrev_b32 v25, 2, v25"); E.i("v_xor_b32 v25, v25, v22")
        E.i(f"v_lshl_add_u32 v{vQO[a]}, v25, 3, v24")
    sQO = 76
    E.i(f"s_mul_i32 s{sQO}, s{sRB}, 2560"); E.i(f"s_add_u32 s{sQO+1}, s{sQO}, 40960")
    M1 = 120
    for r in range(4): E.i(f"v_mov_b32 v{M1+r}, -1")
    ST = 65536; CSL = 65536 + 4096
    vST_W, vST_R, vCS_R = 23, 24, 25
    E.i("v_and_b32 v20, 31, v1"); E.i("v_lshlrev_b32 v21, 6, v20"); E.i(f"s_lshl_b32 s52, s{sMT}, 11"); E.i(f"s_add_u32 s52, s52, {ST}")
    E.i(f"v_add_u32 v{vST_R}, s52, v21"); E.i(f"s_lshl_b32 s52, s{sC}, 4"); E.i(f"v_add_u32 v{vST_W}, s52, v{vST_R}")
    E.i("v_lshrrev_b32 v21, 5, v1"); E.i("v_lshlrev_b32 v21, 4, v21"); E.i(f"s_lshl_b32 s52, s{sC}, 7"); E.i(f"s_add_u32 s52, s52, {CSL}"); E.i(f"v_add_u32 v{vCS_R}, s52, v21")
    for p in range(4, 4 + NPARK):
        for i in range(4): E.bg_push(("c", p), lambda p=p, i=i: dma(p, i))
    E.bg_pop(4)
    sGRP = 61
    E.i(f"s_lshl_b32 s52, s{sMT}, 2"); E.i(f"s_add_u32 s{sGRP}, s{sGRP}, s52")
    vPX, vPWW = 172, 173
    E.i(f"v_add_u32 v{vPX}, s{sLX}, v2"); E.i(f"v_add_u32 v{vPWW}, s{sLW}, v2")
    E.i(f"v_add_u32 v174, 65536, v{vPX}"); E.i(f"v_add_u32 v175, 65536, v{vPWW}")
    stamp(E, 1, 31)
    ACC = [32, 48]; WFr = 64; XFr = [80, 96]
    SS = [28, 29, 30, 31]; SS2 = [20, 21, 22, 26]
    TX = [128 + i for i in range(16)]
    for r in SS + SS2: E.i(f"v_mov_b32 v{r}, 0")
    ks = [(p, sp) for p in range(10) for sp in range(4)]
    def rd(idx):
        p, sp = ks[idx]
        hi = (p % 4) // 2; off = (p % 2) * 32768
        wf = WFr + 4*sp
        E.i(f"ds_read_b64_tr_b16 v[{wf}:{wf+1}], v{vWa[hi][sp]} offset:{off}", tag=("r", idx))
        E.i(f"ds_read_b64_tr_b16 v[{wf+2}:{wf+3}], v{vWa[hi][sp]} offset:{off+1024}", tag=("r", idx))
        for h in range(2):
            E.i(f"ds_read_b128 v[{XFr[h]+4*sp}:{XFr[h]+4*sp+3}], v{vXa[hi][sp]} offset:{off + h*8192}", tag=("r", idx))
    D = 2
    def cs1_loads():
        E.bg_lock += 1
        E.i("v_and_b32 v13, 31, v1"); E.i("v_lshlrev_b32 v13, 3, v13"); E.i("v_lshrrev_b32 v14, 5, v1"); E.i("v_mul_u32_u24 v14, 76800, v14"); E.i("v_add_u32 v13, v13, v14")
        E.i(f"s_lshl_b32 s52, s{sCT}, 10"); E.i(f"s_add_u32 s52, s52, {CS1}"); E.i(f"s_lshl_b32 s53, s{sC}, 8"); E.i("s_add_u32 s52, s52, s53")
        for j in range(5):
            E.i(f"buffer_load_dwordx2 v[{144+2*j}:{145+2*j}], v13, {WSR}, s52 offen{SC}", tag="cs1")
            E.i("s_add_u32 s52, s52, 15360")
        E.bg_lock -= 1
    def loop(g):
        E.wait_vm(("c", 0))
        E.i("s_barrier")
        stamp(E, 44, 27)
        E.bg_period = BGP1
        for idx in range(D): rd(idx)
        work = []; pwq = []; dq = []; dskip = 0
        for idx, (p, sp) in enumerate(ks):
            if sp == 2 and p < 9:
                if p + 1 <= 3 or p + 1 >= 4 + NPARK: E.wait_vm(("c", p + 1))
                if 4 <= p + 1 < 4 + NPARK: E.wait_lg("pw")
                if p == 2: nonce_get(E, 124)
                E.i("s_barrier")
                if p == 3 and g == 0:
                    Lc = E.newlabel("csst")
                    E.i(f"s_cmp_ge_u32 s{sGRP}, 3"); E.branch(f"s_cbranch_scc1 {Lc}")
                    with side(E):
                        E.i("v_add_f32 v120, v120, v121"); E.i("v_mov_b32 v121, v120"); E.i("v_permlane32_swap_b32 v120, v121"); E.i("v_add_f32 v120, v120, v121")
                        E.i("v_and_b32 v122, 31, v1"); E.i("v_lshlrev_b32 v122, 3, v122"); E.i(f"v_mov_b32 v121, s{sNONCE}")
                        E.i(f"s_add_u32 s52, s{sRHO}, s{sGRP}")
                        E.i(f"s_mul_i32 s52, s52, 15360"); E.i(f"s_lshl_b32 s53, s{sCT}, 10"); E.i("s_add_u32 s52, s52, s53"); E.i(f"s_lshl_b32 s53, s{sC}, 8"); E.i("s_add_u32 s52, s52, s53"); E.i(f"s_add_u32 s52, s52, {CS1}")
                        E.i("s_mov_b32 exec_hi, 0")
                        E.i(f"buffer_store_dwordx2 v[120:121], v122, {WSR}, s52 offen{SC}")
                        E.i("s_mov_b64 exec, -1")
                    E.label(Lc)
                if p in (2, 5, 8): stamp(E, 45 + p//3, 27)
                if 1 <= p <= NPARK:
                    pc = p + 3; sl = (pc % 4) * 32768
                    for i in range(4):
                        base = ((vPX, vPWW), (174, 175))[sl >= 65536][i >= 2]
                        off = (sl % 65536) + (i*8192 if i < 2 else (i-2)*1024)
                        r = PK + 16*(pc-4) + 4*i
                        pwq.append((pc, f"ds_write_b128 v{base}, v[{r}:{r+3}] offset:{off}"))
                if p == F0_CHK: cs1_loads()
                if NPARK < p <= 6:
                    for i in range(4): dq.append(lambda p=p, i=i: dma(p + 3, i))
                    dskip = 0 if g == 0 else 4
                if p == S0_ISS: s0_issue(E, 14, None)
                if p == 7 + g: s0_finish(E, 224, 14, None)
                if p == 8 - g:
                    for r in range(4): E.i(f"v_mov_b32 v{160+r}, -1")
                    E.i("s_lshl_b32 s52, s2, 3"); E.i("s_add_u32 s52, s52, s3"); E.i(f"s_mul_i32 s52, s52, {HH_BUSY*1024}"); E.i(f"s_add_u32 s52, s52, {HHF}")
                    for t in range(HH_BUSY): E.i(f"buffer_store_dwordx4 v[160:163], v2, {WSR}, s52 offen offset:{t*1024}{SC}")
            wf = WFr + 4*sp
            E.wait_lg(("r", idx))
            for h in range(2):
                c = "0" if idx == 0 else f"v[{ACC[h]}:{ACC[h]+15}]"
                E.i(f"v_mfma_f32_32x32x16_bf16 v[{ACC[h]}:{ACC[h]+15}], v[{wf}:{wf+3}], v[{XFr[h]+4*sp}:{XFr[h]+4*sp+3}], {c}")
                if sp == 0 and "nostat" not in OPT:
                    for q in range(4):
                        E.i(f"v_lshlrev_b32 v{TX[8*h+2*q]}, 16, v{XFr[h]+q}"); E.i(f"v_and_b32 v{TX[8*h+2*q+1]}, 0xffff0000, v{XFr[h]+q}")
                    for q in range(8):
                        sx = (SS if q & 1 else SS2)[2*h]; sxx = (SS if q & 1 else SS2)[2*h+1]
                        work.append(f"v_add_f32 v{sx}, v{sx}, v{TX[8*h+q]}")
                        work.append(f"v_fmac_f32 v{sxx}, v{TX[8*h+q]}, v{TX[8*h+q]}")
                else:
                    n = 6 if sp < 3 else len(work) if h == 1 else 4
                    for _ in range(min(n, len(work))): E.i(work.pop(0))
                if h == 1 and p < 3 and g == 0:
                    Lc = E.newlabel("csp")
                    E.i(f"s_cmp_lg_u32 s{sGRP}, {p}"); E.branch(f"s_cbranch_scc1 {Lc}")
                    with side(E):
                        if sp == 0: E.i("v_mov_b32 v120, 0"); E.i("v_mov_b32 v121, 0")
                        for q in range(4): E.i(f"v_dot2c_f32_bf16 v{120 + (q&1)}, s{sONE}, v{wf+q}")
                    E.label(Lc)
                if h == 0 and idx + D < len(ks): rd(idx + D)
                if dq:
                    if dskip: dskip -= 1
                    else: dq.pop(0)()
                if h == 1 and pwq:
                    pc, t_ = pwq.pop(0)
                    E.wait_vm(("c", pc)); E.i(t_, tag="pw")
    LG1, LJ = E.newlabel("s1G1"), E.newlabel("s1J")
    vm0 = list(E.vm); q0 = list(E.bgq)
    E.i("s_cmp_ge_u32 s3, 4"); E.branch(f"s_cbranch_scc1 {LG1}")
    loop(0)
    E.wait_vm("cs1")
    E.branch(f"s_branch {LJ}")
    E.label(LG1)
    E.vm = vm0; E.lg = []; E.bgq = q0
    loop(1)
    E.wait_vm("cs1")
    E.label(LJ)
    if "rep1" in OPT:
        for variant in range(3):
            E.i("s_waitcnt vmcnt(0) lgkmcnt(0)"); E.i("s_barrier"); stamp(E, 53 + 2*variant, 27); E.lg = []
            for idx in range(D): rd(idx)
            for idx, (p, sp) in enumerate(ks):
                if sp == 2 and p < 9 and variant != 1: E.i("s_barrier")
                wf = WFr + 4*sp
                E.wait_lg(("r", idx))
                for h in range(2):
                    E.i(f"v_mfma_f32_32x32x16_bf16 v[{192+16*h}:{192+16*h+15}], v[{wf}:{wf+3}], v[{XFr[h]+4*sp}:{XFr[h]+4*sp+3}], v[{192+16*h}:{192+16*h+15}]")
                    if variant == 2:
                        for q in range(6): E.i(f"v_fmac_f32 v{TX[q]}, v{TX[8+q]}, v{TX[8+q]}")
                    if h == 0 and idx + D < len(ks): rd(idx + D)
            E.i("s_barrier"); stamp(E, 54 + 2*variant, 27)
    E.wait_vm("cs1")
    Lc, Lok = E.newlabel("cs1c"), E.newlabel("cs1ok")
    E.label(Lc)
    for j in range(5): E.i(f"v_xor_b32 v{145+2*j}, s{sNONCE}, v{145+2*j}")
    E.i("v_or3_b32 v145, v145, v147, v149"); E.i("v_or3_b32 v145, v145, v151, v153")
    E.i("v_cmp_ne_u32 vcc, 0, v145")
    E.branch(f"s_cbranch_vccz {Lok}")
    with side(E): retry_tail(E, Lok, Lc, cs1_loads)
    E.label(Lok)
    E.i("v_add_f32 v144, v144, v146"); E.i("v_add_f32 v148, v148, v150"); E.i("v_add_f32 v144, v144, v152"); E.i("v_add_f32 v144, v144, v148")
    E.i("v_mov_b32 v145, v144"); E.i("v_permlane32_swap_b32 v144, v145"); E.i("v_add_f32 v144, v144, v145")
    E.i("v_and_b32 v13, 31, v1"); E.i("v_lshlrev_b32 v13, 2, v13"); E.i(f"s_lshl_b32 s52, s{sC}, 7"); E.i(f"s_add_u32 s52, s52, {CSL}"); E.i("v_add_u32 v13, s52, v13")
    E.i("ds_write_b32 v13, v144")
    stamp(E, 2, 27)
    E.bg_flush()
    for j in range(4): E.i(f"v_add_f32 v{SS[j]}, v{SS[j]}, v{SS2[j]}")
    for j in range(4): E.i(f"v_mov_b32 v{SS2[j]}, v{SS[j]}")
    for j in range(4): E.i(f"v_permlane32_swap_b32 v{SS[j]}, v{SS2[j]}")
    for j in range(4): E.i(f"v_add_f32 v{SS[j]}, v{SS[j]}, v{SS2[j]}")
    E.i(f"ds_write_b128 v{vST_W}, v[28:31]")
    E.wait_lg()
    E.i("s_barrier")
    for j in range(4): E.i(f"ds_read_b128 v[{80+4*j}:{83+4*j}], v{vST_R} offset:{16*j}")
    CS = 64
    for a in range(4): E.i(f"ds_read_b128 v[{CS+4*a}:{CS+4*a+3}], v{vCS_R} offset:{a*32}")
    E.wait_lg()
    for j in range(4):
        E.i(f"v_add_f32 v{80+j}, v{80+j}, v{84+j}"); E.i(f"v_add_f32 v{88+j}, v{88+j}, v{92+j}"); E.i(f"v_add_f32 v{SS[j]}, v{80+j}, v{88+j}")
    for h in range(2):
        SX, SXX = SS[2*h], SS[2*h+1]
        stats_math(E, SX, SXX)
        E.i(f"s_cmp_lt_u32 s{sCT}, 5"); E.i(f"s_cselect_b32 s52, {f2u((20 ** -0.5) * math.log2(math.e)):#x}, 1.0")
        E.i(f"v_mul_f32 v{SXX}, s52, v{SXX}")
        for a in range(4):
            A_ = ACC[h] + 4*a
            for b in range(4): E.i(f"v_fma_f32 v{A_+b}, v{SX}, v{CS+4*a+b}, v{A_+b}")
            for b in range(4): E.i(f"v_mul_f32 v{A_+b}, v{SXX}, v{A_+b}")
            o = 96 + 8*h + 2*a
            E.i(f"v_cvt_pk_bf16_f32 v{o}, v{A_}, v{A_+1}")
            E.i(f"v_cvt_pk_bf16_f32 v{o+1}, v{A_+2}, v{A_+3}")
            E.i(f"buffer_store_dwordx2 v[{o}:{o+1}], v{vQO[a]}, {WSR}, s{sQO+h} offen{SC}", tag="st")
    stamp(E, 5, 27)
    assert not E.bgq
S0_ISS = int(os.environ.get('S0_ISS', '-1'))
F0_SET, F0_CHK = 4, int(os.environ.get('F0_CHK', '7'))
NPARK = int(os.environ.get('NPARK', '0'))
BGP1 = int(os.environ.get("BGP1", "70"))
```

```python
from k18a import *

sRB3, sCT3, sCG4, sRB4 = 86, 87, 88, 89
W3R = 156; A3 = [68, 108]; ACC3 = 28
W5P1 = 168
AFR = 88
W5reg = lambda j: (W5P1 + 4*j) if j < 22 else (AFR + 48 + 4*(j-22))
A5 = [lambda f: AFR + 4*f, lambda f: (56 + 4*f) if f < 8 else (AFR + 4*(f-8))]
vA3 = 3
S2B_AT = int(os.environ.get("S2B_AT", "5"))
S3A_AT = int(os.environ.get("S3A_AT", "6"))

def late_scalars(E):
    E.i("s_and_b32 s52, s2, 7"); E.i("s_lshr_b32 s53, s2, 3")
    E.i(f"s_lshr_b32 s{sRB3}, s52, 1"); E.i(f"s_lshl_b32 s{sRB3}, s{sRB3}, 3"); E.i("s_lshr_b32 s54, s53, 2"); E.i(f"s_add_u32 s{sRB3}, s{sRB3}, s54")
    E.i(f"s_and_b32 s{sCT3}, s52, 1"); E.i(f"s_lshl_b32 s{sCT3}, s{sCT3}, 2"); E.i("s_and_b32 s54, s53, 3"); E.i(f"s_add_u32 s{sCT3}, s{sCT3}, s54")
    E.i(f"s_lshr_b32 s{sRB4}, s52, 2"); E.i(f"s_lshl_b32 s{sRB4}, s{sRB4}, 2"); E.i("s_lshr_b32 s54, s53, 3"); E.i(f"s_add_u32 s{sRB4}, s{sRB4}, s54")
    E.i(f"s_and_b32 s{sCG4}, s52, 3"); E.i(f"s_lshl_b32 s{sCG4}, s{sCG4}, 3"); E.i("s_and_b32 s54, s53, 7"); E.i(f"s_add_u32 s{sCG4}, s{sCG4}, s54")

def ld_unit(E, r, sbase, j, tag, vaddr=2, unit=1024):
    off = j * unit
    if off < 4096:
        E.i(f"buffer_load_dwordx4 v[{r}:{r+3}], v{vaddr}, {WSR}, s{sbase} offen offset:{off}{SC}", tag=tag)
    else:
        E.i(f"s_add_u32 s100, s{sbase}, {off - off % 4096}")
        E.i(f"buffer_load_dwordx4 v[{r}:{r+3}], v{vaddr}, {WSR}, s100 offen offset:{off % 4096}{SC}", tag=tag)

sWP, sW4, sW5, sA3, sA4, sA5, sHS, sHH = 56, 57, 59, 60, 62, 63, 65, 66
def bases(E):
    E.i(f"s_mul_i32 s{sW5}, s{sCT3}, 245760"); E.i("s_mul_i32 s53, s3, 30720"); E.i(f"s_add_u32 s{sW5}, s{sW5}, s53"); E.i(f"s_add_u32 s{sW5}, s{sW5}, {W5F}")
    E.i(f"s_mul_i32 s52, s{sCT3}, 102400"); E.i("s_mul_i32 s53, s3, 25600"); E.i("s_add_u32 s52, s52, s53"); E.i(f"s_add_u32 s52, s52, {W3F}")
    E.i(f"s_sub_u32 s53, s{sW5}, 3072")
    E.i("s_cmp_lt_u32 s3, 4"); E.i(f"s_cselect_b32 s{sWP}, s52, s53")
    E.i(f"s_mul_i32 s{sW4}, s{sCG4}, 122880"); E.i(f"s_add_u32 s{sW4}, s{sW4}, {W4F}"); E.i(f"s_lshl_b32 s{sW4+1}, s3, 10"); E.i(f"s_add_u32 s{sW4}, s{sW4}, s{sW4+1}")
    E.i(f"s_mul_i32 s{sA3}, s{sRB3}, 40960"); E.i(f"s_add_u32 s{sA3}, s{sA3}, {OF}")
    E.i("s_and_b32 s53, s3, 3"); E.i("s_lshl_b32 s72, s53, 12"); E.i("s_lshl_b32 s73, s53, 10"); E.i("s_add_u32 s73, s73, 16384")
    E.i(f"s_add_u32 s{sA3+1}, s{sA3}, {64*20480}")
    E.i("s_lshr_b32 s52, s3, 2"); E.i("s_xor_b32 s52, s52, 1"); E.i("s_lshl_b32 s52, s52, 3"); E.i(f"s_add_u32 s52, s52, s{sRB4}"); E.i("s_lshl_b32 s52, s52, 2"); E.i("s_and_b32 s53, s3, 3"); E.i("s_add_u32 s52, s52, s53")
    E.i(f"s_mul_i32 s{sA4}, s52, 40960"); E.i(f"s_add_u32 s{sA4}, s{sA4}, {HF}")
    E.i(f"s_lshl_b32 s{sHS}, s52, 11"); E.i(f"s_add_u32 s{sHS}, s{sHS}, {HSTB}")
    E.i(f"s_mul_i32 s{sHH}, s52, 98304"); E.i(f"s_mul_i32 s53, s{sCG4}, 3072"); E.i(f"s_add_u32 s{sHH}, s{sHH}, s53"); E.i(f"s_add_u32 s{sHH}, s{sHH}, {HHF}")
    E.i(f"s_mul_i32 s{sA5}, s{sRB3}, 98304"); E.i("s_mul_i32 s53, s3, 12288"); E.i(f"s_add_u32 s{sA5}, s{sA5}, s53"); E.i(f"s_add_u32 s{sA5}, s{sA5}, {HHF}")
    E.i(f"s_add_u32 s{sA5+1}, s{sA5}, {32*98304}")

def w4_unit(E, base):
    E.i(f"s_add_u32 m0, s{sW4+1}, {base*1024}"); E.i(f"s_add_u32 s100, s{sW4}, {base*1024}")
    E.i(f"buffer_load_dwordx4 v2, {WSR}, s100 offen{SC} lds", tag="w4")

def a3_all(E, ph):
    for k in range(5):
        for u in range(2):
            r = A3[ph] + (2*k + u)*4
            if k < 4:
                E.i(f"s_add_u32 s100, s{sA3+ph}, s72")
                if u: E.i("s_add_u32 s100, s100, 20480")
                E.i(f"buffer_load_dwordx4 v[{r}:{r+3}], v2, {WSR}, s100 offen offset:{k*1024}{SC}", tag=("a3", ph, k))
            else:
                E.i(f"s_add_u32 s100, s{sA3+ph}, s73")
                if u: E.i("s_add_u32 s100, s100, 20480")
                for h in range(2):
                    E.i(f"buffer_load_dwordx2 v[{r+2*h}:{r+2*h+1}], v{vA3}, {WSR}, s100 offen offset:{h*128}{SC}", tag=("a3", ph, k))

def probe(E, setup, va, vd, loads=None, sleep=4):
    L, Lok = E.newlabel("prb"), E.newlabel("prbok")
    E.bg_lock += 1
    setup()
    E.label(L)
    E.i(f"buffer_load_dword v{vd}, v{va}, {WSR}, s101 offen{SC}", tag="probe")
    if loads and PIGGY: loads()
    E.wait_vm("probe")
    E.i(f"v_cmp_eq_u32 vcc, -1, v{vd}")
    E.branch(f"s_cbranch_vccz {Lok}")
    E.i(f"s_sleep {sleep}")
    E.i(f"s_add_u32 s{sRETRY}, s{sRETRY}, 1"); E.i(f"s_cmp_gt_u32 s{sRETRY}, {RETRY_MAX}")
    E.branch(f"s_cbranch_scc0 {L}")
    E.label(Lok)
    if loads and not PIGGY: loads()
    E.bg_lock -= 1
PIGGY = int(os.environ.get("PIGGY", "0"))
def probe_o(E, ph, va, vd, loads=None, sleep=4):
    def st():
        E.i(f"v_and_b32 v{va}, 7, v1"); E.i(f"v_lshlrev_b32 v{va}, 7, v{va}"); E.i(f"v_bfe_u32 v{vd}, v1, 3, 1"); E.i(f"v_mul_u32_u24 v{vd}, 20480, v{vd}"); E.i(f"v_add_u32 v{va}, v{va}, v{vd}")
        E.i(f"s_add_u32 s101, s{sA3+ph}, s73")
    probe(E, st, va, vd, loads, sleep)
def probe_h(E, va, vd, loads=None):
    def st():
        E.i(f"v_and_b32 v{va}, 7, v1"); E.i(f"v_mul_u32_u24 v{va}, 5120, v{va}"); E.i(f"s_add_u32 s101, s{sA4}, 4096")
    probe(E, st, va, vd, loads)
def probe_hh(E, ph, va, vd, loads=None, sleep=2):
    def st():
        E.i(f"v_and_b32 v{va}, 3, v1"); E.i(f"v_mul_u32_u24 v{va}, 3072, v{va}"); E.i(f"s_add_u32 s101, s{sA5+ph}, 2048")
    probe(E, st, va, vd, loads, sleep)

CNT = 2816
def gwait(E, idx, target, va, vt):
    L, Lok = E.newlabel("gw"), E.newlabel("gwok")
    E.bg_lock += 1
    E.i(f"v_mov_b32 v{va}, {CNT + 4*idx}")
    E.label(L)
    E.i(f"ds_read_b32 v{vt}, v{va}")
    E.i("s_waitcnt lgkmcnt(0)"); E.lg = []
    E.i(f"v_readfirstlane_b32 s52, v{vt}")
    E.i(f"s_cmp_ge_u32 s52, {target}")
    E.branch(f"s_cbranch_scc1 {Lok}")
    E.i("s_sleep 1")
    E.i(f"s_add_u32 s{sRETRY}, s{sRETRY}, 1"); E.i(f"s_cmp_gt_u32 s{sRETRY}, {RETRY_MAX*50}")
    E.branch(f"s_cbranch_scc0 {L}")
    E.label(Lok)
    E.bg_lock -= 1
def garrive(E, idx, va, vt):
    E.bg_lock += 1
    E.i("s_waitcnt lgkmcnt(0)"); E.lg = []
    E.i(f"v_mov_b32 v{va}, {CNT + 4*idx}"); E.i(f"v_mov_b32 v{vt}, 1")
    E.i("s_mov_b64 exec, 1")
    E.i(f"ds_add_u32 v{va}, v{vt}")
    E.i("s_mov_b64 exec, -1")
    E.bg_lock -= 1
GB = [0, 0]
def gbar(E, g, va, vt):
    GB[g] += 1
    garrive(E, g, va, vt); gwait(E, g, 4*GB[g], va, vt)

CSX = 118*1024
ONESL = 2688
def s2(E):
    KV = [122880, 92160]
    stamp(E, 6, 31)
    vD = 34
    s2_scalars(E)
    s2_loads(E, 0, 0, vD, 0, 0, KV[0])
    LO, LO4, K1, K2, VA, VS, vO1, vO2, M0_, M1_ = 4, 5, 6, 7, 8, 9, 10, 11, 32, 33
    QF = 12; BM = 20; KF = 36; VF = 52; PP = 68; S = [84, 100]; NM = 116; OA = 132
    E.i("v_and_b32 v24, 15, v1"); E.i("v_bfe_u32 v25, v1, 4, 1"); E.i("v_lshrrev_b32 v26, 5, v1")
    E.i("v_mul_u32_u24 v27, 640, v25")
    E.i("v_lshlrev_b32 v28, 3, v26"); E.i("v_xor_b32 v28, v28, v24"); E.i(f"v_lshl_add_u32 v{LO}, v28, 3, v27"); E.i(f"v_lshl_add_u32 v{LO}, v26, 8, v{LO}")
    E.i(f"v_lshl_add_u32 v{LO4}, v24, 3, v27"); E.i(f"v_add_u32 v{LO4}, 512, v{LO4}")
    for r in range(4, 8): E.i(f"v_mov_b32 v{QF+r}, 0")
    E.i(f"buffer_load_dwordx2 v[{QF}:{QF+1}], v{LO}, {WSR}, s{sQo} offen", tag="q")
    E.i(f"buffer_load_dwordx2 v[{QF+2}:{QF+3}], v{LO}, {WSR}, s{sQo} offen offset:128", tag="q")
    E.i("s_mov_b32 exec_hi, 0")
    E.i(f"buffer_load_dwordx2 v[{QF+4}:{QF+5}], v{LO4}, {WSR}, s{sQo} offen", tag="q")
    E.i("s_mov_b64 exec, -1")
    s2_loads(E, 0, 1, vD, 0, 0, KV[1])
    late_scalars(E); bases(E)
    E.i("s_and_b32 s52, s3, 3"); E.i("s_mul_i32 s52, s52, 1280"); E.i("s_lshr_b32 s53, s3, 2"); E.i(f"s_mul_i32 s53, s53, {KV[0]-KV[1]}"); E.i(f"s_add_u32 s52, s52, {KV[0]}"); E.i("s_sub_u32 s52, s52, s53")
    E.i(f"v_add_u32 v{K1}, s52, v{LO}"); E.i(f"v_add_u32 v{K2}, s52, v{LO4}")
    E.i("v_bfe_u32 v27, v1, 2, 2"); E.i("v_lshl_add_u32 v27, v26, 2, v27")
    E.i("v_and_b32 v28, 3, v1")
    E.i("v_lshlrev_b32 v29, 7, v28"); E.i("v_lshl_add_u32 v29, v27, 3, v29")
    E.i("v_and_b32 v30, 2, v28"); E.i("v_lshlrev_b32 v30, 5, v30")
    E.i("v_lshlrev_b32 v31, 3, v27"); E.i("v_add_u32 v31, 512, v31")
    E.i("v_cmp_eq_u32 vcc, 1, v25")
    E.i("v_cndmask_b32 v29, v29, v31, vcc"); E.i("v_cndmask_b32 v30, v30, 0, vcc")
    E.i("s_add_u32 s52, s52, 15360")
    E.i("v_add_u32 v29, s52, v29")
    E.i("v_cmp_ne_u32 s[54:55], 0, v28"); E.i("s_and_b64 vcc, vcc, s[54:55]")
    E.i(f"v_mov_b32 v31, {ONESL}"); E.i("v_cndmask_b32 v29, v29, v31, vcc")
    E.i(f"v_mov_b32 v31, 640"); E.i(f"v_cndmask_b32 v{VS}, v31, 0, vcc")
    VA2 = 35
    E.i(f"v_add_u32 v{VA}, v29, v30"); E.i("v_xor_b32 v30, 64, v30"); E.i(f"v_add_u32 v{VA2}, v29, v30")
    E.i("v_mul_u32_u24 v27, 20480, v25"); E.i(f"v_lshl_add_u32 v{vO2}, v24, 3, v27"); E.i(f"v_lshl_add_u32 v{vO1}, v24, 4, v27"); E.i(f"v_lshl_add_u32 v{vO1}, v26, 8, v{vO1}")
    E.i("v_lshrrev_b32 v27, 4, v1"); E.i(f"v_lshlrev_b32 v{vA3}, 8, v27"); E.i(f"v_lshl_add_u32 v{vA3}, v24, 3, v{vA3}")
    MS = [4,6,8,10,12,14,16,18,20,22,28,30,40,42,44,46]
    E.i("v_and_b32 v27, 31, v1"); E.i("v_lshlrev_b32 v28, 2, v26"); E.i("v_sub_u32 v27, v27, v28")
    E.i("v_mov_b32 v28, 0xffff"); E.i("v_mov_b32 v29, 0xffff0000")
    for r in range(16):
        E.i(f"v_cmp_le_i32 s[{MS[r]}:{MS[r]+1}], {8*(r//4) + r%4}, v27")
    for j in range(8):
        E.i(f"v_cndmask_b32 v30, 0, v28, s[{MS[2*j]}:{MS[2*j]+1}]"); E.i(f"v_cndmask_b32 v31, 0, v29, s[{MS[2*j+1]}:{MS[2*j+1]+1}]")
        E.i(f"v_or_b32 v{BM+j}, v30, v31")
    E.i("v_mov_b32 v142, 0"); E.i("v_mov_b32 v143, 0"); E.i(f"v_mov_b32 v37, {CNT}"); E.i("ds_write_b64 v37, v[142:143]"); E.i("ds_write_b64 v37, v[142:143] offset:8")
    E.i(f"v_mov_b32 v142, s{sONE}"); E.i("v_and_b32 v37, 31, v1"); E.i("v_lshlrev_b32 v37, 2, v37"); E.i(f"ds_write_b32 v37, v142 offset:{ONESL}")
    for r in (KF+6, KF+7, KF+14, KF+15): E.i(f"v_mov_b32 v{r}, 0")
    E.wait_lg(); E.wait_vm()
    stamp(E, 7, 30)
    E.i("s_barrier")
    Lw = E.newlabel("g1pre")
    E.i("s_cmp_ge_u32 s3, 4"); E.branch(f"s_cbranch_scc1 {Lw}")
    E.i("s_setprio 2")
    E.branch(f"s_branch {Lw}_j")
    E.label(Lw)
    with side(E):
        E.i(f"s_sub_u32 s{sW4}, s{sW4}, 4096"); E.i(f"s_sub_u32 s{sW4+1}, s{sW4+1}, 4096")
        for u_ in list(range(3, 87, 4)) + [86]: w4_unit(E, u_)
    E.label(f"{Lw}_j")
    stamp(E, 8, 30); stamp(E, 10, 30, wave=4)
    E.i("s_cmp_lt_u32 s3, 4"); E.i("s_cselect_b64 vcc, -1, 0")
    def wpg(j):
        L = E.newlabel("wps")
        E.i(f"s_cbranch_vccz {L}")
        h = list(E.hist)
        ld_unit(E, W3R + 4*j, sWP, j, "wp")
        E.hist = h
        E.raw(f"{L}:")
    WPQ = [(lambda j=j: wpg(j)) for j in range(25)]
    order = [0, 8, 7, 6, 5, 4, 3, 2, 1]
    def rdk(n):
        b = order[n]; r = KF + 8*(n % 2)
        E.i(f"ds_read2_b64 v[{r}:{r+3}], v{K1} offset0:{(b*1280//8) % 256} offset1:{(b*1280//8 + 16) % 256}", tag=("k", n)) if b*1280//8 + 16 < 256 else (
            E.i(f"ds_read_b64 v[{r}:{r+1}], v{K1} offset:{b*1280}", tag=("k", n)), E.i(f"ds_read_b64 v[{r+2}:{r+3}], v{K1} offset:{b*1280+128}", tag=("k", n)))
        E.i(f"ds_read_b64 v[{r+4}:{r+5}], v{K2} offset:{b*1280}", tag=("k", n))
    def weave(big, small):
        nb = len(big); per = -(-len(small) // max(nb, 1))
        for f in big:
            f()
            for _ in range(per):
                if small: E.i(small.pop(0))
        while small: E.i(small.pop(0))
    def qk_parts(n, c):
        r = KF + 8*(n % 2); d = S[n % 2]
        def a():
            E.wait_lg(("k", n))
            E.i(f"v_mfma_f32_32x32x16_bf16 v[{d}:{d+15}], v[{r}:{r+3}], v[{QF}:{QF+3}], {c}")
        def b_():
            E.i(f"v_mfma_f32_32x32x16_bf16 v[{d}:{d+15}], v[{r+4}:{r+7}], v[{QF+4}:{QF+7}], v[{d}:{d+15}]")
            if n + 2 < 9: rdk(n + 2)
        return [a, b_]
    pads = []
    def exit_if_invalid(b, target):
        Lp = E.newlabel("pad"); pads.append((Lp, target))
        E.i(f"s_cmp_lt_u32 s{sTQ}, {16 - 2*b}"); E.branch_nf(f"s_cbranch_scc1 {Lp}")
    def merge():
        Lf = E.newlabel("fv"); pads.append((Lf, None))
        E.i(f"s_cmp_lt_u32 s{sTQ}, 16"); E.branch_nf(f"s_cbranch_scc1 {Lf}")
        E.raw(f"{Lf}_r:")
        for r in range(16): E.i(f"v_cndmask_b32 v{S[1]+r}, v{S[0]+r}, v{S[1]+r}, s[{MS[r]}:{MS[r]+1}]")
    if "rep2" in OPT:
        E.i("s_mov_b32 s77, 0"); E.label("L_rep2")
    Lp1 = E.newlabel("p1done")
    rdk(0); rdk(1)
    for f in qk_parts(0, "0") + qk_parts(1, "0"): f()
    merge()
    for n in range(1, 9):
        d = S[n % 2]
        if n >= 2: exit_if_invalid(order[n], Lp1)
        sm = []
        for j in range(0, 16, 4):
            if n == 1 and j == 0:
                sm += [f"v_max_f32 v{M0_}, v{d}, v{d+1}", f"v_max_f32 v{M1_}, v{d+2}, v{d+3}"]
            else:
                sm += [f"v_max3_f32 v{M0_}, v{d+j}, v{d+j+1}, v{M0_}", f"v_max3_f32 v{M1_}, v{d+j+2}, v{d+j+3}, v{M1_}"]
        weave(qk_parts(n + 1, "0") if n + 1 < 9 else [], sm)
        WPQ[n - 1]()
    E.label(Lp1)
    E.i("s_waitcnt lgkmcnt(0)"); E.lg = []
    rdk(0); rdk(1)
    E.i(f"v_max_f32 v{M0_}, v{M0_}, v{M1_}")
    E.i(f"v_mov_b32 v{M1_}, v{M0_}"); E.i(f"v_permlane32_swap_b32 v{M0_}, v{M1_}"); E.i(f"v_max_f32 v{M0_}, v{M0_}, v{M1_}")
    for r in range(16): E.i(f"v_sub_f32 v{NM+r}, 0, v{M0_}")
    vT1, vT2 = 30, 31
    def rdv(b, slot):
        for ks in range(2):
            tb = 2*b + ks
            E.i(f"v_mad_u32_u24 v{vT1}, v{VS}, {tb}, v{VA}"); E.i(f"v_mad_u32_u24 v{vT2}, v{VS}, {tb}, v{VA2}")
            r = VF + 8*slot + 4*ks
            E.i(f"ds_read_b64_tr_b16 v[{r}:{r+1}], v{vT1}", tag=("v", b)); E.i(f"ds_read_b64_tr_b16 v[{r+2}:{r+3}], v{vT2}", tag=("v", b))
    def pv_parts(b, slot, P, first, nxt=None):
        def mk(ks):
            def f():
                if ks == 0: E.wait_lg(("v", b))
                r = VF + 8*slot + 4*ks
                c = "0" if (first and ks == 0) else f"v[{OA}:{OA+15}]"
                E.i(f"v_mfma_f32_32x32x16_bf16 v[{OA}:{OA+15}], v[{r}:{r+3}], v[{P+4*ks}:{P+4*ks+3}], {c}")
                if ks == 1 and nxt is not None: rdv(nxt, slot)
            return f
        return [mk(0), mk(1)]
    nm = f"v[{NM}:{NM+15}]"
    Lp2 = E.newlabel("p2done")
    PF0 = 148
    for f in qk_parts(0, nm) + qk_parts(1, nm): f()
    rdv(0, 0); rdv(8, 1)
    merge()
    pend = []
    tails = []
    for n in range(1, 9):
        d = S[n % 2]; b = order[n]; P = PP + 8*(n % 2)
        if n >= 2:
            Lt = E.newlabel("p2t"); tails.append((Lt, n - 1))
            exit_if_invalid(b, Lt)
        sm = [f"v_exp_f32 v{d+j}, v{d+j}" for j in range(16)]
        weave((qk_parts(n + 1, nm) if n + 1 < 9 else []) + pend, sm)
        WPQ[8 + 2*(n-1)]()
        for j in range(8): E.i(f"v_cvt_pk_bf16_f32 v{P+j}, v{d+2*j}, v{d+2*j+1}")
        WPQ[9 + 2*(n-1)]()
        if n == 1:
            for j in range(8): E.i(f"v_bfi_b32 v{PF0+j}, v{BM+j}, 0, v{P+j}")
            for j in range(8): E.i(f"v_and_b32 v{P+j}, v{BM+j}, v{P+j}")
            pend = pv_parts(0, 0, PF0, True, order[2]) + pv_parts(8, 1, P, False, order[3])
        else:
            pend = pv_parts(b, n % 2, P, False, order[n + 2] if n + 2 < 9 else None)
    WPQ[24]()
    for f in pend: f()
    E.branch(f"s_branch {Lp2}")
    for Lp, target in pads:
        E.pad_label(Lp)
        if target is None:
            for r in range(16): E.i(f"v_mov_b32 v{S[0]+r}, {NEG:#x}")
            E.branch(f"s_branch {Lp}_r")
        else: E.branch(f"s_branch {target}")
    for Lt, m in tails:
        E.label(Lt)
        E.i("s_waitcnt lgkmcnt(0)"); E.lg = []
        P = PP + 8*(m % 2)
        parts = (pv_parts(0, 0, PF0, True) + pv_parts(8, 1, P, False)) if m == 1 else pv_parts(order[m], m % 2, P, False)
        for f in parts: f()
        E.branch(f"s_branch {Lp2}_w")
    E.label(f"{Lp2}_w")
    for f in WPQ: f()
    E.label(Lp2)
    if "rep2" in OPT:
        E.i("s_waitcnt lgkmcnt(0)"); E.lg = []
        E.i("s_cmp_eq_u32 s77, 1"); E.branch("s_cbranch_scc1 L_rep2_done")
        stamp(E, 12, 30); stamp(E, 13, 30, wave=4)
        E.i("s_barrier"); stamp(E, 37, 30)
        E.i("s_mov_b32 s77, 1"); E.branch("s_branch L_rep2")
        E.label("L_rep2_done")
    stamp(E, 9, 30); stamp(E, 11, 30, wave=4)
    E.i("s_lshr_b32 s52, s3, 2"); E.i("s_lshl_b32 s52, s52, 2"); E.i(f"s_add_u32 s52, s52, {CNT + 8}")
    E.i("s_waitcnt lgkmcnt(0)"); E.lg = []
    E.i("v_mov_b32 v30, s52"); E.i("v_mov_b32 v31, 1"); E.i("s_mov_b64 exec, 1"); E.i("ds_add_u32 v30, v31"); E.i("s_mov_b64 exec, -1")
    E.i(f"v_rcp_f32 v{M0_}, v{OA+12}")
    for r in range(12): E.i(f"v_mul_f32 v{OA+r}, v{OA+r}, v{M0_}")
    for j in range(6): E.i(f"v_cvt_pk_bf16_f32 v{PP+j}, v{OA+2*j}, v{OA+2*j+1}")
    for j in range(6): E.i(f"v_min_u32 v{PP+j}, s{sM1}, v{PP+j}")
    E.i(f"v_permlane32_swap_b32 v{PP}, v{PP+2}"); E.i(f"v_permlane32_swap_b32 v{PP+1}, v{PP+3}")
    E.i(f"s_lshl_b32 s52, s{sHD}, 9"); E.i(f"s_add_u32 s52, s52, s{sOo}")
    E.i(f"s_lshl_b32 s53, s{sHD}, 7"); E.i(f"s_add_u32 s53, s53, s{sOo}"); E.i("s_add_u32 s53, s53, 16384")
    E.i(f"buffer_store_dwordx4 v[{PP}:{PP+3}], v{vO1}, {WSR}, s52 offen{SC}", tag="st")
    E.i("s_mov_b32 exec_hi, 0")
    E.i(f"buffer_store_dwordx2 v[{PP+4}:{PP+5}], v{vO2}, {WSR}, s53 offen{SC}", tag="st")
    E.i("s_mov_b64 exec, -1")
W4_PRE = int(os.environ.get("W4_PRE", "8"))

def final_sum(E, vPR, nslots, T, off0, vt):
    for half in range(nslots // 4):
        for w in range(4):
            off = off0 + (half*4 + w)*10240
            for g in range(2):
                o = off + g*256
                r = T + 8 + (w*2+g)*4
                if o > 65535:
                    E.i(f"v_add_u32 v{vt}, 40960, v{vPR}"); E.i(f"ds_read_b128 v[{r}:{r+3}], v{vt} offset:{o-40960}")
                else:
                    E.i(f"ds_read_b128 v[{r}:{r+3}], v{vPR} offset:{o}")
        E.wait_lg()
        for j in range(8):
            g, b = j // 4, j % 4
            sr = [T + 8 + (w*2+g)*4 + b for w in range(4)]
            E.i(f"v_add_f32 v{sr[0]}, v{sr[0]}, v{sr[1]}"); E.i(f"v_add_f32 v{sr[2]}, v{sr[2]}, v{sr[3]}")
            if half == 0: E.i(f"v_add_f32 v{T+j}, v{sr[0]}, v{sr[2]}")
            else:
                E.i(f"v_add_f32 v{T+j}, v{T+j}, v{sr[0]}"); E.i(f"v_add_f32 v{T+j}, v{T+j}, v{sr[2]}")

def add_res_pack(E, T, RES, OUT, vt, clamp):
    for j in range(4):
        E.i(f"v_lshlrev_b32 v{vt}, 16, v{RES+j}"); E.i(f"v_add_f32 v{T+2*j}, v{T+2*j}, v{vt}")
        E.i(f"v_and_b32 v{vt}, 0xffff0000, v{RES+j}"); E.i(f"v_add_f32 v{T+2*j+1}, v{T+2*j+1}, v{vt}")
    for j in range(4):
        E.i(f"v_cvt_pk_bf16_f32 v{OUT+j}, v{T+2*j}, v{T+2*j+1}")
        if clamp: E.i(f"v_min_u32 v{OUT+j}, s{sM1}, v{OUT+j}")

def lane_pr(E, dst, t0, t1):
    E.i(f"v_bfe_u32 v{t0}, v1, 4, 1"); E.i(f"v_mul_u32_u24 v{t0}, 5120, v{t0}"); E.i(f"v_lshrrev_b32 v{t1}, 5, v1"); E.i(f"v_lshl_add_u32 v{t0}, v{t1}, 9, v{t0}")
    E.i(f"v_and_b32 v{t1}, 15, v1"); E.i(f"v_lshl_add_u32 v{dst}, v{t1}, 4, v{t0}")
def lane_xr(E, dst, t0, t1):
    E.i(f"v_and_b32 v{t0}, 31, v1"); E.i(f"v_mul_u32_u24 v{t0}, 1280, v{t0}"); E.i(f"v_lshrrev_b32 v{t1}, 5, v1"); E.i(f"v_lshl_add_u32 v{dst}, v{t1}, 4, v{t0}")

def a4_load(E, i):
    ld_unit(E, AFR + 4*(i % 20), sA4, i, ("a4", i))

AUXB = 0
CSF = 2048
WF4 = 64
def w4_first(E):
    E.i(f"s_sub_u32 s52, s{sW4}, s{sW4+1}")
    for t in range(3): ld_unit(E, WF4 + 4*t, 52, t, "w40")
def s3(E):
    stamp(E, 14, 35); stamp(E, 36, 35, wave=4)
    LG1, LJ = E.newlabel("s3g1"), E.newlabel("s3j")
    E.i("s_cmp_ge_u32 s3, 4"); E.branch(f"s_cbranch_scc1 {LG1}")
    E.vm = []
    vPW, vM, vPR, vXR = 4, 5, 8, 9
    RES = 12
    T = 68
    E.i("s_mul_i32 s52, s3, 10240"); E.i(f"s_add_u32 s52, s52, {SCR}"); E.i(f"v_add_u32 v{vPW}, s52, v2")
    lane_pr(E, vPR, 6, 7); lane_xr(E, vXR, 6, 7)
    E.i(f"v_add_u32 v{vPR}, s{sW4+1}, v{vPR}"); E.i(f"v_add_u32 v{vPR}, {SCR}, v{vPR}")
    E.i(f"s_lshr_b32 s52, s{sW4+1}, 5"); E.i(f"v_add_u32 v{vXR}, s52, v{vXR}")
    E.i(f"s_mul_i32 s52, s{sRB3}, 40960"); E.i(f"s_mul_i32 s53, s{sCT3}, 160"); E.i("s_add_u32 s52, s52, s53"); E.i("s_add_u32 s53, s52, 1310720")
    for ph in range(2):
        E.i(f"buffer_load_dwordx4 v[{RES+8*ph}:{RES+8*ph+3}], v{vXR}, s[{SRD_X}:{SRD_X+3}], s{52+ph} offen", tag="res")
        E.i(f"buffer_load_dwordx4 v[{RES+8*ph+4}:{RES+8*ph+7}], v{vXR}, s[{SRD_X}:{SRD_X+3}], s{52+ph} offen offset:128", tag="res")
    sHW = 67
    E.i(f"s_mul_i32 s{sHW}, s{sRB3}, 40960"); E.i(f"s_mul_i32 s53, s{sCT3}, 5120"); E.i(f"s_add_u32 s{sHW}, s{sHW}, s53"); E.i(f"s_add_u32 s{sHW}, s{sHW}, s{sW4+1}"); E.i(f"s_add_u32 s{sHW}, s{sHW}, {HF}")
    E.i(f"s_add_u32 s{sHW+1}, s{sHW}, {32*40960}")
    for ph in range(2):
        if ph == 0: probe_o(E, 0, 6, 7, lambda: a3_all(E, 0))
        Lb = E.newlabel("s3v")
        E.label(Lb)
        for k in range(5):
            E.wait_vm(("a3", ph, k))
            for u in range(2):
                af = A3[ph] + (2*k+u)*4
                for nt in range(5):
                    a = ACC3 + (u*5+nt)*4; wf = W3R + (k*5+nt)*4
                    c = "0" if k == 0 else f"v[{a}:{a+3}]"
                    E.i(f"v_mfma_f32_16x16x32_bf16 v[{a}:{a+3}], v[{wf}:{wf+3}], v[{af}:{af+3}], {c}")
                maxtree(E, vM, range(af, af+4), k == 0 and u == 0)
        check_retry(E, vM, Lb, lambda: (probe_o(E, ph, 6, 7, None, 6), a3_all(E, ph)))
        stamp(E, 15 + 3*ph, 6)
        if ph == 0: gwait(E, 2, 4, 6, 7)
        else: gwait(E, 0, 4*GB[0], 6, 7)
        if ph == 1: hst(E, 0)
        for j in range(10): E.i(f"ds_write_b128 v{vPW}, v[{ACC3+4*j}:{ACC3+4*j+3}] offset:{j*1024}")
        GB[0] += 1; garrive(E, 0, 6, 7)
        if ph == 0: a3_all(E, 1)
        gwait(E, 0, 4*GB[0], 6, 7)
        stamp(E, 16 + 3*ph, 6)
        E.wait_vm("res")
        for unit in range(2):
            Lu = None
            if unit == 1:
                Lu = E.newlabel("fin4"); E.i("s_cmp_lg_u32 s3, 0"); E.branch(f"s_cbranch_scc1 {Lu}")
                cm = side(E); cm.__enter__()
            final_sum(E, vPR, 4, T, unit*4096, 6)
            add_res_pack(E, T, RES + 8*ph + 4*unit, 28, 6, True)
            if unit == 0: E.i(f"buffer_store_dwordx4 v[28:31], v2, {WSR}, s{sHW+ph} offen{SC}", tag="st")
            else:
                E.i(f"s_add_u32 s52, s{sHW+ph}, 4096"); E.i(f"buffer_store_dwordx4 v[28:31], v2, {WSR}, s52 offen{SC}")
            if unit == 0:
                E.i(f"v_add_f32 v32, v{T}, v{T+1}"); E.i(f"v_mul_f32 v33, v{T}, v{T}"); E.i(f"v_mul_f32 v35, v{T+1}, v{T+1}"); E.i(f"v_add_f32 v34, v{T+2}, v{T+3}")
                for j in range(2, 8): E.i(f"v_fmac_f32 v{33 if j&1 else 35}, v{T+j}, v{T+j}")
                for j in range(4, 8): E.i(f"v_add_f32 v{32 if j&1 else 34}, v{32 if j&1 else 34}, v{T+j}")
            else:
                for j in range(8):
                    E.i(f"v_fmac_f32 v{33 if j&1 else 35}, v{T+j}, v{T+j}"); E.i(f"v_add_f32 v{32 if j&1 else 34}, v{32 if j&1 else 34}, v{T+j}")
                cm.__exit__(); E.label(Lu)
        E.i("v_add_f32 v32, v32, v34"); E.i("v_add_f32 v33, v33, v35")
        E.i("v_mov_b32 v34, v32"); E.i("v_mov_b32 v35, v33")
        E.i("v_permlane32_swap_b32 v32, v34"); E.i("v_permlane32_swap_b32 v33, v35")
        E.i("v_add_f32 v32, v32, v34"); E.i("v_add_f32 v33, v33, v35")
        E.i("v_and_b32 v10, 31, v1"); E.i("v_lshlrev_b32 v10, 3, v10"); E.i(f"s_lshr_b32 s52, s{sW4+1}, 2"); E.i(f"s_add_u32 s52, s52, {AUXB + ph*1024}"); E.i("v_add_u32 v34, s52, v10")
        E.i("ds_write_b64 v34, v[32:33]")
        garrive(E, 0, 6, 7); GB[0] += 1
        stamp(E, 17 + 3*ph, 6)
    for j in range(W5_PRE): ld_unit(E, W5reg(j), sW5, j, ("w5", j))
    gwait(E, 0, 4*GB[0], 6, 7)
    hst(E, 1)
    G0_DONE = 4*GB[0]
    gwait(E, 1, 12, 6, 7)
    E.i(f"s_setprio {G0_PRIO}")
    q = [(("w5", j), (lambda j=j: ld_unit(E, W5reg(j), sW5, j, ("w5", j)))) for j in range(W5_PRE, 22)]
    s4(E, 1, q)
    E.branch(f"s_branch {LJ}")
    E.label(LG1)
    E.vm = []; E.lg = []
    gwait(E, 3, 4, 6, 7)
    for i in range(7): w4_unit(E, 90 + 4*i)
    G1W5 = True
    E.i("v_lshrrev_b32 v8, 1, v2"); E.i(f"s_mul_i32 s52, s{sW4+1}, 120"); E.i(f"s_mul_i32 s53, s{sCG4}, 384"); E.i("s_add_u32 s52, s52, s53"); E.i(f"s_add_u32 s52, s52, {CSP4}")
    for j in range(10):
        E.i(f"buffer_load_dwordx2 v[{16+2*j}:{17+2*j}], v8, {WSR}, s52 offen", tag="cs")
        E.i("s_add_u32 s52, s52, 12288")
    E.wait_vm("cs")
    for j in range(1, 10):
        E.i(f"v_add_f32 v16, v16, v{16+2*j}"); E.i(f"v_add_f32 v17, v17, v{17+2*j}")
    E.i(f"s_lshr_b32 s52, s{sW4+1}, 1"); E.i(f"s_add_u32 s52, s52, {CSX}"); E.i("v_add_u32 v9, s52, v8")
    E.i("ds_write_b64 v9, v[16:17]")
    gbar(E, 1, 6, 7)
    E.i(f"v_add_u32 v9, {CSX}, v8")
    for w in range(4): E.i(f"ds_read_b64 v[{16+2*w}:{17+2*w}], v9 offset:{w*512}")
    E.wait_lg()
    for w in range(1, 4):
        E.i(f"v_add_f32 v16, v16, v{16+2*w}"); E.i(f"v_add_f32 v17, v17, v{17+2*w}")
    E.i(f"ds_write_b64 v8, v[16:17] offset:{CSF}")
    gbar(E, 1, 6, 7)
    Lq = E.newlabel("w4q"); E.i("s_cmp_ge_u32 s3, 6"); E.branch(f"s_cbranch_scc1 {Lq}")
    with side(E): w4_unit(E, 118)
    E.label(Lq)
    E.i("s_waitcnt vmcnt(0)"); E.vm = []
    gbar(E, 1, 6, 7)
    for j in range(22):
        ld_unit(E, W5reg(j), sW5, j, ("w5", j))
        if j >= 5: E.wait_vm(("w5", j - 5))
    s4(E, 0, [])
    gwait(E, 0, G0_DONE, 12, 13)
    E.label(LJ)
    E.vm = ["st"]; E.lg = []

def hst(E, ph):
    Ls = E.newlabel("hst")
    E.i("s_cmp_lg_u32 s3, 3"); E.branch(f"s_cbranch_scc1 {Ls}")
    with side(E):
        E.i(f"v_add_u32 v11, {AUXB + ph*1024}, v10")
        for j in range(4): E.i(f"ds_read_b64 v[{148+2*j}:{149+2*j}], v11 offset:{j*256}")
        E.i("s_waitcnt lgkmcnt(0)")
        for j in range(1, 4):
            E.i(f"v_add_f32 v148, v148, v{148+2*j}"); E.i(f"v_add_f32 v149, v149, v{149+2*j}")
        E.i(f"v_min_u32 v148, s{sM1}, v148"); E.i(f"v_min_u32 v149, s{sM1}, v149")
        E.i(f"s_lshl_b32 s52, s{sRB3}, 11"); E.i(f"s_lshl_b32 s53, s{sCT3}, 8"); E.i("s_add_u32 s52, s52, s53"); E.i(f"s_add_u32 s52, s52, {HSTB + ph*32*2048}")
        E.i("s_mov_b32 exec_hi, 0")
        E.i(f"buffer_store_dwordx2 v[148:149], v10, {WSR}, s52 offen{SC}")
        E.i("s_mov_b64 exec, -1")
    E.label(Ls)
W5_PRE = int(os.environ.get("W5_PRE", "22"))
WP_PRE = int(os.environ.get("WP_PRE", "8"))
A3B_LATE = int(os.environ.get("A3B_LATE", "1"))
A5_AT = int(os.environ.get("A5_AT", "40"))
G0_PRIO = int(os.environ.get("G0_PRIO", "0"))
S4_INIT = int(os.environ.get("S4_INIT", "8"))
S4_FIRST = 5
WP_FIRST = int(os.environ.get("WP_FIRST", "14"))
W4_S2 = int(os.environ.get("W4_S2", "10"))
F1_AT = int(os.environ.get("F1_AT", "6"))

vA5 = 7
def a5_load(E, ph, f):
    k, u = f // 2, f % 2
    r = A5[ph](f); off = k*2048 + u*256
    E.i(f"s_add_u32 s100, s{sA5+ph}, {off - off % 4096}")
    E.i(f"buffer_load_dwordx4 v[{r}:{r+3}], v{vA5}, {WSR}, s100 offen offset:{off % 4096}{SC}", tag=("a5", ph, f))

def a4_touch(E, va, vd):
    E.i(f"s_and_b32 s52, s{sCG4}, 7"); E.i("s_lshl_b32 s52, s52, 7"); E.i(f"s_add_u32 s52, s52, s{sA4}"); E.i("s_add_u32 s52, s52, 8192")
    E.i(f"v_and_b32 v{va}, 31, v1"); E.i(f"v_lshlrev_b32 v{va}, 10, v{va}")
    E.i(f"buffer_load_dword v{vd}, v{va}, {WSR}, s52 offen{SC}")

def s4(E, g, q0):
    vWB, vWB2, vCSR, vM = 3, 4, 6, 5
    ST = 8; SX, SXX = 8, 9
    ACC = 16; WF = WF4
    stamp(E, 21 if g == 0 else 24, 15, wave=4*(1-g))
    if g == 0: E.i("s_setprio 1")
    E.i(f"v_add_u32 v{vWB2}, 61440, v2")
    E.i("v_lshrrev_b32 v8, 5, v1"); E.i("v_lshlrev_b32 v8, 4, v8"); E.i(f"v_add_u32 v{vCSR}, {CSF}, v8")
    E.i("v_lshrrev_b32 v8, 4, v1"); E.i("v_and_b32 v9, 15, v1"); E.i("v_lshlrev_b32 v8, 9, v8"); E.i(f"v_lshl_add_u32 v{vA5}, v9, 4, v8")
    K1, K2 = 78, 79
    k1 = -2.0 * 0.7978845608028654 * 1.4426950408889634
    E.i(f"s_mov_b32 s{K1}, {f2u(k1):#x}"); E.i(f"s_mov_b32 s{K2}, {f2u(k1*0.044715):#x}")
    def st_loads():
        E.i(f"v_lshrrev_b32 v{ST+6}, 1, v2")
        for i in range(4):
            E.i(f"buffer_load_dwordx2 v[{ST+2*i}:{ST+2*i+1}], v{ST+6}, {WSR}, s{sHS} offen offset:{i*512}{SC}", tag="hst")
    w4_first(E)
    probe_h(E, 8, 9, lambda: [a4_load(E, i) for i in range(S4_INIT)])
    if "notouch" not in OPT: a4_touch(E, 8, 9)
    Lb = E.newlabel("s4v"); Lh = E.newlabel("s4h")
    E.label(Lb)
    E.bg_period = 0
    def rd(i):
        for t in range(3):
            r = WF + (i%2)*12 + 4*t
            o = (i*3+t)*1024
            if o < 61440: E.i(f"ds_read_b128 v[{r}:{r+3}], v2 offset:{o}", tag=("w", i))
            else: E.i(f"ds_read_b128 v[{r}:{r+3}], v{vWB2} offset:{o-61440}", tag=("w", i))
    sched = [[] for _ in range(41)]
    nxt = S4_INIT
    for i in range(40):
        for _ in range(2 if nxt < 20 else 1):
            if nxt < 40 and nxt - 20 < i:
                sched[i].append(lambda n=nxt: a4_load(E, n)); nxt += 1
    assert nxt == 40
    q = list(q0)
    for n, (tg, fn) in enumerate(q): sched[min((8 if g else 18) + n, 40)].append(fn)
    if g == 1:
        for f in range(12): sched[A5_AT + f if A5_AT + f < 40 else 40].append(lambda f=f: a5_load(E, 0, f))
        for n in range(22, 30): sched[33 + n - 22].append(lambda n=n: ld_unit(E, W5reg(n), sW5, n, ("w5", n)))
    sched[30].append(st_loads)
    for i in range(40):
        if i + 1 < 40: rd(i + 1)
        E.wait_vm(("a4", i))
        if i > 0: E.wait_lg(("w", i))
        af = AFR + 4*(i % 20)
        ops = list(sched[i])
        for t in range(3):
            r = WF + (i%2)*12 + 4*t; a = ACC + 16*t
            c = "0" if i == 0 else f"v[{a}:{a+15}]"
            E.i(f"v_mfma_f32_32x32x16_bf16 v[{a}:{a+15}], v[{r}:{r+3}], v[{af}:{af+3}], {c}")
            if t == 0: maxtree(E, vM, range(af, af+4), i == 0)
            if ops: ops.pop(0)()
        for o in ops: o()
        if i % 5 == 4 or i == 0: checkpoint(E, vM, Lh)
        if i in (0, 9, 19, 29): stamp(E, 53 + 5*g + (i+1)//10, 3, wave=4*(1-g))
    def reissue():
        for i in range(S4_INIT): a4_load(E, i)
        w4_first(E)
    handler(E, Lh, Lb, reissue)
    stamp(E, 22 if g == 0 else 25, 87, wave=4*(1-g))
    for o in sched[40]: E.bg_push("x", o)
    if g == 0:
        for n in range(22, 30): E.bg_push(("w5", n), lambda n=n: ld_unit(E, W5reg(n), sW5, n, ("w5", n)))
    E.bg_period = BGP
    Ls = E.newlabel("s4st")
    E.wait_vm("hst")
    E.label(Ls)
    E.bg_lock += 1
    maxtree(E, vM, range(ST, ST+8), True)
    check_retry(E, vM, Ls, st_loads)
    E.bg_lock -= 1
    E.i(f"v_add_f32 v{ST}, v{ST}, v{ST+2}"); E.i(f"v_add_f32 v{ST+1}, v{ST+1}, v{ST+3}")
    E.i(f"v_add_f32 v{ST+4}, v{ST+4}, v{ST+6}"); E.i(f"v_add_f32 v{ST+5}, v{ST+5}, v{ST+7}")
    E.i(f"v_add_f32 v{ST}, v{ST}, v{ST+4}"); E.i(f"v_add_f32 v{ST+1}, v{ST+1}, v{ST+5}")
    E.i(f"v_mov_b32 v{ST+2}, v{ST}"); E.i(f"v_mov_b32 v{ST+3}, v{ST+1}")
    E.i(f"v_permlane32_swap_b32 v{ST}, v{ST+2}"); E.i(f"v_permlane32_swap_b32 v{ST+1}, v{ST+3}")
    E.i(f"v_add_f32 v{ST}, v{ST}, v{ST+2}"); E.i(f"v_add_f32 v{ST+1}, v{ST+1}, v{ST+3}")
    stats_math(E, SX, SXX)
    E.i(f"v_mov_b32 v10, s{K1}")
    for t in range(3):
        a = ACC + 16*t; C = WF; G = WF + 16
        for q_ in range(4): E.i(f"ds_read_b128 v[{C+4*q_}:{C+4*q_+3}], v{vCSR} offset:{t*128 + q_*32}")
        E.wait_lg()
        for r in range(16): E.i(f"v_fma_f32 v{a+r}, v{SX}, v{C+r}, v{a+r}")
        for r in range(16): E.i(f"v_mul_f32 v{a+r}, v{SXX}, v{a+r}")
        for r in range(8): E.i(f"v_mul_f32 v{G+r}, v{a+r}, v{a+r}")
        for r in range(8): E.i(f"v_fma_f32 v{G+r}, v{G+r}, s{K2}, v10")
        for r in range(8): E.i(f"v_mul_f32 v{G+r}, v{G+r}, v{a+r}")
        for r in range(8): E.i(f"v_exp_f32 v{G+r}, v{G+r}")
        for r in range(8): E.i(f"v_mul_f32 v{a+r}, v{a+r}, v{a+8+r}")
        for r in range(8): E.i(f"v_add_f32 v{G+r}, 1.0, v{G+r}")
        for r in range(8): E.i(f"v_rcp_f32 v{G+r}, v{G+r}")
        for r in range(8): E.i(f"v_mul_f32 v{a+r}, v{a+r}, v{G+r}")
        for r in range(4):
            E.i(f"v_cvt_pk_bf16_f32 v{a+8+r}, v{a+2*r}, v{a+2*r+1}"); E.i(f"v_min_u32 v{a+8+r}, s{sM1}, v{a+8+r}")
        E.i(f"buffer_store_dwordx4 v[{a+8}:{a+11}], v2, {WSR}, s{sHH} offen offset:{t*1024}{SC}", tag="st")
    E.bg_flush()
    if g == 0:
        E.i("s_setprio 0")
        probe_hh(E, 0, 8, 9, None, 6)
        for f in range(12): a5_load(E, 0, f)
    stamp(E, 23 if g == 0 else 26, 87, wave=4*(1-g))
G1_SLEEP = int(os.environ.get("G1_SLEEP", "8"))
G0_SLEEP = int(os.environ.get("G0_SLEEP", "8"))

def s4_rep(E):
    ACC = 16; WF = WF4
    for variant in range(3):
        E.i("s_waitcnt vmcnt(0) lgkmcnt(0)"); E.vm = []; E.lg = []
        E.i("s_barrier"); stamp(E, 53 + 2*variant, 15)
        def rd(i):
            for t in range(3):
                r = WF + (i%2)*12 + 4*t
                o = (max(i,1)*3+t)*1024
                if o < 61440: E.i(f"ds_read_b128 v[{r}:{r+3}], v2 offset:{o}", tag=("w", i))
                else: E.i(f"ds_read_b128 v[{r}:{r+3}], v4 offset:{o-61440}", tag=("w", i))
        if variant >= 1:
            for i in range(20): a4_load(E, i)
        rd(0)
        for i in range(40):
            if i + 1 < 40: rd(i + 1)
            E.wait_vm(("a4", i)); E.wait_lg(("w", i))
            af = AFR + 4*(i % 20)
            for t in range(3):
                r = WF + (i%2)*12 + 4*t; a = ACC + 16*t
                if "m16" in OPT:
                    af2 = AFR + 4*((i+1) % 20); a2 = a + 8*(i%2)
                    E.i(f"v_mfma_f32_16x16x32_bf16 v[{a2}:{a2+3}], v[{r}:{r+3}], v[{af}:{af+3}], v[{a2}:{a2+3}]")
                    E.i(f"v_mfma_f32_16x16x32_bf16 v[{a2+4}:{a2+7}], v[{r}:{r+3}], v[{af2}:{af2+3}], v[{a2+4}:{a2+7}]")
                else:
                    E.i(f"v_mfma_f32_32x32x16_bf16 v[{a}:{a+15}], v[{r}:{r+3}], v[{af}:{af+3}], v[{a}:{a+15}]")
                if t == 0 and variant >= 1 and 1 <= i <= 20: a4_load(E, i + 19)
                if t == 1 and variant == 2 and i < 22: ld_unit(E, W5reg(i), sW5, i, ("w5", i))
        E.i("s_barrier"); stamp(E, 54 + 2*variant, 15)

def s5(E):
    ACC = 16; vPW, vPR, vM, XR = 3, 4, 6, 15
    E.bg_period = 0
    lane_pr(E, 5, 12, 13); lane_xr(E, 14, 12, 13)
    E.i("s_mul_i32 s52, s3, 10240"); E.i("s_add_u32 s52, s52, 81920"); E.i(f"v_add_u32 v{vPW}, s52, v2")
    sHB, sOB = 74, 75
    E.i(f"s_mul_i32 s{sHB}, s{sRB3}, 40960"); E.i(f"s_mul_i32 s53, s{sCT3}, 5120"); E.i(f"s_add_u32 s{sHB}, s{sHB}, s53"); E.i(f"s_add_u32 s{sHB}, s{sHB}, {HF}")
    E.i(f"s_mul_i32 s{sOB}, s{sRB3}, 40960"); E.i(f"s_mul_i32 s53, s{sCT3}, 160"); E.i(f"s_add_u32 s{sOB}, s{sOB}, s53")
    def mm(ph):
        Lb = E.newlabel("s5v")
        E.label(Lb)
        for k in range(6):
            E.wait_vm(("a5", ph, 2*k+1))
            for u in range(2):
                af = A5[ph](2*k+u)
                for nt in range(5):
                    a = ACC + (u*5+nt)*4; wf = W5reg(k*5+nt)
                    c = "0" if k == 0 else f"v[{a}:{a+3}]"
                    E.i(f"v_mfma_f32_16x16x32_bf16 v[{a}:{a+3}], v[{wf}:{wf+3}], v[{af}:{af+3}], {c}")
                maxtree(E, vM, range(af, af+4), k == 0 and u == 0)
        check_retry(E, vM, Lb, lambda: probe_hh(E, ph, 12, 13, lambda: [a5_load(E, ph, f) for f in range(12)]))
    def wr():
        for j in range(10): E.i(f"ds_write_b128 v{vPW}, v[{ACC+4*j}:{ACC+4*j+3}] offset:{j*1024}")
        E.wait_lg()
    def res_load(ph, snt, r):
        E.i(f"s_lshl_b32 s52, s{snt}, 10"); E.i(f"s_add_u32 s52, s52, s{sHB}")
        if ph: E.i(f"s_add_u32 s52, s52, {32*40960}")
        E.i(f"buffer_load_dwordx4 v[{r}:{r+3}], v2, {WSR}, s52 offen{SC}", tag="res")
    def fin(ph, snt, r, T):
        E.i(f"s_lshl_b32 s52, s{snt}, 10"); E.i(f"s_add_u32 s52, s52, {81920 if ph == 0 else 0}"); E.i(f"v_add_u32 v{vPR}, s52, v5")
        final_sum(E, vPR, 8, T, 0, 12)
        add_res_pack(E, T, r, T + 8, 12, False)
        E.i(f"s_lshl_b32 s52, s{snt}, 5"); E.i(f"s_add_u32 s52, s52, s{sOB}")
        if ph: E.i("s_add_u32 s52, s52, 1310720")
        E.i(f"buffer_store_dwordx4 v[{T+8}:{T+11}], v14, s[{SRD_OUT}:{SRD_OUT+3}], s52 offen")
    a5b = lambda: [a5_load(E, 1, f) for f in range(12)]
    LG1, LJ = E.newlabel("s5g1"), E.newlabel("s5j")
    RA = AFR + 16
    E.i("s_sub_u32 s76, s3, 3"); E.i("s_max_i32 s76, s76, 0"); E.i("s_min_u32 s77, s3, 4")
    E.i("s_waitcnt vmcnt(0)"); E.vm = []
    mm(0); stamp(E, 28, 12)
    E.i("s_cmp_ge_u32 s3, 4"); E.branch(f"s_cbranch_scc1 {LG1}")
    E.i("s_barrier")
    wr()
    E.branch(f"s_branch {LJ}")
    E.label(LG1)
    wr()
    E.i("s_barrier")
    E.label(LJ)
    res_load(0, 76, RA); res_load(1, 77, 8)
    probe_hh(E, 1, 12, 13, a5b)
    E.i("s_barrier")
    stamp(E, 29, 12)
    L4 = E.newlabel("f4"); E.i("s_cmp_lt_u32 s3, 3"); E.branch(f"s_cbranch_scc1 {L4}")
    with side(E): fin(0, 76, RA, ACC)
    E.label(L4)
    stamp(E, 30, 12, wave=4)
    E.i(f"v_subrev_u32 v{vPW}, 81920, v{vPW}")
    mm(1); stamp(E, 31, 12)
    wr()
    E.i("s_barrier")
    stamp(E, 32, 12)
    Lsk = E.newlabel("s5sk")
    E.i("s_cmp_ge_u32 s3, 5"); E.branch(f"s_cbranch_scc1 {Lsk}")
    with side(E): fin(1, 3, 8, ACC)
    E.label(Lsk)
    stamp(E, 33, 12)

def prologue(E, kn):
    E.raw(f".globl {kn}\n.p2align 8\n.type {kn},@function\n{kn}:")
    E.i("s_cmp_ge_u32 s2, 256")
    E.branch(f"s_cbranch_scc1 L_exit_{kn}")
    E.i("s_load_dwordx16 s[4:19], s[0:1], 0")
    E.i("s_load_dwordx4 s[20:23], s[0:1], 64")
    E.i("s_memrealtime s[96:97]")
    E.i("v_and_b32 v1, 63, v0")
    E.i("v_lshrrev_b32 v2, 6, v0")
    E.i("v_readfirstlane_b32 s3, v2")
    E.i("v_lshlrev_b32 v2, 4, v1")
    E.i(f"s_mov_b32 s{sONE}, 0x3f803f80"); E.i(f"s_mov_b32 s{sRETRY}, 0"); E.i(f"s_mov_b32 s{sM1}, 0xfffffffe")
    E.i("s_waitcnt lgkmcnt(0)")
    E.i(f"s_mov_b32 s{sT0}, s96")
    srd(E, SRD_X, P_X, 2621440)
    srd(E, SRD_W1, P_W1, 2457600)
    srd(E, SRD_WS, P_WS, WS_BYTES)
    srd(E, SRD_OUT, P_OUT, 2621440)
    srd(E, SRD_DBG, P_DBG, 256)
def kdesc(kn):
    return f""".section .rodata,"a"
.p2align 6
.amdhsa_kernel {kn}
  .amdhsa_next_free_vgpr 256
  .amdhsa_next_free_sgpr 102
  .amdhsa_accum_offset 256
  .amdhsa_group_segment_fixed_size 0
  .amdhsa_kernarg_size 80
  .amdhsa_user_sgpr_count 2
  .amdhsa_user_sgpr_kernarg_segment_ptr 1
  .amdhsa_system_sgpr_workgroup_id_x 1
.end_amdhsa_kernel
"""
def build():
    E = Emitter()
    prologue(E, "ka_kernel")
    stamp(E, 0, 31)
    E.i("s_lshl_b32 s52, s2, 3"); E.i("s_or_b32 s52, s52, s3"); E.i("s_cmp_lg_u32 s52, 2047"); E.branch("s_cbranch_scc1 L_nonce_done")
    E.i(f"s_or_b32 s52, s{sT0}, 1"); E.i("s_mov_b64 exec, 1"); E.i("v_mov_b32 v3, s52")
    E.raw(f"  buffer_store_dword v3, off, s[{SRD_DBG}:{SRD_DBG+3}], 0{SC}")
    E.i("s_mov_b64 exec, -1")
    E.label("L_nonce_done")
    E.i("s_cmp_ge_u32 s2, 240"); E.branch("s_cbranch_scc1 L_idle")
    s1(E)
    E.branch("s_branch L_tail")
    E.label("L_idle")
    E.vm = []; E.lg = []
    idle(E)
    E.label("L_tail")
    E.vm = [("s0dma", 0)] + ["st"]*8; E.lg = []
    ka_tail(E)
    if CFG.stamps:
        E.i("s_waitcnt vmcnt(0)"); stamp(E, 3, 31); stamp(E, 4, 31, wave=7)
    E.label("L_exit_ka_kernel")
    E.raw("  s_endpgm")
    prologue(E, "kb_kernel")
    E.vm = []; E.lg = []; E.bg_period = 0
    s2(E)
    s3(E)
    s5(E)
    E.i("s_waitcnt vmcnt(0) lgkmcnt(0)")
    stamp(E, 40, 31)
    E.label("L_exit_kb_kernel")
    E.raw("  s_endpgm")
    E.raw("L_end_of_code:")
    hdr = ("; @launch kernel=ka_kernel grid=(256,1,1) block=(512,1,1) lds=163840\n; @launch kernel=kb_kernel grid=(256,1,1) block=(512,1,1) lds=163840\n"
           ".amdgcn_target \"amdgcn-amd-amdhsa--gfx950\"\n.text\n")
    return hdr + E.text() + kdesc("ka_kernel") + kdesc("kb_kernel")

if __name__ == "__main__":
    mode = sys.argv[2] if len(sys.argv) > 2 else ""
    CFG.stamps = mode == "stamps"; CFG.dbgst = mode == "dbg"
    open(sys.argv[1], "w").write(build())
```

```python
import struct, math, sys, os
from emit import *

NAME = "sequential_preLN__sliding_block__glu_gated_geglu__prompt"
KN = NAME + "_kernel"
QKV = 0x0
OF  = 0x800000
HF  = OF + 2621440
HHF = HF + 2621440
HSTB = HHF + 6291456
CLR0 = HF
W3F = 0x1800000
W4F = 0x1A00000
W5F = 0x1E00000
CS1 = 0x2080000
CSP4 = 0x1780000
XST = 0x20C0000
CSW = 0x2000000
FLG = 0x1400000
FO, FHH, FH, FS = FLG, FLG + 262144, FLG + 524288, FLG + 589824
STAMP = 0x2040000
WS_BYTES = 0x2100000
SRD_X, SRD_W1, SRD_WS, SRD_OUT, SRD_T0, SRD_T1, SRD_DBG = 24, 28, 32, 36, 40, 44, 48
P_X, P_W1, P_WO, P_WG, P_WU, P_WD, P_OUT, P_DBG, P_WS = 4, 6, 8, 12, 14, 16, 18, 20, 22
SC = " sc1"
NEG = 0xff800000
f2u = lambda x: struct.unpack("<I", struct.pack("<f", x))[0]
class CFG:
    stamps = False
    dbgst = False
OPT = set(os.environ.get('OPT', '').split(','))
WSR = f"s[{SRD_WS}:{SRD_WS+3}]"
sONE, sRETRY, sM1, sNONCE, sT0 = 94, 95, 93, 92, 91
S0SCR, MISC = 131072, 159744
SCR = 122880
RETRY_MAX = 20000
BGP = int(os.environ.get("BGP", "80"))

DBG_MAP = {1:1, 44:2, 2:3, 5:4, 10:5, 8:6, 12:7, 13:8, 16:9, 19:10, 21:11, 22:12, 23:13, 29:14, 40:15}
def stamp(E, idx, vr, wave=0):
    if CFG.dbgst:
        if idx not in DBG_MAP or wave != 0: return
        L = E.newlabel("stamp")
        E.bg_lock += 1
        E.i("s_lshl_b32 s98, s2, 3"); E.i("s_or_b32 s98, s98, s3"); E.i(f"s_cmp_lg_u32 s98, {37*8}"); E.branch(f"s_cbranch_scc1 {L}")
        E.i("s_memrealtime s[96:97]"); E.raw("  s_waitcnt lgkmcnt(0)")
        E.i(f"s_sub_u32 s96, s96, s{sT0}")
        E.i("s_mov_b64 exec, 1"); E.i(f"v_mov_b32 v{vr}, s96")
        E.raw(f"  buffer_store_dword v{vr}, off, s[{SRD_DBG}:{SRD_DBG+3}], 0 offset:{4*DBG_MAP[idx]}")
        E.i("s_mov_b64 exec, -1")
        E.label(L); E.bg_lock -= 1
        return
    if not CFG.stamps: return
    L = E.newlabel("stamp")
    E.bg_lock += 1
    E.i(f"s_cmp_lg_u32 s3, {wave}"); E.branch(f"s_cbranch_scc1 {L}")
    E.i("s_memrealtime s[96:97]")
    E.i("s_lshl_b32 s98, s2, 9"); E.i(f"s_add_u32 s98, s98, {STAMP + idx*8}")
    E.raw("  s_waitcnt lgkmcnt(0)")
    E.i("s_mov_b64 exec, 1")
    E.i(f"v_mov_b32 v{vr}, s96")
    E.raw(f"  buffer_store_dword v{vr}, off, {WSR}, s98")
    if "clk" in OPT:
        E.i("s_memtime s[96:97]"); E.raw("  s_waitcnt lgkmcnt(0)"); E.i(f"v_mov_b32 v{vr}, s96")
        E.raw(f"  buffer_store_dword v{vr}, off, {WSR}, s98 offset:4")
    E.i("s_mov_b64 exec, -1")
    E.label(L)
    E.bg_lock -= 1

def srd(E, d, p, nbytes):
    E.i(f"s_mov_b32 s{d}, s{p}")
    E.i(f"s_and_b32 s{d+1}, s{p+1}, 0xffff")
    E.i(f"s_mov_b32 s{d+2}, {nbytes}")
    E.i(f"s_mov_b32 s{d+3}, 0x20000")

def maxtree(E, dst, regs, first):
    regs = list(regs)
    if first:
        a = regs.pop(0); b = regs.pop(0); c = regs.pop(0) if regs else b
        E.i(f"v_max3_u32 v{dst}, v{a}, v{b}, v{c}")
    while regs:
        a = regs.pop(0); b = regs.pop(0) if regs else a
        E.i(f"v_max3_u32 v{dst}, v{a}, v{b}, v{dst}")

class side:
    def __init__(s, E): s.E = E
    def __enter__(s):
        s.sv = (list(s.E.vm), list(s.E.lg)); s.E.bg_lock += 1
    def __exit__(s, *a):
        s.E.vm, s.E.lg = s.sv; s.E.bg_lock -= 1

def retry_tail(E, Lok, Lback, reissue, sleep=4):
    E.i(f"s_add_u32 s{sRETRY}, s{sRETRY}, 1"); E.i(f"s_cmp_gt_u32 s{sRETRY}, {RETRY_MAX}")
    E.branch(f"s_cbranch_scc1 {Lok}")
    E.i(f"s_sleep {sleep}")
    E.i("s_waitcnt vmcnt(0) lgkmcnt(0)")
    reissue()
    E.i("s_waitcnt vmcnt(0)")
    E.branch(f"s_branch {Lback}")

def check_retry(E, vM, Lback, reissue):
    Lok = E.newlabel("ok")
    E.i(f"v_cmp_eq_u32 vcc, -1, v{vM}")
    E.branch(f"s_cbranch_vccz {Lok}")
    with side(E): retry_tail(E, Lok, Lback, reissue)
    E.label(Lok)

def checkpoint(E, vM, Lh):
    E.i(f"v_cmp_eq_u32 vcc, -1, v{vM}")
    E.branch_nf(f"s_cbranch_vccnz {Lh}")

def handler(E, Lh, Lback, reissue):
    Lok = E.newlabel("ok")
    E.branch(f"s_branch {Lok}")
    E.pad_label(Lh)
    with side(E): retry_tail(E, Lok, Lback, reissue)
    E.label(Lok)

def nonce_issue(E, vr):
    E.i(f"buffer_load_dword v{vr}, off, s[{SRD_DBG}:{SRD_DBG+3}], 0{SC}", tag="nonce")
def nonce_get(E, vr):
    L, Lok = E.newlabel("nchk"), E.newlabel("nok")
    E.wait_vm("nonce")
    E.label(L)
    E.i(f"v_readfirstlane_b32 s{sNONCE}, v{vr}")
    E.i(f"s_cmp_lg_u32 s{sNONCE}, 0")
    E.branch(f"s_cbranch_scc1 {Lok}")
    with side(E): retry_tail(E, Lok, L, lambda: nonce_issue(E, vr), 8)
    E.label(Lok)

def flag_issue(E, vr, which, quad=False):
    E.bg_lock += 1
    E.i(f"v_bfe_u32 v{vr}, v1, 2, {4 if quad else 3}"); E.i(f"v_lshlrev_b32 v{vr}, 7, v{vr}")
    E.i(f"v_and_b32 v{vr+1}, 3, v1"); E.i(f"v_lshl_add_u32 v{vr}, v{vr+1}, 4, v{vr}")
    if quad: E.i("s_and_b32 s52, s3, 3"); E.i("s_lshl_b32 s52, s52, 11")
    else: E.i("s_lshl_b32 s52, s3, 10")
    E.i(f"s_add_u32 s52, s52, {FLG + 4*which}")
    E.i(f"buffer_load_dword v{vr}, v{vr}, {WSR}, s52 offen{SC}", tag="flag")
    E.bg_lock -= 1
def flag_check(E, vr, which, quad=False):
    if "noflag" in OPT: return
    L, Lok = E.newlabel("fchk"), E.newlabel("fok")
    E.wait_vm("flag")
    E.label(L)
    E.i(f"v_cmp_ne_u32 vcc, s{sNONCE}, v{vr}")
    E.branch(f"s_cbranch_vccz {Lok}")
    with side(E): retry_tail(E, Lok, L, lambda: flag_issue(E, vr, which, quad))
    E.label(Lok)
def flag_check_n(E, vr, which):
    E.vm = ["flag"]
    flag_check(E, vr, which)
    E.vm = []
def flag_set(E, which, vr):
    L = E.newlabel("fset")
    E.i("s_cmp_lg_u32 s3, 7"); E.branch(f"s_cbranch_scc1 {L}")
    with side(E):
        E.i("s_mov_b64 exec, 1")
        E.i(f"v_mov_b32 v{vr}, s{sNONCE}")
        E.i("s_lshr_b32 s52, s2, 2"); E.i("s_lshl_b32 s52, s52, 7"); E.i("s_and_b32 s53, s2, 3"); E.i("s_lshl_b32 s53, s53, 4"); E.i("s_add_u32 s52, s52, s53"); E.i(f"s_add_u32 s52, s52, {FLG + 4*which}")
        E.i(f"buffer_store_dword v{vr}, off, {WSR}, s52{SC}")
        E.i("s_mov_b64 exec, -1")
    E.label(L)

def stats_math(E, SX, SXX):
    E.i(f"v_mul_f32 v{SX}, 0xbacccccd, v{SX}")
    E.i(f"v_mul_f32 v{SXX}, 0x3acccccd, v{SXX}")
    E.i(f"v_fma_f32 v{SXX}, -v{SX}, v{SX}, v{SXX}")
    E.i(f"v_max_f32 v{SXX}, 0, v{SXX}")
    E.i(f"v_add_f32 v{SXX}, 0x3727c5ac, v{SXX}")
    E.i(f"v_rsq_f32 v{SXX}, v{SXX}")

sHD, sTB2, sKVo, sQo, sOo, sTQ = 80, 81, 82, 83, 84, 79
vD2, vLO1, vLO2 = 93, 94, 95
def s2_scalars(E):
    E.i("s_and_b32 s52, s2, 7"); E.i("s_lshr_b32 s53, s2, 3")
    E.i(f"s_lshl_b32 s{sHD}, s52, 2"); E.i("s_lshr_b32 s54, s53, 3"); E.i(f"s_add_u32 s{sHD}, s{sHD}, s54")
    E.i(f"s_and_b32 s{sTB2}, s53, 7"); E.i(f"s_lshl_b32 s{sTB2}, s{sTB2}, 3")
    E.i("s_lshr_b32 s54, s3, 2"); E.i("s_lshl_b32 s54, s54, 5"); E.i("s_add_u32 s54, s54, 32"); E.i(f"s_add_u32 s54, s54, s{sHD}")
    E.i("s_mul_i32 s54, s54, 81920")
    E.i(f"s_add_u32 s{SRD_T1}, s{P_WS}, s54"); E.i(f"s_addc_u32 s{SRD_T1+1}, s{P_WS+1}, 0"); E.i(f"s_and_b32 s{SRD_T1+1}, s{SRD_T1+1}, 0xffff")
    E.i(f"s_mov_b32 s{SRD_T1+2}, 81920"); E.i(f"s_mov_b32 s{SRD_T1+3}, 0x20000")
    E.i(f"s_and_b32 s{sKVo}, s3, 3"); E.i(f"s_mul_i32 s{sKVo}, s{sKVo}, 3840")
    E.i("s_lshr_b32 s54, s3, 2"); E.i("s_lshl_b32 s54, s54, 6"); E.i("s_and_b32 s55, s3, 3"); E.i("s_lshl_b32 s55, s55, 1"); E.i("s_add_u32 s54, s54, s55"); E.i(f"s_add_u32 s{sTQ}, s54, s{sTB2}")
    E.i(f"s_mul_i32 s{sQo}, s{sHD}, 81920"); E.i(f"s_mul_i32 s55, s{sTQ}, 640"); E.i(f"s_add_u32 s{sQo}, s{sQo}, s55")
    E.i(f"s_mul_i32 s{sOo}, s{sTQ}, 20480"); E.i(f"s_add_u32 s{sOo}, s{sOo}, {OF}")
    E.i(f"s_add_u32 s{sOo+1}, s{sOo}, {64*20480}")
def s2_laneoffs(E, d1, d2, t0, t1):
    E.i(f"v_and_b32 v{t0}, 15, v1"); E.i(f"v_lshrrev_b32 v{t1}, 4, v1")
    E.i(f"v_and_b32 v{d1}, 2, v{t1}"); E.i(f"v_lshlrev_b32 v{d1}, 2, v{d1}"); E.i(f"v_xor_b32 v{d1}, v{d1}, v{t0}"); E.i(f"v_lshlrev_b32 v{d1}, 3, v{d1}"); E.i(f"v_lshl_add_u32 v{d1}, v{t1}, 7, v{d1}")
    E.i(f"v_lshlrev_b32 v{d2}, 3, v{t0}"); E.i(f"v_add_u32 v{d2}, 512, v{d2}")
NKV = 6
def s2_loads(E, QR, ph, vD, l1, l2, ldsbase):
    E.bg_lock += 1
    E.i(f"s_add_u32 s52, s{sTB2}, {64*ph - 16}"); E.i("s_mul_i32 s52, s52, 640"); E.i(f"s_add_u32 s52, s52, s{sKVo}")
    E.i(f"v_add_u32 v{vD}, s52, v2")
    E.i("s_mul_i32 s53, s3, 3840")
    for i in range(4):
        E.i(f"s_add_u32 m0, s53, {ldsbase + i*1024}")
        if i == 3: E.i("s_mov_b32 exec_hi, 0xffff")
        E.i(f"buffer_load_dwordx4 v{vD}, s[{SRD_T1}:{SRD_T1+3}], 0 offen{SC} lds", tag=("kv", ph))
        if i < 3: E.i(f"v_add_u32 v{vD}, 1024, v{vD}")
    E.i("s_mov_b64 exec, -1")
    E.bg_lock -= 1

def o_clears(E, vm1, vt, deltas):
    E.i(f"v_lshrrev_b32 v{vt}, 1, v2")
    for d in deltas:
        for ph in range(2):
            E.i(f"s_sub_u32 s52, s{sOo+ph}, {d}")
            E.i(f"buffer_store_dwordx2 v[{vm1}:{vm1+1}], v{vt}, {WSR}, s52 offen{SC}", tag="oclr")
            E.i("s_mov_b64 exec, 0xffff")
            E.i(f"buffer_store_dwordx2 v[{vm1}:{vm1+1}], v{vt}, {WSR}, s52 offen offset:512{SC}", tag="oclr")
            E.i("s_mov_b64 exec, -1")

NB_IDLE = int(os.environ.get("NB_IDLE", "2"))
N_IDLE_BLOCKS = 128 * NB_IDLE
NB_BUSY = -(-(1640 - N_IDLE_BLOCKS) // 240)
def s0_decode(E, rnd, Lskip):
    if rnd is None:
        E.i(f"s_min_u32 s55, s3, {NB_BUSY-1}")
        E.i(f"s_mul_i32 s52, s2, {NB_BUSY}"); E.i("s_add_u32 s52, s52, s55"); E.i(f"s_add_u32 s52, s52, {N_IDLE_BLOCKS}"); E.i("s_min_u32 s52, s52, 1639")
        E.i("s_lshl_b32 s55, s3, 12"); E.i(f"s_add_u32 s55, s55, {S0SCR}")
    else:
        E.i(f"s_add_u32 s52, s60, {128*rnd}")
        E.i("s_lshl_b32 s55, s3, 14"); E.i(f"s_add_u32 s55, s55, {(rnd % 4) * 4096}")

def s0_issue(E, vt, rnd):
    if "nos0" in OPT: return
    L, L4, L5, LG = [E.newlabel(x) for x in ("s0i", "s0i4", "s0i5", "s0ig")]
    with side(E):
        s0_decode(E, rnd, L)
        E.i(f"v_lshrrev_b32 v{vt}, 3, v1"); E.i(f"v_and_b32 v{vt+1}, 7, v1")
        E.i("s_cmp_ge_u32 s52, 680"); E.branch(f"s_cbranch_scc1 {L4}")
        E.i("s_cmp_ge_u32 s52, 200"); E.branch(f"s_cbranch_scc1 {L5}")
        srd(E, SRD_T0, P_WO, 819200)
        E.i("s_mul_i32 s87, s52, 6554"); E.i("s_lshr_b32 s87, s87, 16")
        E.i("s_mul_i32 s88, s87, 10"); E.i("s_sub_u32 s88, s52, s88"); E.i("s_lshl_b32 s54, s88, 7")
        E.i("s_cmp_ge_u32 s87, 16"); E.branch(f"s_cbranch_scc1 {LG}")
        E.i("s_mul_i32 s53, s87, 51200"); E.i("s_add_u32 s53, s53, s54")
        E.i(f"v_mul_u32_u24 v{vt}, 1280, v{vt}"); E.i(f"v_lshl_add_u32 v{vt}, v{vt+1}, 4, v{vt}")
        for i in range(4):
            E.i(f"s_add_u32 m0, s55, {i*1024}"); E.i(f"s_add_u32 s54, s53, {(20*(i>>1) + 8*(i&1))*1280}")
            E.i(f"buffer_load_dwordx4 v{vt}, s[{SRD_T0}:{SRD_T0+3}], s54 offen lds")
        E.branch(f"s_branch {L}")
        E.label(LG)
        E.i("s_sub_u32 s53, s87, 16"); E.i("s_mul_i32 s53, s53, 204800"); E.i("s_add_u32 s53, s53, s54"); E.i("s_add_u32 s53, s53, 20480")
        E.i(f"v_lshlrev_b32 v{vt+1}, 4, v{vt+1}")
        E.i(f"v_and_b32 v{vt}, 3, v{vt}"); E.i(f"v_mul_u32_u24 v{vt}, 1280, v{vt}"); E.i(f"v_add_u32 v{vt+1}, v{vt+1}, v{vt}")
        E.i(f"v_lshrrev_b32 v{vt}, 5, v1"); E.i(f"v_mul_u32_u24 v{vt}, 25600, v{vt}"); E.i(f"v_add_u32 v{vt}, v{vt}, v{vt+1}")
        for i in range(4):
            E.i(f"s_add_u32 m0, s55, {i*1024}")
            E.i(f"buffer_load_dwordx4 v{vt}, s[{SRD_T0}:{SRD_T0+3}], s53 offen lds")
            if i < 3: E.i("s_add_u32 s53, s53, 51200")
        E.branch(f"s_branch {L}")
        E.label(L5)
        srd(E, SRD_T0, P_WD, 1966080); E.i("s_sub_u32 s52, s52, 200")
        E.i("s_mul_i32 s87, s52, 6554"); E.i("s_lshr_b32 s87, s87, 16")
        E.i("s_mul_i32 s88, s87, 10"); E.i("s_sub_u32 s88, s52, s88")
        E.i("s_mul_i32 s53, s87, 40960"); E.i("s_lshl_b32 s54, s88, 7"); E.i("s_add_u32 s53, s53, s54")
        E.i(f"v_mul_u32_u24 v{vt}, 1280, v{vt}"); E.i(f"v_lshl_add_u32 v{vt}, v{vt+1}, 4, v{vt}")
        for i in range(4):
            E.i(f"s_add_u32 m0, s55, {i*1024}")
            E.i(f"buffer_load_dwordx4 v{vt}, s[{SRD_T0}:{SRD_T0+3}], s53 offen lds")
            if i < 3: E.i("s_add_u32 s53, s53, 10240")
        E.branch(f"s_branch {L}")
        E.label(L4)
        E.i("s_sub_u32 s52, s52, 680")
        E.i("s_mul_i32 s87, s52, 2731"); E.i("s_lshr_b32 s87, s87, 16")
        E.i("s_mul_i32 s88, s87, 24"); E.i("s_sub_u32 s88, s52, s88")
        E.i("s_mul_i32 s53, s87, 49152"); E.i("s_lshl_b32 s54, s88, 7"); E.i("s_add_u32 s53, s53, s54"); E.i("s_add_u32 s54, s53, 24576")
        E.i(f"v_mul_u32_u24 v{vt}, 3072, v{vt}"); E.i(f"v_lshl_add_u32 v{vt}, v{vt+1}, 4, v{vt}")
        for m, p in enumerate((P_WG, P_WU)):
            srd(E, SRD_T0, p, 1966080)
            for i in range(2):
                E.i(f"s_add_u32 m0, s55, {(2*m+i)*1024}")
                E.i(f"buffer_load_dwordx4 v{vt}, s[{SRD_T0}:{SRD_T0+3}], s{53+i} offen lds")
    E.label(L)
    E.vm += [("s0dma", rnd)] * 4

def s0_finish(E, F, vt, rnd):
    if "nos0" in OPT: return
    E.wait_vm(("s0dma", rnd))
    L, L4, L5, LG, LS = [E.newlabel(x) for x in ("s0f", "s0f4", "s0f5", "s0fg", "s0fs")]
    with side(E):
        s0_decode(E, rnd, L)
        E.i("s_mov_b32 s86, 0")
        E.i(f"v_bfe_u32 v{vt+1}, v1, 2, 2")
        E.i("s_cmp_ge_u32 s52, 680"); E.branch(f"s_cbranch_scc1 {L4}")
        E.i("s_cmp_ge_u32 s52, 200"); E.branch(f"s_cbranch_scc1 {L5}")
        E.i("s_mov_b32 s89, 20"); E.i(f"s_mov_b32 s90, {W3F}")
        E.i("s_mul_i32 s87, s52, 6554"); E.i("s_lshr_b32 s87, s87, 16")
        E.i("s_mul_i32 s88, s87, 10"); E.i("s_sub_u32 s88, s52, s88")
        E.i("s_lshr_b32 s53, s87, 2"); E.i("s_add_u32 s53, s53, s87")
        E.i("s_sub_u32 s54, s87, 16"); E.i("s_mul_i32 s54, s54, 5"); E.i("s_add_u32 s54, s54, 4")
        E.i("s_cmp_ge_u32 s87, 16"); E.i("s_cselect_b32 s87, s54, s53")
        E.branch(f"s_branch {LG}")
        E.label(L5)
        E.i("s_sub_u32 s52, s52, 200"); E.i("s_mov_b32 s89, 48"); E.i(f"s_mov_b32 s90, {W5F}")
        E.i("s_mul_i32 s87, s52, 6554"); E.i("s_lshr_b32 s87, s87, 16")
        E.i("s_mul_i32 s88, s87, 10"); E.i("s_sub_u32 s88, s52, s88")
        E.label(LG)
        E.i(f"v_lshrrev_b32 v{vt}, 4, v1"); E.i(f"v_lshl_add_u32 v{vt}, v{vt}, 3, v{vt+1}"); E.i(f"v_lshlrev_b32 v{vt}, 7, v{vt}")
        E.i(f"v_and_b32 v{vt+1}, 3, v1"); E.i(f"v_lshl_add_u32 v{vt}, v{vt+1}, 3, v{vt}")
        for nt in range(4):
            E.i(f"s_lshl_b32 s52, s88, 2"); E.i(f"s_add_u32 s52, s52, {nt}")
            E.i("s_mul_i32 s53, s52, 52"); E.i("s_lshr_b32 s53, s53, 8")
            E.i("s_mul_i32 s54, s53, 5"); E.i("s_sub_u32 s54, s52, s54")
            E.i("s_mul_i32 s53, s53, s89"); E.i("s_add_u32 s53, s53, s87"); E.i("s_mul_i32 s53, s53, 5"); E.i("s_add_u32 s53, s53, s54")
            E.i("s_lshl_b32 s53, s53, 10"); E.i(f"s_add_u32 s{96+nt}, s53, s90")
        E.branch(f"s_branch {LS}")
        E.label(L4)
        E.i("s_sub_u32 s52, s52, 680")
        E.i("s_mul_i32 s87, s52, 2731"); E.i("s_lshr_b32 s87, s87, 16")
        E.i("s_mul_i32 s88, s87, 24"); E.i("s_sub_u32 s88, s52, s88")
        E.i(f"v_lshrrev_b32 v{vt}, 5, v1"); E.i(f"v_lshl_add_u32 v{vt}, v{vt}, 3, v{vt+1}"); E.i(f"v_lshlrev_b32 v{vt}, 7, v{vt}")
        E.i(f"v_bfe_u32 v{vt+1}, v1, 4, 1"); E.i(f"v_lshl_add_u32 v{vt}, v{vt+1}, 11, v{vt}")
        E.i(f"v_and_b32 v{vt+1}, 1, v1"); E.i(f"v_lshl_add_u32 v{vt}, v{vt+1}, 4, v{vt}")
        E.i(f"v_bfe_u32 v{vt+1}, v1, 1, 1"); E.i(f"v_lshl_add_u32 v{vt}, v{vt+1}, 3, v{vt}")
        for nt in range(4):
            E.i(f"s_lshl_b32 s52, s88, 2"); E.i(f"s_add_u32 s52, s52, {nt}")
            E.i("s_mul_i32 s53, s52, 171"); E.i("s_lshr_b32 s53, s53, 9")
            E.i("s_mul_i32 s54, s53, 3"); E.i("s_sub_u32 s54, s52, s54")
            E.i("s_mul_i32 s53, s53, 40"); E.i("s_add_u32 s53, s53, s87"); E.i("s_mul_i32 s53, s53, 3"); E.i("s_add_u32 s53, s53, s54")
            E.i("s_lshl_b32 s53, s53, 10"); E.i(f"s_add_u32 s{96+nt}, s53, {W4F}")
        E.i("s_mov_b32 s86, 1")
        E.label(LS)
        E.i(f"v_add_u32 v{vt}, s55, v{vt}")
        for nt in range(4):
            for h in range(2):
                E.i(f"ds_read_b64_tr_b16 v[{F+4*nt+2*h}:{F+1+4*nt+2*h}], v{vt} offset:{h*512+nt*32}")
        E.i("s_waitcnt lgkmcnt(0)")
        for nt in range(4):
            E.i(f"buffer_store_dwordx4 v[{F+4*nt}:{F+3+4*nt}], v2, {WSR}, s{96+nt} offen{SC}")
        E.i("s_cmp_eq_u32 s86, 0"); E.branch(f"s_cbranch_scc1 {L}")
        for nt in range(4): E.i(f"v_mov_b32 v{F+16+nt}, 0")
        for q in range(4):
            for nt in range(4): E.i(f"v_dot2c_f32_bf16 v{F+16+nt}, s{sONE}, v{F+4*nt+q}")
        for pr in range(2):
            a_, b_ = F+16+2*pr, F+17+2*pr
            E.i(f"v_permlane32_swap_b32 v{a_}, v{b_}")
            E.i(f"v_add_f32 v{a_}, v{a_}, v{b_}")
        E.i(f"v_lshlrev_b32 v{vt}, 2, v1"); E.i("s_lshl_b32 s52, s88, 9"); E.i("s_mul_i32 s53, s87, 12288"); E.i("s_add_u32 s52, s52, s53"); E.i(f"s_add_u32 s52, s52, {CSP4}")
        for pr in range(2):
            E.i(f"buffer_store_dword v{F+16+2*pr}, v{vt}, {WSR}, s52 offen offset:{pr*256}{SC}")
    E.label(L)
    E.vm += ["s0st"] * 4

def code_touch(E, kname, endlabel):
    E.i("v_lshlrev_b32 v5, 7, v1")
    E.flush()
    E.i("s_getpc_b64 s[70:71]")
    E.raw(f"L_pc_{kname}:")
    E.i(f"s_sub_u32 s70, s70, L_pc_{kname}-ka_kernel"); E.i("s_subb_u32 s71, s71, 0")
    E.i("s_lshl_b32 s72, s3, 13"); E.i("v_add_u32 v6, s72, v5")
    E.i(f"v_min_u32 v6, {endlabel}-ka_kernel-4, v6"); E.i("v_and_b32 v6, 0xfffffffc, v6")
    E.i("global_load_dword v7, v6, s[70:71]")

def idle(E):
    E.bg_period = 0
    E.i("s_sub_u32 s60, s2, 240"); E.i("s_lshl_b32 s60, s60, 3"); E.i("s_add_u32 s60, s60, s3")
    E.i("v_lshrrev_b32 v3, 2, v1"); E.i("v_and_b32 v4, 3, v1"); E.i("v_mul_u32_u24 v8, 1280, v3"); E.i("v_lshl_add_u32 v8, v4, 4, v8")
    E.i("s_mul_i32 s61, s60, 20480")
    for j in range(20): E.i(f"buffer_load_dwordx4 v[{96+4*j}:{99+4*j}], v8, s[{SRD_X}:{SRD_X+3}], s61 offen offset:{j*64}", tag=("xs", j))
    code_touch(E, "a", "L_end_of_code")
    nonce_issue(E, 15)
    for r in range(4): E.i(f"v_mov_b32 v{10+r}, 0")
    for j in range(20):
        E.wait_vm(("xs", j))
        for q in range(4):
            E.i(f"v_dot2c_f32_bf16 v{10 + (q&1)}, s{sONE}, v{96+4*j+q}")
            E.i(f"v_dot2c_f32_bf16 v{12 + (q&1)}, v{96+4*j+q}, v{96+4*j+q}")
    E.i("v_add_f32 v16, v10, v11"); E.i("v_add_f32 v17, v12, v13")
    for perm in ("[1,0,3,2]", "[2,3,0,1]"):
        E.i(f"v_add_f32_dpp v16, v16, v16 quad_perm:{perm} row_mask:0xf bank_mask:0xf")
        E.i(f"v_add_f32_dpp v17, v17, v17 quad_perm:{perm} row_mask:0xf bank_mask:0xf")
    stats_math(E, 16, 17)
    nonce_get(E, 15)
    E.i("v_mov_b32 v18, v17"); E.i(f"v_mov_b32 v17, s{sNONCE}"); E.i(f"v_mov_b32 v19, s{sNONCE}")
    E.i("v_lshlrev_b32 v8, 4, v3"); E.i("s_lshl_b32 s61, s60, 8"); E.i(f"s_add_u32 s61, s61, {XST}")
    E.i("v_cmp_eq_u32 vcc, 0, v4"); E.i("s_mov_b64 exec, vcc")
    E.i(f"buffer_store_dwordx4 v[16:19], v8, {WSR}, s61 offen{SC}")
    E.i("s_mov_b64 exec, -1")
    E.i("s_barrier")
    stamp(E, 52, 31)
    for n in range(min(4, NB_IDLE)): s0_issue(E, 8, n)
    for n in range(NB_IDLE):
        s0_finish(E, 32 + 32*(n % 2), 10, n)
        if n + 4 < NB_IDLE: s0_issue(E, 8, n + 4)
    for r in range(4): E.i(f"v_mov_b32 v{20+r}, 0")
    E.i("s_mul_i32 s61, s60, 5120"); E.i(f"s_add_u32 s61, s61, {FLG}"); E.i("s_add_u32 s62, s61, 4096")
    for j in range(5): E.i(f"buffer_store_dwordx4 v[20:23], v2, {WSR}, s{61 + j//4} offen offset:{(j%4)*1024}{SC}")
    stamp(E, 1, 31)
HH_BUSY = int(os.environ.get("HH_BUSY", "5"))
HH_IDLE = (11392 - 1920*HH_BUSY) // 128
assert 1920*HH_BUSY + 128*HH_IDLE == 11392

def ka_tail(E):
    return
    for r in range(4): E.i(f"v_mov_b32 v{20+r}, -1")
    E.i("s_lshl_b32 s52, s2, 3"); E.i("s_add_u32 s52, s52, s3"); E.i("s_mul_i32 s52, s52, 5760"); E.i(f"s_add_u32 s52, s52, {OF}"); E.i("s_add_u32 s53, s52, 4096")
    for t in range(5): E.i(f"buffer_store_dwordx4 v[20:23], v2, {WSR}, s{52 + t//4} offen offset:{(t%4)*1024}{SC}")
    E.i("s_mov_b32 exec_hi, 0xff")
    E.i(f"buffer_store_dwordx4 v[20:23], v2, {WSR}, s53 offen offset:1024{SC}")
    E.i("s_mov_b64 exec, -1")

def s1(E):
    E.i("s_and_b32 s52, s2, 7"); E.i("s_lshr_b32 s53, s2, 3")
    E.i("s_and_b32 s54, s52, 1"); E.i("s_mul_i32 s54, s54, 30"); E.i("s_add_u32 s54, s54, s53")
    sCT, sRB, sRHO, sC, sMT = 56, 57, 58, 59, 60
    E.i(f"s_lshr_b32 s{sCT}, s54, 2")
    E.i("s_and_b32 s55, s54, 3")
    E.i(f"s_lshr_b32 s{sRB}, s52, 1"); E.i(f"s_lshl_b32 s{sRB}, s{sRB}, 2"); E.i(f"s_add_u32 s{sRB}, s{sRB}, s55")
    if "rotl" in OPT:
        E.i(f"s_mul_i32 s{sRHO}, s55, 5"); E.i(f"s_lshr_b32 s{sRHO}, s{sRHO}, 1"); E.i("s_lshr_b32 s61, s52, 1")
    else:
        E.i(f"s_lshr_b32 s{sRHO}, s52, 1"); E.i(f"s_mul_i32 s{sRHO}, s{sRHO}, 5"); E.i(f"s_lshr_b32 s{sRHO}, s{sRHO}, 1")
        E.i("s_and_b32 s53, s52, 1"); E.i("s_mul_i32 s53, s53, 5"); E.i(f"s_add_u32 s{sRHO}, s{sRHO}, s53")
        E.i(f"s_cmp_ge_u32 s{sRHO}, 10"); E.i("s_cselect_b32 s53, 10, 0"); E.i(f"s_sub_u32 s{sRHO}, s{sRHO}, s53")
        E.i("s_mov_b32 s61, s55")
    E.i(f"s_and_b32 s{sC}, s3, 3"); E.i(f"s_lshr_b32 s{sMT}, s3, 2")
    vQO = [16, 17, 18, 19]
    vXo, vWo = 3, 4
    E.i("v_lshrrev_b32 v5, 3, v1"); E.i("s_lshl_b32 s52, s3, 3"); E.i("v_add_u32 v5, s52, v5")
    E.i("v_bfe_u32 v6, v5, 1, 3"); E.i("v_and_b32 v7, 7, v1"); E.i("v_xor_b32 v6, v6, v7")
    E.i("v_mul_u32_u24 v5, 1280, v5"); E.i(f"v_lshl_add_u32 v{vXo}, v6, 4, v5")
    E.i("v_lshrrev_b32 v5, 4, v1")
    E.i("v_lshlrev_b32 v6, 2, v5"); E.i("v_and_b32 v7, 15, v1"); E.i("v_xor_b32 v6, v6, v7")
    E.i("v_add_u32 v5, s52, v5")
    E.i("v_mul_u32_u24 v5, 3840, v5"); E.i(f"v_lshl_add_u32 v{vWo}, v6, 4, v5")
    sXb, sWb, sLX, sLW = 62, 63, 64, 65
    E.i(f"s_mul_i32 s{sXb}, s{sRB}, 81920")
    E.i(f"s_lshl_b32 s{sWb}, s{sCT}, 8")
    E.i(f"s_lshl_b32 s{sLX}, s3, 10"); E.i(f"s_lshl_b32 s{sLW}, s3, 11"); E.i(f"s_add_u32 s{sLW}, s{sLW}, 16384")
    sCH = 66
    def chunk(p):
        E.i(f"s_add_u32 s{sCH+p}, s{sRHO}, {p}")
        if p >= 3:
            E.i(f"s_cmp_ge_u32 s{sCH+p}, 10"); E.i("s_cselect_b32 s52, 10, 0"); E.i(f"s_sub_u32 s{sCH+p}, s{sCH+p}, s52")
    PK = 176
    def dma(p, i, other=0):
        sl = (p % 4) * 32768
        parked = 4 <= p < 4 + NPARK
        dst = f"v[{PK+16*(p-4)+4*i}:{PK+16*(p-4)+4*i+3}], " if parked else ""
        sfx = "" if parked else " lds"
        if i < 2:
            E.i(f"s_lshl_b32 s100, s{sCH+p}, 7"); E.i(f"s_add_u32 s100, s100, s{sXb}")
            if i or other: E.i(f"s_add_u32 s100, s100, {i*1310720 + other*32*1280}")
            if not parked: E.i(f"s_add_u32 m0, s{sLX}, {sl + i*8192 + other*4096}")
            E.i(f"buffer_load_dwordx4 {dst}v{vXo}, s[{SRD_X}:{SRD_X+3}], s100 offen{sfx}", tag=("c", p))
        else:
            E.i(f"s_mul_i32 s100, s{sCH+p}, 245760"); E.i(f"s_add_u32 s100, s100, s{sWb}")
            if i == 3 or other: E.i(f"s_add_u32 s100, s100, {(i-2)*15360 + other*32*3840}")
            if not parked: E.i(f"s_add_u32 m0, s{sLW}, {sl + (i-2)*1024 + other*8192}")
            E.i(f"buffer_load_dwordx4 {dst}v{vWo}, s[{SRD_W1}:{SRD_W1+3}], s100 offen{sfx}", tag=("c", p))
    for p in range(2):
        chunk(p)
        for i in range(4): dma(p, i)
    for p in range(2, 10): chunk(p)
    E.i(f"s_and_b32 s{sC}, s3, 3"); E.i(f"s_lshr_b32 s{sMT}, s3, 2")
    vXa = [[5, 6, 7, 8], [112, 113, 114, 115]]; vWa = [[9, 10, 11, 12], [116, 117, 118, 119]]; vQO = [16, 17, 18, 19]
    E.i("v_and_b32 v20, 31, v1"); E.i(f"s_lshl_b32 s52, s{sMT}, 5"); E.i("v_add_u32 v20, s52, v20")
    E.i("v_bfe_u32 v21, v20, 1, 3"); E.i("v_lshrrev_b32 v22, 5, v1"); E.i("v_xor_b32 v21, v21, v22")
    E.i("v_lshlrev_b32 v20, 7, v20"); E.i("v_lshl_add_u32 v20, v21, 4, v20")
    E.i("v_bfe_u32 v21, v1, 2, 2")
    E.i("v_lshrrev_b32 v22, 5, v1"); E.i("v_lshl_add_u32 v22, v22, 3, v21"); E.i("v_lshlrev_b32 v22, 8, v22")
    E.i(f"v_xor_b32 v21, s{sC}, v21"); E.i("v_lshl_add_u32 v22, v21, 6, v22")
    E.i("v_bfe_u32 v21, v1, 4, 1"); E.i("v_lshl_add_u32 v22, v21, 5, v22")
    E.i("v_and_b32 v21, 3, v1"); E.i("v_lshl_add_u32 v22, v21, 3, v22")
    E.i(f"v_add_u32 v22, 16384, v22")
    for sp in range(4):
        E.i(f"s_add_u32 s52, s{sC}, {sp}"); E.i("s_and_b32 s52, s52, 3")
        E.i("s_lshl_b32 s53, s52, 5"); E.i(f"v_xor_b32 v{vXa[0][sp]}, s53, v20"); E.i(f"v_add_u32 v{vXa[1][sp]}, 65536, v{vXa[0][sp]}")
        E.i("s_lshl_b32 s53, s52, 12"); E.i(f"v_add_u32 v{vWa[0][sp]}, s53, v22"); E.i(f"v_add_u32 v{vWa[1][sp]}, 65536, v{vWa[0][sp]}")
    for i in range(4): dma(2, i)
    sQO = 76
    E.i(f"s_mul_i32 s{sQO}, s{sRB}, 2560"); E.i(f"s_add_u32 s{sQO+1}, s{sQO}, 40960")
    E.i(f"s_lshl_b32 s78, s{sC}, 3"); E.i(f"s_lshl_b32 s53, s{sCT}, 5"); E.i("s_add_u32 s78, s78, s53"); E.i(f"s_lshl_b32 s79, s{sMT}, 1"); E.i("s_mov_b32 s80, 81920")
    FILL = ["v_lshrrev_b32 v20, 5, v1", "v_add_u32 v20, s78, v20", "v_bfe_u32 v21, v1, 4, 1", "v_add_u32 v21, s79, v21", "v_mul_u32_u24 v21, 640, v21", "v_and_b32 v22, 15, v1"]
    for a_ in range(4):
        FILL += [f"v_add_u32 v23, {2*a_}, v20", "v_mul_u32_u24 v24, 0xcccd, v23", "v_lshrrev_b32 v24, 18, v24", "v_mul_u32_u24 v25, 5, v24", "v_sub_u32 v25, v23, v25",
                 "v_mul_lo_u32 v24, v24, s80", "v_add_u32 v24, v24, v21", "v_lshl_add_u32 v24, v25, 7, v24", "v_and_b32 v25, 2, v25", "v_lshlrev_b32 v25, 2, v25", "v_xor_b32 v25, v25, v22",
                 f"v_lshl_add_u32 v{vQO[a_]}, v25, 3, v24"]
    sGRP = 61
    E.i(f"s_lshl_b32 s52, s{sMT}, 2"); E.i(f"s_add_u32 s{sGRP}, s{sGRP}, s52")
    stamp(E, 1, 31)
    ACC = [32, 48]; WFr = 64; XFr = [80, 96]
    SS = [28, 29, 30, 31]; SS2 = [20, 21, 22, 26]
    TX = [128 + i for i in range(16)]
    ks = [(p, sp) for p in range(10) for sp in range(4)]
    def rd(idx):
        p, sp = ks[idx]
        hi = (p % 4) // 2; off = (p % 2) * 32768
        wf = WFr + 4*sp
        E.i(f"ds_read_b64_tr_b16 v[{wf}:{wf+1}], v{vWa[hi][sp]} offset:{off}", tag=("r", idx))
        E.i(f"ds_read_b64_tr_b16 v[{wf+2}:{wf+3}], v{vWa[hi][sp]} offset:{off+1024}", tag=("r", idx))
        for h in range(2):
            E.i(f"ds_read_b128 v[{XFr[h]+4*sp}:{XFr[h]+4*sp+3}], v{vXa[hi][sp]} offset:{off + h*8192}", tag=("r", idx))
    D = 2
    def cs1_loads():
        E.bg_lock += 1
        E.i("v_and_b32 v13, 31, v1"); E.i("v_lshlrev_b32 v13, 3, v13"); E.i("v_lshrrev_b32 v14, 5, v1"); E.i("v_mul_u32_u24 v14, 76800, v14"); E.i("v_add_u32 v13, v13, v14")
        E.i(f"s_lshl_b32 s52, s{sCT}, 10"); E.i(f"s_add_u32 s52, s52, {CS1}"); E.i(f"s_lshl_b32 s53, s{sC}, 8"); E.i("s_add_u32 s52, s52, s53")
        for j in range(5):
            E.i(f"buffer_load_dwordx2 v[{144+2*j}:{145+2*j}], v13, {WSR}, s52 offen{SC}", tag="cs1")
            E.i("s_add_u32 s52, s52, 15360")
        E.i("v_and_b32 v13, 31, v1"); E.i("v_lshlrev_b32 v13, 4, v13"); E.i("v_lshrrev_b32 v14, 5, v1"); E.i("v_lshl_add_u32 v13, v14, 14, v13")
        E.i(f"s_lshl_b32 s52, s{sRB}, 10"); E.i(f"s_lshl_b32 s53, s{sMT}, 9"); E.i("s_add_u32 s52, s52, s53"); E.i(f"s_add_u32 s52, s52, {XST}")
        E.i(f"buffer_load_dwordx4 v[156:159], v13, {WSR}, s52 offen{SC}", tag="cs1")
        E.bg_lock -= 1
    def loop(g):
        E.wait_vm(("c", 0))
        E.i("s_barrier")
        stamp(E, 44, 27)
        E.bg_period = BGP1
        for idx in range(D): rd(idx)
        work = list(FILL); pwq = []; dskip = 0 if g == 0 else 2
        dq = [(lambda i=i: dma(3, i)) for i in range(4)] + [lambda: nonce_issue(E, 124)]
        for idx, (p, sp) in enumerate(ks):
            if sp == 2 and p < 9:
                if p + 1 <= 3 or p + 1 >= 4 + NPARK: E.wait_vm(("c", p + 1))
                if 4 <= p + 1 < 4 + NPARK: E.wait_lg("pw")
                if p == 2: nonce_get(E, 124)
                E.i("s_barrier")
                if p == 3 and g == 0:
                    Lc = E.newlabel("csst")
                    E.i(f"s_cmp_ge_u32 s{sGRP}, 3"); E.branch(f"s_cbranch_scc1 {Lc}")
                    with side(E):
                        E.i("v_add_f32 v120, v120, v121"); E.i("v_mov_b32 v121, v120"); E.i("v_permlane32_swap_b32 v120, v121"); E.i("v_add_f32 v120, v120, v121")
                        E.i("v_and_b32 v122, 31, v1"); E.i("v_lshlrev_b32 v122, 3, v122"); E.i(f"v_mov_b32 v121, s{sNONCE}")
                        E.i(f"s_add_u32 s52, s{sRHO}, s{sGRP}")
                        E.i(f"s_mul_i32 s52, s52, 15360"); E.i(f"s_lshl_b32 s53, s{sCT}, 10"); E.i("s_add_u32 s52, s52, s53"); E.i(f"s_lshl_b32 s53, s{sC}, 8"); E.i("s_add_u32 s52, s52, s53"); E.i(f"s_add_u32 s52, s52, {CS1}")
                        E.i("s_mov_b32 exec_hi, 0")
                        E.i(f"buffer_store_dwordx2 v[120:121], v122, {WSR}, s52 offen{SC}")
                        E.i("s_mov_b64 exec, -1")
                    E.label(Lc)
                if p in (2, 5, 8): stamp(E, 45 + p//3, 27)
                if 1 <= p <= NPARK:
                    pc = p + 3; sl = (pc % 4) * 32768
                    for i in range(4):
                        base = ((vPX, vPWW), (174, 175))[sl >= 65536][i >= 2]
                        off = (sl % 65536) + (i*8192 if i < 2 else (i-2)*1024)
                        r = PK + 16*(pc-4) + 4*i
                        pwq.append((pc, f"ds_write_b128 v{base}, v[{r}:{r+3}] offset:{off}"))
                if p == F0_CHK: cs1_loads()
                if NPARK < p <= 6:
                    for i in range(4): dq.append(lambda p=p, i=i: dma(p + 3, i))
                    dskip = 0 if g == 0 else 4
                if p == S0_ISS: s0_issue(E, 14, None)
                if p == S0_FIN + g: s0_finish(E, 224, 14, None)
            wf = WFr + 4*sp
            E.wait_lg(("r", idx))
            for h in range(2):
                c = "0" if idx == 0 else f"v[{ACC[h]}:{ACC[h]+15}]"
                E.i(f"v_mfma_f32_32x32x16_bf16 v[{ACC[h]}:{ACC[h]+15}], v[{wf}:{wf+3}], v[{XFr[h]+4*sp}:{XFr[h]+4*sp+3}], {c}")
                if p >= 4:
                    for _ in range(min(3, len(work))): E.i(work.pop(0))
                if h == 1 and p < 3 and g == 0:
                    Lc = E.newlabel("csp")
                    E.i(f"s_cmp_lg_u32 s{sGRP}, {p}"); E.i(f"s_cbranch_scc1 {Lc}")
                    hh_ = list(E.hist)
                    with side(E):
                        if sp == 0: E.i("v_mov_b32 v120, 0"); E.i("v_mov_b32 v121, 0")
                        for q in range(4): E.i(f"v_dot2c_f32_bf16 v{120 + (q&1)}, s{sONE}, v{wf+q}")
                    E.hist = hh_
                    E.raw(f"{Lc}:")
                if h == 0 and idx + D < len(ks): rd(idx + D)
                if dq:
                    if dskip: dskip -= 1
                    else: dq.pop(0)()
                if h == 1 and pwq:
                    pc, t_ = pwq.pop(0)
                    E.wait_vm(("c", pc)); E.i(t_, tag="pw")
    LG1, LJ = E.newlabel("s1G1"), E.newlabel("s1J")
    vm0 = list(E.vm); q0 = list(E.bgq)
    E.i("s_cmp_ge_u32 s3, 4"); E.branch(f"s_cbranch_scc1 {LG1}")
    loop(0)
    E.wait_vm("cs1")
    E.branch(f"s_branch {LJ}")
    E.label(LG1)
    E.vm = vm0; E.lg = []; E.bgq = q0
    loop(1)
    E.wait_vm("cs1")
    E.label(LJ)
    if "rep1" in OPT:
        for variant in range(3):
            E.i("s_waitcnt vmcnt(0) lgkmcnt(0)"); E.i("s_barrier"); stamp(E, 53 + 2*variant, 27); E.lg = []
            for idx in range(D): rd(idx)
            for idx, (p, sp) in enumerate(ks):
                if sp == 2 and p < 9 and variant != 1: E.i("s_barrier")
                wf = WFr + 4*sp
                E.wait_lg(("r", idx))
                for h in range(2):
                    E.i(f"v_mfma_f32_32x32x16_bf16 v[{192+16*h}:{192+16*h+15}], v[{wf}:{wf+3}], v[{XFr[h]+4*sp}:{XFr[h]+4*sp+3}], v[{192+16*h}:{192+16*h+15}]")
                    if variant == 2:
                        for q in range(6): E.i(f"v_fmac_f32 v{TX[q]}, v{TX[8+q]}, v{TX[8+q]}")
                    if h == 0 and idx + D < len(ks): rd(idx + D)
            E.i("s_barrier"); stamp(E, 54 + 2*variant, 27)
    E.wait_vm("cs1")
    Lc, Lok = E.newlabel("cs1c"), E.newlabel("cs1ok")
    E.label(Lc)
    for r in (145, 147, 149, 151, 153, 157, 159): E.i(f"v_xor_b32 v{r}, s{sNONCE}, v{r}")
    E.i("v_or3_b32 v145, v145, v147, v149"); E.i("v_or3_b32 v145, v145, v151, v153"); E.i("v_or3_b32 v145, v145, v157, v159")
    E.i("v_cmp_ne_u32 vcc, 0, v145")
    E.branch(f"s_cbranch_vccz {Lok}")
    with side(E): retry_tail(E, Lok, Lc, cs1_loads)
    E.label(Lok)
    E.i("v_add_f32 v144, v144, v146"); E.i("v_add_f32 v148, v148, v150"); E.i("v_add_f32 v144, v144, v152"); E.i("v_add_f32 v144, v144, v148")
    E.i("v_mov_b32 v145, v144"); E.i("v_permlane32_swap_b32 v144, v145"); E.i("v_add_f32 v144, v144, v145")
    E.i("v_and_b32 v13, 31, v1"); E.i("v_lshlrev_b32 v13, 2, v13"); E.i("s_lshl_b32 s52, s3, 12"); E.i(f"s_add_u32 s52, s52, {S0SCR}"); E.i("v_add_u32 v13, s52, v13")
    E.i("ds_write_b32 v13, v144")
    E.i("v_lshrrev_b32 v14, 5, v1"); E.i("v_lshlrev_b32 v14, 4, v14"); E.i("v_add_u32 v14, s52, v14")
    stamp(E, 2, 27)
    CS = 64
    for a in range(4): E.i(f"ds_read_b128 v[{CS+4*a}:{CS+4*a+3}], v14 offset:{a*32}")
    E.i("v_mov_b32 v28, v156"); E.i("v_mov_b32 v29, v158"); E.i("v_mov_b32 v30, v156"); E.i("v_mov_b32 v31, v158")
    E.i("v_permlane32_swap_b32 v28, v30"); E.i("v_permlane32_swap_b32 v29, v31")
    E.wait_lg()
    for h in range(2):
        SX, SXX = SS[2*h], SS[2*h+1]
        E.i(f"s_cmp_lt_u32 s{sCT}, 5"); E.i(f"s_cselect_b32 s52, {f2u((20 ** -0.5) * math.log2(math.e)):#x}, 1.0")
        E.i(f"v_mul_f32 v{SXX}, s52, v{SXX}")
        for a in range(4):
            A_ = ACC[h] + 4*a
            for b in range(4): E.i(f"v_fma_f32 v{A_+b}, v{SX}, v{CS+4*a+b}, v{A_+b}")
            for b in range(4): E.i(f"v_mul_f32 v{A_+b}, v{SXX}, v{A_+b}")
            o = 96 + 8*h + 2*a
            E.i(f"v_cvt_pk_bf16_f32 v{o}, v{A_}, v{A_+1}")
            E.i(f"v_cvt_pk_bf16_f32 v{o+1}, v{A_+2}, v{A_+3}")
            E.i(f"buffer_store_dwordx2 v[{o}:{o+1}], v{vQO[a]}, {WSR}, s{sQO+h} offen{SC}", tag="st")
    stamp(E, 5, 27)
    assert not E.bgq
CLR_AT = int(os.environ.get('CLR_AT', '-1'))
S0_FIN = int(os.environ.get('S0_FIN', '7'))
S0_ISS = int(os.environ.get('S0_ISS', '2'))
F0_SET, F0_CHK = 4, int(os.environ.get('F0_CHK', '7'))
NPARK = int(os.environ.get('NPARK', '0'))
BGP1 = int(os.environ.get("BGP1", "70"))
```

```python
from k21a import *

sRB3, sCT3, sCG4, sRB4 = 86, 87, 88, 89
W3R = 156; A3 = [68, 108]; ACC3 = 28
W5P1 = 168
AFR = 88
W5reg = lambda j: (W5P1 + 4*j) if j < 22 else (AFR + 48 + 4*(j-22))
A5 = [lambda f: AFR + 4*f, lambda f: (56 + 4*f) if f < 8 else (AFR + 4*(f-8))]
vA3 = 3
S2B_AT = int(os.environ.get("S2B_AT", "5"))
S3A_AT = int(os.environ.get("S3A_AT", "6"))

def late_scalars(E):
    E.i("s_and_b32 s52, s2, 7"); E.i("s_lshr_b32 s53, s2, 3")
    E.i(f"s_lshr_b32 s{sRB3}, s52, 1"); E.i(f"s_lshl_b32 s{sRB3}, s{sRB3}, 3"); E.i("s_lshr_b32 s54, s53, 2"); E.i(f"s_add_u32 s{sRB3}, s{sRB3}, s54")
    E.i(f"s_and_b32 s{sCT3}, s52, 1"); E.i(f"s_lshl_b32 s{sCT3}, s{sCT3}, 2"); E.i("s_and_b32 s54, s53, 3"); E.i(f"s_add_u32 s{sCT3}, s{sCT3}, s54")
    E.i(f"s_lshr_b32 s{sRB4}, s52, 2"); E.i(f"s_lshl_b32 s{sRB4}, s{sRB4}, 2"); E.i("s_lshr_b32 s54, s53, 3"); E.i(f"s_add_u32 s{sRB4}, s{sRB4}, s54")
    E.i(f"s_and_b32 s{sCG4}, s52, 3"); E.i(f"s_lshl_b32 s{sCG4}, s{sCG4}, 3"); E.i("s_and_b32 s54, s53, 7"); E.i(f"s_add_u32 s{sCG4}, s{sCG4}, s54")

def ld_unit(E, r, sbase, j, tag, vaddr=2, unit=1024):
    off = j * unit
    if off < 4096:
        E.i(f"buffer_load_dwordx4 v[{r}:{r+3}], v{vaddr}, {WSR}, s{sbase} offen offset:{off}{SC}", tag=tag)
    else:
        E.i(f"s_add_u32 s100, s{sbase}, {off - off % 4096}")
        E.i(f"buffer_load_dwordx4 v[{r}:{r+3}], v{vaddr}, {WSR}, s100 offen offset:{off % 4096}{SC}", tag=tag)

sWP, sW4, sW5, sA3, sA4, sA5, sHS, sHH = 56, 57, 59, 60, 62, 63, 65, 66
def bases(E):
    E.i(f"s_mul_i32 s{sW5}, s{sCT3}, 245760"); E.i("s_mul_i32 s53, s3, 30720"); E.i(f"s_add_u32 s{sW5}, s{sW5}, s53"); E.i(f"s_add_u32 s{sW5}, s{sW5}, {W5F}")
    E.i(f"s_mul_i32 s52, s{sCT3}, 102400"); E.i("s_mul_i32 s53, s3, 25600"); E.i("s_add_u32 s52, s52, s53"); E.i(f"s_add_u32 s52, s52, {W3F}")
    E.i(f"s_sub_u32 s53, s{sW5}, 3072")
    E.i("s_cmp_lt_u32 s3, 4"); E.i(f"s_cselect_b32 s{sWP}, s52, s53")
    E.i(f"s_mul_i32 s{sW4}, s{sCG4}, 122880"); E.i(f"s_add_u32 s{sW4}, s{sW4}, {W4F}"); E.i(f"s_lshl_b32 s{sW4+1}, s3, 10"); E.i(f"s_add_u32 s{sW4}, s{sW4}, s{sW4+1}")
    E.i(f"s_mul_i32 s{sA3}, s{sRB3}, 40960"); E.i(f"s_add_u32 s{sA3}, s{sA3}, {OF}")
    E.i("s_and_b32 s53, s3, 3"); E.i("s_lshl_b32 s72, s53, 12"); E.i("s_lshl_b32 s73, s53, 10"); E.i("s_add_u32 s73, s73, 16384")
    E.i(f"s_add_u32 s{sA3+1}, s{sA3}, {64*20480}")
    E.i("s_lshr_b32 s52, s3, 2"); E.i("s_xor_b32 s52, s52, 1"); E.i("s_lshl_b32 s52, s52, 3"); E.i(f"s_add_u32 s52, s52, s{sRB4}"); E.i("s_lshl_b32 s52, s52, 2"); E.i("s_and_b32 s53, s3, 3"); E.i("s_add_u32 s52, s52, s53")
    E.i(f"s_mov_b32 s90, s52")
    E.i(f"s_mul_i32 s{sA4}, s52, 40960"); E.i(f"s_add_u32 s{sA4}, s{sA4}, {HF}")
    E.i(f"s_lshl_b32 s{sHS}, s52, 11"); E.i(f"s_add_u32 s{sHS}, s{sHS}, {HSTB}")
    E.i(f"s_mul_i32 s{sHH}, s52, 98304"); E.i(f"s_mul_i32 s53, s{sCG4}, 3072"); E.i(f"s_add_u32 s{sHH}, s{sHH}, s53"); E.i(f"s_add_u32 s{sHH}, s{sHH}, {HHF}")
    E.i(f"s_mul_i32 s{sA5}, s{sRB3}, 98304"); E.i("s_mul_i32 s53, s3, 12288"); E.i(f"s_add_u32 s{sA5}, s{sA5}, s53"); E.i(f"s_add_u32 s{sA5}, s{sA5}, {HHF}")
    E.i(f"s_add_u32 s{sA5+1}, s{sA5}, {32*98304}")

def w4_unit(E, base):
    E.i(f"s_add_u32 m0, s{sW4+1}, {base*1024}"); E.i(f"s_add_u32 s100, s{sW4}, {base*1024}")
    E.i(f"buffer_load_dwordx4 v2, {WSR}, s100 offen{SC} lds", tag="w4")

def a3_all(E, ph):
    for k in range(5):
        for u in range(2):
            r = A3[ph] + (2*k + u)*4
            if k < 4:
                E.i(f"s_add_u32 s100, s{sA3+ph}, s72")
                if u: E.i("s_add_u32 s100, s100, 20480")
                E.i(f"buffer_load_dwordx4 v[{r}:{r+3}], v2, {WSR}, s100 offen offset:{k*1024}{SC}", tag=("a3", ph, k))
            else:
                E.i(f"s_add_u32 s100, s{sA3+ph}, s73")
                if u: E.i("s_add_u32 s100, s100, 20480")
                for h in range(2):
                    E.i(f"buffer_load_dwordx2 v[{r+2*h}:{r+2*h+1}], v{vA3}, {WSR}, s100 offen offset:{h*128}{SC}", tag=("a3", ph, k))

PSL = int(os.environ.get('PSL', '6'))
def probe(E, sbase, n, va, vd, loads=None, sleep=PSL):
    L, Lok = E.newlabel("prb"), E.newlabel("prbok")
    E.bg_lock += 1
    E.i(f"v_and_b32 v{va}, {n-1}, v1"); E.i(f"v_lshlrev_b32 v{va}, 7, v{va}")
    E.label(L)
    E.i(f"buffer_load_dword v{vd}, v{va}, {WSR}, s{sbase} offen{SC}", tag="probe")
    E.wait_vm("probe")
    E.i(f"v_cmp_eq_u32 vcc, 0, v{vd}")
    E.branch(f"s_cbranch_vccz {Lok}")
    E.i(f"s_sleep {sleep}")
    E.i(f"s_add_u32 s{sRETRY}, s{sRETRY}, 1"); E.i(f"s_cmp_gt_u32 s{sRETRY}, {RETRY_MAX}")
    E.branch(f"s_cbranch_scc0 {L}")
    E.label(Lok)
    if loads: loads()
    E.bg_lock -= 1
def signal(E, sreg, vt):
    E.bg_lock += 1
    E.i("s_waitcnt vmcnt(0)"); E.vm = []
    E.i(f"v_mov_b32 v{vt}, 1"); E.i("s_mov_b64 exec, 1")
    E.i(f"buffer_store_dword v{vt}, off, {WSR}, s{sreg}{SC}")
    E.i("s_mov_b64 exec, -1")
    E.bg_lock -= 1
def signal_last(E, sreg, idx, va, vt, nwait=0):
    L = E.newlabel("sl")
    E.bg_lock += 1
    E.i(f"s_waitcnt vmcnt({nwait})")
    if nwait == 0: E.vm = []
    E.i(f"v_mov_b32 v{va}, {CNT + 4*idx}"); E.i(f"v_mov_b32 v{vt}, 1"); E.i("s_mov_b64 exec, 1")
    E.i(f"ds_add_rtn_u32 v{va}, v{va}, v{vt}")
    E.i("s_waitcnt lgkmcnt(0)"); E.lg = []
    E.i(f"v_readfirstlane_b32 s53, v{va}")
    E.i("s_cmp_lg_u32 s53, 3"); E.branch(f"s_cbranch_scc1 {L}")
    with side(E): E.i(f"buffer_store_dword v{vt}, off, {WSR}, s{sreg}{SC}")
    E.label(L)
    E.i("s_mov_b64 exec, -1")
    E.bg_lock -= 1
sTB4 = 90
def probe_o(E, ph, va, vd, loads=None, sleep=PSL):
    E.i(f"s_lshl_b32 s101, s{sRB3}, 12"); E.i("s_lshl_b32 s52, s3, 10"); E.i("s_add_u32 s101, s101, s52"); E.i(f"s_add_u32 s101, s101, {FO + ph*131072}")
    probe(E, 101, 8, va, vd, loads, sleep)
def probe_h(E, va, vd, loads=None):
    E.i(f"s_lshl_b32 s101, s{sTB4}, 10"); E.i(f"s_add_u32 s101, s101, {FH}")
    probe(E, 101, 8, va, vd, loads)
def probe_s(E, va, vd, loads=None):
    E.i(f"s_lshl_b32 s101, s{sTB4}, 10"); E.i(f"s_add_u32 s101, s101, {FS}")
    probe(E, 101, 8, va, vd, loads)
def probe_hh(E, ph, va, vd, loads=None, sleep=PSL):
    E.i(f"s_lshl_b32 s101, s{sRB3}, 12"); E.i("s_lshl_b32 s52, s3, 9"); E.i("s_add_u32 s101, s101, s52"); E.i(f"s_add_u32 s101, s101, {FHH + ph*131072}")
    probe(E, 101, 4, va, vd, loads, sleep)

CNT = 2816
def gwait(E, idx, target, va, vt):
    L, Lok = E.newlabel("gw"), E.newlabel("gwok")
    E.bg_lock += 1
    E.i(f"v_mov_b32 v{va}, {CNT + 4*idx}")
    E.label(L)
    E.i(f"ds_read_b32 v{vt}, v{va}")
    E.i("s_waitcnt lgkmcnt(0)"); E.lg = []
    E.i(f"v_readfirstlane_b32 s52, v{vt}")
    E.i(f"s_cmp_ge_u32 s52, {target}")
    E.branch(f"s_cbranch_scc1 {Lok}")
    E.i("s_sleep 1")
    E.i(f"s_add_u32 s{sRETRY}, s{sRETRY}, 1"); E.i(f"s_cmp_gt_u32 s{sRETRY}, {RETRY_MAX*50}")
    E.branch(f"s_cbranch_scc0 {L}")
    E.label(Lok)
    E.bg_lock -= 1
def garrive(E, idx, va, vt):
    E.bg_lock += 1
    E.i("s_waitcnt lgkmcnt(0)"); E.lg = []
    E.i(f"v_mov_b32 v{va}, {CNT + 4*idx}"); E.i(f"v_mov_b32 v{vt}, 1")
    E.i("s_mov_b64 exec, 1")
    E.i(f"ds_add_u32 v{va}, v{vt}")
    E.i("s_mov_b64 exec, -1")
    E.bg_lock -= 1
GB = [0, 0]
def gbar(E, g, va, vt):
    GB[g] += 1
    garrive(E, g, va, vt); gwait(E, g, 4*GB[g], va, vt)

CSX = 118*1024
ONESL = 2688
def s2(E):
    KV = [122880, 92160]
    stamp(E, 6, 31)
    vD = 34
    s2_scalars(E)
    s2_loads(E, 0, 0, vD, 0, 0, KV[0])
    LO, LO4, K1, K2, VA, VS, vO1, vO2, M0_, M1_ = 4, 5, 6, 7, 8, 9, 10, 11, 32, 33
    QF = 12; BM = 20; KF = 36; VF = 52; PP = 68; S = [84, 100]; NM = 116; OA = 132
    E.i("v_and_b32 v24, 15, v1"); E.i("v_bfe_u32 v25, v1, 4, 1"); E.i("v_lshrrev_b32 v26, 5, v1")
    E.i("v_mul_u32_u24 v27, 640, v25")
    E.i("v_lshlrev_b32 v28, 3, v26"); E.i("v_xor_b32 v28, v28, v24"); E.i(f"v_lshl_add_u32 v{LO}, v28, 3, v27"); E.i(f"v_lshl_add_u32 v{LO}, v26, 8, v{LO}")
    E.i(f"v_lshl_add_u32 v{LO4}, v24, 3, v27"); E.i(f"v_add_u32 v{LO4}, 512, v{LO4}")
    for r in range(4, 8): E.i(f"v_mov_b32 v{QF+r}, 0")
    E.i(f"buffer_load_dwordx2 v[{QF}:{QF+1}], v{LO}, {WSR}, s{sQo} offen", tag="q")
    E.i(f"buffer_load_dwordx2 v[{QF+2}:{QF+3}], v{LO}, {WSR}, s{sQo} offen offset:128", tag="q")
    E.i("s_mov_b32 exec_hi, 0")
    E.i(f"buffer_load_dwordx2 v[{QF+4}:{QF+5}], v{LO4}, {WSR}, s{sQo} offen", tag="q")
    E.i("s_mov_b64 exec, -1")
    s2_loads(E, 0, 1, vD, 0, 0, KV[1])
    late_scalars(E); bases(E)
    E.i("s_and_b32 s52, s3, 3"); E.i("s_mul_i32 s52, s52, 1280"); E.i("s_lshr_b32 s53, s3, 2"); E.i(f"s_mul_i32 s53, s53, {KV[0]-KV[1]}"); E.i(f"s_add_u32 s52, s52, {KV[0]}"); E.i("s_sub_u32 s52, s52, s53")
    E.i(f"v_add_u32 v{K1}, s52, v{LO}"); E.i(f"v_add_u32 v{K2}, s52, v{LO4}")
    E.i("v_bfe_u32 v27, v1, 2, 2"); E.i("v_lshl_add_u32 v27, v26, 2, v27")
    E.i("v_and_b32 v28, 3, v1")
    E.i("v_lshlrev_b32 v29, 7, v28"); E.i("v_lshl_add_u32 v29, v27, 3, v29")
    E.i("v_and_b32 v30, 2, v28"); E.i("v_lshlrev_b32 v30, 5, v30")
    E.i("v_lshlrev_b32 v31, 3, v27"); E.i("v_add_u32 v31, 512, v31")
    E.i("v_cmp_eq_u32 vcc, 1, v25")
    E.i("v_cndmask_b32 v29, v29, v31, vcc"); E.i("v_cndmask_b32 v30, v30, 0, vcc")
    E.i("s_add_u32 s52, s52, 15360")
    E.i("v_add_u32 v29, s52, v29")
    E.i("v_cmp_ne_u32 s[54:55], 0, v28"); E.i("s_and_b64 vcc, vcc, s[54:55]")
    E.i(f"v_mov_b32 v31, {ONESL}"); E.i("v_cndmask_b32 v29, v29, v31, vcc")
    E.i(f"v_mov_b32 v31, 640"); E.i(f"v_cndmask_b32 v{VS}, v31, 0, vcc")
    VA2 = 35
    E.i(f"v_add_u32 v{VA}, v29, v30"); E.i("v_xor_b32 v30, 64, v30"); E.i(f"v_add_u32 v{VA2}, v29, v30")
    E.i("v_mul_u32_u24 v27, 20480, v25"); E.i(f"v_lshl_add_u32 v{vO2}, v24, 3, v27"); E.i(f"v_lshl_add_u32 v{vO1}, v24, 4, v27"); E.i(f"v_lshl_add_u32 v{vO1}, v26, 8, v{vO1}")
    E.i("v_lshrrev_b32 v27, 4, v1"); E.i(f"v_lshlrev_b32 v{vA3}, 8, v27"); E.i(f"v_lshl_add_u32 v{vA3}, v24, 3, v{vA3}")
    MS = [4,6,8,10,12,14,16,18,20,22,28,30,40,42,44,46]
    E.i("v_and_b32 v27, 31, v1"); E.i("v_lshlrev_b32 v28, 2, v26"); E.i("v_sub_u32 v27, v27, v28")
    E.i("v_mov_b32 v28, 0xffff"); E.i("v_mov_b32 v29, 0xffff0000")
    for r in range(16):
        E.i(f"v_cmp_le_i32 s[{MS[r]}:{MS[r]+1}], {8*(r//4) + r%4}, v27")
    for j in range(8):
        E.i(f"v_cndmask_b32 v30, 0, v28, s[{MS[2*j]}:{MS[2*j]+1}]"); E.i(f"v_cndmask_b32 v31, 0, v29, s[{MS[2*j+1]}:{MS[2*j+1]+1}]")
        E.i(f"v_or_b32 v{BM+j}, v30, v31")
    E.i("v_mov_b32 v142, 0"); E.i("v_mov_b32 v143, 0"); E.i(f"v_mov_b32 v37, {CNT}"); E.i("ds_write_b64 v37, v[142:143]"); E.i("ds_write_b64 v37, v[142:143] offset:8"); E.i("ds_write_b64 v37, v[142:143] offset:16")
    E.i(f"v_mov_b32 v142, s{sONE}"); E.i("v_and_b32 v37, 31, v1"); E.i("v_lshlrev_b32 v37, 2, v37"); E.i(f"ds_write_b32 v37, v142 offset:{ONESL}")
    for r in (KF+6, KF+7, KF+14, KF+15): E.i(f"v_mov_b32 v{r}, 0")
    E.wait_lg(); E.wait_vm()
    stamp(E, 7, 30)
    E.i("s_barrier")
    Lw = E.newlabel("g1pre")
    E.i("s_cmp_ge_u32 s3, 4"); E.branch(f"s_cbranch_scc1 {Lw}")
    E.i(f"s_setprio {ATT_PRIO}")
    E.branch(f"s_branch {Lw}_j")
    E.label(Lw)
    with side(E):
        E.i(f"s_sub_u32 s{sW4}, s{sW4}, 4096"); E.i(f"s_sub_u32 s{sW4+1}, s{sW4+1}, 4096")
        for u_ in W4U[:W4_EARLY]: w4_unit(E, u_)
        E.i("v_lshrrev_b32 v30, 1, v2"); E.i(f"s_mul_i32 s52, s{sW4+1}, 120"); E.i(f"s_mul_i32 s53, s{sCG4}, 384"); E.i("s_add_u32 s52, s52, s53"); E.i(f"s_add_u32 s52, s52, {CSP4}")
        for j in range(10):
            E.i(f"buffer_load_dwordx2 v[{200+2*j}:{201+2*j}], v30, {WSR}, s52 offen")
            E.i("s_add_u32 s52, s52, 12288")
    E.label(f"{Lw}_j")
    stamp(E, 8, 30); stamp(E, 10, 30, wave=4)
    E.i("s_cmp_lt_u32 s3, 4"); E.i("s_cselect_b64 vcc, -1, 0")
    def wpg(j):
        L = E.newlabel("wps")
        E.i(f"s_cbranch_vccz {L}")
        h = list(E.hist)
        ld_unit(E, W3R + 4*j, sWP, j, "wp")
        E.hist = h
        E.raw(f"{L}:")
    WPQ = [(lambda j=j: wpg(j)) for j in range(25)]
    order = [0, 8, 7, 6, 5, 4, 3, 2, 1]
    def rdk(n):
        b = order[n]; r = KF + 8*(n % 2)
        E.i(f"ds_read2_b64 v[{r}:{r+3}], v{K1} offset0:{(b*1280//8) % 256} offset1:{(b*1280//8 + 16) % 256}", tag=("k", n)) if b*1280//8 + 16 < 256 else (
            E.i(f"ds_read_b64 v[{r}:{r+1}], v{K1} offset:{b*1280}", tag=("k", n)), E.i(f"ds_read_b64 v[{r+2}:{r+3}], v{K1} offset:{b*1280+128}", tag=("k", n)))
        E.i(f"ds_read_b64 v[{r+4}:{r+5}], v{K2} offset:{b*1280}", tag=("k", n))
    def weave(big, small):
        nb = len(big); per = -(-len(small) // max(nb, 1))
        for f in big:
            f()
            for _ in range(per):
                if small: E.i(small.pop(0))
        while small: E.i(small.pop(0))
    def qk_parts(n, c):
        r = KF + 8*(n % 2); d = S[n % 2]
        def a():
            E.wait_lg(("k", n))
            E.i(f"v_mfma_f32_32x32x16_bf16 v[{d}:{d+15}], v[{r}:{r+3}], v[{QF}:{QF+3}], {c}")
        def b_():
            E.i(f"v_mfma_f32_32x32x16_bf16 v[{d}:{d+15}], v[{r+4}:{r+7}], v[{QF+4}:{QF+7}], v[{d}:{d+15}]")
            if n + 2 < 9: rdk(n + 2)
        return [a, b_]
    pads = []
    def exit_if_invalid(b, target):
        Lp = E.newlabel("pad"); pads.append((Lp, target))
        E.i(f"s_cmp_lt_u32 s{sTQ}, {16 - 2*b}"); E.branch_nf(f"s_cbranch_scc1 {Lp}")
    def merge():
        Lf = E.newlabel("fv"); pads.append((Lf, None))
        E.i(f"s_cmp_lt_u32 s{sTQ}, 16"); E.branch_nf(f"s_cbranch_scc1 {Lf}")
        E.raw(f"{Lf}_r:")
        for r in range(16): E.i(f"v_cndmask_b32 v{S[1]+r}, v{S[0]+r}, v{S[1]+r}, s[{MS[r]}:{MS[r]+1}]")
    if "rep2" in OPT:
        E.i("s_mov_b32 s77, 0"); E.label("L_rep2")
    Lp1 = E.newlabel("p1done")
    rdk(0); rdk(1)
    for f in qk_parts(0, "0") + qk_parts(1, "0"): f()
    merge()
    for n in range(1, 9):
        d = S[n % 2]
        if n >= 2: exit_if_invalid(order[n], Lp1)
        sm = []
        for j in range(0, 16, 4):
            if n == 1 and j == 0:
                sm += [f"v_max_f32 v{M0_}, v{d}, v{d+1}", f"v_max_f32 v{M1_}, v{d+2}, v{d+3}"]
            else:
                sm += [f"v_max3_f32 v{M0_}, v{d+j}, v{d+j+1}, v{M0_}", f"v_max3_f32 v{M1_}, v{d+j+2}, v{d+j+3}, v{M1_}"]
        weave(qk_parts(n + 1, "0") if n + 1 < 9 else [], sm)
        WPQ[n - 1]()
    E.label(Lp1)
    E.i("s_waitcnt lgkmcnt(0)"); E.lg = []
    rdk(0); rdk(1)
    E.i(f"v_max_f32 v{M0_}, v{M0_}, v{M1_}")
    E.i(f"v_mov_b32 v{M1_}, v{M0_}"); E.i(f"v_permlane32_swap_b32 v{M0_}, v{M1_}"); E.i(f"v_max_f32 v{M0_}, v{M0_}, v{M1_}")
    for r in range(16): E.i(f"v_sub_f32 v{NM+r}, 0, v{M0_}")
    vT1, vT2 = 30, 31
    def rdv(b, slot):
        for ks in range(2):
            tb = 2*b + ks
            E.i(f"v_mad_u32_u24 v{vT1}, v{VS}, {tb}, v{VA}"); E.i(f"v_mad_u32_u24 v{vT2}, v{VS}, {tb}, v{VA2}")
            r = VF + 8*slot + 4*ks
            E.i(f"ds_read_b64_tr_b16 v[{r}:{r+1}], v{vT1}", tag=("v", b)); E.i(f"ds_read_b64_tr_b16 v[{r+2}:{r+3}], v{vT2}", tag=("v", b))
    def pv_parts(b, slot, P, first, nxt=None):
        def mk(ks):
            def f():
                if ks == 0: E.wait_lg(("v", b))
                r = VF + 8*slot + 4*ks
                c = "0" if (first and ks == 0) else f"v[{OA}:{OA+15}]"
                E.i(f"v_mfma_f32_32x32x16_bf16 v[{OA}:{OA+15}], v[{r}:{r+3}], v[{P+4*ks}:{P+4*ks+3}], {c}")
                if ks == 1 and nxt is not None: rdv(nxt, slot)
            return f
        return [mk(0), mk(1)]
    nm = f"v[{NM}:{NM+15}]"
    Lp2 = E.newlabel("p2done")
    PF0 = 148
    for f in qk_parts(0, nm) + qk_parts(1, nm): f()
    rdv(0, 0); rdv(8, 1)
    merge()
    pend = []
    tails = []
    for n in range(1, 9):
        d = S[n % 2]; b = order[n]; P = PP + 8*(n % 2)
        if n >= 2:
            Lt = E.newlabel("p2t"); tails.append((Lt, n - 1))
            exit_if_invalid(b, Lt)
        sm = [f"v_exp_f32 v{d+j}, v{d+j}" for j in range(16)]
        weave((qk_parts(n + 1, nm) if n + 1 < 9 else []) + pend, sm)
        WPQ[8 + 2*(n-1)]()
        for j in range(8): E.i(f"v_cvt_pk_bf16_f32 v{P+j}, v{d+2*j}, v{d+2*j+1}")
        WPQ[9 + 2*(n-1)]()
        if n == 1:
            for j in range(8): E.i(f"v_bfi_b32 v{PF0+j}, v{BM+j}, 0, v{P+j}")
            for j in range(8): E.i(f"v_and_b32 v{P+j}, v{BM+j}, v{P+j}")
            pend = pv_parts(0, 0, PF0, True, order[2]) + pv_parts(8, 1, P, False, order[3])
        else:
            pend = pv_parts(b, n % 2, P, False, order[n + 2] if n + 2 < 9 else None)
    WPQ[24]()
    for f in pend: f()
    E.branch(f"s_branch {Lp2}")
    for Lp, target in pads:
        E.pad_label(Lp)
        if target is None:
            for r in range(16): E.i(f"v_mov_b32 v{S[0]+r}, {NEG:#x}")
            E.branch(f"s_branch {Lp}_r")
        else: E.branch(f"s_branch {target}")
    for Lt, m in tails:
        E.label(Lt)
        E.i("s_waitcnt lgkmcnt(0)"); E.lg = []
        P = PP + 8*(m % 2)
        parts = (pv_parts(0, 0, PF0, True) + pv_parts(8, 1, P, False)) if m == 1 else pv_parts(order[m], m % 2, P, False)
        for f in parts: f()
        E.branch(f"s_branch {Lp2}_w")
    E.label(f"{Lp2}_w")
    E.label(Lp2)
    if "rep2" in OPT:
        E.i("s_waitcnt lgkmcnt(0)"); E.lg = []
        E.i("s_cmp_eq_u32 s77, 1"); E.branch("s_cbranch_scc1 L_rep2_done")
        stamp(E, 12, 30); stamp(E, 13, 30, wave=4)
        E.i("s_barrier"); stamp(E, 37, 30)
        E.i("s_mov_b32 s77, 1"); E.branch("s_branch L_rep2")
        E.label("L_rep2_done")
    stamp(E, 9, 30); stamp(E, 11, 30, wave=4)
    E.i("s_lshr_b32 s52, s3, 2"); E.i("s_lshl_b32 s52, s52, 2"); E.i(f"s_add_u32 s52, s52, {CNT + 8}")
    E.i("s_waitcnt lgkmcnt(0)"); E.lg = []
    E.i("v_mov_b32 v30, s52"); E.i("v_mov_b32 v31, 1"); E.i("s_mov_b64 exec, 1"); E.i("ds_add_u32 v30, v31"); E.i("s_mov_b64 exec, -1")
    E.i(f"v_rcp_f32 v{M0_}, v{OA+12}")
    for r in range(12): E.i(f"v_mul_f32 v{OA+r}, v{OA+r}, v{M0_}")
    for j in range(6): E.i(f"v_cvt_pk_bf16_f32 v{PP+j}, v{OA+2*j}, v{OA+2*j+1}")
    E.i(f"v_permlane32_swap_b32 v{PP}, v{PP+2}"); E.i(f"v_permlane32_swap_b32 v{PP+1}, v{PP+3}")
    E.i(f"s_lshl_b32 s52, s{sHD}, 9"); E.i(f"s_add_u32 s52, s52, s{sOo}")
    E.i(f"s_lshl_b32 s53, s{sHD}, 7"); E.i(f"s_add_u32 s53, s53, s{sOo}"); E.i("s_add_u32 s53, s53, 16384")
    E.i(f"buffer_store_dwordx4 v[{PP}:{PP+3}], v{vO1}, {WSR}, s52 offen{SC}", tag="st")
    E.i("s_mov_b32 exec_hi, 0")
    E.i(f"buffer_store_dwordx2 v[{PP+4}:{PP+5}], v{vO2}, {WSR}, s53 offen{SC}", tag="st")
    E.i("s_mov_b64 exec, -1")
    E.i(f"s_lshl_b32 s52, s{sTQ}, 11"); E.i(f"s_lshl_b32 s53, s{sHD}, 7"); E.i("s_add_u32 s52, s52, s53"); E.i(f"s_add_u32 s52, s52, {FO}")
    signal(E, 52, 30)
    Lw = E.newlabel("wpre")
    E.i(f"s_cmp_ge_u32 s{sTQ}, 14"); E.branch(f"s_cbranch_scc1 {Lw}")
    with side(E):
        for j in range(25): ld_unit(E, W3R + 4*j, sWP, j, "wp")
    E.label(Lw)
W4_PRE = int(os.environ.get("W4_PRE", "8"))

def final_sum(E, vPR, nslots, T, off0, vt):
    for half in range(nslots // 4):
        for w in range(4):
            off = off0 + (half*4 + w)*10240
            for g in range(2):
                o = off + g*256
                r = T + 8 + (w*2+g)*4
                if o > 65535:
                    E.i(f"v_add_u32 v{vt}, 40960, v{vPR}"); E.i(f"ds_read_b128 v[{r}:{r+3}], v{vt} offset:{o-40960}")
                else:
                    E.i(f"ds_read_b128 v[{r}:{r+3}], v{vPR} offset:{o}")
        E.wait_lg()
        for j in range(8):
            g, b = j // 4, j % 4
            sr = [T + 8 + (w*2+g)*4 + b for w in range(4)]
            E.i(f"v_add_f32 v{sr[0]}, v{sr[0]}, v{sr[1]}"); E.i(f"v_add_f32 v{sr[2]}, v{sr[2]}, v{sr[3]}")
            if half == 0: E.i(f"v_add_f32 v{T+j}, v{sr[0]}, v{sr[2]}")
            else:
                E.i(f"v_add_f32 v{T+j}, v{T+j}, v{sr[0]}"); E.i(f"v_add_f32 v{T+j}, v{T+j}, v{sr[2]}")

def add_res_pack(E, T, RES, OUT, vt, clamp):
    for j in range(4):
        E.i(f"v_lshlrev_b32 v{vt}, 16, v{RES+j}"); E.i(f"v_add_f32 v{T+2*j}, v{T+2*j}, v{vt}")
        E.i(f"v_and_b32 v{vt}, 0xffff0000, v{RES+j}"); E.i(f"v_add_f32 v{T+2*j+1}, v{T+2*j+1}, v{vt}")
    for j in range(4):
        E.i(f"v_cvt_pk_bf16_f32 v{OUT+j}, v{T+2*j}, v{T+2*j+1}")
        if clamp: E.i(f"v_min_u32 v{OUT+j}, s{sM1}, v{OUT+j}")

def lane_pr(E, dst, t0, t1):
    E.i(f"v_bfe_u32 v{t0}, v1, 4, 1"); E.i(f"v_mul_u32_u24 v{t0}, 5120, v{t0}"); E.i(f"v_lshrrev_b32 v{t1}, 5, v1"); E.i(f"v_lshl_add_u32 v{t0}, v{t1}, 9, v{t0}")
    E.i(f"v_and_b32 v{t1}, 15, v1"); E.i(f"v_lshl_add_u32 v{dst}, v{t1}, 4, v{t0}")
def lane_xr(E, dst, t0, t1):
    E.i(f"v_and_b32 v{t0}, 31, v1"); E.i(f"v_mul_u32_u24 v{t0}, 1280, v{t0}"); E.i(f"v_lshrrev_b32 v{t1}, 5, v1"); E.i(f"v_lshl_add_u32 v{dst}, v{t1}, 4, v{t0}")

def a4_load(E, i):
    ld_unit(E, AFR + 4*(i % 20), sA4, i, ("a4", i))

AUXB = 0
CSF = 2048
WF4 = 64
def w4_first(E):
    E.i(f"s_sub_u32 s52, s{sW4}, s{sW4+1}")
    for t in range(3): ld_unit(E, WF4 + 4*t, 52, t, "w40")
def s3(E):
    stamp(E, 14, 35); stamp(E, 36, 35, wave=4)
    LG1, LJ = E.newlabel("s3g1"), E.newlabel("s3j")
    E.i("s_cmp_ge_u32 s3, 4"); E.branch(f"s_cbranch_scc1 {LG1}")
    E.vm = []
    E.i("s_setprio 2")
    vPW, vM, vPR, vXR = 4, 5, 8, 9
    RES = 12
    T = 68
    E.i("s_mul_i32 s52, s3, 10240"); E.i(f"s_add_u32 s52, s52, {SCR}"); E.i(f"v_add_u32 v{vPW}, s52, v2")
    lane_pr(E, vPR, 6, 7); lane_xr(E, vXR, 6, 7)
    E.i(f"v_add_u32 v{vPR}, s{sW4+1}, v{vPR}"); E.i(f"v_add_u32 v{vPR}, {SCR}, v{vPR}")
    E.i(f"s_lshr_b32 s52, s{sW4+1}, 5"); E.i(f"v_add_u32 v{vXR}, s52, v{vXR}")
    E.i(f"s_mul_i32 s52, s{sRB3}, 40960"); E.i(f"s_mul_i32 s53, s{sCT3}, 160"); E.i("s_add_u32 s52, s52, s53"); E.i("s_add_u32 s53, s52, 1310720")
    for ph in range(2):
        E.i(f"buffer_load_dwordx4 v[{RES+8*ph}:{RES+8*ph+3}], v{vXR}, s[{SRD_X}:{SRD_X+3}], s{52+ph} offen", tag="res")
        E.i(f"buffer_load_dwordx4 v[{RES+8*ph+4}:{RES+8*ph+7}], v{vXR}, s[{SRD_X}:{SRD_X+3}], s{52+ph} offen offset:128", tag="res")
    sHW = 67
    E.i(f"s_mul_i32 s{sHW}, s{sRB3}, 40960"); E.i(f"s_mul_i32 s53, s{sCT3}, 5120"); E.i(f"s_add_u32 s{sHW}, s{sHW}, s53"); E.i(f"s_add_u32 s{sHW}, s{sHW}, s{sW4+1}"); E.i(f"s_add_u32 s{sHW}, s{sHW}, {HF}")
    E.i(f"s_add_u32 s{sHW+1}, s{sHW}, {32*40960}")
    for ph in range(2):
        if ph == 0: probe_o(E, 0, 6, 7, lambda: a3_all(E, 0))
        Lb = E.newlabel("s3v")
        E.label(Lb)
        for k in range(5):
            E.wait_vm(("a3", ph, k))
            for u in range(2):
                af = A3[ph] + (2*k+u)*4
                for nt in range(5):
                    a = ACC3 + (u*5+nt)*4; wf = W3R + (k*5+nt)*4
                    c = "0" if k == 0 else f"v[{a}:{a+3}]"
                    E.i(f"v_mfma_f32_16x16x32_bf16 v[{a}:{a+3}], v[{wf}:{wf+3}], v[{af}:{af+3}], {c}")
        stamp(E, 15 + 3*ph, 6)
        if ph == 0: gwait(E, 2, 4, 6, 7)
        else: gwait(E, 0, 4*GB[0], 6, 7)
        for j in range(10): E.i(f"ds_write_b128 v{vPW}, v[{ACC3+4*j}:{ACC3+4*j+3}] offset:{j*1024}")
        GB[0] += 1; garrive(E, 0, 6, 7)
        if ph == 0:
            E.i(f"s_lshl_b32 s101, s{sRB3}, 12"); E.i("s_lshl_b32 s52, s3, 10"); E.i("s_add_u32 s101, s101, s52"); E.i(f"s_add_u32 s101, s101, {FO + 131072}")
            E.i("v_and_b32 v11, 7, v1"); E.i("v_lshlrev_b32 v11, 7, v11")
        gwait(E, 0, 4*GB[0], 6, 7)
        if ph == 0: E.i(f"buffer_load_dword v11, v11, {WSR}, s101 offen{SC}", tag="aprobe")
        stamp(E, 16 + 3*ph, 6)
        E.wait_vm("res")
        for unit in range(2):
            Lu = None
            if unit == 1:
                Lu = E.newlabel("fin4"); E.i("s_cmp_lg_u32 s3, 0"); E.branch(f"s_cbranch_scc1 {Lu}")
                cm = side(E); cm.__enter__()
            final_sum(E, vPR, 4, T, unit*4096, 6)
            add_res_pack(E, T, RES + 8*ph + 4*unit, 28, 6, False)
            if unit == 0: E.i(f"buffer_store_dwordx4 v[28:31], v2, {WSR}, s{sHW+ph} offen{SC}", tag="st")
            else:
                E.i(f"s_add_u32 s52, s{sHW+ph}, 4096"); E.i(f"buffer_store_dwordx4 v[28:31], v2, {WSR}, s52 offen{SC}")
            if unit == 0:
                E.i(f"v_add_f32 v32, v{T}, v{T+1}"); E.i(f"v_mul_f32 v33, v{T}, v{T}"); E.i(f"v_mul_f32 v35, v{T+1}, v{T+1}"); E.i(f"v_add_f32 v34, v{T+2}, v{T+3}")
                for j in range(2, 8): E.i(f"v_fmac_f32 v{33 if j&1 else 35}, v{T+j}, v{T+j}")
                for j in range(4, 8): E.i(f"v_add_f32 v{32 if j&1 else 34}, v{32 if j&1 else 34}, v{T+j}")
            else:
                for j in range(8):
                    E.i(f"v_fmac_f32 v{33 if j&1 else 35}, v{T+j}, v{T+j}"); E.i(f"v_add_f32 v{32 if j&1 else 34}, v{32 if j&1 else 34}, v{T+j}")
                cm.__exit__(); E.label(Lu)
        E.i("v_add_f32 v32, v32, v34"); E.i("v_add_f32 v33, v33, v35")
        E.i("v_mov_b32 v34, v32"); E.i("v_mov_b32 v35, v33")
        E.i("v_permlane32_swap_b32 v32, v34"); E.i("v_permlane32_swap_b32 v33, v35")
        E.i("v_add_f32 v32, v32, v34"); E.i("v_add_f32 v33, v33, v35")
        E.i("v_and_b32 v10, 31, v1"); E.i("v_lshlrev_b32 v10, 3, v10"); E.i(f"s_lshr_b32 s52, s{sW4+1}, 2"); E.i(f"s_add_u32 s52, s52, {AUXB + ph*1024}"); E.i("v_add_u32 v34, s52, v10")
        E.i("ds_write_b64 v34, v[32:33]")
        garrive(E, 0, 6, 7); GB[0] += 1
        E.i(f"s_lshl_b32 s52, s{sRB3}, 10"); E.i(f"s_lshl_b32 s53, s{sCT3}, 7"); E.i("s_add_u32 s52, s52, s53"); E.i(f"s_add_u32 s52, s52, {FH + ph*32768}")
        if ph == 0:
            Lsl, Lj_ = E.newlabel("slow"), E.newlabel("fj")
            E.i("s_mov_b32 s54, s52")
            E.wait_vm("aprobe")
            E.i("v_cmp_eq_u32 vcc, 0, v11")
            E.branch(f"s_cbranch_vccnz {Lsl}")
            with side(E):
                a3_all(E, 1)
                signal_last(E, 54, 4, 6, 7, 12)
            E.branch(f"s_branch {Lj_}")
            E.label(Lsl)
            signal_last(E, 54, 4, 6, 7)
            probe_o(E, 1, 6, 7, lambda: a3_all(E, 1))
            E.label(Lj_)
        else: signal_last(E, 52, 5, 6, 7)
        stamp(E, 17 + 3*ph, 6)
    gwait(E, 0, 4*GB[0], 6, 7)
    hst(E, 0, 2); hst(E, 1, 3)
    for j in range(W5_PRE): ld_unit(E, W5reg(j), sW5, j, ("w5", j))
    G0_DONE = 4*GB[0]
    gwait(E, 1, 12, 6, 7)
    E.i(f"s_setprio {G0_PRIO}")
    q = [(("w5", j), (lambda j=j: ld_unit(E, W5reg(j), sW5, j, ("w5", j)))) for j in range(W5_PRE, 22)]
    s4(E, 1, q)
    E.branch(f"s_branch {LJ}")
    E.label(LG1)
    E.vm = []; E.lg = []
    for u_ in W4U[W4_EARLY:]: w4_unit(E, u_)
    gwait(E, 3, 4, 6, 7)
    for i in range(7): w4_unit(E, 90 + 4*i)
    E.i("v_lshrrev_b32 v8, 1, v2")
    E.i("v_add_f32 v16, v200, v202"); E.i("v_add_f32 v17, v201, v203")
    for j in range(2, 10):
        E.i(f"v_add_f32 v16, v16, v{200+2*j}"); E.i(f"v_add_f32 v17, v17, v{201+2*j}")
    E.i(f"s_lshr_b32 s52, s{sW4+1}, 1"); E.i(f"s_add_u32 s52, s52, {CSX}"); E.i("v_add_u32 v9, s52, v8")
    E.i("ds_write_b64 v9, v[16:17]")
    gbar(E, 1, 6, 7)
    E.i(f"v_add_u32 v9, {CSX}, v8")
    for w in range(4): E.i(f"ds_read_b64 v[{16+2*w}:{17+2*w}], v9 offset:{w*512}")
    E.wait_lg()
    for w in range(1, 4):
        E.i(f"v_add_f32 v16, v16, v{16+2*w}"); E.i(f"v_add_f32 v17, v17, v{17+2*w}")
    E.i(f"ds_write_b64 v8, v[16:17] offset:{CSF}")
    gbar(E, 1, 6, 7)
    Lq = E.newlabel("w4q"); E.i("s_cmp_ge_u32 s3, 6"); E.branch(f"s_cbranch_scc1 {Lq}")
    with side(E): w4_unit(E, 118)
    E.label(Lq)
    E.vm = []
    for j in range(G1W5): ld_unit(E, W5reg(j), sW5, j, ("w5", j))
    E.i(f"s_waitcnt vmcnt({G1W5})")
    gbar(E, 1, 6, 7)
    s4(E, 0, [(("w5", j), (lambda j=j: ld_unit(E, W5reg(j), sW5, j, ("w5", j)))) for j in range(G1W5, 22)])
    gwait(E, 0, G0_DONE, 12, 13)
    E.label(LJ)
    E.vm = ["st"]; E.lg = []

def hst(E, ph, wv):
    Ls = E.newlabel("hst")
    E.i(f"s_cmp_lg_u32 s3, {wv}"); E.branch(f"s_cbranch_scc1 {Ls}")
    with side(E):
        E.i(f"v_add_u32 v11, {AUXB + ph*1024}, v10")
        for j in range(4): E.i(f"ds_read_b64 v[{148+2*j}:{149+2*j}], v11 offset:{j*256}")
        E.i("s_waitcnt lgkmcnt(0)")
        for j in range(1, 4):
            E.i(f"v_add_f32 v148, v148, v{148+2*j}"); E.i(f"v_add_f32 v149, v149, v{149+2*j}")
        E.i(f"s_lshl_b32 s52, s{sRB3}, 11"); E.i(f"s_lshl_b32 s53, s{sCT3}, 8"); E.i("s_add_u32 s52, s52, s53"); E.i(f"s_add_u32 s52, s52, {HSTB + ph*32*2048}")
        E.i("s_mov_b32 exec_hi, 0")
        E.i(f"buffer_store_dwordx2 v[148:149], v10, {WSR}, s52 offen{SC}")
        E.i("s_mov_b64 exec, -1")
        E.i(f"s_lshl_b32 s52, s{sRB3}, 10"); E.i(f"s_lshl_b32 s53, s{sCT3}, 7"); E.i("s_add_u32 s52, s52, s53"); E.i(f"s_add_u32 s52, s52, {FS + ph*32768}")
        signal(E, 52, 148)
    E.label(Ls)
W5_PRE = int(os.environ.get("W5_PRE", "14"))
WP_PRE = int(os.environ.get("WP_PRE", "8"))
A3B_LATE = int(os.environ.get("A3B_LATE", "1"))
A5_AT = int(os.environ.get("A5_AT", "40"))
G0_PRIO = int(os.environ.get("G0_PRIO", "0"))
G1W5 = int(os.environ.get("G1W5", "10"))
W4U = list(range(3, 87, 4)) + [86]
W4_EARLY = int(os.environ.get("W4_EARLY", "22"))
ATT_PRIO = int(os.environ.get("ATT_PRIO", "2"))
S4_INIT = int(os.environ.get("S4_INIT", "8"))
S4_FIRST = 5
WP_FIRST = int(os.environ.get("WP_FIRST", "14"))
W4_S2 = int(os.environ.get("W4_S2", "10"))
F1_AT = int(os.environ.get("F1_AT", "6"))

vA5 = 7
def a5_load(E, ph, f):
    k, u = f // 2, f % 2
    r = A5[ph](f); off = k*2048 + u*256
    E.i(f"s_add_u32 s100, s{sA5+ph}, {off - off % 4096}")
    E.i(f"buffer_load_dwordx4 v[{r}:{r+3}], v{vA5}, {WSR}, s100 offen offset:{off % 4096}{SC}", tag=("a5", ph, f))

def a4_touch(E, va, vd):
    E.i(f"s_and_b32 s52, s{sCG4}, 7"); E.i("s_lshl_b32 s52, s52, 7"); E.i(f"s_add_u32 s52, s52, s{sA4}"); E.i("s_add_u32 s52, s52, 8192")
    E.i(f"v_and_b32 v{va}, 31, v1"); E.i(f"v_lshlrev_b32 v{va}, 10, v{va}")
    E.i(f"buffer_load_dword v{vd}, v{va}, {WSR}, s52 offen{SC}")

def s4(E, g, q0):
    vWB, vWB2, vCSR, vM = 3, 4, 6, 5
    ST = 8; SX, SXX = 8, 9
    ACC = 16; WF = WF4
    stamp(E, 21 if g == 0 else 24, 15, wave=4*(1-g))
    if g == 0: E.i("s_setprio 1")
    E.i(f"v_add_u32 v{vWB2}, 61440, v2")
    E.i("v_lshrrev_b32 v8, 5, v1"); E.i("v_lshlrev_b32 v8, 4, v8"); E.i(f"v_add_u32 v{vCSR}, {CSF}, v8")
    E.i("v_lshrrev_b32 v8, 4, v1"); E.i("v_and_b32 v9, 15, v1"); E.i("v_lshlrev_b32 v8, 9, v8"); E.i(f"v_lshl_add_u32 v{vA5}, v9, 4, v8")
    K1, K2 = 78, 79
    k1 = -2.0 * 0.7978845608028654 * 1.4426950408889634
    E.i(f"s_mov_b32 s{K1}, {f2u(k1):#x}"); E.i(f"s_mov_b32 s{K2}, {f2u(k1*0.044715):#x}")
    def st_loads():
        E.i(f"v_lshrrev_b32 v{ST+6}, 1, v2")
        for i in range(4):
            E.i(f"buffer_load_dwordx2 v[{ST+2*i}:{ST+2*i+1}], v{ST+6}, {WSR}, s{sHS} offen offset:{i*512}{SC}", tag="hst")
    w4_first(E)
    probe_h(E, 8, 9, lambda: [a4_load(E, i) for i in range(S4_INIT)])
    if "notouch" not in OPT: a4_touch(E, 8, 9)
    Lb = E.newlabel("s4v"); Lh = E.newlabel("s4h")
    E.label(Lb)
    E.bg_period = 0
    def rd(i):
        for t in range(3):
            r = WF + (i%2)*12 + 4*t
            o = (i*3+t)*1024
            if o < 61440: E.i(f"ds_read_b128 v[{r}:{r+3}], v2 offset:{o}", tag=("w", i))
            else: E.i(f"ds_read_b128 v[{r}:{r+3}], v{vWB2} offset:{o-61440}", tag=("w", i))
    sched = [[] for _ in range(41)]
    nxt = S4_INIT
    for i in range(40):
        for _ in range(2 if nxt < 20 else 1):
            if nxt < 40 and nxt - 20 < i:
                sched[i].append(lambda n=nxt: a4_load(E, n)); nxt += 1
    assert nxt == 40
    q = list(q0)
    for n, (tg, fn) in enumerate(q): sched[min((8 if g else 18) + n, 40)].append(fn)
    if g == 1:
        for n in range(22, 30): sched[33 + n - 22].append(lambda n=n: ld_unit(E, W5reg(n), sW5, n, ("w5", n)))
    for i in range(40):
        if i + 1 < 40: rd(i + 1)
        E.wait_vm(("a4", i))
        if i > 0: E.wait_lg(("w", i))
        af = AFR + 4*(i % 20)
        ops = list(sched[i])
        for t in range(3):
            r = WF + (i%2)*12 + 4*t; a = ACC + 16*t
            c = "0" if i == 0 else f"v[{a}:{a+15}]"
            E.i(f"v_mfma_f32_32x32x16_bf16 v[{a}:{a+15}], v[{r}:{r+3}], v[{af}:{af+3}], {c}")
            if ops: ops.pop(0)()
        for o in ops: o()
        if i == 30: probe_s(E, 8, 9, st_loads)
        if i in (0, 9, 19, 29): stamp(E, 53 + 5*g + (i+1)//10, 3, wave=4*(1-g))
    stamp(E, 22 if g == 0 else 25, 87, wave=4*(1-g))
    for o in sched[40]: E.bg_push("x", o)
    if g == 0:
        for n in range(22, 30): E.bg_push(("w5", n), lambda n=n: ld_unit(E, W5reg(n), sW5, n, ("w5", n)))
    E.bg_period = BGP
    E.wait_vm("hst")
    E.i(f"v_add_f32 v{ST}, v{ST}, v{ST+2}"); E.i(f"v_add_f32 v{ST+1}, v{ST+1}, v{ST+3}")
    E.i(f"v_add_f32 v{ST+4}, v{ST+4}, v{ST+6}"); E.i(f"v_add_f32 v{ST+5}, v{ST+5}, v{ST+7}")
    E.i(f"v_add_f32 v{ST}, v{ST}, v{ST+4}"); E.i(f"v_add_f32 v{ST+1}, v{ST+1}, v{ST+5}")
    E.i(f"v_mov_b32 v{ST+2}, v{ST}"); E.i(f"v_mov_b32 v{ST+3}, v{ST+1}")
    E.i(f"v_permlane32_swap_b32 v{ST}, v{ST+2}"); E.i(f"v_permlane32_swap_b32 v{ST+1}, v{ST+3}")
    E.i(f"v_add_f32 v{ST}, v{ST}, v{ST+2}"); E.i(f"v_add_f32 v{ST+1}, v{ST+1}, v{ST+3}")
    stats_math(E, SX, SXX)
    E.i(f"v_mul_f32 v11, v{SXX}, v{SXX}"); E.i(f"v_mul_f32 v10, s{K1}, v{SXX}"); E.i(f"v_mul_f32 v12, v11, v{SXX}"); E.i(f"v_mul_f32 v12, s{K2}, v12"); E.i("v_rcp_f32 v11, v11")
    for q_ in range(4): E.i(f"ds_read_b128 v[{WF+4*q_}:{WF+4*q_+3}], v{vCSR} offset:{q_*32}")
    for t in range(3):
        a = ACC + 16*t; C = WF; G = WF + 16
        E.wait_lg()
        for r in range(16): E.i(f"v_fma_f32 v{a+r}, v{SX}, v{C+r}, v{a+r}")
        if t < 2:
            for q_ in range(4): E.i(f"ds_read_b128 v[{C+4*q_}:{C+4*q_+3}], v{vCSR} offset:{(t+1)*128 + q_*32}")
        for r in range(8): E.i(f"v_mul_f32 v{G+r}, v{a+r}, v{a+r}")
        for r in range(8): E.i(f"v_fma_f32 v{G+r}, v{G+r}, v12, v10")
        for r in range(8): E.i(f"v_mul_f32 v{G+r}, v{G+r}, v{a+r}")
        for r in range(8): E.i(f"v_exp_f32 v{G+r}, v{G+r}")
        for r in range(8): E.i(f"v_mul_f32 v{a+r}, v{a+r}, v{a+8+r}")
        for r in range(8): E.i(f"v_fma_f32 v{G+r}, v{G+r}, v11, v11")
        for r in range(8): E.i(f"v_rcp_f32 v{G+r}, v{G+r}")
        for r in range(8): E.i(f"v_mul_f32 v{a+r}, v{a+r}, v{G+r}")
        for r in range(4):
            E.i(f"v_cvt_pk_bf16_f32 v{a+8+r}, v{a+2*r}, v{a+2*r+1}")
        E.i(f"buffer_store_dwordx4 v[{a+8}:{a+11}], v2, {WSR}, s{sHH} offen offset:{t*1024}{SC}", tag="st")
    E.bg_flush()
    E.i(f"s_lshl_b32 s52, s{sTB4}, 12"); E.i(f"s_lshl_b32 s53, s{sCG4}, 7"); E.i("s_add_u32 s52, s52, s53"); E.i(f"s_add_u32 s52, s52, {FHH}")
    signal(E, 52, 8)
    if g == 0: E.i("s_setprio 0")
    probe_hh(E, 0, 8, 9, lambda: [a5_load(E, 0, f) for f in range(12)], 6 if g == 0 else 2)
    stamp(E, 23 if g == 0 else 26, 87, wave=4*(1-g))
G1_SLEEP = int(os.environ.get("G1_SLEEP", "8"))
G0_SLEEP = int(os.environ.get("G0_SLEEP", "8"))

def s4_rep(E):
    ACC = 16; WF = WF4
    for variant in range(3):
        E.i("s_waitcnt vmcnt(0) lgkmcnt(0)"); E.vm = []; E.lg = []
        E.i("s_barrier"); stamp(E, 53 + 2*variant, 15)
        def rd(i):
            for t in range(3):
                r = WF + (i%2)*12 + 4*t
                o = (max(i,1)*3+t)*1024
                if o < 61440: E.i(f"ds_read_b128 v[{r}:{r+3}], v2 offset:{o}", tag=("w", i))
                else: E.i(f"ds_read_b128 v[{r}:{r+3}], v4 offset:{o-61440}", tag=("w", i))
        if variant >= 1:
            for i in range(20): a4_load(E, i)
        rd(0)
        for i in range(40):
            if i + 1 < 40: rd(i + 1)
            E.wait_vm(("a4", i)); E.wait_lg(("w", i))
            af = AFR + 4*(i % 20)
            for t in range(3):
                r = WF + (i%2)*12 + 4*t; a = ACC + 16*t
                if "m16" in OPT:
                    af2 = AFR + 4*((i+1) % 20); a2 = a + 8*(i%2)
                    E.i(f"v_mfma_f32_16x16x32_bf16 v[{a2}:{a2+3}], v[{r}:{r+3}], v[{af}:{af+3}], v[{a2}:{a2+3}]")
                    E.i(f"v_mfma_f32_16x16x32_bf16 v[{a2+4}:{a2+7}], v[{r}:{r+3}], v[{af2}:{af2+3}], v[{a2+4}:{a2+7}]")
                else:
                    E.i(f"v_mfma_f32_32x32x16_bf16 v[{a}:{a+15}], v[{r}:{r+3}], v[{af}:{af+3}], v[{a}:{a+15}]")
                if t == 0 and variant >= 1 and 1 <= i <= 20: a4_load(E, i + 19)
                if t == 1 and variant == 2 and i < 22: ld_unit(E, W5reg(i), sW5, i, ("w5", i))
        E.i("s_barrier"); stamp(E, 54 + 2*variant, 15)

def s5(E):
    ACC = 16; vPW, vPR, vM, XR = 3, 4, 6, 15
    E.bg_period = 0
    lane_pr(E, 5, 12, 13); lane_xr(E, 14, 12, 13)
    E.i("s_mul_i32 s52, s3, 10240"); E.i("s_add_u32 s52, s52, 81920"); E.i(f"v_add_u32 v{vPW}, s52, v2")
    sHB, sOB = 74, 75
    E.i(f"s_mul_i32 s{sHB}, s{sRB3}, 40960"); E.i(f"s_mul_i32 s53, s{sCT3}, 5120"); E.i(f"s_add_u32 s{sHB}, s{sHB}, s53"); E.i(f"s_add_u32 s{sHB}, s{sHB}, {HF}")
    E.i(f"s_mul_i32 s{sOB}, s{sRB3}, 40960"); E.i(f"s_mul_i32 s53, s{sCT3}, 160"); E.i(f"s_add_u32 s{sOB}, s{sOB}, s53")
    def mm(ph):
        Lb = E.newlabel("s5v")
        E.label(Lb)
        for k in range(6):
            E.wait_vm(("a5", ph, 2*k+1))
            for u in range(2):
                af = A5[ph](2*k+u)
                for nt in range(5):
                    a = ACC + (u*5+nt)*4; wf = W5reg(k*5+nt)
                    c = "0" if k == 0 else f"v[{a}:{a+3}]"
                    E.i(f"v_mfma_f32_16x16x32_bf16 v[{a}:{a+3}], v[{wf}:{wf+3}], v[{af}:{af+3}], {c}")
    def wr():
        for j in range(10): E.i(f"ds_write_b128 v{vPW}, v[{ACC+4*j}:{ACC+4*j+3}] offset:{j*1024}")
        E.wait_lg()
    def res_load(ph, snt, r):
        E.i(f"s_lshl_b32 s52, s{snt}, 10"); E.i(f"s_add_u32 s52, s52, s{sHB}")
        if ph: E.i(f"s_add_u32 s52, s52, {32*40960}")
        E.i(f"buffer_load_dwordx4 v[{r}:{r+3}], v2, {WSR}, s52 offen{SC}", tag="res")
    def fin(ph, snt, r, T):
        E.i(f"s_lshl_b32 s52, s{snt}, 10"); E.i(f"s_add_u32 s52, s52, {81920 if ph == 0 else 0}"); E.i(f"v_add_u32 v{vPR}, s52, v5")
        final_sum(E, vPR, 8, T, 0, 12)
        add_res_pack(E, T, r, T + 8, 12, False)
        E.i(f"s_lshl_b32 s52, s{snt}, 5"); E.i(f"s_add_u32 s52, s52, s{sOB}")
        if ph: E.i("s_add_u32 s52, s52, 1310720")
        E.i(f"buffer_store_dwordx4 v[{T+8}:{T+11}], v14, s[{SRD_OUT}:{SRD_OUT+3}], s52 offen")
    a5b = lambda: [a5_load(E, 1, f) for f in range(12)]
    LG1, LJ = E.newlabel("s5g1"), E.newlabel("s5j")
    RA = AFR + 16
    E.i("s_sub_u32 s76, s3, 3"); E.i("s_max_i32 s76, s76, 0"); E.i("s_min_u32 s77, s3, 4")
    E.vm = [("a5", 0, f) for f in range(12)]
    mm(0); stamp(E, 28, 12)
    E.i("s_cmp_ge_u32 s3, 4"); E.branch(f"s_cbranch_scc1 {LG1}")
    E.i("s_barrier")
    wr()
    E.branch(f"s_branch {LJ}")
    E.label(LG1)
    wr()
    E.i("s_barrier")
    E.label(LJ)
    res_load(0, 76, RA); res_load(1, 77, 8)
    probe_hh(E, 1, 12, 13, a5b)
    E.i("s_barrier")
    stamp(E, 29, 12)
    L4 = E.newlabel("f4"); E.i("s_cmp_lt_u32 s3, 3"); E.branch(f"s_cbranch_scc1 {L4}")
    with side(E): fin(0, 76, RA, ACC)
    E.label(L4)
    stamp(E, 30, 12, wave=4)
    E.i(f"v_subrev_u32 v{vPW}, 81920, v{vPW}")
    mm(1); stamp(E, 31, 12)
    wr()
    E.i("s_barrier")
    stamp(E, 32, 12)
    Lsk = E.newlabel("s5sk")
    E.i("s_cmp_ge_u32 s3, 5"); E.branch(f"s_cbranch_scc1 {Lsk}")
    with side(E): fin(1, 3, 8, ACC)
    E.label(Lsk)
    stamp(E, 33, 12)

def prologue(E, kn):
    E.raw(f".globl {kn}\n.p2align 8\n.type {kn},@function\n{kn}:")
    E.i("s_cmp_ge_u32 s2, 256")
    E.branch(f"s_cbranch_scc1 L_exit_{kn}")
    if "scr" in OPT:
        E.i("s_and_b32 s52, s2, 7"); E.i("s_bfe_u32 s53, s2, 0x30003"); E.i("s_and_b32 s2, s2, 0xc0"); E.i("s_lshl_b32 s52, s52, 3"); E.i("s_or_b32 s2, s2, s52"); E.i("s_or_b32 s2, s2, s53")
    E.i("s_load_dwordx16 s[4:19], s[0:1], 0")
    E.i("s_load_dwordx4 s[20:23], s[0:1], 64")
    E.i("s_memrealtime s[96:97]")
    E.i("v_and_b32 v1, 63, v0")
    E.i("v_lshrrev_b32 v2, 6, v0")
    E.i("v_readfirstlane_b32 s3, v2")
    E.i("v_lshlrev_b32 v2, 4, v1")
    E.i(f"s_mov_b32 s{sONE}, 0x3f803f80"); E.i(f"s_mov_b32 s{sRETRY}, 0"); E.i(f"s_mov_b32 s{sM1}, 0xfffffffe")
    E.i("s_waitcnt lgkmcnt(0)")
    E.i(f"s_mov_b32 s{sT0}, s96")
    srd(E, SRD_X, P_X, 2621440)
    srd(E, SRD_W1, P_W1, 2457600)
    srd(E, SRD_WS, P_WS, WS_BYTES)
    srd(E, SRD_OUT, P_OUT, 2621440)
    srd(E, SRD_DBG, P_DBG, 256)
def kdesc(kn):
    return f""".section .rodata,"a"
.p2align 6
.amdhsa_kernel {kn}
  .amdhsa_next_free_vgpr 256
  .amdhsa_next_free_sgpr 102
  .amdhsa_accum_offset 256
  .amdhsa_group_segment_fixed_size 0
  .amdhsa_kernarg_size 80
  .amdhsa_user_sgpr_count 2
  .amdhsa_user_sgpr_kernarg_segment_ptr 1
  .amdhsa_system_sgpr_workgroup_id_x 1
.end_amdhsa_kernel
"""
def build():
    E = Emitter()
    prologue(E, "ka_kernel")
    stamp(E, 0, 31)
    E.i("s_lshl_b32 s52, s2, 3"); E.i("s_or_b32 s52, s52, s3"); E.i("s_cmp_lg_u32 s52, 2047"); E.branch("s_cbranch_scc1 L_nonce_done")
    E.i(f"s_or_b32 s52, s{sT0}, 1"); E.i("s_mov_b64 exec, 1"); E.i("v_mov_b32 v3, s52")
    E.raw(f"  buffer_store_dword v3, off, s[{SRD_DBG}:{SRD_DBG+3}], 0{SC}")
    E.i("s_mov_b64 exec, -1")
    E.label("L_nonce_done")
    E.i("s_cmp_ge_u32 s2, 240"); E.branch("s_cbranch_scc1 L_idle")
    s1(E)
    E.branch("s_branch L_tail")
    E.label("L_idle")
    E.vm = []; E.lg = []
    idle(E)
    E.label("L_tail")
    E.vm = [("s0dma", 0)] + ["st"]*8; E.lg = []
    ka_tail(E)
    if CFG.stamps:
        E.i("s_waitcnt vmcnt(0)"); stamp(E, 3, 31); stamp(E, 4, 31, wave=7)
    E.label("L_exit_ka_kernel")
    E.raw("  s_endpgm")
    prologue(E, "kb_kernel")
    E.vm = []; E.lg = []; E.bg_period = 0
    s2(E)
    s3(E)
    s5(E)
    E.i("s_waitcnt vmcnt(0) lgkmcnt(0)")
    stamp(E, 40, 31)
    E.label("L_exit_kb_kernel")
    E.raw("  s_endpgm")
    E.raw("L_end_of_code:")
    hdr = ("; @launch kernel=ka_kernel grid=(256,1,1) block=(512,1,1) lds=163840\n; @launch kernel=kb_kernel grid=(256,1,1) block=(512,1,1) lds=163840\n"
           ".amdgcn_target \"amdgcn-amd-amdhsa--gfx950\"\n.text\n")
    return hdr + E.text() + kdesc("ka_kernel") + kdesc("kb_kernel")

if __name__ == "__main__":
    mode = sys.argv[2] if len(sys.argv) > 2 else ""
    CFG.stamps = mode == "stamps"; CFG.dbgst = mode == "dbg"
    open(sys.argv[1], "w").write(build())
```

```python
import struct, math, sys, os
from emit import *

NAME = "sequential_preLN__sliding_block__glu_gated_geglu__prompt"
KN = NAME + "_kernel"
QKV = 0x0
OF  = 0x800000
HF  = OF + 2621440
HHF = HF + 2621440
HSTB = HHF + 6291456
CLR0 = HF
W3F = 0x1800000
W4F = 0x1A00000
W5F = 0x1E00000
CS1 = 0x2080000
CSP4 = 0x1780000
XST = 0x20C0000
CSW = 0x2000000
FLG = 0x1400000
FO, FHH, FH, FS = FLG, FLG + 262144, FLG + 524288, FLG + 589824
STAMP = 0x2040000
WS_BYTES = 0x2100000
SRD_X, SRD_W1, SRD_WS, SRD_OUT, SRD_T0, SRD_T1, SRD_DBG = 24, 28, 32, 36, 40, 44, 48
P_X, P_W1, P_WO, P_WG, P_WU, P_WD, P_OUT, P_DBG, P_WS = 4, 6, 8, 12, 14, 16, 18, 20, 22
SC = " sc1"
NEG = 0xff800000
f2u = lambda x: struct.unpack("<I", struct.pack("<f", x))[0]
class CFG:
    stamps = False
    dbgst = False
OPT = set(os.environ.get('OPT', '').split(','))
WSR = f"s[{SRD_WS}:{SRD_WS+3}]"
sONE, sRETRY, sM1, sNONCE, sT0 = 94, 95, 93, 92, 91
S0SCR, MISC = 131072, 159744
SCR = 122880
RETRY_MAX = 20000
BGP = int(os.environ.get("BGP", "60"))

DBG_MAP = {1:1, 44:2, 2:3, 5:4, 10:5, 8:6, 12:7, 13:8, 16:9, 19:10, 21:11, 22:12, 23:13, 29:14, 40:15}
def stamp(E, idx, vr, wave=0):
    if CFG.dbgst:
        if idx not in DBG_MAP or wave != 0: return
        L = E.newlabel("stamp")
        E.bg_lock += 1
        E.i("s_lshl_b32 s98, s2, 3"); E.i("s_or_b32 s98, s98, s3"); E.i(f"s_cmp_lg_u32 s98, {37*8}"); E.branch(f"s_cbranch_scc1 {L}")
        E.i("s_memrealtime s[96:97]"); E.raw("  s_waitcnt lgkmcnt(0)")
        E.i(f"s_sub_u32 s96, s96, s{sT0}")
        E.i("s_mov_b64 exec, 1"); E.i(f"v_mov_b32 v{vr}, s96")
        E.raw(f"  buffer_store_dword v{vr}, off, s[{SRD_DBG}:{SRD_DBG+3}], 0 offset:{4*DBG_MAP[idx]}")
        E.i("s_mov_b64 exec, -1")
        E.label(L); E.bg_lock -= 1
        return
    if not CFG.stamps: return
    L = E.newlabel("stamp")
    E.bg_lock += 1
    E.i(f"s_cmp_lg_u32 s3, {wave}"); E.branch(f"s_cbranch_scc1 {L}")
    E.i("s_memrealtime s[96:97]")
    E.i("s_lshl_b32 s98, s2, 9"); E.i(f"s_add_u32 s98, s98, {STAMP + idx*8}")
    E.raw("  s_waitcnt lgkmcnt(0)")
    E.i("s_mov_b64 exec, 1")
    E.i(f"v_mov_b32 v{vr}, s96")
    E.raw(f"  buffer_store_dword v{vr}, off, {WSR}, s98")
    if "clk" in OPT:
        E.i("s_memtime s[96:97]"); E.raw("  s_waitcnt lgkmcnt(0)"); E.i(f"v_mov_b32 v{vr}, s96")
        E.raw(f"  buffer_store_dword v{vr}, off, {WSR}, s98 offset:4")
    E.i("s_mov_b64 exec, -1")
    E.label(L)
    E.bg_lock -= 1

def srd(E, d, p, nbytes):
    E.i(f"s_mov_b32 s{d}, s{p}")
    E.i(f"s_and_b32 s{d+1}, s{p+1}, 0xffff")
    E.i(f"s_mov_b32 s{d+2}, {nbytes}")
    E.i(f"s_mov_b32 s{d+3}, 0x20000")

def maxtree(E, dst, regs, first):
    regs = list(regs)
    if first:
        a = regs.pop(0); b = regs.pop(0); c = regs.pop(0) if regs else b
        E.i(f"v_max3_u32 v{dst}, v{a}, v{b}, v{c}")
    while regs:
        a = regs.pop(0); b = regs.pop(0) if regs else a
        E.i(f"v_max3_u32 v{dst}, v{a}, v{b}, v{dst}")

class side:
    def __init__(s, E): s.E = E
    def __enter__(s):
        s.sv = (list(s.E.vm), list(s.E.lg)); s.E.bg_lock += 1
    def __exit__(s, *a):
        s.E.vm, s.E.lg = s.sv; s.E.bg_lock -= 1

def retry_tail(E, Lok, Lback, reissue, sleep=4):
    E.i(f"s_add_u32 s{sRETRY}, s{sRETRY}, 1"); E.i(f"s_cmp_gt_u32 s{sRETRY}, {RETRY_MAX}")
    E.branch(f"s_cbranch_scc1 {Lok}")
    E.i(f"s_sleep {sleep}")
    E.i("s_waitcnt vmcnt(0) lgkmcnt(0)")
    reissue()
    E.i("s_waitcnt vmcnt(0)")
    E.branch(f"s_branch {Lback}")

def check_retry(E, vM, Lback, reissue):
    Lok = E.newlabel("ok")
    E.i(f"v_cmp_eq_u32 vcc, -1, v{vM}")
    E.branch(f"s_cbranch_vccz {Lok}")
    with side(E): retry_tail(E, Lok, Lback, reissue)
    E.label(Lok)

def checkpoint(E, vM, Lh):
    E.i(f"v_cmp_eq_u32 vcc, -1, v{vM}")
    E.branch_nf(f"s_cbranch_vccnz {Lh}")

def handler(E, Lh, Lback, reissue):
    Lok = E.newlabel("ok")
    E.branch(f"s_branch {Lok}")
    E.pad_label(Lh)
    with side(E): retry_tail(E, Lok, Lback, reissue)
    E.label(Lok)

def nonce_issue(E, vr):
    E.i(f"buffer_load_dword v{vr}, off, s[{SRD_DBG}:{SRD_DBG+3}], 0{SC}", tag="nonce")
def nonce_get(E, vr):
    L, Lok = E.newlabel("nchk"), E.newlabel("nok")
    E.wait_vm("nonce")
    E.label(L)
    E.i(f"v_readfirstlane_b32 s{sNONCE}, v{vr}")
    E.i(f"s_cmp_lg_u32 s{sNONCE}, 0")
    E.branch(f"s_cbranch_scc1 {Lok}")
    with side(E): retry_tail(E, Lok, L, lambda: nonce_issue(E, vr), 8)
    E.label(Lok)

def flag_issue(E, vr, which, quad=False):
    E.bg_lock += 1
    E.i(f"v_bfe_u32 v{vr}, v1, 2, {4 if quad else 3}"); E.i(f"v_lshlrev_b32 v{vr}, 7, v{vr}")
    E.i(f"v_and_b32 v{vr+1}, 3, v1"); E.i(f"v_lshl_add_u32 v{vr}, v{vr+1}, 4, v{vr}")
    if quad: E.i("s_and_b32 s52, s3, 3"); E.i("s_lshl_b32 s52, s52, 11")
    else: E.i("s_lshl_b32 s52, s3, 10")
    E.i(f"s_add_u32 s52, s52, {FLG + 4*which}")
    E.i(f"buffer_load_dword v{vr}, v{vr}, {WSR}, s52 offen{SC}", tag="flag")
    E.bg_lock -= 1
def flag_check(E, vr, which, quad=False):
    if "noflag" in OPT: return
    L, Lok = E.newlabel("fchk"), E.newlabel("fok")
    E.wait_vm("flag")
    E.label(L)
    E.i(f"v_cmp_ne_u32 vcc, s{sNONCE}, v{vr}")
    E.branch(f"s_cbranch_vccz {Lok}")
    with side(E): retry_tail(E, Lok, L, lambda: flag_issue(E, vr, which, quad))
    E.label(Lok)
def flag_check_n(E, vr, which):
    E.vm = ["flag"]
    flag_check(E, vr, which)
    E.vm = []
def flag_set(E, which, vr):
    L = E.newlabel("fset")
    E.i("s_cmp_lg_u32 s3, 7"); E.branch(f"s_cbranch_scc1 {L}")
    with side(E):
        E.i("s_mov_b64 exec, 1")
        E.i(f"v_mov_b32 v{vr}, s{sNONCE}")
        E.i("s_lshr_b32 s52, s2, 2"); E.i("s_lshl_b32 s52, s52, 7"); E.i("s_and_b32 s53, s2, 3"); E.i("s_lshl_b32 s53, s53, 4"); E.i("s_add_u32 s52, s52, s53"); E.i(f"s_add_u32 s52, s52, {FLG + 4*which}")
        E.i(f"buffer_store_dword v{vr}, off, {WSR}, s52{SC}")
        E.i("s_mov_b64 exec, -1")
    E.label(L)

def stats_math(E, SX, SXX):
    E.i(f"v_mul_f32 v{SX}, 0xbacccccd, v{SX}")
    E.i(f"v_mul_f32 v{SXX}, 0x3acccccd, v{SXX}")
    E.i(f"v_fma_f32 v{SXX}, -v{SX}, v{SX}, v{SXX}")
    E.i(f"v_max_f32 v{SXX}, 0, v{SXX}")
    E.i(f"v_add_f32 v{SXX}, 0x3727c5ac, v{SXX}")
    E.i(f"v_rsq_f32 v{SXX}, v{SXX}")

sHD, sTB2, sKVo, sQo, sOo, sTQ = 80, 81, 82, 83, 84, 79
vD2, vLO1, vLO2 = 93, 94, 95
def s2_scalars(E):
    E.i("s_and_b32 s52, s2, 7"); E.i("s_lshr_b32 s53, s2, 3")
    E.i(f"s_lshl_b32 s{sHD}, s52, 2"); E.i("s_lshr_b32 s54, s53, 3"); E.i(f"s_add_u32 s{sHD}, s{sHD}, s54")
    E.i(f"s_and_b32 s{sTB2}, s53, 7"); E.i(f"s_lshl_b32 s{sTB2}, s{sTB2}, 3")
    E.i("s_lshr_b32 s54, s3, 2"); E.i("s_lshl_b32 s54, s54, 5"); E.i("s_add_u32 s54, s54, 32"); E.i(f"s_add_u32 s54, s54, s{sHD}")
    E.i("s_mul_i32 s54, s54, 81920")
    E.i(f"s_add_u32 s{SRD_T1}, s{P_WS}, s54"); E.i(f"s_addc_u32 s{SRD_T1+1}, s{P_WS+1}, 0"); E.i(f"s_and_b32 s{SRD_T1+1}, s{SRD_T1+1}, 0xffff")
    E.i(f"s_mov_b32 s{SRD_T1+2}, 81920"); E.i(f"s_mov_b32 s{SRD_T1+3}, 0x20000")
    E.i(f"s_and_b32 s{sKVo}, s3, 3"); E.i(f"s_mul_i32 s{sKVo}, s{sKVo}, 3840")
    E.i("s_lshr_b32 s54, s3, 2"); E.i("s_lshl_b32 s54, s54, 6"); E.i("s_and_b32 s55, s3, 3"); E.i("s_lshl_b32 s55, s55, 1"); E.i("s_add_u32 s54, s54, s55"); E.i(f"s_add_u32 s{sTQ}, s54, s{sTB2}")
    E.i(f"s_mul_i32 s{sQo}, s{sHD}, 81920"); E.i(f"s_mul_i32 s55, s{sTQ}, 640"); E.i(f"s_add_u32 s{sQo}, s{sQo}, s55")
    E.i(f"s_mul_i32 s{sOo}, s{sTQ}, 20480"); E.i(f"s_add_u32 s{sOo}, s{sOo}, {OF}")
    E.i(f"s_add_u32 s{sOo+1}, s{sOo}, {64*20480}")
def s2_laneoffs(E, d1, d2, t0, t1):
    E.i(f"v_and_b32 v{t0}, 15, v1"); E.i(f"v_lshrrev_b32 v{t1}, 4, v1")
    E.i(f"v_and_b32 v{d1}, 2, v{t1}"); E.i(f"v_lshlrev_b32 v{d1}, 2, v{d1}"); E.i(f"v_xor_b32 v{d1}, v{d1}, v{t0}"); E.i(f"v_lshlrev_b32 v{d1}, 3, v{d1}"); E.i(f"v_lshl_add_u32 v{d1}, v{t1}, 7, v{d1}")
    E.i(f"v_lshlrev_b32 v{d2}, 3, v{t0}"); E.i(f"v_add_u32 v{d2}, 512, v{d2}")
NKV = 6
def s2_loads(E, QR, ph, vD, l1, l2, ldsbase):
    E.bg_lock += 1
    E.i(f"s_add_u32 s52, s{sTB2}, {64*ph - 16}"); E.i("s_mul_i32 s52, s52, 640"); E.i(f"s_add_u32 s52, s52, s{sKVo}")
    E.i(f"v_add_u32 v{vD}, s52, v2")
    E.i("s_mul_i32 s53, s3, 3840")
    for i in range(4):
        E.i(f"s_add_u32 m0, s53, {ldsbase + i*1024}")
        if i == 3: E.i("s_mov_b32 exec_hi, 0xffff")
        E.i(f"buffer_load_dwordx4 v{vD}, s[{SRD_T1}:{SRD_T1+3}], 0 offen{SC} lds", tag=("kv", ph))
        if i < 3: E.i(f"v_add_u32 v{vD}, 1024, v{vD}")
    E.i("s_mov_b64 exec, -1")
    E.bg_lock -= 1

def o_clears(E, vm1, vt, deltas):
    E.i(f"v_lshrrev_b32 v{vt}, 1, v2")
    for d in deltas:
        for ph in range(2):
            E.i(f"s_sub_u32 s52, s{sOo+ph}, {d}")
            E.i(f"buffer_store_dwordx2 v[{vm1}:{vm1+1}], v{vt}, {WSR}, s52 offen{SC}", tag="oclr")
            E.i("s_mov_b64 exec, 0xffff")
            E.i(f"buffer_store_dwordx2 v[{vm1}:{vm1+1}], v{vt}, {WSR}, s52 offen offset:512{SC}", tag="oclr")
            E.i("s_mov_b64 exec, -1")

NB_IDLE = int(os.environ.get("NB_IDLE", "0"))
N_IDLE_BLOCKS = 128 * NB_IDLE
NB_BUSY = -(-(1640 - N_IDLE_BLOCKS) // 240)
def s0_decode(E, rnd, Lskip):
    if rnd is None:
        E.i(f"s_min_u32 s55, s3, {NB_BUSY-1}")
        E.i(f"s_mul_i32 s52, s2, {NB_BUSY}"); E.i("s_add_u32 s52, s52, s55"); E.i(f"s_add_u32 s52, s52, {N_IDLE_BLOCKS}"); E.i("s_min_u32 s52, s52, 1639")
        E.i("s_lshl_b32 s55, s3, 12"); E.i(f"s_add_u32 s55, s55, {S0SCR}")
    else:
        E.i(f"s_add_u32 s52, s60, {128*rnd}")
        E.i("s_lshl_b32 s55, s3, 14"); E.i(f"s_add_u32 s55, s55, {(rnd % 4) * 4096}")

def s0_issue(E, vt, rnd):
    if "nos0" in OPT: return
    L, L4, L5, LG = [E.newlabel(x) for x in ("s0i", "s0i4", "s0i5", "s0ig")]
    with side(E):
        s0_decode(E, rnd, L)
        E.i(f"v_lshrrev_b32 v{vt}, 3, v1"); E.i(f"v_and_b32 v{vt+1}, 7, v1")
        E.i("s_cmp_ge_u32 s52, 680"); E.branch(f"s_cbranch_scc1 {L4}")
        E.i("s_cmp_ge_u32 s52, 200"); E.branch(f"s_cbranch_scc1 {L5}")
        srd(E, SRD_T0, P_WO, 819200)
        E.i("s_mul_i32 s87, s52, 6554"); E.i("s_lshr_b32 s87, s87, 16")
        E.i("s_mul_i32 s88, s87, 10"); E.i("s_sub_u32 s88, s52, s88"); E.i("s_lshl_b32 s54, s88, 7")
        E.i("s_cmp_ge_u32 s87, 16"); E.branch(f"s_cbranch_scc1 {LG}")
        E.i("s_mul_i32 s53, s87, 51200"); E.i("s_add_u32 s53, s53, s54")
        E.i(f"v_mul_u32_u24 v{vt}, 1280, v{vt}"); E.i(f"v_lshl_add_u32 v{vt}, v{vt+1}, 4, v{vt}")
        for i in range(4):
            E.i(f"s_add_u32 m0, s55, {i*1024}"); E.i(f"s_add_u32 s54, s53, {(20*(i>>1) + 8*(i&1))*1280}")
            E.i(f"buffer_load_dwordx4 v{vt}, s[{SRD_T0}:{SRD_T0+3}], s54 offen lds")
        E.branch(f"s_branch {L}")
        E.label(LG)
        E.i("s_sub_u32 s53, s87, 16"); E.i("s_mul_i32 s53, s53, 204800"); E.i("s_add_u32 s53, s53, s54"); E.i("s_add_u32 s53, s53, 20480")
        E.i(f"v_lshlrev_b32 v{vt+1}, 4, v{vt+1}")
        E.i(f"v_and_b32 v{vt}, 3, v{vt}"); E.i(f"v_mul_u32_u24 v{vt}, 1280, v{vt}"); E.i(f"v_add_u32 v{vt+1}, v{vt+1}, v{vt}")
        E.i(f"v_lshrrev_b32 v{vt}, 5, v1"); E.i(f"v_mul_u32_u24 v{vt}, 25600, v{vt}"); E.i(f"v_add_u32 v{vt}, v{vt}, v{vt+1}")
        for i in range(4):
            E.i(f"s_add_u32 m0, s55, {i*1024}")
            E.i(f"buffer_load_dwordx4 v{vt}, s[{SRD_T0}:{SRD_T0+3}], s53 offen lds")
            if i < 3: E.i("s_add_u32 s53, s53, 51200")
        E.branch(f"s_branch {L}")
        E.label(L5)
        srd(E, SRD_T0, P_WD, 1966080); E.i("s_sub_u32 s52, s52, 200")
        E.i("s_mul_i32 s87, s52, 6554"); E.i("s_lshr_b32 s87, s87, 16")
        E.i("s_mul_i32 s88, s87, 10"); E.i("s_sub_u32 s88, s52, s88")
        E.i("s_mul_i32 s53, s87, 40960"); E.i("s_lshl_b32 s54, s88, 7"); E.i("s_add_u32 s53, s53, s54")
        E.i(f"v_mul_u32_u24 v{vt}, 1280, v{vt}"); E.i(f"v_lshl_add_u32 v{vt}, v{vt+1}, 4, v{vt}")
        for i in range(4):
            E.i(f"s_add_u32 m0, s55, {i*1024}")
            E.i(f"buffer_load_dwordx4 v{vt}, s[{SRD_T0}:{SRD_T0+3}], s53 offen lds")
            if i < 3: E.i("s_add_u32 s53, s53, 10240")
        E.branch(f"s_branch {L}")
        E.label(L4)
        E.i("s_sub_u32 s52, s52, 680")
        E.i("s_mul_i32 s87, s52, 2731"); E.i("s_lshr_b32 s87, s87, 16")
        E.i("s_mul_i32 s88, s87, 24"); E.i("s_sub_u32 s88, s52, s88")
        E.i("s_mul_i32 s53, s87, 49152"); E.i("s_lshl_b32 s54, s88, 7"); E.i("s_add_u32 s53, s53, s54"); E.i("s_add_u32 s54, s53, 24576")
        E.i(f"v_mul_u32_u24 v{vt}, 3072, v{vt}"); E.i(f"v_lshl_add_u32 v{vt}, v{vt+1}, 4, v{vt}")
        for m, p in enumerate((P_WG, P_WU)):
            srd(E, SRD_T0, p, 1966080)
            for i in range(2):
                E.i(f"s_add_u32 m0, s55, {(2*m+i)*1024}")
                E.i(f"buffer_load_dwordx4 v{vt}, s[{SRD_T0}:{SRD_T0+3}], s{53+i} offen lds")
    E.label(L)
    E.vm += [("s0dma", rnd)] * 4

def s0_finish(E, F, vt, rnd):
    if "nos0" in OPT: return
    E.wait_vm(("s0dma", rnd))
    L, L4, L5, LG, LS = [E.newlabel(x) for x in ("s0f", "s0f4", "s0f5", "s0fg", "s0fs")]
    with side(E):
        s0_decode(E, rnd, L)
        E.i("s_mov_b32 s86, 0")
        E.i(f"v_bfe_u32 v{vt+1}, v1, 2, 2")
        E.i("s_cmp_ge_u32 s52, 680"); E.branch(f"s_cbranch_scc1 {L4}")
        E.i("s_cmp_ge_u32 s52, 200"); E.branch(f"s_cbranch_scc1 {L5}")
        E.i("s_mov_b32 s89, 20"); E.i(f"s_mov_b32 s90, {W3F}")
        E.i("s_mul_i32 s87, s52, 6554"); E.i("s_lshr_b32 s87, s87, 16")
        E.i("s_mul_i32 s88, s87, 10"); E.i("s_sub_u32 s88, s52, s88")
        E.i("s_lshr_b32 s53, s87, 2"); E.i("s_add_u32 s53, s53, s87")
        E.i("s_sub_u32 s54, s87, 16"); E.i("s_mul_i32 s54, s54, 5"); E.i("s_add_u32 s54, s54, 4")
        E.i("s_cmp_ge_u32 s87, 16"); E.i("s_cselect_b32 s87, s54, s53")
        E.branch(f"s_branch {LG}")
        E.label(L5)
        E.i("s_sub_u32 s52, s52, 200"); E.i("s_mov_b32 s89, 48"); E.i(f"s_mov_b32 s90, {W5F}")
        E.i("s_mul_i32 s87, s52, 6554"); E.i("s_lshr_b32 s87, s87, 16")
        E.i("s_mul_i32 s88, s87, 10"); E.i("s_sub_u32 s88, s52, s88")
        E.label(LG)
        E.i(f"v_lshrrev_b32 v{vt}, 4, v1"); E.i(f"v_lshl_add_u32 v{vt}, v{vt}, 3, v{vt+1}"); E.i(f"v_lshlrev_b32 v{vt}, 7, v{vt}")
        E.i(f"v_and_b32 v{vt+1}, 3, v1"); E.i(f"v_lshl_add_u32 v{vt}, v{vt+1}, 3, v{vt}")
        for nt in range(4):
            E.i(f"s_lshl_b32 s52, s88, 2"); E.i(f"s_add_u32 s52, s52, {nt}")
            E.i("s_mul_i32 s53, s52, 52"); E.i("s_lshr_b32 s53, s53, 8")
            E.i("s_mul_i32 s54, s53, 5"); E.i("s_sub_u32 s54, s52, s54")
            E.i("s_mul_i32 s53, s53, s89"); E.i("s_add_u32 s53, s53, s87"); E.i("s_mul_i32 s53, s53, 5"); E.i("s_add_u32 s53, s53, s54")
            E.i("s_lshl_b32 s53, s53, 10"); E.i(f"s_add_u32 s{96+nt}, s53, s90")
        E.branch(f"s_branch {LS}")
        E.label(L4)
        E.i("s_sub_u32 s52, s52, 680")
        E.i("s_mul_i32 s87, s52, 2731"); E.i("s_lshr_b32 s87, s87, 16")
        E.i("s_mul_i32 s88, s87, 24"); E.i("s_sub_u32 s88, s52, s88")
        E.i(f"v_lshrrev_b32 v{vt}, 5, v1"); E.i(f"v_lshl_add_u32 v{vt}, v{vt}, 3, v{vt+1}"); E.i(f"v_lshlrev_b32 v{vt}, 7, v{vt}")
        E.i(f"v_bfe_u32 v{vt+1}, v1, 4, 1"); E.i(f"v_lshl_add_u32 v{vt}, v{vt+1}, 11, v{vt}")
        E.i(f"v_and_b32 v{vt+1}, 1, v1"); E.i(f"v_lshl_add_u32 v{vt}, v{vt+1}, 4, v{vt}")
        E.i(f"v_bfe_u32 v{vt+1}, v1, 1, 1"); E.i(f"v_lshl_add_u32 v{vt}, v{vt+1}, 3, v{vt}")
        for nt in range(4):
            E.i(f"s_lshl_b32 s52, s88, 2"); E.i(f"s_add_u32 s52, s52, {nt}")
            E.i("s_mul_i32 s53, s52, 171"); E.i("s_lshr_b32 s53, s53, 9")
            E.i("s_mul_i32 s54, s53, 3"); E.i("s_sub_u32 s54, s52, s54")
            E.i("s_mul_i32 s53, s53, 40"); E.i("s_add_u32 s53, s53, s87"); E.i("s_mul_i32 s53, s53, 3"); E.i("s_add_u32 s53, s53, s54")
            E.i("s_lshl_b32 s53, s53, 10"); E.i(f"s_add_u32 s{96+nt}, s53, {W4F}")
        E.i("s_mov_b32 s86, 1")
        E.label(LS)
        E.i(f"v_add_u32 v{vt}, s55, v{vt}")
        for nt in range(4):
            for h in range(2):
                E.i(f"ds_read_b64_tr_b16 v[{F+4*nt+2*h}:{F+1+4*nt+2*h}], v{vt} offset:{h*512+nt*32}")
        E.i("s_waitcnt lgkmcnt(0)")
        for nt in range(4):
            E.i(f"buffer_store_dwordx4 v[{F+4*nt}:{F+3+4*nt}], v2, {WSR}, s{96+nt} offen{SC}")
        E.i("s_cmp_eq_u32 s86, 0"); E.branch(f"s_cbranch_scc1 {L}")
        for nt in range(4): E.i(f"v_mov_b32 v{F+16+nt}, 0")
        for q in range(4):
            for nt in range(4): E.i(f"v_dot2c_f32_bf16 v{F+16+nt}, s{sONE}, v{F+4*nt+q}")
        for pr in range(2):
            a_, b_ = F+16+2*pr, F+17+2*pr
            E.i(f"v_permlane32_swap_b32 v{a_}, v{b_}")
            E.i(f"v_add_f32 v{a_}, v{a_}, v{b_}")
        E.i(f"v_lshlrev_b32 v{vt}, 2, v1"); E.i("s_lshl_b32 s52, s88, 9"); E.i("s_mul_i32 s53, s87, 12288"); E.i("s_add_u32 s52, s52, s53"); E.i(f"s_add_u32 s52, s52, {CSP4}")
        for pr in range(2):
            E.i(f"buffer_store_dword v{F+16+2*pr}, v{vt}, {WSR}, s52 offen offset:{pr*256}{SC}")
    E.label(L)
    E.vm += ["s0st"] * 4

def code_touch(E, kname, endlabel):
    E.i("v_lshlrev_b32 v5, 7, v1")
    E.flush()
    E.i("s_getpc_b64 s[70:71]")
    E.raw(f"L_pc_{kname}:")
    E.i(f"s_sub_u32 s70, s70, L_pc_{kname}-ka_kernel"); E.i("s_subb_u32 s71, s71, 0")
    E.i("s_lshl_b32 s72, s3, 13"); E.i("v_add_u32 v6, s72, v5")
    E.i(f"v_min_u32 v6, {endlabel}-ka_kernel-4, v6"); E.i("v_and_b32 v6, 0xfffffffc, v6")
    E.i("global_load_dword v7, v6, s[70:71]")

def idle(E):
    E.bg_period = 0
    E.i("s_sub_u32 s60, s2, 240"); E.i("s_lshl_b32 s60, s60, 3"); E.i("s_add_u32 s60, s60, s3")
    if "tc0" in OPT: code_touch(E, "a", "L_end_of_code")
    if "tlb" in OPT:
        E.i("v_min_u32 v6, 16, v1"); E.i("v_lshlrev_b32 v6, 21, v6")
        E.i(f"buffer_load_dword v9, v6, {WSR}, 0 offen")
        E.i("v_and_b32 v6, 1, v1"); E.i("v_lshlrev_b32 v6, 21, v6")
        E.i(f"buffer_load_dword v9, v6, s[{SRD_OUT}:{SRD_OUT+3}], 0 offen")
    E.i("v_lshrrev_b32 v3, 2, v1"); E.i("v_and_b32 v4, 3, v1"); E.i("v_mul_u32_u24 v8, 1280, v3"); E.i("v_lshl_add_u32 v8, v4, 4, v8")
    E.i("s_mul_i32 s61, s60, 20480")
    for j in range(20): E.i(f"buffer_load_dwordx4 v[{96+4*j}:{99+4*j}], v8, s[{SRD_X}:{SRD_X+3}], s61 offen offset:{j*64}", tag=("xs", j))
    if "notc" not in OPT and "tc0" not in OPT: code_touch(E, "a", "L_end_of_code")
    nonce_issue(E, 15)
    for n in range(min(4, NB_IDLE)): s0_issue(E, 24, n)
    for r in range(4): E.i(f"v_mov_b32 v{10+r}, 0")
    for j in range(20):
        E.wait_vm(("xs", j))
        for q in range(4):
            E.i(f"v_dot2c_f32_bf16 v{10 + (q&1)}, s{sONE}, v{96+4*j+q}")
            E.i(f"v_dot2c_f32_bf16 v{12 + (q&1)}, v{96+4*j+q}, v{96+4*j+q}")
    E.i("v_add_f32 v16, v10, v11"); E.i("v_add_f32 v17, v12, v13")
    for perm in ("[1,0,3,2]", "[2,3,0,1]"):
        E.i(f"v_add_f32_dpp v16, v16, v16 quad_perm:{perm} row_mask:0xf bank_mask:0xf")
        E.i(f"v_add_f32_dpp v17, v17, v17 quad_perm:{perm} row_mask:0xf bank_mask:0xf")
    stats_math(E, 16, 17)
    nonce_get(E, 15)
    E.i("v_mov_b32 v18, v17"); E.i(f"v_mov_b32 v17, s{sNONCE}"); E.i(f"v_mov_b32 v19, s{sNONCE}")
    E.i("v_lshlrev_b32 v8, 4, v3"); E.i("s_lshl_b32 s61, s60, 8"); E.i(f"s_add_u32 s61, s61, {XST}")
    E.i("v_cmp_eq_u32 vcc, 0, v4"); E.i("s_mov_b64 exec, vcc")
    E.i(f"buffer_store_dwordx4 v[16:19], v8, {WSR}, s61 offen{SC}")
    E.i("s_mov_b64 exec, -1")
    stamp(E, 52, 31)
    for n in range(NB_IDLE):
        s0_finish(E, 32 + 32*(n % 2), 10, n)
        if n + 4 < NB_IDLE: s0_issue(E, 8, n + 4)
    for r in range(4): E.i(f"v_mov_b32 v{20+r}, 0")
    E.i("s_mul_i32 s61, s60, 5120"); E.i(f"s_add_u32 s61, s61, {FLG}"); E.i("s_add_u32 s62, s61, 4096")
    for j in range(5): E.i(f"buffer_store_dwordx4 v[20:23], v2, {WSR}, s{61 + j//4} offen offset:{(j%4)*1024}{SC}")
    stamp(E, 1, 31)
HH_BUSY = int(os.environ.get("HH_BUSY", "5"))
HH_IDLE = (11392 - 1920*HH_BUSY) // 128
assert 1920*HH_BUSY + 128*HH_IDLE == 11392

def ka_tail(E):
    return
    for r in range(4): E.i(f"v_mov_b32 v{20+r}, -1")
    E.i("s_lshl_b32 s52, s2, 3"); E.i("s_add_u32 s52, s52, s3"); E.i("s_mul_i32 s52, s52, 5760"); E.i(f"s_add_u32 s52, s52, {OF}"); E.i("s_add_u32 s53, s52, 4096")
    for t in range(5): E.i(f"buffer_store_dwordx4 v[20:23], v2, {WSR}, s{52 + t//4} offen offset:{(t%4)*1024}{SC}")
    E.i("s_mov_b32 exec_hi, 0xff")
    E.i(f"buffer_store_dwordx4 v[20:23], v2, {WSR}, s53 offen offset:1024{SC}")
    E.i("s_mov_b64 exec, -1")

def s1(E):
    E.i("s_and_b32 s52, s2, 7"); E.i("s_lshr_b32 s53, s2, 3")
    E.i("s_and_b32 s54, s52, 1"); E.i("s_mul_i32 s54, s54, 30"); E.i("s_add_u32 s54, s54, s53")
    sCT, sRB, sRHO, sC, sMT = 56, 57, 58, 59, 60
    E.i(f"s_lshr_b32 s{sCT}, s54, 2")
    E.i("s_and_b32 s55, s54, 3")
    E.i(f"s_lshr_b32 s{sRB}, s52, 1"); E.i(f"s_lshl_b32 s{sRB}, s{sRB}, 2"); E.i(f"s_add_u32 s{sRB}, s{sRB}, s55")
    if "rotl" in OPT:
        E.i(f"s_mul_i32 s{sRHO}, s55, 5"); E.i(f"s_lshr_b32 s{sRHO}, s{sRHO}, 1"); E.i("s_lshr_b32 s61, s52, 1")
    else:
        E.i(f"s_lshr_b32 s{sRHO}, s52, 1"); E.i(f"s_mul_i32 s{sRHO}, s{sRHO}, 5"); E.i(f"s_lshr_b32 s{sRHO}, s{sRHO}, 1")
        E.i("s_and_b32 s53, s52, 1"); E.i("s_mul_i32 s53, s53, 5"); E.i(f"s_add_u32 s{sRHO}, s{sRHO}, s53")
        E.i(f"s_cmp_ge_u32 s{sRHO}, 10"); E.i("s_cselect_b32 s53, 10, 0"); E.i(f"s_sub_u32 s{sRHO}, s{sRHO}, s53")
        E.i("s_mov_b32 s61, s55")
    E.i(f"s_and_b32 s{sC}, s3, 3"); E.i(f"s_lshr_b32 s{sMT}, s3, 2")
    vQO = [16, 17, 18, 19]
    vXo, vWo = 3, 4
    E.i("v_lshrrev_b32 v5, 3, v1"); E.i("s_lshl_b32 s52, s3, 3"); E.i("v_add_u32 v5, s52, v5")
    E.i("v_bfe_u32 v6, v5, 1, 3"); E.i("v_and_b32 v7, 7, v1"); E.i("v_xor_b32 v6, v6, v7")
    E.i("v_mul_u32_u24 v5, 1280, v5"); E.i(f"v_lshl_add_u32 v{vXo}, v6, 4, v5")
    E.i("v_lshrrev_b32 v5, 4, v1")
    E.i("v_lshlrev_b32 v6, 2, v5"); E.i("v_and_b32 v7, 15, v1"); E.i("v_xor_b32 v6, v6, v7")
    E.i("v_add_u32 v5, s52, v5")
    E.i("v_mul_u32_u24 v5, 3840, v5"); E.i(f"v_lshl_add_u32 v{vWo}, v6, 4, v5")
    sXb, sWb, sLX, sLW = 62, 63, 64, 65
    E.i(f"s_mul_i32 s{sXb}, s{sRB}, 81920")
    E.i(f"s_lshl_b32 s{sWb}, s{sCT}, 8")
    E.i(f"s_lshl_b32 s{sLX}, s3, 10"); E.i(f"s_lshl_b32 s{sLW}, s3, 11"); E.i(f"s_add_u32 s{sLW}, s{sLW}, 16384")
    sCH = 66
    def chunk(p):
        E.i(f"s_add_u32 s{sCH+p}, s{sRHO}, {p}")
        if p >= 3:
            E.i(f"s_cmp_ge_u32 s{sCH+p}, 10"); E.i("s_cselect_b32 s52, 10, 0"); E.i(f"s_sub_u32 s{sCH+p}, s{sCH+p}, s52")
    PK = 176
    def dma(p, i, other=0):
        sl = (p % 4) * 32768
        parked = 4 <= p < 4 + NPARK
        dst = f"v[{PK+16*(p-4)+4*i}:{PK+16*(p-4)+4*i+3}], " if parked else ""
        sfx = "" if parked else " lds"
        if i < 2:
            E.i(f"s_lshl_b32 s100, s{sCH+p}, 7"); E.i(f"s_add_u32 s100, s100, s{sXb}")
            if i or other: E.i(f"s_add_u32 s100, s100, {i*1310720 + other*32*1280}")
            if not parked: E.i(f"s_add_u32 m0, s{sLX}, {sl + i*8192 + other*4096}")
            E.i(f"buffer_load_dwordx4 {dst}v{vXo}, s[{SRD_X}:{SRD_X+3}], s100 offen{sfx}", tag=("c", p))
        else:
            E.i(f"s_mul_i32 s100, s{sCH+p}, 245760"); E.i(f"s_add_u32 s100, s100, s{sWb}")
            if i == 3 or other: E.i(f"s_add_u32 s100, s100, {(i-2)*15360 + other*32*3840}")
            if not parked: E.i(f"s_add_u32 m0, s{sLW}, {sl + (i-2)*1024 + other*8192}")
            E.i(f"buffer_load_dwordx4 {dst}v{vWo}, s[{SRD_W1}:{SRD_W1+3}], s100 offen{sfx}", tag=("c", p))
    for p in range(2):
        chunk(p)
        for i in range(4): dma(p, i)
    for p in range(2, 10): chunk(p)
    E.i(f"s_and_b32 s{sC}, s3, 3"); E.i(f"s_lshr_b32 s{sMT}, s3, 2")
    vXa = [[5, 6, 7, 8], [112, 113, 114, 115]]; vWa = [[9, 10, 11, 12], [116, 117, 118, 119]]; vQO = [16, 17, 18, 19]
    E.i("v_and_b32 v20, 31, v1"); E.i(f"s_lshl_b32 s52, s{sMT}, 5"); E.i("v_add_u32 v20, s52, v20")
    E.i("v_bfe_u32 v21, v20, 1, 3"); E.i("v_lshrrev_b32 v22, 5, v1"); E.i("v_xor_b32 v21, v21, v22")
    E.i("v_lshlrev_b32 v20, 7, v20"); E.i("v_lshl_add_u32 v20, v21, 4, v20")
    E.i("v_bfe_u32 v21, v1, 2, 2")
    E.i("v_lshrrev_b32 v22, 5, v1"); E.i("v_lshl_add_u32 v22, v22, 3, v21"); E.i("v_lshlrev_b32 v22, 8, v22")
    E.i(f"v_xor_b32 v21, s{sC}, v21"); E.i("v_lshl_add_u32 v22, v21, 6, v22")
    E.i("v_bfe_u32 v21, v1, 4, 1"); E.i("v_lshl_add_u32 v22, v21, 5, v22")
    E.i("v_and_b32 v21, 3, v1"); E.i("v_lshl_add_u32 v22, v21, 3, v22")
    E.i(f"v_add_u32 v22, 16384, v22")
    for sp in range(4):
        E.i(f"s_add_u32 s52, s{sC}, {sp}"); E.i("s_and_b32 s52, s52, 3")
        E.i("s_lshl_b32 s53, s52, 5"); E.i(f"v_xor_b32 v{vXa[0][sp]}, s53, v20"); E.i(f"v_add_u32 v{vXa[1][sp]}, 65536, v{vXa[0][sp]}")
        E.i("s_lshl_b32 s53, s52, 12"); E.i(f"v_add_u32 v{vWa[0][sp]}, s53, v22"); E.i(f"v_add_u32 v{vWa[1][sp]}, 65536, v{vWa[0][sp]}")
    for i in range(4): dma(2, i)
    sQO = 76
    E.i(f"s_mul_i32 s{sQO}, s{sRB}, 2560"); E.i(f"s_add_u32 s{sQO+1}, s{sQO}, 40960")
    E.i(f"s_lshl_b32 s78, s{sC}, 3"); E.i(f"s_lshl_b32 s53, s{sCT}, 5"); E.i("s_add_u32 s78, s78, s53"); E.i(f"s_lshl_b32 s79, s{sMT}, 1"); E.i("s_mov_b32 s80, 81920")
    FILL = ["v_lshrrev_b32 v20, 5, v1", "v_add_u32 v20, s78, v20", "v_bfe_u32 v21, v1, 4, 1", "v_add_u32 v21, s79, v21", "v_mul_u32_u24 v21, 640, v21", "v_and_b32 v22, 15, v1"]
    for a_ in range(4):
        FILL += [f"v_add_u32 v23, {2*a_}, v20", "v_mul_u32_u24 v24, 0xcccd, v23", "v_lshrrev_b32 v24, 18, v24", "v_mul_u32_u24 v25, 5, v24", "v_sub_u32 v25, v23, v25",
                 "v_mul_lo_u32 v24, v24, s80", "v_add_u32 v24, v24, v21", "v_lshl_add_u32 v24, v25, 7, v24", "v_and_b32 v25, 2, v25", "v_lshlrev_b32 v25, 2, v25", "v_xor_b32 v25, v25, v22",
                 f"v_lshl_add_u32 v{vQO[a_]}, v25, 3, v24"]
    sGRP = 61
    E.i(f"s_lshl_b32 s52, s{sMT}, 2"); E.i(f"s_add_u32 s{sGRP}, s{sGRP}, s52")
    stamp(E, 1, 31)
    ACC = [32, 48]; WFr = 64; XFr = [80, 96]
    SS = [28, 29, 30, 31]; SS2 = [20, 21, 22, 26]
    TX = [128 + i for i in range(16)]
    ks = [(p, sp) for p in range(10) for sp in range(4)]
    def rd(idx):
        p, sp = ks[idx]
        hi = (p % 4) // 2; off = (p % 2) * 32768
        wf = WFr + 4*sp
        E.i(f"ds_read_b64_tr_b16 v[{wf}:{wf+1}], v{vWa[hi][sp]} offset:{off}", tag=("r", idx))
        E.i(f"ds_read_b64_tr_b16 v[{wf+2}:{wf+3}], v{vWa[hi][sp]} offset:{off+1024}", tag=("r", idx))
        for h in range(2):
            E.i(f"ds_read_b128 v[{XFr[h]+4*sp}:{XFr[h]+4*sp+3}], v{vXa[hi][sp]} offset:{off + h*8192}", tag=("r", idx))
    D = 2
    def cs1_loads():
        E.bg_lock += 1
        E.i("v_and_b32 v13, 31, v1"); E.i("v_lshlrev_b32 v13, 3, v13"); E.i("v_lshrrev_b32 v14, 5, v1"); E.i("v_mul_u32_u24 v14, 76800, v14"); E.i("v_add_u32 v13, v13, v14")
        E.i(f"s_lshl_b32 s52, s{sCT}, 10"); E.i(f"s_add_u32 s52, s52, {CS1}"); E.i(f"s_lshl_b32 s53, s{sC}, 8"); E.i("s_add_u32 s52, s52, s53")
        for j in range(5):
            E.i(f"buffer_load_dwordx2 v[{144+2*j}:{145+2*j}], v13, {WSR}, s52 offen{SC}", tag="cs1")
            E.i("s_add_u32 s52, s52, 15360")
        E.i("v_and_b32 v13, 31, v1"); E.i("v_lshlrev_b32 v13, 4, v13"); E.i("v_lshrrev_b32 v14, 5, v1"); E.i("v_lshl_add_u32 v13, v14, 14, v13")
        E.i(f"s_lshl_b32 s52, s{sRB}, 10"); E.i(f"s_lshl_b32 s53, s{sMT}, 9"); E.i("s_add_u32 s52, s52, s53"); E.i(f"s_add_u32 s52, s52, {XST}")
        E.i(f"buffer_load_dwordx4 v[156:159], v13, {WSR}, s52 offen{SC}", tag="cs1")
        E.bg_lock -= 1
    def loop(g):
        E.wait_vm(("c", 0))
        E.i("s_barrier")
        stamp(E, 44, 27)
        E.bg_period = BGP1
        for idx in range(D): rd(idx)
        work = list(FILL); pwq = []; dskip = 0 if g == 0 else 2
        dq = [(lambda i=i: dma(3, i)) for i in range(4)] + [lambda: nonce_issue(E, 124)]
        for idx, (p, sp) in enumerate(ks):
            if sp == 2 and p < 9:
                if p + 1 <= 3 or p + 1 >= 4 + NPARK: E.wait_vm(("c", p + 1))
                if 4 <= p + 1 < 4 + NPARK: E.wait_lg("pw")
                if p == 2: nonce_get(E, 124)
                E.i("s_barrier")
                if p == 3 and g == 0:
                    Lc = E.newlabel("csst")
                    E.i(f"s_cmp_ge_u32 s{sGRP}, 3"); E.branch(f"s_cbranch_scc1 {Lc}")
                    with side(E):
                        E.i("v_add_f32 v120, v120, v121"); E.i("v_mov_b32 v121, v120"); E.i("v_permlane32_swap_b32 v120, v121"); E.i("v_add_f32 v120, v120, v121")
                        E.i("v_and_b32 v122, 31, v1"); E.i("v_lshlrev_b32 v122, 3, v122"); E.i(f"v_mov_b32 v121, s{sNONCE}")
                        E.i(f"s_add_u32 s52, s{sRHO}, s{sGRP}")
                        E.i(f"s_mul_i32 s52, s52, 15360"); E.i(f"s_lshl_b32 s53, s{sCT}, 10"); E.i("s_add_u32 s52, s52, s53"); E.i(f"s_lshl_b32 s53, s{sC}, 8"); E.i("s_add_u32 s52, s52, s53"); E.i(f"s_add_u32 s52, s52, {CS1}")
                        E.i("s_mov_b32 exec_hi, 0")
                        E.i(f"buffer_store_dwordx2 v[120:121], v122, {WSR}, s52 offen{SC}")
                        E.i("s_mov_b64 exec, -1")
                    E.label(Lc)
                if p in (2, 5, 8): stamp(E, 45 + p//3, 27)
                if 1 <= p <= NPARK:
                    pc = p + 3; sl = (pc % 4) * 32768
                    for i in range(4):
                        base = ((vPX, vPWW), (174, 175))[sl >= 65536][i >= 2]
                        off = (sl % 65536) + (i*8192 if i < 2 else (i-2)*1024)
                        r = PK + 16*(pc-4) + 4*i
                        pwq.append((pc, f"ds_write_b128 v{base}, v[{r}:{r+3}] offset:{off}"))
                if p == F0_CHK: cs1_loads()
                if NPARK < p <= 6:
                    for i in range(4): dq.append(lambda p=p, i=i: dma(p + 3, i))
                    dskip = 0 if g == 0 else 4
                if p == S0_ISS: s0_issue(E, 14, None)
                if p == S0_FIN + g: s0_finish(E, 224, 14, None)
            wf = WFr + 4*sp
            E.wait_lg(("r", idx))
            for h in range(2):
                c = "0" if idx == 0 else f"v[{ACC[h]}:{ACC[h]+15}]"
                E.i(f"v_mfma_f32_32x32x16_bf16 v[{ACC[h]}:{ACC[h]+15}], v[{wf}:{wf+3}], v[{XFr[h]+4*sp}:{XFr[h]+4*sp+3}], {c}")
                if p >= 4:
                    for _ in range(min(3, len(work))): E.i(work.pop(0))
                if h == 1 and p < 3 and g == 0:
                    Lc = E.newlabel("csp")
                    E.i(f"s_cmp_lg_u32 s{sGRP}, {p}"); E.i(f"s_cbranch_scc1 {Lc}")
                    hh_ = list(E.hist)
                    with side(E):
                        if sp == 0: E.i("v_mov_b32 v120, 0"); E.i("v_mov_b32 v121, 0")
                        for q in range(4): E.i(f"v_dot2c_f32_bf16 v{120 + (q&1)}, s{sONE}, v{wf+q}")
                    E.hist = hh_
                    E.raw(f"{Lc}:")
                if h == 0 and idx + D < len(ks): rd(idx + D)
                if dq:
                    if dskip: dskip -= 1
                    else: dq.pop(0)()
                if h == 1 and pwq:
                    pc, t_ = pwq.pop(0)
                    E.wait_vm(("c", pc)); E.i(t_, tag="pw")
    LG1, LJ = E.newlabel("s1G1"), E.newlabel("s1J")
    vm0 = list(E.vm); q0 = list(E.bgq)
    E.i("s_cmp_ge_u32 s3, 4"); E.branch(f"s_cbranch_scc1 {LG1}")
    loop(0)
    E.wait_vm("cs1")
    E.branch(f"s_branch {LJ}")
    E.label(LG1)
    E.vm = vm0; E.lg = []; E.bgq = q0
    loop(1)
    E.wait_vm("cs1")
    E.label(LJ)
    if "rep1" in OPT:
        for variant in range(3):
            E.i("s_waitcnt vmcnt(0) lgkmcnt(0)"); E.i("s_barrier"); stamp(E, 53 + 2*variant, 27); E.lg = []
            for idx in range(D): rd(idx)
            for idx, (p, sp) in enumerate(ks):
                if sp == 2 and p < 9 and variant != 1: E.i("s_barrier")
                wf = WFr + 4*sp
                E.wait_lg(("r", idx))
                for h in range(2):
                    E.i(f"v_mfma_f32_32x32x16_bf16 v[{192+16*h}:{192+16*h+15}], v[{wf}:{wf+3}], v[{XFr[h]+4*sp}:{XFr[h]+4*sp+3}], v[{192+16*h}:{192+16*h+15}]")
                    if variant == 2:
                        for q in range(6): E.i(f"v_fmac_f32 v{TX[q]}, v{TX[8+q]}, v{TX[8+q]}")
                    if h == 0 and idx + D < len(ks): rd(idx + D)
            E.i("s_barrier"); stamp(E, 54 + 2*variant, 27)
    E.wait_vm("cs1")
    Lc, Lok = E.newlabel("cs1c"), E.newlabel("cs1ok")
    E.label(Lc)
    for r in (145, 147, 149, 151, 153, 157, 159): E.i(f"v_xor_b32 v{r}, s{sNONCE}, v{r}")
    E.i("v_or3_b32 v145, v145, v147, v149"); E.i("v_or3_b32 v145, v145, v151, v153"); E.i("v_or3_b32 v145, v145, v157, v159")
    E.i("v_cmp_ne_u32 vcc, 0, v145")
    E.branch(f"s_cbranch_vccz {Lok}")
    with side(E): retry_tail(E, Lok, Lc, cs1_loads)
    E.label(Lok)
    E.i("v_add_f32 v144, v144, v146"); E.i("v_add_f32 v148, v148, v150"); E.i("v_add_f32 v144, v144, v152"); E.i("v_add_f32 v144, v144, v148")
    E.i("v_mov_b32 v145, v144"); E.i("v_permlane32_swap_b32 v144, v145"); E.i("v_add_f32 v144, v144, v145")
    E.i("v_and_b32 v13, 31, v1"); E.i("v_lshlrev_b32 v13, 2, v13"); E.i("s_lshl_b32 s52, s3, 12"); E.i(f"s_add_u32 s52, s52, {S0SCR}"); E.i("v_add_u32 v13, s52, v13")
    E.i("ds_write_b32 v13, v144")
    E.i("v_lshrrev_b32 v14, 5, v1"); E.i("v_lshlrev_b32 v14, 4, v14"); E.i("v_add_u32 v14, s52, v14")
    stamp(E, 2, 27)
    CS = 64
    for a in range(4): E.i(f"ds_read_b128 v[{CS+4*a}:{CS+4*a+3}], v14 offset:{a*32}")
    E.i("v_mov_b32 v28, v156"); E.i("v_mov_b32 v29, v158"); E.i("v_mov_b32 v30, v156"); E.i("v_mov_b32 v31, v158")
    E.i("v_permlane32_swap_b32 v28, v30"); E.i("v_permlane32_swap_b32 v29, v31")
    E.wait_lg()
    for h in range(2):
        SX, SXX = SS[2*h], SS[2*h+1]
        E.i(f"s_cmp_lt_u32 s{sCT}, 5"); E.i(f"s_cselect_b32 s52, {f2u((20 ** -0.5) * math.log2(math.e)):#x}, 1.0")
        E.i(f"v_mul_f32 v{SXX}, s52, v{SXX}")
        for a in range(4):
            A_ = ACC[h] + 4*a
            for b in range(4): E.i(f"v_fma_f32 v{A_+b}, v{SX}, v{CS+4*a+b}, v{A_+b}")
            for b in range(4): E.i(f"v_mul_f32 v{A_+b}, v{SXX}, v{A_+b}")
            o = 96 + 8*h + 2*a
            E.i(f"v_cvt_pk_bf16_f32 v{o}, v{A_}, v{A_+1}")
            E.i(f"v_cvt_pk_bf16_f32 v{o+1}, v{A_+2}, v{A_+3}")
            E.i(f"buffer_store_dwordx2 v[{o}:{o+1}], v{vQO[a]}, {WSR}, s{sQO+h} offen{SC}", tag="st")
    stamp(E, 5, 27)
    assert not E.bgq
CLR_AT = int(os.environ.get('CLR_AT', '-1'))
S0_FIN = int(os.environ.get('S0_FIN', '7'))
S0_ISS = int(os.environ.get('S0_ISS', '2'))
F0_SET, F0_CHK = 4, int(os.environ.get('F0_CHK', '7'))
NPARK = int(os.environ.get('NPARK', '0'))
BGP1 = int(os.environ.get("BGP1", "70"))
```

```python
from k21a import *

sRB3, sCT3, sCG4, sRB4 = 86, 87, 88, 89
W3R = 156; A3 = [68, 108]; ACC3 = 28
W5P1 = 168
AFR = 88
W5reg = lambda j: (W5P1 + 4*j) if j < 22 else (AFR + 48 + 4*(j-22))
A5 = [lambda f: AFR + 4*f, lambda f: (56 + 4*f) if f < 8 else (AFR + 4*(f-8))]
vA3 = 3
S2B_AT = int(os.environ.get("S2B_AT", "5"))
S3A_AT = int(os.environ.get("S3A_AT", "6"))

MAP3 = int(os.environ.get("MAP3", "2"))
MAP4 = int(os.environ.get("MAP4", "3"))
def late_scalars(E):
    E.i("s_and_b32 s52, s2, 7"); E.i("s_lshr_b32 s53, s2, 3")
    c = MAP3
    E.i(f"s_lshr_b32 s{sRB3}, s52, {3-c}"); E.i(f"s_lshl_b32 s{sRB3}, s{sRB3}, {5-c}"); E.i(f"s_lshr_b32 s54, s53, {c}"); E.i(f"s_add_u32 s{sRB3}, s{sRB3}, s54")
    E.i(f"s_and_b32 s{sCT3}, s52, {(1 << (3-c)) - 1}"); E.i(f"s_lshl_b32 s{sCT3}, s{sCT3}, {c}"); E.i(f"s_and_b32 s54, s53, {(1 << c) - 1}"); E.i(f"s_add_u32 s{sCT3}, s{sCT3}, s54")
    c = MAP4
    E.i(f"s_lshr_b32 s{sRB4}, s52, {5-c}"); E.i(f"s_lshl_b32 s{sRB4}, s{sRB4}, {5-c}"); E.i(f"s_lshr_b32 s54, s53, {c}"); E.i(f"s_add_u32 s{sRB4}, s{sRB4}, s54")
    E.i(f"s_and_b32 s{sCG4}, s52, {(1 << (5-c)) - 1}"); E.i(f"s_lshl_b32 s{sCG4}, s{sCG4}, {c}"); E.i(f"s_and_b32 s54, s53, {(1 << c) - 1}"); E.i(f"s_add_u32 s{sCG4}, s{sCG4}, s54")

def ld_unit(E, r, sbase, j, tag, vaddr=2, unit=1024):
    off = j * unit
    if off < 4096:
        E.i(f"buffer_load_dwordx4 v[{r}:{r+3}], v{vaddr}, {WSR}, s{sbase} offen offset:{off}{SC}", tag=tag)
    else:
        E.i(f"s_add_u32 s100, s{sbase}, {off - off % 4096}")
        E.i(f"buffer_load_dwordx4 v[{r}:{r+3}], v{vaddr}, {WSR}, s100 offen offset:{off % 4096}{SC}", tag=tag)

sWP, sW4, sW5, sA3, sA4, sA5, sHS, sHH = 56, 57, 59, 60, 62, 63, 65, 66
def bases(E):
    E.i(f"s_mul_i32 s{sW5}, s{sCT3}, 245760"); E.i("s_mul_i32 s53, s3, 30720"); E.i(f"s_add_u32 s{sW5}, s{sW5}, s53"); E.i(f"s_add_u32 s{sW5}, s{sW5}, {W5F}")
    E.i(f"s_mul_i32 s52, s{sCT3}, 102400"); E.i("s_mul_i32 s53, s3, 25600"); E.i("s_add_u32 s52, s52, s53"); E.i(f"s_add_u32 s52, s52, {W3F}")
    E.i(f"s_sub_u32 s53, s{sW5}, 3072")
    E.i("s_cmp_lt_u32 s3, 4"); E.i(f"s_cselect_b32 s{sWP}, s52, s53")
    E.i(f"s_mul_i32 s{sW4}, s{sCG4}, 122880"); E.i(f"s_add_u32 s{sW4}, s{sW4}, {W4F}"); E.i(f"s_lshl_b32 s{sW4+1}, s3, 10"); E.i(f"s_add_u32 s{sW4}, s{sW4}, s{sW4+1}")
    E.i(f"s_mul_i32 s{sA3}, s{sRB3}, 40960"); E.i(f"s_add_u32 s{sA3}, s{sA3}, {OF}")
    E.i("s_and_b32 s53, s3, 3"); E.i("s_lshl_b32 s72, s53, 12"); E.i("s_lshl_b32 s73, s53, 10"); E.i("s_add_u32 s73, s73, 16384")
    E.i(f"s_add_u32 s{sA3+1}, s{sA3}, {64*20480}")
    E.i("s_lshr_b32 s52, s3, 2"); E.i("s_xor_b32 s52, s52, 1"); E.i("s_lshl_b32 s52, s52, 3"); E.i(f"s_add_u32 s52, s52, s{sRB4}"); E.i("s_lshl_b32 s52, s52, 2"); E.i("s_and_b32 s53, s3, 3"); E.i("s_add_u32 s52, s52, s53")
    E.i(f"s_mov_b32 s90, s52")
    E.i(f"s_mul_i32 s{sA4}, s52, 40960"); E.i(f"s_add_u32 s{sA4}, s{sA4}, {HF}")
    E.i(f"s_lshl_b32 s{sHS}, s52, 11"); E.i(f"s_add_u32 s{sHS}, s{sHS}, {HSTB}")
    E.i(f"s_mul_i32 s{sHH}, s52, 98304"); E.i(f"s_mul_i32 s53, s{sCG4}, 3072"); E.i(f"s_add_u32 s{sHH}, s{sHH}, s53"); E.i(f"s_add_u32 s{sHH}, s{sHH}, {HHF}")
    E.i(f"s_mul_i32 s{sA5}, s{sRB3}, 98304"); E.i("s_mul_i32 s53, s3, 12288"); E.i(f"s_add_u32 s{sA5}, s{sA5}, s53"); E.i(f"s_add_u32 s{sA5}, s{sA5}, {HHF}")
    E.i(f"s_add_u32 s{sA5+1}, s{sA5}, {32*98304}")

def w4_unit(E, base):
    E.i(f"s_add_u32 m0, s{sW4+1}, {base*1024}"); E.i(f"s_add_u32 s100, s{sW4}, {base*1024}")
    E.i(f"buffer_load_dwordx4 v2, {WSR}, s100 offen{SC} lds", tag="w4")

def a3_all(E, ph):
    for k in range(5):
        for u in range(2):
            r = A3[ph] + (2*k + u)*4
            if k < 4:
                E.i(f"s_add_u32 s100, s{sA3+ph}, s72")
                if u: E.i("s_add_u32 s100, s100, 20480")
                E.i(f"buffer_load_dwordx4 v[{r}:{r+3}], v2, {WSR}, s100 offen offset:{k*1024}{SC}", tag=("a3", ph, k))
            else:
                E.i(f"s_add_u32 s100, s{sA3+ph}, s73")
                if u: E.i("s_add_u32 s100, s100, 20480")
                for h in range(2):
                    E.i(f"buffer_load_dwordx2 v[{r+2*h}:{r+2*h+1}], v{vA3}, {WSR}, s100 offen offset:{h*128}{SC}", tag=("a3", ph, k))

PSL = int(os.environ.get('PSL', '6'))
def probe(E, sbase, n, va, vd, loads=None, sleep=PSL):
    L, Lok = E.newlabel("prb"), E.newlabel("prbok")
    E.bg_lock += 1
    E.i(f"v_and_b32 v{va}, {n-1}, v1"); E.i(f"v_lshlrev_b32 v{va}, 7, v{va}")
    E.label(L)
    E.i(f"buffer_load_dword v{vd}, v{va}, {WSR}, s{sbase} offen{SC}", tag="probe")
    E.wait_vm("probe")
    E.i(f"v_cmp_eq_u32 vcc, 0, v{vd}")
    E.branch(f"s_cbranch_vccz {Lok}")
    E.i(f"s_sleep {sleep}")
    E.i(f"s_add_u32 s{sRETRY}, s{sRETRY}, 1"); E.i(f"s_cmp_gt_u32 s{sRETRY}, {RETRY_MAX}")
    E.branch(f"s_cbranch_scc0 {L}")
    E.label(Lok)
    if loads: loads()
    E.bg_lock -= 1
def signal(E, sreg, vt):
    E.bg_lock += 1
    E.i("s_waitcnt vmcnt(0)"); E.vm = []
    E.i(f"v_mov_b32 v{vt}, 1"); E.i("s_mov_b64 exec, 1")
    E.i(f"buffer_store_dword v{vt}, off, {WSR}, s{sreg}{SC}")
    E.i("s_mov_b64 exec, -1")
    E.bg_lock -= 1
def signal_last(E, sreg, idx, va, vt, nwait=0):
    L = E.newlabel("sl")
    E.bg_lock += 1
    E.i(f"s_waitcnt vmcnt({nwait})")
    if nwait == 0: E.vm = []
    E.i(f"v_mov_b32 v{va}, {CNT + 4*idx}"); E.i(f"v_mov_b32 v{vt}, 1"); E.i("s_mov_b64 exec, 1")
    E.i(f"ds_add_rtn_u32 v{va}, v{va}, v{vt}")
    E.i("s_waitcnt lgkmcnt(0)"); E.lg = []
    E.i(f"v_readfirstlane_b32 s53, v{va}")
    E.i("s_cmp_lg_u32 s53, 3"); E.branch(f"s_cbranch_scc1 {L}")
    with side(E): E.i(f"buffer_store_dword v{vt}, off, {WSR}, s{sreg}{SC}")
    E.label(L)
    E.i("s_mov_b64 exec, -1")
    E.bg_lock -= 1
sTB4 = 90
def probe_o(E, ph, va, vd, loads=None, sleep=PSL):
    E.i(f"s_lshl_b32 s101, s{sRB3}, 12"); E.i("s_lshl_b32 s52, s3, 10"); E.i("s_add_u32 s101, s101, s52"); E.i(f"s_add_u32 s101, s101, {FO + ph*131072}")
    probe(E, 101, 8, va, vd, loads, sleep)
def probe_h(E, va, vd, loads=None):
    E.i(f"s_lshl_b32 s101, s{sTB4}, 10"); E.i(f"s_add_u32 s101, s101, {FH}")
    probe(E, 101, 8, va, vd, loads)
def probe_s(E, va, vd, loads=None):
    E.i(f"s_lshl_b32 s101, s{sTB4}, 10"); E.i(f"s_add_u32 s101, s101, {FS}")
    probe(E, 101, 8, va, vd, loads)
def probe_hh(E, ph, va, vd, loads=None, sleep=PSL):
    E.i(f"s_lshl_b32 s101, s{sRB3}, 12"); E.i("s_lshl_b32 s52, s3, 9"); E.i("s_add_u32 s101, s101, s52"); E.i(f"s_add_u32 s101, s101, {FHH + ph*131072}")
    probe(E, 101, 4, va, vd, loads, sleep)

CNT = 2816
def gwait(E, idx, target, va, vt):
    L, Lok = E.newlabel("gw"), E.newlabel("gwok")
    E.bg_lock += 1
    E.i(f"v_mov_b32 v{va}, {CNT + 4*idx}")
    E.label(L)
    E.i(f"ds_read_b32 v{vt}, v{va}")
    E.i("s_waitcnt lgkmcnt(0)"); E.lg = []
    E.i(f"v_readfirstlane_b32 s52, v{vt}")
    E.i(f"s_cmp_ge_u32 s52, {target}")
    E.branch(f"s_cbranch_scc1 {Lok}")
    E.i("s_sleep 1")
    E.i(f"s_add_u32 s{sRETRY}, s{sRETRY}, 1"); E.i(f"s_cmp_gt_u32 s{sRETRY}, {RETRY_MAX*50}")
    E.branch(f"s_cbranch_scc0 {L}")
    E.label(Lok)
    E.bg_lock -= 1
def garrive(E, idx, va, vt):
    E.bg_lock += 1
    E.i("s_waitcnt lgkmcnt(0)"); E.lg = []
    E.i(f"v_mov_b32 v{va}, {CNT + 4*idx}"); E.i(f"v_mov_b32 v{vt}, 1")
    E.i("s_mov_b64 exec, 1")
    E.i(f"ds_add_u32 v{va}, v{vt}")
    E.i("s_mov_b64 exec, -1")
    E.bg_lock -= 1
GB = [0, 0]
def gbar(E, g, va, vt):
    GB[g] += 1
    garrive(E, g, va, vt); gwait(E, g, 4*GB[g], va, vt)

CSX = 118*1024
ONESL = 2688
def s2(E):
    KV = [122880, 92160]
    stamp(E, 6, 31)
    vD = 34
    s2_scalars(E)
    s2_loads(E, 0, 0, vD, 0, 0, KV[0])
    LO, LO4, K1, K2, VA, VS, vO1, vO2, M0_, M1_ = 4, 5, 6, 7, 8, 9, 10, 11, 32, 33
    QF = 12; BM = 20; KF = 36; VF = 52; PP = 68; S = [84, 100]; NM = 116; OA = 132
    E.i("v_and_b32 v24, 15, v1"); E.i("v_bfe_u32 v25, v1, 4, 1"); E.i("v_lshrrev_b32 v26, 5, v1")
    E.i("v_mul_u32_u24 v27, 640, v25")
    E.i("v_lshlrev_b32 v28, 3, v26"); E.i("v_xor_b32 v28, v28, v24"); E.i(f"v_lshl_add_u32 v{LO}, v28, 3, v27"); E.i(f"v_lshl_add_u32 v{LO}, v26, 8, v{LO}")
    E.i(f"v_lshl_add_u32 v{LO4}, v24, 3, v27"); E.i(f"v_add_u32 v{LO4}, 512, v{LO4}")
    for r in range(4, 8): E.i(f"v_mov_b32 v{QF+r}, 0")
    E.i(f"buffer_load_dwordx2 v[{QF}:{QF+1}], v{LO}, {WSR}, s{sQo} offen", tag="q")
    E.i(f"buffer_load_dwordx2 v[{QF+2}:{QF+3}], v{LO}, {WSR}, s{sQo} offen offset:128", tag="q")
    E.i("s_mov_b32 exec_hi, 0")
    E.i(f"buffer_load_dwordx2 v[{QF+4}:{QF+5}], v{LO4}, {WSR}, s{sQo} offen", tag="q")
    E.i("s_mov_b64 exec, -1")
    s2_loads(E, 0, 1, vD, 0, 0, KV[1])
    late_scalars(E); bases(E)
    E.i("s_and_b32 s52, s3, 3"); E.i("s_mul_i32 s52, s52, 1280"); E.i("s_lshr_b32 s53, s3, 2"); E.i(f"s_mul_i32 s53, s53, {KV[0]-KV[1]}"); E.i(f"s_add_u32 s52, s52, {KV[0]}"); E.i("s_sub_u32 s52, s52, s53")
    E.i(f"v_add_u32 v{K1}, s52, v{LO}"); E.i(f"v_add_u32 v{K2}, s52, v{LO4}")
    E.i("v_bfe_u32 v27, v1, 2, 2"); E.i("v_lshl_add_u32 v27, v26, 2, v27")
    E.i("v_and_b32 v28, 3, v1")
    E.i("v_lshlrev_b32 v29, 7, v28"); E.i("v_lshl_add_u32 v29, v27, 3, v29")
    E.i("v_and_b32 v30, 2, v28"); E.i("v_lshlrev_b32 v30, 5, v30")
    E.i("v_lshlrev_b32 v31, 3, v27"); E.i("v_add_u32 v31, 512, v31")
    E.i("v_cmp_eq_u32 vcc, 1, v25")
    E.i("v_cndmask_b32 v29, v29, v31, vcc"); E.i("v_cndmask_b32 v30, v30, 0, vcc")
    E.i("s_add_u32 s52, s52, 15360")
    E.i("v_add_u32 v29, s52, v29")
    E.i("v_cmp_ne_u32 s[54:55], 0, v28"); E.i("s_and_b64 vcc, vcc, s[54:55]")
    E.i(f"v_mov_b32 v31, {ONESL}"); E.i("v_cndmask_b32 v29, v29, v31, vcc")
    E.i(f"v_mov_b32 v31, 640"); E.i(f"v_cndmask_b32 v{VS}, v31, 0, vcc")
    VA2 = 35
    E.i(f"v_add_u32 v{VA}, v29, v30"); E.i("v_xor_b32 v30, 64, v30"); E.i(f"v_add_u32 v{VA2}, v29, v30")
    E.i("v_mul_u32_u24 v27, 20480, v25"); E.i(f"v_lshl_add_u32 v{vO2}, v24, 3, v27"); E.i(f"v_lshl_add_u32 v{vO1}, v24, 4, v27"); E.i(f"v_lshl_add_u32 v{vO1}, v26, 8, v{vO1}")
    E.i("v_lshrrev_b32 v27, 4, v1"); E.i(f"v_lshlrev_b32 v{vA3}, 8, v27"); E.i(f"v_lshl_add_u32 v{vA3}, v24, 3, v{vA3}")
    MS = [4,6,8,10,12,14,16,18,20,22,28,30,40,42,44,46]
    E.i("v_and_b32 v27, 31, v1"); E.i("v_lshlrev_b32 v28, 2, v26"); E.i("v_sub_u32 v27, v27, v28")
    E.i("v_mov_b32 v28, 0xffff"); E.i("v_mov_b32 v29, 0xffff0000")
    for r in range(16):
        E.i(f"v_cmp_le_i32 s[{MS[r]}:{MS[r]+1}], {8*(r//4) + r%4}, v27")
    for j in range(8):
        E.i(f"v_cndmask_b32 v30, 0, v28, s[{MS[2*j]}:{MS[2*j]+1}]"); E.i(f"v_cndmask_b32 v31, 0, v29, s[{MS[2*j+1]}:{MS[2*j+1]+1}]")
        E.i(f"v_or_b32 v{BM+j}, v30, v31")
    E.i("v_mov_b32 v142, 0"); E.i("v_mov_b32 v143, 0"); E.i(f"v_mov_b32 v37, {CNT}"); E.i("ds_write_b64 v37, v[142:143]"); E.i("ds_write_b64 v37, v[142:143] offset:8"); E.i("ds_write_b64 v37, v[142:143] offset:16")
    E.i(f"v_mov_b32 v142, s{sONE}"); E.i("v_and_b32 v37, 31, v1"); E.i("v_lshlrev_b32 v37, 2, v37"); E.i(f"ds_write_b32 v37, v142 offset:{ONESL}")
    for r in (KF+6, KF+7, KF+14, KF+15): E.i(f"v_mov_b32 v{r}, 0")
    E.wait_lg(); E.wait_vm()
    stamp(E, 7, 30)
    E.i("s_barrier")
    Lw = E.newlabel("g1pre")
    E.i("s_cmp_ge_u32 s3, 4"); E.branch(f"s_cbranch_scc1 {Lw}")
    E.i(f"s_setprio {ATT_PRIO}")
    E.branch(f"s_branch {Lw}_j")
    E.label(Lw)
    with side(E):
        E.i(f"s_sub_u32 s{sW4}, s{sW4}, 4096"); E.i(f"s_sub_u32 s{sW4+1}, s{sW4+1}, 4096")
        for u_ in W4U[:W4_EARLY]: w4_unit(E, u_)
        E.i("v_lshrrev_b32 v30, 1, v2"); E.i(f"s_mul_i32 s52, s{sW4+1}, 120"); E.i(f"s_mul_i32 s53, s{sCG4}, 384"); E.i("s_add_u32 s52, s52, s53"); E.i(f"s_add_u32 s52, s52, {CSP4}")
        for j in range(10):
            E.i(f"buffer_load_dwordx2 v[{200+2*j}:{201+2*j}], v30, {WSR}, s52 offen")
            E.i("s_add_u32 s52, s52, 12288")
    E.label(f"{Lw}_j")
    stamp(E, 8, 30); stamp(E, 10, 30, wave=4)
    E.i("s_cmp_lt_u32 s3, 4"); E.i("s_cselect_b64 vcc, -1, 0")
    def wpg(j):
        L = E.newlabel("wps")
        E.i(f"s_cbranch_vccz {L}")
        h = list(E.hist)
        ld_unit(E, W3R + 4*j, sWP, j, "wp")
        E.hist = h
        E.raw(f"{L}:")
    WPQ = [(lambda j=j: wpg(j)) for j in range(25)]
    order = [0, 8, 7, 6, 5, 4, 3, 2, 1]
    def rdk(n):
        b = order[n]; r = KF + 8*(n % 2)
        E.i(f"ds_read2_b64 v[{r}:{r+3}], v{K1} offset0:{(b*1280//8) % 256} offset1:{(b*1280//8 + 16) % 256}", tag=("k", n)) if b*1280//8 + 16 < 256 else (
            E.i(f"ds_read_b64 v[{r}:{r+1}], v{K1} offset:{b*1280}", tag=("k", n)), E.i(f"ds_read_b64 v[{r+2}:{r+3}], v{K1} offset:{b*1280+128}", tag=("k", n)))
        E.i(f"ds_read_b64 v[{r+4}:{r+5}], v{K2} offset:{b*1280}", tag=("k", n))
    def weave(big, small):
        nb = len(big); per = -(-len(small) // max(nb, 1))
        for f in big:
            f()
            for _ in range(per):
                if small: E.i(small.pop(0))
        while small: E.i(small.pop(0))
    def qk_parts(n, c):
        r = KF + 8*(n % 2); d = S[n % 2]
        def a():
            E.wait_lg(("k", n))
            E.i(f"v_mfma_f32_32x32x16_bf16 v[{d}:{d+15}], v[{r}:{r+3}], v[{QF}:{QF+3}], {c}")
        def b_():
            E.i(f"v_mfma_f32_32x32x16_bf16 v[{d}:{d+15}], v[{r+4}:{r+7}], v[{QF+4}:{QF+7}], v[{d}:{d+15}]")
            if n + 2 < 9: rdk(n + 2)
        return [a, b_]
    pads = []
    def exit_if_invalid(b, target):
        Lp = E.newlabel("pad"); pads.append((Lp, target))
        E.i(f"s_cmp_lt_u32 s{sTQ}, {16 - 2*b}"); E.branch_nf(f"s_cbranch_scc1 {Lp}")
    def merge():
        Lf = E.newlabel("fv"); pads.append((Lf, None))
        E.i(f"s_cmp_lt_u32 s{sTQ}, 16"); E.branch_nf(f"s_cbranch_scc1 {Lf}")
        E.raw(f"{Lf}_r:")
        for r in range(16): E.i(f"v_cndmask_b32 v{S[1]+r}, v{S[0]+r}, v{S[1]+r}, s[{MS[r]}:{MS[r]+1}]")
    if "rep2" in OPT:
        E.i("s_mov_b32 s77, 0"); E.label("L_rep2")
    Lp1 = E.newlabel("p1done")
    rdk(0); rdk(1)
    for f in qk_parts(0, "0") + qk_parts(1, "0"): f()
    merge()
    for n in range(1, 9):
        d = S[n % 2]
        if n >= 2: exit_if_invalid(order[n], Lp1)
        sm = []
        for j in range(0, 16, 4):
            if n == 1 and j == 0:
                sm += [f"v_max_f32 v{M0_}, v{d}, v{d+1}", f"v_max_f32 v{M1_}, v{d+2}, v{d+3}"]
            else:
                sm += [f"v_max3_f32 v{M0_}, v{d+j}, v{d+j+1}, v{M0_}", f"v_max3_f32 v{M1_}, v{d+j+2}, v{d+j+3}, v{M1_}"]
        weave(qk_parts(n + 1, "0") if n + 1 < 9 else [], sm)
        WPQ[n - 1]()
    E.label(Lp1)
    E.i("s_waitcnt lgkmcnt(0)"); E.lg = []
    rdk(0); rdk(1)
    E.i(f"v_max_f32 v{M0_}, v{M0_}, v{M1_}")
    E.i(f"v_mov_b32 v{M1_}, v{M0_}"); E.i(f"v_permlane32_swap_b32 v{M0_}, v{M1_}"); E.i(f"v_max_f32 v{M0_}, v{M0_}, v{M1_}")
    for r in range(16): E.i(f"v_sub_f32 v{NM+r}, 0, v{M0_}")
    vT1, vT2 = 30, 31
    def rdv(b, slot):
        for ks in range(2):
            tb = 2*b + ks
            E.i(f"v_mad_u32_u24 v{vT1}, v{VS}, {tb}, v{VA}"); E.i(f"v_mad_u32_u24 v{vT2}, v{VS}, {tb}, v{VA2}")
            r = VF + 8*slot + 4*ks
            E.i(f"ds_read_b64_tr_b16 v[{r}:{r+1}], v{vT1}", tag=("v", b)); E.i(f"ds_read_b64_tr_b16 v[{r+2}:{r+3}], v{vT2}", tag=("v", b))
    def pv_parts(b, slot, P, first, nxt=None):
        def mk(ks):
            def f():
                if ks == 0: E.wait_lg(("v", b))
                r = VF + 8*slot + 4*ks
                c = "0" if (first and ks == 0) else f"v[{OA}:{OA+15}]"
                E.i(f"v_mfma_f32_32x32x16_bf16 v[{OA}:{OA+15}], v[{r}:{r+3}], v[{P+4*ks}:{P+4*ks+3}], {c}")
                if ks == 1 and nxt is not None: rdv(nxt, slot)
            return f
        return [mk(0), mk(1)]
    nm = f"v[{NM}:{NM+15}]"
    Lp2 = E.newlabel("p2done")
    PF0 = 148
    for f in qk_parts(0, nm) + qk_parts(1, nm): f()
    rdv(0, 0); rdv(8, 1)
    merge()
    pend = []
    tails = []
    for n in range(1, 9):
        d = S[n % 2]; b = order[n]; P = PP + 8*(n % 2)
        if n >= 2:
            Lt = E.newlabel("p2t"); tails.append((Lt, n - 1))
            exit_if_invalid(b, Lt)
        sm = [f"v_exp_f32 v{d+j}, v{d+j}" for j in range(16)]
        weave((qk_parts(n + 1, nm) if n + 1 < 9 else []) + pend, sm)
        WPQ[8 + 2*(n-1)]()
        for j in range(8): E.i(f"v_cvt_pk_bf16_f32 v{P+j}, v{d+2*j}, v{d+2*j+1}")
        WPQ[9 + 2*(n-1)]()
        if n == 1:
            for j in range(8): E.i(f"v_bfi_b32 v{PF0+j}, v{BM+j}, 0, v{P+j}")
            for j in range(8): E.i(f"v_and_b32 v{P+j}, v{BM+j}, v{P+j}")
            pend = pv_parts(0, 0, PF0, True, order[2]) + pv_parts(8, 1, P, False, order[3])
        else:
            pend = pv_parts(b, n % 2, P, False, order[n + 2] if n + 2 < 9 else None)
    WPQ[24]()
    for f in pend: f()
    E.branch(f"s_branch {Lp2}")
    for Lp, target in pads:
        E.pad_label(Lp)
        if target is None:
            for r in range(16): E.i(f"v_mov_b32 v{S[0]+r}, {NEG:#x}")
            E.branch(f"s_branch {Lp}_r")
        else: E.branch(f"s_branch {target}")
    for Lt, m in tails:
        E.label(Lt)
        E.i("s_waitcnt lgkmcnt(0)"); E.lg = []
        P = PP + 8*(m % 2)
        parts = (pv_parts(0, 0, PF0, True) + pv_parts(8, 1, P, False)) if m == 1 else pv_parts(order[m], m % 2, P, False)
        for f in parts: f()
        E.branch(f"s_branch {Lp2}_w")
    E.label(f"{Lp2}_w")
    E.label(Lp2)
    if "rep2" in OPT:
        E.i("s_waitcnt lgkmcnt(0)"); E.lg = []
        E.i("s_cmp_eq_u32 s77, 1"); E.branch("s_cbranch_scc1 L_rep2_done")
        stamp(E, 12, 30); stamp(E, 13, 30, wave=4)
        E.i("s_barrier"); stamp(E, 37, 30)
        E.i("s_mov_b32 s77, 1"); E.branch("s_branch L_rep2")
        E.label("L_rep2_done")
    stamp(E, 9, 30); stamp(E, 11, 30, wave=4)
    E.i("s_lshr_b32 s52, s3, 2"); E.i("s_lshl_b32 s52, s52, 2"); E.i(f"s_add_u32 s52, s52, {CNT + 8}")
    E.i("s_waitcnt lgkmcnt(0)"); E.lg = []
    E.i("v_mov_b32 v30, s52"); E.i("v_mov_b32 v31, 1"); E.i("s_mov_b64 exec, 1"); E.i("ds_add_u32 v30, v31"); E.i("s_mov_b64 exec, -1")
    E.i(f"v_rcp_f32 v{M0_}, v{OA+12}")
    for r in range(12): E.i(f"v_mul_f32 v{OA+r}, v{OA+r}, v{M0_}")
    for j in range(6): E.i(f"v_cvt_pk_bf16_f32 v{PP+j}, v{OA+2*j}, v{OA+2*j+1}")
    E.i(f"v_permlane32_swap_b32 v{PP}, v{PP+2}"); E.i(f"v_permlane32_swap_b32 v{PP+1}, v{PP+3}")
    E.i(f"s_lshl_b32 s52, s{sHD}, 9"); E.i(f"s_add_u32 s52, s52, s{sOo}")
    E.i(f"s_lshl_b32 s53, s{sHD}, 7"); E.i(f"s_add_u32 s53, s53, s{sOo}"); E.i("s_add_u32 s53, s53, 16384")
    E.i(f"buffer_store_dwordx4 v[{PP}:{PP+3}], v{vO1}, {WSR}, s52 offen{SC}", tag="st")
    E.i("s_mov_b32 exec_hi, 0")
    E.i(f"buffer_store_dwordx2 v[{PP+4}:{PP+5}], v{vO2}, {WSR}, s53 offen{SC}", tag="st")
    E.i("s_mov_b64 exec, -1")
    E.i(f"s_lshl_b32 s52, s{sTQ}, 11"); E.i(f"s_lshl_b32 s53, s{sHD}, 7"); E.i("s_add_u32 s52, s52, s53"); E.i(f"s_add_u32 s52, s52, {FO}")
    signal(E, 52, 30)
    Lw = E.newlabel("wpre")
    E.i(f"s_cmp_ge_u32 s{sTQ}, 14"); E.branch(f"s_cbranch_scc1 {Lw}")
    with side(E):
        for j in range(25): ld_unit(E, W3R + 4*j, sWP, j, "wp")
    E.label(Lw)
W4_PRE = int(os.environ.get("W4_PRE", "8"))

def final_sum(E, vPR, nslots, T, off0, vt):
    for half in range(nslots // 4):
        for w in range(4):
            off = off0 + (half*4 + w)*10240
            for g in range(2):
                o = off + g*256
                r = T + 8 + (w*2+g)*4
                if o > 65535:
                    E.i(f"v_add_u32 v{vt}, 40960, v{vPR}"); E.i(f"ds_read_b128 v[{r}:{r+3}], v{vt} offset:{o-40960}")
                else:
                    E.i(f"ds_read_b128 v[{r}:{r+3}], v{vPR} offset:{o}")
        E.wait_lg()
        for j in range(8):
            g, b = j // 4, j % 4
            sr = [T + 8 + (w*2+g)*4 + b for w in range(4)]
            E.i(f"v_add_f32 v{sr[0]}, v{sr[0]}, v{sr[1]}"); E.i(f"v_add_f32 v{sr[2]}, v{sr[2]}, v{sr[3]}")
            if half == 0: E.i(f"v_add_f32 v{T+j}, v{sr[0]}, v{sr[2]}")
            else:
                E.i(f"v_add_f32 v{T+j}, v{T+j}, v{sr[0]}"); E.i(f"v_add_f32 v{T+j}, v{T+j}, v{sr[2]}")

def add_res_pack(E, T, RES, OUT, vt, clamp):
    for j in range(4):
        E.i(f"v_lshlrev_b32 v{vt}, 16, v{RES+j}"); E.i(f"v_add_f32 v{T+2*j}, v{T+2*j}, v{vt}")
        E.i(f"v_and_b32 v{vt}, 0xffff0000, v{RES+j}"); E.i(f"v_add_f32 v{T+2*j+1}, v{T+2*j+1}, v{vt}")
    for j in range(4):
        E.i(f"v_cvt_pk_bf16_f32 v{OUT+j}, v{T+2*j}, v{T+2*j+1}")
        if clamp: E.i(f"v_min_u32 v{OUT+j}, s{sM1}, v{OUT+j}")

def lane_pr(E, dst, t0, t1):
    E.i(f"v_bfe_u32 v{t0}, v1, 4, 1"); E.i(f"v_mul_u32_u24 v{t0}, 5120, v{t0}"); E.i(f"v_lshrrev_b32 v{t1}, 5, v1"); E.i(f"v_lshl_add_u32 v{t0}, v{t1}, 9, v{t0}")
    E.i(f"v_and_b32 v{t1}, 15, v1"); E.i(f"v_lshl_add_u32 v{dst}, v{t1}, 4, v{t0}")
def lane_xr(E, dst, t0, t1):
    E.i(f"v_and_b32 v{t0}, 31, v1"); E.i(f"v_mul_u32_u24 v{t0}, 1280, v{t0}"); E.i(f"v_lshrrev_b32 v{t1}, 5, v1"); E.i(f"v_lshl_add_u32 v{dst}, v{t1}, 4, v{t0}")

def a4_load(E, i):
    ld_unit(E, AFR + 4*(i % 20), sA4, i, ("a4", i))

AUXB = 0
CSF = 2048
WF4 = 64
def w4_first(E):
    E.i(f"s_sub_u32 s52, s{sW4}, s{sW4+1}")
    for t in range(3): ld_unit(E, WF4 + 4*t, 52, t, "w40")
def s3(E):
    stamp(E, 14, 35); stamp(E, 36, 35, wave=4)
    LG1, LJ = E.newlabel("s3g1"), E.newlabel("s3j")
    E.i("s_cmp_ge_u32 s3, 4"); E.branch(f"s_cbranch_scc1 {LG1}")
    E.vm = []
    E.i("s_setprio 2")
    vPW, vM, vPR, vXR = 4, 5, 8, 9
    RES = 12
    T = 68
    E.i("s_mul_i32 s52, s3, 10240"); E.i(f"s_add_u32 s52, s52, {SCR}"); E.i(f"v_add_u32 v{vPW}, s52, v2")
    lane_pr(E, vPR, 6, 7); lane_xr(E, vXR, 6, 7)
    E.i(f"v_add_u32 v{vPR}, s{sW4+1}, v{vPR}"); E.i(f"v_add_u32 v{vPR}, {SCR}, v{vPR}")
    E.i(f"s_lshr_b32 s52, s{sW4+1}, 5"); E.i(f"v_add_u32 v{vXR}, s52, v{vXR}")
    E.i(f"s_mul_i32 s52, s{sRB3}, 40960"); E.i(f"s_mul_i32 s53, s{sCT3}, 160"); E.i("s_add_u32 s52, s52, s53"); E.i("s_add_u32 s53, s52, 1310720")
    for ph in range(2):
        E.i(f"buffer_load_dwordx4 v[{RES+8*ph}:{RES+8*ph+3}], v{vXR}, s[{SRD_X}:{SRD_X+3}], s{52+ph} offen", tag="res")
        E.i(f"buffer_load_dwordx4 v[{RES+8*ph+4}:{RES+8*ph+7}], v{vXR}, s[{SRD_X}:{SRD_X+3}], s{52+ph} offen offset:128", tag="res")
    sHW = 67
    E.i(f"s_mul_i32 s{sHW}, s{sRB3}, 40960"); E.i(f"s_mul_i32 s53, s{sCT3}, 5120"); E.i(f"s_add_u32 s{sHW}, s{sHW}, s53"); E.i(f"s_add_u32 s{sHW}, s{sHW}, s{sW4+1}"); E.i(f"s_add_u32 s{sHW}, s{sHW}, {HF}")
    E.i(f"s_add_u32 s{sHW+1}, s{sHW}, {32*40960}")
    for ph in range(2):
        if ph == 0: probe_o(E, 0, 6, 7, lambda: a3_all(E, 0))
        Lb = E.newlabel("s3v")
        E.label(Lb)
        for k in range(5):
            E.wait_vm(("a3", ph, k))
            for u in range(2):
                af = A3[ph] + (2*k+u)*4
                for nt in range(5):
                    a = ACC3 + (u*5+nt)*4; wf = W3R + (k*5+nt)*4
                    c = "0" if k == 0 else f"v[{a}:{a+3}]"
                    E.i(f"v_mfma_f32_16x16x32_bf16 v[{a}:{a+3}], v[{wf}:{wf+3}], v[{af}:{af+3}], {c}")
        stamp(E, 15 + 3*ph, 6)
        if ph == 0: gwait(E, 2, 4, 6, 7)
        else: gwait(E, 0, 4*GB[0], 6, 7)
        for j in range(10): E.i(f"ds_write_b128 v{vPW}, v[{ACC3+4*j}:{ACC3+4*j+3}] offset:{j*1024}")
        GB[0] += 1; garrive(E, 0, 6, 7)
        if ph == 0:
            E.i(f"s_lshl_b32 s101, s{sRB3}, 12"); E.i("s_lshl_b32 s52, s3, 10"); E.i("s_add_u32 s101, s101, s52"); E.i(f"s_add_u32 s101, s101, {FO + 131072}")
            E.i("v_and_b32 v11, 7, v1"); E.i("v_lshlrev_b32 v11, 7, v11")
        gwait(E, 0, 4*GB[0], 6, 7)
        if ph == 0: E.i(f"buffer_load_dword v11, v11, {WSR}, s101 offen{SC}", tag="aprobe")
        stamp(E, 16 + 3*ph, 6)
        E.wait_vm("res")
        for unit in range(2):
            Lu = None
            if unit == 1:
                Lu = E.newlabel("fin4"); E.i("s_cmp_lg_u32 s3, 0"); E.branch(f"s_cbranch_scc1 {Lu}")
                cm = side(E); cm.__enter__()
            final_sum(E, vPR, 4, T, unit*4096, 6)
            add_res_pack(E, T, RES + 8*ph + 4*unit, 28, 6, False)
            if unit == 0: E.i(f"buffer_store_dwordx4 v[28:31], v2, {WSR}, s{sHW+ph} offen{SC}", tag="st")
            else:
                E.i(f"s_add_u32 s52, s{sHW+ph}, 4096"); E.i(f"buffer_store_dwordx4 v[28:31], v2, {WSR}, s52 offen{SC}")
            if unit == 0:
                E.i(f"v_add_f32 v32, v{T}, v{T+1}"); E.i(f"v_mul_f32 v33, v{T}, v{T}"); E.i(f"v_mul_f32 v35, v{T+1}, v{T+1}"); E.i(f"v_add_f32 v34, v{T+2}, v{T+3}")
                for j in range(2, 8): E.i(f"v_fmac_f32 v{33 if j&1 else 35}, v{T+j}, v{T+j}")
                for j in range(4, 8): E.i(f"v_add_f32 v{32 if j&1 else 34}, v{32 if j&1 else 34}, v{T+j}")
            else:
                for j in range(8):
                    E.i(f"v_fmac_f32 v{33 if j&1 else 35}, v{T+j}, v{T+j}"); E.i(f"v_add_f32 v{32 if j&1 else 34}, v{32 if j&1 else 34}, v{T+j}")
                cm.__exit__(); E.label(Lu)
        E.i("v_add_f32 v32, v32, v34"); E.i("v_add_f32 v33, v33, v35")
        E.i("v_mov_b32 v34, v32"); E.i("v_mov_b32 v35, v33")
        E.i("v_permlane32_swap_b32 v32, v34"); E.i("v_permlane32_swap_b32 v33, v35")
        E.i("v_add_f32 v32, v32, v34"); E.i("v_add_f32 v33, v33, v35")
        E.i("v_and_b32 v10, 31, v1"); E.i("v_lshlrev_b32 v10, 3, v10"); E.i(f"s_lshr_b32 s52, s{sW4+1}, 2"); E.i(f"s_add_u32 s52, s52, {AUXB + ph*1024}"); E.i("v_add_u32 v34, s52, v10")
        E.i("ds_write_b64 v34, v[32:33]")
        garrive(E, 0, 6, 7); GB[0] += 1
        E.i(f"s_lshl_b32 s52, s{sRB3}, 10"); E.i(f"s_lshl_b32 s53, s{sCT3}, 7"); E.i("s_add_u32 s52, s52, s53"); E.i(f"s_add_u32 s52, s52, {FH + ph*32768}")
        if ph == 0:
            Lsl, Lj_ = E.newlabel("slow"), E.newlabel("fj")
            E.i("s_mov_b32 s54, s52")
            E.wait_vm("aprobe")
            E.i("v_cmp_eq_u32 vcc, 0, v11")
            E.branch(f"s_cbranch_vccnz {Lsl}")
            with side(E):
                a3_all(E, 1)
                signal_last(E, 54, 4, 6, 7, 12)
            E.branch(f"s_branch {Lj_}")
            E.label(Lsl)
            signal_last(E, 54, 4, 6, 7)
            probe_o(E, 1, 6, 7, lambda: a3_all(E, 1))
            E.label(Lj_)
        else: signal_last(E, 52, 5, 6, 7)
        stamp(E, 17 + 3*ph, 6)
    gwait(E, 0, 4*GB[0], 6, 7)
    hst(E, 0, 2); hst(E, 1, 3)
    for j in range(W5_PRE): ld_unit(E, W5reg(j), sW5, j, ("w5", j))
    G0_DONE = 4*GB[0]
    gwait(E, 1, 12, 6, 7)
    E.i(f"s_setprio {G0_PRIO}")
    q = [(("w5", j), (lambda j=j: ld_unit(E, W5reg(j), sW5, j, ("w5", j)))) for j in range(W5_PRE, 22)]
    s4(E, 1, q)
    E.branch(f"s_branch {LJ}")
    E.label(LG1)
    E.vm = []; E.lg = []
    for u_ in W4U[W4_EARLY:]: w4_unit(E, u_)
    gwait(E, 3, 4, 6, 7)
    for i in range(7): w4_unit(E, 90 + 4*i)
    E.i("v_lshrrev_b32 v8, 1, v2")
    E.i("v_add_f32 v16, v200, v202"); E.i("v_add_f32 v17, v201, v203")
    for j in range(2, 10):
        E.i(f"v_add_f32 v16, v16, v{200+2*j}"); E.i(f"v_add_f32 v17, v17, v{201+2*j}")
    E.i(f"s_lshr_b32 s52, s{sW4+1}, 1"); E.i(f"s_add_u32 s52, s52, {CSX}"); E.i("v_add_u32 v9, s52, v8")
    E.i("ds_write_b64 v9, v[16:17]")
    gbar(E, 1, 6, 7)
    E.i(f"v_add_u32 v9, {CSX}, v8")
    for w in range(4): E.i(f"ds_read_b64 v[{16+2*w}:{17+2*w}], v9 offset:{w*512}")
    E.wait_lg()
    for w in range(1, 4):
        E.i(f"v_add_f32 v16, v16, v{16+2*w}"); E.i(f"v_add_f32 v17, v17, v{17+2*w}")
    E.i(f"ds_write_b64 v8, v[16:17] offset:{CSF}")
    gbar(E, 1, 6, 7)
    Lq = E.newlabel("w4q"); E.i("s_cmp_ge_u32 s3, 6"); E.branch(f"s_cbranch_scc1 {Lq}")
    with side(E): w4_unit(E, 118)
    E.label(Lq)
    E.vm = []
    for j in range(G1W5): ld_unit(E, W5reg(j), sW5, j, ("w5", j))
    E.i(f"s_waitcnt vmcnt({G1W5})")
    gbar(E, 1, 6, 7)
    s4(E, 0, [(("w5", j), (lambda j=j: ld_unit(E, W5reg(j), sW5, j, ("w5", j)))) for j in range(G1W5, 22)])
    gwait(E, 0, G0_DONE, 12, 13)
    E.label(LJ)
    E.vm = ["st"]; E.lg = []

def hst(E, ph, wv):
    Ls = E.newlabel("hst")
    E.i(f"s_cmp_lg_u32 s3, {wv}"); E.branch(f"s_cbranch_scc1 {Ls}")
    with side(E):
        E.i(f"v_add_u32 v11, {AUXB + ph*1024}, v10")
        for j in range(4): E.i(f"ds_read_b64 v[{148+2*j}:{149+2*j}], v11 offset:{j*256}")
        E.i("s_waitcnt lgkmcnt(0)")
        for j in range(1, 4):
            E.i(f"v_add_f32 v148, v148, v{148+2*j}"); E.i(f"v_add_f32 v149, v149, v{149+2*j}")
        E.i(f"s_lshl_b32 s52, s{sRB3}, 11"); E.i(f"s_lshl_b32 s53, s{sCT3}, 8"); E.i("s_add_u32 s52, s52, s53"); E.i(f"s_add_u32 s52, s52, {HSTB + ph*32*2048}")
        E.i("s_mov_b32 exec_hi, 0")
        E.i(f"buffer_store_dwordx2 v[148:149], v10, {WSR}, s52 offen{SC}")
        E.i("s_mov_b64 exec, -1")
        E.i(f"s_lshl_b32 s52, s{sRB3}, 10"); E.i(f"s_lshl_b32 s53, s{sCT3}, 7"); E.i("s_add_u32 s52, s52, s53"); E.i(f"s_add_u32 s52, s52, {FS + ph*32768}")
        signal(E, 52, 148)
    E.label(Ls)
W5_PRE = int(os.environ.get("W5_PRE", "22"))
WP_PRE = int(os.environ.get("WP_PRE", "8"))
A3B_LATE = int(os.environ.get("A3B_LATE", "1"))
A5_AT = int(os.environ.get("A5_AT", "40"))
G0_PRIO = int(os.environ.get("G0_PRIO", "0"))
G1W5 = int(os.environ.get("G1W5", "22"))
W4U = list(range(3, 87, 4)) + [86]
W4_EARLY = int(os.environ.get("W4_EARLY", "22"))
ATT_PRIO = int(os.environ.get("ATT_PRIO", "2"))
S4_INIT = int(os.environ.get("S4_INIT", "8"))
S4_FIRST = 5
WP_FIRST = int(os.environ.get("WP_FIRST", "14"))
W4_S2 = int(os.environ.get("W4_S2", "10"))
F1_AT = int(os.environ.get("F1_AT", "6"))

vA5 = 7
def a5_load(E, ph, f):
    k, u = f // 2, f % 2
    r = A5[ph](f); off = k*2048 + u*256
    E.i(f"s_add_u32 s100, s{sA5+ph}, {off - off % 4096}")
    E.i(f"buffer_load_dwordx4 v[{r}:{r+3}], v{vA5}, {WSR}, s100 offen offset:{off % 4096}{SC}", tag=("a5", ph, f))

def a4_touch(E, va, vd):
    E.i(f"s_and_b32 s52, s{sCG4}, 7"); E.i("s_lshl_b32 s52, s52, 7"); E.i(f"s_add_u32 s52, s52, s{sA4}"); E.i("s_add_u32 s52, s52, 8192")
    E.i(f"v_and_b32 v{va}, 31, v1"); E.i(f"v_lshlrev_b32 v{va}, 10, v{va}")
    E.i(f"buffer_load_dword v{vd}, v{va}, {WSR}, s52 offen{SC}")

def s4(E, g, q0):
    vWB, vWB2, vCSR, vM = 3, 4, 6, 5
    ST = 8; SX, SXX = 8, 9
    ACC = 16; WF = WF4
    stamp(E, 21 if g == 0 else 24, 15, wave=4*(1-g))
    if g == 0: E.i("s_setprio 1")
    E.i(f"v_add_u32 v{vWB2}, 61440, v2")
    E.i("v_lshrrev_b32 v8, 5, v1"); E.i("v_lshlrev_b32 v8, 4, v8"); E.i(f"v_add_u32 v{vCSR}, {CSF}, v8")
    E.i("v_lshrrev_b32 v8, 4, v1"); E.i("v_and_b32 v9, 15, v1"); E.i("v_lshlrev_b32 v8, 9, v8"); E.i(f"v_lshl_add_u32 v{vA5}, v9, 4, v8")
    K1, K2 = 78, 79
    k1 = -2.0 * 0.7978845608028654 * 1.4426950408889634
    E.i(f"s_mov_b32 s{K1}, {f2u(k1):#x}"); E.i(f"s_mov_b32 s{K2}, {f2u(k1*0.044715):#x}")
    def st_loads():
        E.i(f"v_lshrrev_b32 v{ST+6}, 1, v2")
        for i in range(4):
            E.i(f"buffer_load_dwordx2 v[{ST+2*i}:{ST+2*i+1}], v{ST+6}, {WSR}, s{sHS} offen offset:{i*512}{SC}", tag="hst")
    w4_first(E)
    probe_h(E, 8, 9, lambda: [a4_load(E, i) for i in range(S4_INIT)])
    if "touch" in OPT: a4_touch(E, 8, 9)
    Lb = E.newlabel("s4v"); Lh = E.newlabel("s4h")
    E.label(Lb)
    E.bg_period = 0
    def rd(i):
        for t in range(3):
            r = WF + (i%2)*12 + 4*t
            o = (i*3+t)*1024
            if o < 61440: E.i(f"ds_read_b128 v[{r}:{r+3}], v2 offset:{o}", tag=("w", i))
            else: E.i(f"ds_read_b128 v[{r}:{r+3}], v{vWB2} offset:{o-61440}", tag=("w", i))
    sched = [[] for _ in range(41)]
    nxt = S4_INIT
    for i in range(40):
        for _ in range(2 if nxt < 20 else 1):
            if nxt < 40 and nxt - 20 < i:
                sched[i].append(lambda n=nxt: a4_load(E, n)); nxt += 1
    assert nxt == 40
    q = list(q0)
    for n, (tg, fn) in enumerate(q): sched[min((8 if g else 18) + n, 40)].append(fn)
    if g == 1:
        for n in range(22, 30): sched[33 + n - 22].append(lambda n=n: ld_unit(E, W5reg(n), sW5, n, ("w5", n)))
    for i in range(40):
        if i + 1 < 40: rd(i + 1)
        E.wait_vm(("a4", i))
        if i > 0: E.wait_lg(("w", i))
        af = AFR + 4*(i % 20)
        ops = list(sched[i])
        for t in range(3):
            r = WF + (i%2)*12 + 4*t; a = ACC + 16*t
            c = "0" if i == 0 else f"v[{a}:{a+15}]"
            E.i(f"v_mfma_f32_32x32x16_bf16 v[{a}:{a+15}], v[{r}:{r+3}], v[{af}:{af+3}], {c}")
            if ops: ops.pop(0)()
        for o in ops: o()
        if i == 30: probe_s(E, 8, 9, st_loads)
        if i in (0, 9, 19, 29): stamp(E, 53 + 5*g + (i+1)//10, 3, wave=4*(1-g))
    stamp(E, 22 if g == 0 else 25, 87, wave=4*(1-g))
    for o in sched[40]: E.bg_push("x", o)
    if g == 0:
        for n in range(22, 30): E.bg_push(("w5", n), lambda n=n: ld_unit(E, W5reg(n), sW5, n, ("w5", n)))
    E.bg_period = BGP
    E.wait_vm("hst")
    E.i(f"v_add_f32 v{ST}, v{ST}, v{ST+2}"); E.i(f"v_add_f32 v{ST+1}, v{ST+1}, v{ST+3}")
    E.i(f"v_add_f32 v{ST+4}, v{ST+4}, v{ST+6}"); E.i(f"v_add_f32 v{ST+5}, v{ST+5}, v{ST+7}")
    E.i(f"v_add_f32 v{ST}, v{ST}, v{ST+4}"); E.i(f"v_add_f32 v{ST+1}, v{ST+1}, v{ST+5}")
    E.i(f"v_mov_b32 v{ST+2}, v{ST}"); E.i(f"v_mov_b32 v{ST+3}, v{ST+1}")
    E.i(f"v_permlane32_swap_b32 v{ST}, v{ST+2}"); E.i(f"v_permlane32_swap_b32 v{ST+1}, v{ST+3}")
    E.i(f"v_add_f32 v{ST}, v{ST}, v{ST+2}"); E.i(f"v_add_f32 v{ST+1}, v{ST+1}, v{ST+3}")
    stats_math(E, SX, SXX)
    E.i(f"v_mul_f32 v11, v{SXX}, v{SXX}"); E.i(f"v_mul_f32 v10, s{K1}, v{SXX}"); E.i(f"v_mul_f32 v12, v11, v{SXX}"); E.i(f"v_mul_f32 v12, s{K2}, v12"); E.i("v_rcp_f32 v11, v11")
    for q_ in range(4): E.i(f"ds_read_b128 v[{WF+4*q_}:{WF+4*q_+3}], v{vCSR} offset:{q_*32}")
    for t in range(3):
        a = ACC + 16*t; C = WF; G = WF + 16
        E.wait_lg()
        for r in range(16): E.i(f"v_fma_f32 v{a+r}, v{SX}, v{C+r}, v{a+r}")
        if t < 2:
            for q_ in range(4): E.i(f"ds_read_b128 v[{C+4*q_}:{C+4*q_+3}], v{vCSR} offset:{(t+1)*128 + q_*32}")
        for r in range(8): E.i(f"v_mul_f32 v{G+r}, v{a+r}, v{a+r}")
        for r in range(8): E.i(f"v_fma_f32 v{G+r}, v{G+r}, v12, v10")
        for r in range(8): E.i(f"v_mul_f32 v{G+r}, v{G+r}, v{a+r}")
        for r in range(8): E.i(f"v_exp_f32 v{G+r}, v{G+r}")
        for r in range(8): E.i(f"v_mul_f32 v{a+r}, v{a+r}, v{a+8+r}")
        for r in range(8): E.i(f"v_fma_f32 v{G+r}, v{G+r}, v11, v11")
        for r in range(8): E.i(f"v_rcp_f32 v{G+r}, v{G+r}")
        for r in range(8): E.i(f"v_mul_f32 v{a+r}, v{a+r}, v{G+r}")
        for r in range(4):
            E.i(f"v_cvt_pk_bf16_f32 v{a+8+r}, v{a+2*r}, v{a+2*r+1}")
        E.i(f"buffer_store_dwordx4 v[{a+8}:{a+11}], v2, {WSR}, s{sHH} offen offset:{t*1024}{SC}", tag="st")
    E.bg_flush()
    E.i(f"s_lshl_b32 s52, s{sTB4}, 12"); E.i(f"s_lshl_b32 s53, s{sCG4}, 7"); E.i("s_add_u32 s52, s52, s53"); E.i(f"s_add_u32 s52, s52, {FHH}")
    signal(E, 52, 8)
    if g == 0: E.i("s_setprio 0")
    probe_hh(E, 0, 8, 9, lambda: [a5_load(E, 0, f) for f in range(12)], 6 if g == 0 else 2)
    stamp(E, 23 if g == 0 else 26, 87, wave=4*(1-g))
G1_SLEEP = int(os.environ.get("G1_SLEEP", "8"))
G0_SLEEP = int(os.environ.get("G0_SLEEP", "8"))

def s4_rep(E):
    ACC = 16; WF = WF4
    for variant in range(3):
        E.i("s_waitcnt vmcnt(0) lgkmcnt(0)"); E.vm = []; E.lg = []
        E.i("s_barrier"); stamp(E, 53 + 2*variant, 15)
        def rd(i):
            for t in range(3):
                r = WF + (i%2)*12 + 4*t
                o = (max(i,1)*3+t)*1024
                if o < 61440: E.i(f"ds_read_b128 v[{r}:{r+3}], v2 offset:{o}", tag=("w", i))
                else: E.i(f"ds_read_b128 v[{r}:{r+3}], v4 offset:{o-61440}", tag=("w", i))
        if variant >= 1:
            for i in range(20): a4_load(E, i)
        rd(0)
        for i in range(40):
            if i + 1 < 40: rd(i + 1)
            E.wait_vm(("a4", i)); E.wait_lg(("w", i))
            af = AFR + 4*(i % 20)
            for t in range(3):
                r = WF + (i%2)*12 + 4*t; a = ACC + 16*t
                if "m16" in OPT:
                    af2 = AFR + 4*((i+1) % 20); a2 = a + 8*(i%2)
                    E.i(f"v_mfma_f32_16x16x32_bf16 v[{a2}:{a2+3}], v[{r}:{r+3}], v[{af}:{af+3}], v[{a2}:{a2+3}]")
                    E.i(f"v_mfma_f32_16x16x32_bf16 v[{a2+4}:{a2+7}], v[{r}:{r+3}], v[{af2}:{af2+3}], v[{a2+4}:{a2+7}]")
                else:
                    E.i(f"v_mfma_f32_32x32x16_bf16 v[{a}:{a+15}], v[{r}:{r+3}], v[{af}:{af+3}], v[{a}:{a+15}]")
                if t == 0 and variant >= 1 and 1 <= i <= 20: a4_load(E, i + 19)
                if t == 1 and variant == 2 and i < 22: ld_unit(E, W5reg(i), sW5, i, ("w5", i))
        E.i("s_barrier"); stamp(E, 54 + 2*variant, 15)

def s5(E):
    ACC = 16; vPW, vPR, vM, XR = 3, 4, 6, 15
    E.bg_period = 0
    lane_pr(E, 5, 12, 13); lane_xr(E, 14, 12, 13)
    E.i("s_mul_i32 s52, s3, 10240"); E.i("s_add_u32 s52, s52, 81920"); E.i(f"v_add_u32 v{vPW}, s52, v2")
    sHB, sOB = 74, 75
    E.i(f"s_mul_i32 s{sHB}, s{sRB3}, 40960"); E.i(f"s_mul_i32 s53, s{sCT3}, 5120"); E.i(f"s_add_u32 s{sHB}, s{sHB}, s53"); E.i(f"s_add_u32 s{sHB}, s{sHB}, {HF}")
    E.i(f"s_mul_i32 s{sOB}, s{sRB3}, 40960"); E.i(f"s_mul_i32 s53, s{sCT3}, 160"); E.i(f"s_add_u32 s{sOB}, s{sOB}, s53")
    def mm(ph):
        Lb = E.newlabel("s5v")
        E.label(Lb)
        for k in range(6):
            E.wait_vm(("a5", ph, 2*k+1))
            for u in range(2):
                af = A5[ph](2*k+u)
                for nt in range(5):
                    a = ACC + (u*5+nt)*4; wf = W5reg(k*5+nt)
                    c = "0" if k == 0 else f"v[{a}:{a+3}]"
                    E.i(f"v_mfma_f32_16x16x32_bf16 v[{a}:{a+3}], v[{wf}:{wf+3}], v[{af}:{af+3}], {c}")
    def wr():
        for j in range(10): E.i(f"ds_write_b128 v{vPW}, v[{ACC+4*j}:{ACC+4*j+3}] offset:{j*1024}")
        E.wait_lg()
    def res_load(ph, snt, r):
        E.i(f"s_lshl_b32 s52, s{snt}, 10"); E.i(f"s_add_u32 s52, s52, s{sHB}")
        if ph: E.i(f"s_add_u32 s52, s52, {32*40960}")
        E.i(f"buffer_load_dwordx4 v[{r}:{r+3}], v2, {WSR}, s52 offen{SC}", tag="res")
    def fin(ph, snt, r, T):
        E.i(f"s_lshl_b32 s52, s{snt}, 10"); E.i(f"s_add_u32 s52, s52, {81920 if ph == 0 else 0}"); E.i(f"v_add_u32 v{vPR}, s52, v5")
        final_sum(E, vPR, 8, T, 0, 12)
        add_res_pack(E, T, r, T + 8, 12, False)
        E.i(f"s_lshl_b32 s52, s{snt}, 5"); E.i(f"s_add_u32 s52, s52, s{sOB}")
        if ph: E.i("s_add_u32 s52, s52, 1310720")
        E.i(f"buffer_store_dwordx4 v[{T+8}:{T+11}], v14, s[{SRD_OUT}:{SRD_OUT+3}], s52 offen")
    a5b = lambda: [a5_load(E, 1, f) for f in range(12)]
    LG1, LJ = E.newlabel("s5g1"), E.newlabel("s5j")
    RA = AFR + 16
    E.i("s_sub_u32 s76, s3, 3"); E.i("s_max_i32 s76, s76, 0"); E.i("s_min_u32 s77, s3, 4")
    E.vm = [("a5", 0, f) for f in range(12)]
    mm(0); stamp(E, 28, 12)
    E.i("s_cmp_ge_u32 s3, 4"); E.branch(f"s_cbranch_scc1 {LG1}")
    E.i("s_barrier")
    wr()
    E.branch(f"s_branch {LJ}")
    E.label(LG1)
    wr()
    E.i("s_barrier")
    E.label(LJ)
    res_load(0, 76, RA); res_load(1, 77, 8)
    probe_hh(E, 1, 12, 13, a5b)
    E.i("s_barrier")
    stamp(E, 29, 12)
    L4 = E.newlabel("f4"); E.i("s_cmp_lt_u32 s3, 3"); E.branch(f"s_cbranch_scc1 {L4}")
    with side(E): fin(0, 76, RA, ACC)
    E.label(L4)
    stamp(E, 30, 12, wave=4)
    E.i(f"v_subrev_u32 v{vPW}, 81920, v{vPW}")
    mm(1); stamp(E, 31, 12)
    wr()
    E.i("s_barrier")
    stamp(E, 32, 12)
    Lsk = E.newlabel("s5sk")
    E.i("s_cmp_ge_u32 s3, 5"); E.branch(f"s_cbranch_scc1 {Lsk}")
    with side(E): fin(1, 3, 8, ACC)
    E.label(Lsk)
    stamp(E, 33, 12)

def prologue(E, kn):
    E.raw(f".globl {kn}\n.p2align 8\n.type {kn},@function\n{kn}:")
    E.i("s_cmp_ge_u32 s2, 256")
    E.branch(f"s_cbranch_scc1 L_exit_{kn}")
    if "scr" in OPT:
        E.i("s_and_b32 s52, s2, 7"); E.i("s_bfe_u32 s53, s2, 0x30003"); E.i("s_and_b32 s2, s2, 0xc0"); E.i("s_lshl_b32 s52, s52, 3"); E.i("s_or_b32 s2, s2, s52"); E.i("s_or_b32 s2, s2, s53")
    E.i("s_load_dwordx16 s[4:19], s[0:1], 0")
    E.i("s_load_dwordx4 s[20:23], s[0:1], 64")
    E.i("s_memrealtime s[96:97]")
    E.i("v_and_b32 v1, 63, v0")
    E.i("v_lshrrev_b32 v2, 6, v0")
    E.i("v_readfirstlane_b32 s3, v2")
    E.i("v_lshlrev_b32 v2, 4, v1")
    E.i(f"s_mov_b32 s{sONE}, 0x3f803f80"); E.i(f"s_mov_b32 s{sRETRY}, 0"); E.i(f"s_mov_b32 s{sM1}, 0xfffffffe")
    E.i("s_waitcnt lgkmcnt(0)")
    E.i(f"s_mov_b32 s{sT0}, s96")
    srd(E, SRD_X, P_X, 2621440)
    srd(E, SRD_W1, P_W1, 2457600)
    srd(E, SRD_WS, P_WS, WS_BYTES)
    srd(E, SRD_OUT, P_OUT, 2621440)
    srd(E, SRD_DBG, P_DBG, 256)
def kdesc(kn):
    return f""".section .rodata,"a"
.p2align 6
.amdhsa_kernel {kn}
  .amdhsa_next_free_vgpr 256
  .amdhsa_next_free_sgpr 102
  .amdhsa_accum_offset 256
  .amdhsa_group_segment_fixed_size 0
  .amdhsa_kernarg_size 80
  .amdhsa_user_sgpr_count 2
  .amdhsa_user_sgpr_kernarg_segment_ptr 1
  .amdhsa_system_sgpr_workgroup_id_x 1
.end_amdhsa_kernel
"""
def build():
    E = Emitter()
    prologue(E, "ka_kernel")
    stamp(E, 0, 31)
    E.i("s_lshl_b32 s52, s2, 3"); E.i("s_or_b32 s52, s52, s3"); E.i("s_cmp_lg_u32 s52, 2047"); E.branch("s_cbranch_scc1 L_nonce_done")
    E.i(f"s_or_b32 s52, s{sT0}, 1"); E.i("s_mov_b64 exec, 1"); E.i("v_mov_b32 v3, s52")
    E.raw(f"  buffer_store_dword v3, off, s[{SRD_DBG}:{SRD_DBG+3}], 0{SC}")
    E.i("s_mov_b64 exec, -1")
    E.label("L_nonce_done")
    E.i("s_cmp_ge_u32 s2, 240"); E.branch("s_cbranch_scc1 L_idle")
    s1(E)
    E.branch("s_branch L_tail")
    E.label("L_idle")
    E.vm = []; E.lg = []
    idle(E)
    E.label("L_tail")
    E.vm = [("s0dma", 0)] + ["st"]*8; E.lg = []
    ka_tail(E)
    if CFG.stamps:
        E.i("s_waitcnt vmcnt(0)"); stamp(E, 3, 31); stamp(E, 4, 31, wave=7)
    E.label("L_exit_ka_kernel")
    E.raw("  s_endpgm")
    prologue(E, "kb_kernel")
    E.vm = []; E.lg = []; E.bg_period = 0
    s2(E)
    s3(E)
    s5(E)
    E.i("s_waitcnt vmcnt(0) lgkmcnt(0)")
    stamp(E, 40, 31)
    E.label("L_exit_kb_kernel")
    E.raw("  s_endpgm")
    E.raw("L_end_of_code:")
    hdr = ("; @launch kernel=ka_kernel grid=(256,1,1) block=(512,1,1) lds=163840\n; @launch kernel=kb_kernel grid=(256,1,1) block=(512,1,1) lds=163840\n"
           ".amdgcn_target \"amdgcn-amd-amdhsa--gfx950\"\n.text\n")
    return hdr + E.text() + kdesc("ka_kernel") + kdesc("kb_kernel")

if __name__ == "__main__":
    mode = sys.argv[2] if len(sys.argv) > 2 else ""
    CFG.stamps = mode == "stamps"; CFG.dbgst = mode == "dbg"
    open(sys.argv[1], "w").write(build())
```

```python
from k21a import *

sRB3, sCT3, sCG4, sRB4 = 86, 87, 88, 89
W3R = 156; A3 = [68, 108]; ACC3 = 28
W5P1 = 168
AFR = 88
W5reg = lambda j: (W5P1 + 4*j) if j < 22 else (AFR + 48 + 4*(j-22))
A5 = [lambda f: AFR + 4*f, lambda f: (56 + 4*f) if f < 8 else (AFR + 4*(f-8))]
vA3 = 3
S2B_AT = int(os.environ.get("S2B_AT", "5"))
S3A_AT = int(os.environ.get("S3A_AT", "6"))

MAP3 = int(os.environ.get("MAP3", "2"))
MAP4 = int(os.environ.get("MAP4", "3"))
def late_scalars(E):
    E.i("s_and_b32 s52, s2, 7"); E.i("s_lshr_b32 s53, s2, 3")
    c = MAP3
    E.i(f"s_lshr_b32 s{sRB3}, s52, {3-c}"); E.i(f"s_lshl_b32 s{sRB3}, s{sRB3}, {5-c}"); E.i(f"s_lshr_b32 s54, s53, {c}"); E.i(f"s_add_u32 s{sRB3}, s{sRB3}, s54")
    E.i(f"s_and_b32 s{sCT3}, s52, {(1 << (3-c)) - 1}"); E.i(f"s_lshl_b32 s{sCT3}, s{sCT3}, {c}"); E.i(f"s_and_b32 s54, s53, {(1 << c) - 1}"); E.i(f"s_add_u32 s{sCT3}, s{sCT3}, s54")
    c = MAP4
    E.i(f"s_lshr_b32 s{sRB4}, s52, {5-c}"); E.i(f"s_lshl_b32 s{sRB4}, s{sRB4}, {5-c}"); E.i(f"s_lshr_b32 s54, s53, {c}"); E.i(f"s_add_u32 s{sRB4}, s{sRB4}, s54")
    E.i(f"s_and_b32 s{sCG4}, s52, {(1 << (5-c)) - 1}"); E.i(f"s_lshl_b32 s{sCG4}, s{sCG4}, {c}"); E.i(f"s_and_b32 s54, s53, {(1 << c) - 1}"); E.i(f"s_add_u32 s{sCG4}, s{sCG4}, s54")

def ld_unit(E, r, sbase, j, tag, vaddr=2, unit=1024):
    off = j * unit
    if off < 4096:
        E.i(f"buffer_load_dwordx4 v[{r}:{r+3}], v{vaddr}, {WSR}, s{sbase} offen offset:{off}{SC}", tag=tag)
    else:
        E.i(f"s_add_u32 s100, s{sbase}, {off - off % 4096}")
        E.i(f"buffer_load_dwordx4 v[{r}:{r+3}], v{vaddr}, {WSR}, s100 offen offset:{off % 4096}{SC}", tag=tag)

sWP, sW4, sW5, sA3, sA4, sA5, sHS, sHH = 56, 57, 59, 60, 62, 63, 65, 66
def bases(E):
    E.i(f"s_mul_i32 s{sW5}, s{sCT3}, 245760"); E.i("s_mul_i32 s53, s3, 30720"); E.i(f"s_add_u32 s{sW5}, s{sW5}, s53"); E.i(f"s_add_u32 s{sW5}, s{sW5}, {W5F}")
    E.i(f"s_mul_i32 s52, s{sCT3}, 102400"); E.i("s_mul_i32 s53, s3, 25600"); E.i("s_add_u32 s52, s52, s53"); E.i(f"s_add_u32 s52, s52, {W3F}")
    E.i(f"s_sub_u32 s53, s{sW5}, 3072")
    E.i("s_cmp_lt_u32 s3, 4"); E.i(f"s_cselect_b32 s{sWP}, s52, s53")
    E.i(f"s_mul_i32 s{sW4}, s{sCG4}, 122880"); E.i(f"s_add_u32 s{sW4}, s{sW4}, {W4F}"); E.i(f"s_lshl_b32 s{sW4+1}, s3, 10"); E.i(f"s_add_u32 s{sW4}, s{sW4}, s{sW4+1}")
    E.i(f"s_mul_i32 s{sA3}, s{sRB3}, 40960"); E.i(f"s_add_u32 s{sA3}, s{sA3}, {OF}")
    E.i("s_and_b32 s53, s3, 3"); E.i("s_lshl_b32 s72, s53, 12"); E.i("s_lshl_b32 s73, s53, 10"); E.i("s_add_u32 s73, s73, 16384")
    E.i(f"s_add_u32 s{sA3+1}, s{sA3}, {64*20480}")
    E.i("s_lshr_b32 s52, s3, 2"); E.i("s_xor_b32 s52, s52, 1"); E.i("s_lshl_b32 s52, s52, 3"); E.i(f"s_add_u32 s52, s52, s{sRB4}"); E.i("s_lshl_b32 s52, s52, 2"); E.i("s_and_b32 s53, s3, 3"); E.i("s_add_u32 s52, s52, s53")
    E.i(f"s_mov_b32 s90, s52")
    E.i(f"s_mul_i32 s{sA4}, s52, 40960"); E.i(f"s_add_u32 s{sA4}, s{sA4}, {HF}")
    E.i(f"s_lshl_b32 s{sHS}, s52, 11"); E.i(f"s_add_u32 s{sHS}, s{sHS}, {HSTB}")
    E.i(f"s_mul_i32 s{sHH}, s52, 98304"); E.i(f"s_mul_i32 s53, s{sCG4}, 3072"); E.i(f"s_add_u32 s{sHH}, s{sHH}, s53"); E.i(f"s_add_u32 s{sHH}, s{sHH}, {HHF}")
    E.i(f"s_mul_i32 s{sA5}, s{sRB3}, 98304"); E.i("s_mul_i32 s53, s3, 12288"); E.i(f"s_add_u32 s{sA5}, s{sA5}, s53"); E.i(f"s_add_u32 s{sA5}, s{sA5}, {HHF}")
    E.i(f"s_add_u32 s{sA5+1}, s{sA5}, {32*98304}")

def w4_unit(E, base):
    E.i(f"s_add_u32 m0, s{sW4+1}, {base*1024}"); E.i(f"s_add_u32 s100, s{sW4}, {base*1024}")
    E.i(f"buffer_load_dwordx4 v2, {WSR}, s100 offen{SC} lds", tag="w4")

def a3_all(E, ph):
    for k in range(5):
        for u in range(2):
            r = A3[ph] + (2*k + u)*4
            if k < 4:
                E.i(f"s_add_u32 s100, s{sA3+ph}, s72")
                if u: E.i("s_add_u32 s100, s100, 20480")
                E.i(f"buffer_load_dwordx4 v[{r}:{r+3}], v2, {WSR}, s100 offen offset:{k*1024}{SC}", tag=("a3", ph, k))
            else:
                E.i(f"s_add_u32 s100, s{sA3+ph}, s73")
                if u: E.i("s_add_u32 s100, s100, 20480")
                for h in range(2):
                    E.i(f"buffer_load_dwordx2 v[{r+2*h}:{r+2*h+1}], v{vA3}, {WSR}, s100 offen offset:{h*128}{SC}", tag=("a3", ph, k))

PSL = int(os.environ.get('PSL', '6'))
def probe(E, sbase, n, va, vd, loads=None, sleep=PSL):
    L, Lok = E.newlabel("prb"), E.newlabel("prbok")
    E.bg_lock += 1
    E.i(f"v_and_b32 v{va}, {n-1}, v1"); E.i(f"v_lshlrev_b32 v{va}, 7, v{va}")
    E.label(L)
    E.i(f"buffer_load_dword v{vd}, v{va}, {WSR}, s{sbase} offen{SC}", tag="probe")
    E.wait_vm("probe")
    E.i(f"v_cmp_eq_u32 vcc, 0, v{vd}")
    E.branch(f"s_cbranch_vccz {Lok}")
    E.i(f"s_sleep {sleep}")
    E.i(f"s_add_u32 s{sRETRY}, s{sRETRY}, 1"); E.i(f"s_cmp_gt_u32 s{sRETRY}, {RETRY_MAX}")
    E.branch(f"s_cbranch_scc0 {L}")
    E.label(Lok)
    if loads: loads()
    E.bg_lock -= 1
def signal(E, sreg, vt):
    E.bg_lock += 1
    E.i("s_waitcnt vmcnt(0)"); E.vm = []
    E.i(f"v_mov_b32 v{vt}, 1"); E.i("s_mov_b64 exec, 1")
    E.i(f"buffer_store_dword v{vt}, off, {WSR}, s{sreg}{SC}")
    E.i("s_mov_b64 exec, -1")
    E.bg_lock -= 1
def signal_last(E, sreg, idx, va, vt, nwait=0):
    L = E.newlabel("sl")
    E.bg_lock += 1
    E.i(f"s_waitcnt vmcnt({nwait})")
    if nwait == 0: E.vm = []
    E.i(f"v_mov_b32 v{va}, {CNT + 4*idx}"); E.i(f"v_mov_b32 v{vt}, 1"); E.i("s_mov_b64 exec, 1")
    E.i(f"ds_add_rtn_u32 v{va}, v{va}, v{vt}")
    E.i("s_waitcnt lgkmcnt(0)"); E.lg = []
    E.i(f"v_readfirstlane_b32 s53, v{va}")
    E.i("s_cmp_lg_u32 s53, 3"); E.branch(f"s_cbranch_scc1 {L}")
    with side(E): E.i(f"buffer_store_dword v{vt}, off, {WSR}, s{sreg}{SC}")
    E.label(L)
    E.i("s_mov_b64 exec, -1")
    E.bg_lock -= 1
sTB4 = 90
def probe_o(E, ph, va, vd, loads=None, sleep=PSL):
    E.i(f"s_lshl_b32 s101, s{sRB3}, 12"); E.i("s_lshl_b32 s52, s3, 10"); E.i("s_add_u32 s101, s101, s52"); E.i(f"s_add_u32 s101, s101, {FO + ph*131072}")
    probe(E, 101, 8, va, vd, loads, sleep)
def probe_h(E, va, vd, loads=None):
    E.i(f"s_lshl_b32 s101, s{sTB4}, 10"); E.i(f"s_add_u32 s101, s101, {FH}")
    probe(E, 101, 8, va, vd, loads)
def probe_s(E, va, vd, loads=None):
    E.i(f"s_lshl_b32 s101, s{sTB4}, 10"); E.i(f"s_add_u32 s101, s101, {FS}")
    probe(E, 101, 8, va, vd, loads)
def probe_hh(E, ph, va, vd, loads=None, sleep=PSL):
    E.i(f"s_lshl_b32 s101, s{sRB3}, 12"); E.i("s_lshl_b32 s52, s3, 9"); E.i("s_add_u32 s101, s101, s52"); E.i(f"s_add_u32 s101, s101, {FHH + ph*131072}")
    probe(E, 101, 4, va, vd, loads, sleep)

CNT = 2816
def gwait(E, idx, target, va, vt):
    L, Lok = E.newlabel("gw"), E.newlabel("gwok")
    E.bg_lock += 1
    E.i(f"v_mov_b32 v{va}, {CNT + 4*idx}")
    E.label(L)
    E.i(f"ds_read_b32 v{vt}, v{va}")
    E.i("s_waitcnt lgkmcnt(0)"); E.lg = []
    E.i(f"v_readfirstlane_b32 s52, v{vt}")
    E.i(f"s_cmp_ge_u32 s52, {target}")
    E.branch(f"s_cbranch_scc1 {Lok}")
    E.i("s_sleep 1")
    E.i(f"s_add_u32 s{sRETRY}, s{sRETRY}, 1"); E.i(f"s_cmp_gt_u32 s{sRETRY}, {RETRY_MAX*50}")
    E.branch(f"s_cbranch_scc0 {L}")
    E.label(Lok)
    E.bg_lock -= 1
def garrive(E, idx, va, vt):
    E.bg_lock += 1
    E.i("s_waitcnt lgkmcnt(0)"); E.lg = []
    E.i(f"v_mov_b32 v{va}, {CNT + 4*idx}"); E.i(f"v_mov_b32 v{vt}, 1")
    E.i("s_mov_b64 exec, 1")
    E.i(f"ds_add_u32 v{va}, v{vt}")
    E.i("s_mov_b64 exec, -1")
    E.bg_lock -= 1
GB = [0, 0]
def gbar(E, g, va, vt):
    GB[g] += 1
    garrive(E, g, va, vt); gwait(E, g, 4*GB[g], va, vt)

CSX = 118*1024
ONESL = 2688
def s2(E):
    KV = [122880, 92160]
    stamp(E, 6, 31)
    vD = 34
    s2_scalars(E)
    s2_loads(E, 0, 0, vD, 0, 0, KV[0])
    LO, LO4, K1, K2, VA, VS, vO1, vO2, M0_, M1_ = 4, 5, 6, 7, 8, 9, 10, 11, 32, 33
    QF = 12; BM = 20; KF = 36; VF = 52; PP = 68; S = [84, 100]; NM = 116; OA = 132
    E.i("v_and_b32 v24, 15, v1"); E.i("v_bfe_u32 v25, v1, 4, 1"); E.i("v_lshrrev_b32 v26, 5, v1")
    E.i("v_mul_u32_u24 v27, 640, v25")
    E.i("v_lshlrev_b32 v28, 3, v26"); E.i("v_xor_b32 v28, v28, v24"); E.i(f"v_lshl_add_u32 v{LO}, v28, 3, v27"); E.i(f"v_lshl_add_u32 v{LO}, v26, 8, v{LO}")
    E.i(f"v_lshl_add_u32 v{LO4}, v24, 3, v27"); E.i(f"v_add_u32 v{LO4}, 512, v{LO4}")
    for r in range(4, 8): E.i(f"v_mov_b32 v{QF+r}, 0")
    E.i(f"buffer_load_dwordx2 v[{QF}:{QF+1}], v{LO}, {WSR}, s{sQo} offen", tag="q")
    E.i(f"buffer_load_dwordx2 v[{QF+2}:{QF+3}], v{LO}, {WSR}, s{sQo} offen offset:128", tag="q")
    E.i("s_mov_b32 exec_hi, 0")
    E.i(f"buffer_load_dwordx2 v[{QF+4}:{QF+5}], v{LO4}, {WSR}, s{sQo} offen", tag="q")
    E.i("s_mov_b64 exec, -1")
    s2_loads(E, 0, 1, vD, 0, 0, KV[1])
    late_scalars(E); bases(E)
    E.i("s_and_b32 s52, s3, 3"); E.i("s_mul_i32 s52, s52, 1280"); E.i("s_lshr_b32 s53, s3, 2"); E.i(f"s_mul_i32 s53, s53, {KV[0]-KV[1]}"); E.i(f"s_add_u32 s52, s52, {KV[0]}"); E.i("s_sub_u32 s52, s52, s53")
    E.i(f"v_add_u32 v{K1}, s52, v{LO}"); E.i(f"v_add_u32 v{K2}, s52, v{LO4}")
    E.i("v_bfe_u32 v27, v1, 2, 2"); E.i("v_lshl_add_u32 v27, v26, 2, v27")
    E.i("v_and_b32 v28, 3, v1")
    E.i("v_lshlrev_b32 v29, 7, v28"); E.i("v_lshl_add_u32 v29, v27, 3, v29")
    E.i("v_and_b32 v30, 2, v28"); E.i("v_lshlrev_b32 v30, 5, v30")
    E.i("v_lshlrev_b32 v31, 3, v27"); E.i("v_add_u32 v31, 512, v31")
    E.i("v_cmp_eq_u32 vcc, 1, v25")
    E.i("v_cndmask_b32 v29, v29, v31, vcc"); E.i("v_cndmask_b32 v30, v30, 0, vcc")
    E.i("s_add_u32 s52, s52, 15360")
    E.i("v_add_u32 v29, s52, v29")
    E.i("v_cmp_ne_u32 s[54:55], 0, v28"); E.i("s_and_b64 vcc, vcc, s[54:55]")
    E.i(f"v_mov_b32 v31, {ONESL}"); E.i("v_cndmask_b32 v29, v29, v31, vcc")
    E.i(f"v_mov_b32 v31, 640"); E.i(f"v_cndmask_b32 v{VS}, v31, 0, vcc")
    VA2 = 35
    E.i(f"v_add_u32 v{VA}, v29, v30"); E.i("v_xor_b32 v30, 64, v30"); E.i(f"v_add_u32 v{VA2}, v29, v30")
    E.i("v_mul_u32_u24 v27, 20480, v25"); E.i(f"v_lshl_add_u32 v{vO2}, v24, 3, v27"); E.i(f"v_lshl_add_u32 v{vO1}, v24, 4, v27"); E.i(f"v_lshl_add_u32 v{vO1}, v26, 8, v{vO1}")
    E.i("v_lshrrev_b32 v27, 4, v1"); E.i(f"v_lshlrev_b32 v{vA3}, 8, v27"); E.i(f"v_lshl_add_u32 v{vA3}, v24, 3, v{vA3}")
    MS = [4,6,8,10,12,14,16,18,20,22,28,30,40,42,44,46]
    E.i("v_and_b32 v27, 31, v1"); E.i("v_lshlrev_b32 v28, 2, v26"); E.i("v_sub_u32 v27, v27, v28")
    E.i("v_mov_b32 v28, 0xffff"); E.i("v_mov_b32 v29, 0xffff0000")
    for r in range(16):
        E.i(f"v_cmp_le_i32 s[{MS[r]}:{MS[r]+1}], {8*(r//4) + r%4}, v27")
    for j in range(8):
        E.i(f"v_cndmask_b32 v30, 0, v28, s[{MS[2*j]}:{MS[2*j]+1}]"); E.i(f"v_cndmask_b32 v31, 0, v29, s[{MS[2*j+1]}:{MS[2*j+1]+1}]")
        E.i(f"v_or_b32 v{BM+j}, v30, v31")
    E.i("v_mov_b32 v142, 0"); E.i("v_mov_b32 v143, 0"); E.i(f"v_mov_b32 v37, {CNT}"); E.i("ds_write_b64 v37, v[142:143]"); E.i("ds_write_b64 v37, v[142:143] offset:8"); E.i("ds_write_b64 v37, v[142:143] offset:16")
    E.i(f"v_mov_b32 v142, s{sONE}"); E.i("v_and_b32 v37, 31, v1"); E.i("v_lshlrev_b32 v37, 2, v37"); E.i(f"ds_write_b32 v37, v142 offset:{ONESL}")
    for r in (KF+6, KF+7, KF+14, KF+15): E.i(f"v_mov_b32 v{r}, 0")
    E.wait_lg(); E.wait_vm()
    stamp(E, 7, 30)
    E.i("s_barrier")
    Lw = E.newlabel("g1pre")
    E.i("s_cmp_ge_u32 s3, 4"); E.branch(f"s_cbranch_scc1 {Lw}")
    E.i(f"s_setprio {ATT_PRIO}")
    E.branch(f"s_branch {Lw}_j")
    E.label(Lw)
    with side(E):
        E.i(f"s_sub_u32 s{sW4}, s{sW4}, 4096"); E.i(f"s_sub_u32 s{sW4+1}, s{sW4+1}, 4096")
        for u_ in W4U[:W4_EARLY]: w4_unit(E, u_)
        E.i("v_lshrrev_b32 v30, 1, v2"); E.i(f"s_mul_i32 s52, s{sW4+1}, 120"); E.i(f"s_mul_i32 s53, s{sCG4}, 384"); E.i("s_add_u32 s52, s52, s53"); E.i(f"s_add_u32 s52, s52, {CSP4}")
        for j in range(10):
            E.i(f"buffer_load_dwordx2 v[{200+2*j}:{201+2*j}], v30, {WSR}, s52 offen")
            E.i("s_add_u32 s52, s52, 12288")
    E.label(f"{Lw}_j")
    stamp(E, 8, 30); stamp(E, 10, 30, wave=4)
    E.i("s_cmp_lt_u32 s3, 4"); E.i("s_cselect_b64 vcc, -1, 0")
    def wpg(j):
        L = E.newlabel("wps")
        E.i(f"s_cbranch_vccz {L}")
        h = list(E.hist)
        ld_unit(E, W3R + 4*j, sWP, j, "wp")
        E.hist = h
        E.raw(f"{L}:")
    WPQ = [(lambda j=j: wpg(j)) for j in range(25)]
    order = [0, 8, 7, 6, 5, 4, 3, 2, 1]
    def rdk(n):
        b = order[n]; r = KF + 8*(n % 2)
        E.i(f"ds_read2_b64 v[{r}:{r+3}], v{K1} offset0:{(b*1280//8) % 256} offset1:{(b*1280//8 + 16) % 256}", tag=("k", n)) if b*1280//8 + 16 < 256 else (
            E.i(f"ds_read_b64 v[{r}:{r+1}], v{K1} offset:{b*1280}", tag=("k", n)), E.i(f"ds_read_b64 v[{r+2}:{r+3}], v{K1} offset:{b*1280+128}", tag=("k", n)))
        E.i(f"ds_read_b64 v[{r+4}:{r+5}], v{K2} offset:{b*1280}", tag=("k", n))
    def weave(big, small):
        nb = len(big); per = -(-len(small) // max(nb, 1))
        for f in big:
            f()
            for _ in range(per):
                if small: E.i(small.pop(0))
        while small: E.i(small.pop(0))
    def qk_parts(n, c):
        r = KF + 8*(n % 2); d = S[n % 2]
        def a():
            E.wait_lg(("k", n))
            E.i(f"v_mfma_f32_32x32x16_bf16 v[{d}:{d+15}], v[{r}:{r+3}], v[{QF}:{QF+3}], {c}")
        def b_():
            E.i(f"v_mfma_f32_32x32x16_bf16 v[{d}:{d+15}], v[{r+4}:{r+7}], v[{QF+4}:{QF+7}], v[{d}:{d+15}]")
            if n + 2 < 9: rdk(n + 2)
        return [a, b_]
    pads = []
    def exit_if_invalid(b, target):
        Lp = E.newlabel("pad"); pads.append((Lp, target))
        E.i(f"s_cmp_lt_u32 s{sTQ}, {16 - 2*b}"); E.branch_nf(f"s_cbranch_scc1 {Lp}")
    def merge():
        Lf = E.newlabel("fv"); pads.append((Lf, None))
        E.i(f"s_cmp_lt_u32 s{sTQ}, 16"); E.branch_nf(f"s_cbranch_scc1 {Lf}")
        E.raw(f"{Lf}_r:")
        for r in range(16): E.i(f"v_cndmask_b32 v{S[1]+r}, v{S[0]+r}, v{S[1]+r}, s[{MS[r]}:{MS[r]+1}]")
    if "rep2" in OPT:
        E.i("s_mov_b32 s77, 0"); E.label("L_rep2")
    Lp1 = E.newlabel("p1done")
    rdk(0); rdk(1)
    for f in qk_parts(0, "0") + qk_parts(1, "0"): f()
    merge()
    for n in range(1, 9):
        d = S[n % 2]
        if n >= 2: exit_if_invalid(order[n], Lp1)
        sm = []
        for j in range(0, 16, 4):
            if n == 1 and j == 0:
                sm += [f"v_max_f32 v{M0_}, v{d}, v{d+1}", f"v_max_f32 v{M1_}, v{d+2}, v{d+3}"]
            else:
                sm += [f"v_max3_f32 v{M0_}, v{d+j}, v{d+j+1}, v{M0_}", f"v_max3_f32 v{M1_}, v{d+j+2}, v{d+j+3}, v{M1_}"]
        weave(qk_parts(n + 1, "0") if n + 1 < 9 else [], sm)
        WPQ[n - 1]()
    E.label(Lp1)
    E.i("s_waitcnt lgkmcnt(0)"); E.lg = []
    rdk(0); rdk(1)
    E.i(f"v_max_f32 v{M0_}, v{M0_}, v{M1_}")
    E.i(f"v_mov_b32 v{M1_}, v{M0_}"); E.i(f"v_permlane32_swap_b32 v{M0_}, v{M1_}"); E.i(f"v_max_f32 v{M0_}, v{M0_}, v{M1_}")
    for r in range(16): E.i(f"v_sub_f32 v{NM+r}, 0, v{M0_}")
    vT1, vT2 = 30, 31
    def rdv(b, slot):
        for ks in range(2):
            tb = 2*b + ks
            E.i(f"v_mad_u32_u24 v{vT1}, v{VS}, {tb}, v{VA}"); E.i(f"v_mad_u32_u24 v{vT2}, v{VS}, {tb}, v{VA2}")
            r = VF + 8*slot + 4*ks
            E.i(f"ds_read_b64_tr_b16 v[{r}:{r+1}], v{vT1}", tag=("v", b)); E.i(f"ds_read_b64_tr_b16 v[{r+2}:{r+3}], v{vT2}", tag=("v", b))
    def pv_parts(b, slot, P, first, nxt=None):
        def mk(ks):
            def f():
                if ks == 0: E.wait_lg(("v", b))
                r = VF + 8*slot + 4*ks
                c = "0" if (first and ks == 0) else f"v[{OA}:{OA+15}]"
                E.i(f"v_mfma_f32_32x32x16_bf16 v[{OA}:{OA+15}], v[{r}:{r+3}], v[{P+4*ks}:{P+4*ks+3}], {c}")
                if ks == 1 and nxt is not None: rdv(nxt, slot)
            return f
        return [mk(0), mk(1)]
    nm = f"v[{NM}:{NM+15}]"
    Lp2 = E.newlabel("p2done")
    PF0 = 148
    for f in qk_parts(0, nm) + qk_parts(1, nm): f()
    rdv(0, 0); rdv(8, 1)
    merge()
    pend = []
    tails = []
    for n in range(1, 9):
        d = S[n % 2]; b = order[n]; P = PP + 8*(n % 2)
        if n >= 2:
            Lt = E.newlabel("p2t"); tails.append((Lt, n - 1))
            exit_if_invalid(b, Lt)
        sm = [f"v_exp_f32 v{d+j}, v{d+j}" for j in range(16)]
        weave((qk_parts(n + 1, nm) if n + 1 < 9 else []) + pend, sm)
        WPQ[8 + 2*(n-1)]()
        for j in range(8): E.i(f"v_cvt_pk_bf16_f32 v{P+j}, v{d+2*j}, v{d+2*j+1}")
        WPQ[9 + 2*(n-1)]()
        if n == 1:
            for j in range(8): E.i(f"v_bfi_b32 v{PF0+j}, v{BM+j}, 0, v{P+j}")
            for j in range(8): E.i(f"v_and_b32 v{P+j}, v{BM+j}, v{P+j}")
            pend = pv_parts(0, 0, PF0, True, order[2]) + pv_parts(8, 1, P, False, order[3])
        else:
            pend = pv_parts(b, n % 2, P, False, order[n + 2] if n + 2 < 9 else None)
    WPQ[24]()
    for f in pend: f()
    E.branch(f"s_branch {Lp2}")
    for Lp, target in pads:
        E.pad_label(Lp)
        if target is None:
            for r in range(16): E.i(f"v_mov_b32 v{S[0]+r}, {NEG:#x}")
            E.branch(f"s_branch {Lp}_r")
        else: E.branch(f"s_branch {target}")
    for Lt, m in tails:
        E.label(Lt)
        E.i("s_waitcnt lgkmcnt(0)"); E.lg = []
        P = PP + 8*(m % 2)
        parts = (pv_parts(0, 0, PF0, True) + pv_parts(8, 1, P, False)) if m == 1 else pv_parts(order[m], m % 2, P, False)
        for f in parts: f()
        E.branch(f"s_branch {Lp2}_w")
    E.label(f"{Lp2}_w")
    E.label(Lp2)
    if "rep2" in OPT:
        E.i("s_waitcnt lgkmcnt(0)"); E.lg = []
        E.i("s_cmp_eq_u32 s77, 1"); E.branch("s_cbranch_scc1 L_rep2_done")
        stamp(E, 12, 30); stamp(E, 13, 30, wave=4)
        E.i("s_barrier"); stamp(E, 37, 30)
        E.i("s_mov_b32 s77, 1"); E.branch("s_branch L_rep2")
        E.label("L_rep2_done")
    stamp(E, 9, 30); stamp(E, 11, 30, wave=4)
    E.i("s_lshr_b32 s52, s3, 2"); E.i("s_lshl_b32 s52, s52, 2"); E.i(f"s_add_u32 s52, s52, {CNT + 8}")
    E.i("s_waitcnt lgkmcnt(0)"); E.lg = []
    E.i("v_mov_b32 v30, s52"); E.i("v_mov_b32 v31, 1"); E.i("s_mov_b64 exec, 1"); E.i("ds_add_u32 v30, v31"); E.i("s_mov_b64 exec, -1")
    E.i(f"v_rcp_f32 v{M0_}, v{OA+12}")
    for r in range(12): E.i(f"v_mul_f32 v{OA+r}, v{OA+r}, v{M0_}")
    for j in range(6): E.i(f"v_cvt_pk_bf16_f32 v{PP+j}, v{OA+2*j}, v{OA+2*j+1}")
    E.i(f"v_permlane32_swap_b32 v{PP}, v{PP+2}"); E.i(f"v_permlane32_swap_b32 v{PP+1}, v{PP+3}")
    E.i(f"s_lshl_b32 s52, s{sHD}, 9"); E.i(f"s_add_u32 s52, s52, s{sOo}")
    E.i(f"s_lshl_b32 s53, s{sHD}, 7"); E.i(f"s_add_u32 s53, s53, s{sOo}"); E.i("s_add_u32 s53, s53, 16384")
    E.i(f"buffer_store_dwordx4 v[{PP}:{PP+3}], v{vO1}, {WSR}, s52 offen{SC}", tag="st")
    E.i("s_mov_b32 exec_hi, 0")
    E.i(f"buffer_store_dwordx2 v[{PP+4}:{PP+5}], v{vO2}, {WSR}, s53 offen{SC}", tag="st")
    E.i("s_mov_b64 exec, -1")
    E.i(f"s_lshl_b32 s52, s{sTQ}, 11"); E.i(f"s_lshl_b32 s53, s{sHD}, 7"); E.i("s_add_u32 s52, s52, s53"); E.i(f"s_add_u32 s52, s52, {FO}")
    signal(E, 52, 30)
    Lw = E.newlabel("wpre")
    E.i(f"s_cmp_ge_u32 s{sTQ}, 14"); E.branch(f"s_cbranch_scc1 {Lw}")
    with side(E):
        for j in range(25): ld_unit(E, W3R + 4*j, sWP, j, "wp")
    E.label(Lw)
W4_PRE = int(os.environ.get("W4_PRE", "8"))

def final_sum(E, vPR, nslots, T, off0, vt):
    for half in range(nslots // 4):
        for w in range(4):
            off = off0 + (half*4 + w)*10240
            for g in range(2):
                o = off + g*256
                r = T + 8 + (w*2+g)*4
                if o > 65535:
                    E.i(f"v_add_u32 v{vt}, 40960, v{vPR}"); E.i(f"ds_read_b128 v[{r}:{r+3}], v{vt} offset:{o-40960}")
                else:
                    E.i(f"ds_read_b128 v[{r}:{r+3}], v{vPR} offset:{o}")
        E.wait_lg()
        for j in range(8):
            g, b = j // 4, j % 4
            sr = [T + 8 + (w*2+g)*4 + b for w in range(4)]
            E.i(f"v_add_f32 v{sr[0]}, v{sr[0]}, v{sr[1]}"); E.i(f"v_add_f32 v{sr[2]}, v{sr[2]}, v{sr[3]}")
            if half == 0: E.i(f"v_add_f32 v{T+j}, v{sr[0]}, v{sr[2]}")
            else:
                E.i(f"v_add_f32 v{T+j}, v{T+j}, v{sr[0]}"); E.i(f"v_add_f32 v{T+j}, v{T+j}, v{sr[2]}")

def add_res_pack(E, T, RES, OUT, vt, clamp):
    for j in range(4):
        E.i(f"v_lshlrev_b32 v{vt}, 16, v{RES+j}"); E.i(f"v_add_f32 v{T+2*j}, v{T+2*j}, v{vt}")
        E.i(f"v_and_b32 v{vt}, 0xffff0000, v{RES+j}"); E.i(f"v_add_f32 v{T+2*j+1}, v{T+2*j+1}, v{vt}")
    for j in range(4):
        E.i(f"v_cvt_pk_bf16_f32 v{OUT+j}, v{T+2*j}, v{T+2*j+1}")
        if clamp: E.i(f"v_min_u32 v{OUT+j}, s{sM1}, v{OUT+j}")

def lane_pr(E, dst, t0, t1):
    E.i(f"v_bfe_u32 v{t0}, v1, 4, 1"); E.i(f"v_mul_u32_u24 v{t0}, 5120, v{t0}"); E.i(f"v_lshrrev_b32 v{t1}, 5, v1"); E.i(f"v_lshl_add_u32 v{t0}, v{t1}, 9, v{t0}")
    E.i(f"v_and_b32 v{t1}, 15, v1"); E.i(f"v_lshl_add_u32 v{dst}, v{t1}, 4, v{t0}")
def lane_xr(E, dst, t0, t1):
    E.i(f"v_and_b32 v{t0}, 31, v1"); E.i(f"v_mul_u32_u24 v{t0}, 1280, v{t0}"); E.i(f"v_lshrrev_b32 v{t1}, 5, v1"); E.i(f"v_lshl_add_u32 v{dst}, v{t1}, 4, v{t0}")

def a4_load(E, i):
    ld_unit(E, AFR + 4*(i % 20), sA4, i, ("a4", i))

AUXB = 0
CSF = 2048
WF4 = 64
def w4_first(E):
    E.i(f"s_sub_u32 s52, s{sW4}, s{sW4+1}")
    for t in range(3): ld_unit(E, WF4 + 4*t, 52, t, "w40")
def s3(E):
    stamp(E, 14, 35); stamp(E, 36, 35, wave=4)
    LG1, LJ = E.newlabel("s3g1"), E.newlabel("s3j")
    E.i("s_cmp_ge_u32 s3, 4"); E.branch(f"s_cbranch_scc1 {LG1}")
    E.vm = []
    E.i("s_setprio 2")
    vPW, vM, vPR, vXR = 4, 5, 8, 9
    RES = 12
    T = 68
    E.i("s_mul_i32 s52, s3, 10240"); E.i(f"s_add_u32 s52, s52, {SCR}"); E.i(f"v_add_u32 v{vPW}, s52, v2")
    lane_pr(E, vPR, 6, 7); lane_xr(E, vXR, 6, 7)
    E.i(f"v_add_u32 v{vPR}, s{sW4+1}, v{vPR}"); E.i(f"v_add_u32 v{vPR}, {SCR}, v{vPR}")
    E.i(f"s_lshr_b32 s52, s{sW4+1}, 5"); E.i(f"v_add_u32 v{vXR}, s52, v{vXR}")
    E.i(f"s_mul_i32 s52, s{sRB3}, 40960"); E.i(f"s_mul_i32 s53, s{sCT3}, 160"); E.i("s_add_u32 s52, s52, s53"); E.i("s_add_u32 s53, s52, 1310720")
    for ph in range(2):
        E.i(f"buffer_load_dwordx4 v[{RES+8*ph}:{RES+8*ph+3}], v{vXR}, s[{SRD_X}:{SRD_X+3}], s{52+ph} offen", tag="res")
        E.i(f"buffer_load_dwordx4 v[{RES+8*ph+4}:{RES+8*ph+7}], v{vXR}, s[{SRD_X}:{SRD_X+3}], s{52+ph} offen offset:128", tag="res")
    sHW = 67
    E.i(f"s_mul_i32 s{sHW}, s{sRB3}, 40960"); E.i(f"s_mul_i32 s53, s{sCT3}, 5120"); E.i(f"s_add_u32 s{sHW}, s{sHW}, s53"); E.i(f"s_add_u32 s{sHW}, s{sHW}, s{sW4+1}"); E.i(f"s_add_u32 s{sHW}, s{sHW}, {HF}")
    E.i(f"s_add_u32 s{sHW+1}, s{sHW}, {32*40960}")
    for ph in range(2):
        if ph == 0: probe_o(E, 0, 6, 7, lambda: a3_all(E, 0))
        Lb = E.newlabel("s3v")
        E.label(Lb)
        for k in range(5):
            E.wait_vm(("a3", ph, k))
            for u in range(2):
                af = A3[ph] + (2*k+u)*4
                for nt in range(5):
                    a = ACC3 + (u*5+nt)*4; wf = W3R + (k*5+nt)*4
                    c = "0" if k == 0 else f"v[{a}:{a+3}]"
                    E.i(f"v_mfma_f32_16x16x32_bf16 v[{a}:{a+3}], v[{wf}:{wf+3}], v[{af}:{af+3}], {c}")
        stamp(E, 15 + 3*ph, 6)
        if ph == 0: gwait(E, 2, 4, 6, 7)
        else: gwait(E, 0, 4*GB[0], 6, 7)
        for j in range(10): E.i(f"ds_write_b128 v{vPW}, v[{ACC3+4*j}:{ACC3+4*j+3}] offset:{j*1024}")
        GB[0] += 1; garrive(E, 0, 6, 7)
        if ph == 0:
            E.i(f"s_lshl_b32 s101, s{sRB3}, 12"); E.i("s_lshl_b32 s52, s3, 10"); E.i("s_add_u32 s101, s101, s52"); E.i(f"s_add_u32 s101, s101, {FO + 131072}")
            E.i("v_and_b32 v11, 7, v1"); E.i("v_lshlrev_b32 v11, 7, v11")
        gwait(E, 0, 4*GB[0], 6, 7)
        if ph == 0: E.i(f"buffer_load_dword v11, v11, {WSR}, s101 offen{SC}", tag="aprobe")
        stamp(E, 16 + 3*ph, 6)
        E.wait_vm("res")
        for unit in range(2):
            Lu = None
            if unit == 1:
                Lu = E.newlabel("fin4"); E.i("s_cmp_lg_u32 s3, 0"); E.branch(f"s_cbranch_scc1 {Lu}")
                cm = side(E); cm.__enter__()
            final_sum(E, vPR, 4, T, unit*4096, 6)
            add_res_pack(E, T, RES + 8*ph + 4*unit, 28, 6, False)
            if unit == 0: E.i(f"buffer_store_dwordx4 v[28:31], v2, {WSR}, s{sHW+ph} offen{SC}", tag="st")
            else:
                E.i(f"s_add_u32 s52, s{sHW+ph}, 4096"); E.i(f"buffer_store_dwordx4 v[28:31], v2, {WSR}, s52 offen{SC}")
            if unit == 0:
                E.i(f"v_add_f32 v32, v{T}, v{T+1}"); E.i(f"v_mul_f32 v33, v{T}, v{T}"); E.i(f"v_mul_f32 v35, v{T+1}, v{T+1}"); E.i(f"v_add_f32 v34, v{T+2}, v{T+3}")
                for j in range(2, 8): E.i(f"v_fmac_f32 v{33 if j&1 else 35}, v{T+j}, v{T+j}")
                for j in range(4, 8): E.i(f"v_add_f32 v{32 if j&1 else 34}, v{32 if j&1 else 34}, v{T+j}")
            else:
                for j in range(8):
                    E.i(f"v_fmac_f32 v{33 if j&1 else 35}, v{T+j}, v{T+j}"); E.i(f"v_add_f32 v{32 if j&1 else 34}, v{32 if j&1 else 34}, v{T+j}")
                cm.__exit__(); E.label(Lu)
        E.i("v_add_f32 v32, v32, v34"); E.i("v_add_f32 v33, v33, v35")
        E.i("v_mov_b32 v34, v32"); E.i("v_mov_b32 v35, v33")
        E.i("v_permlane32_swap_b32 v32, v34"); E.i("v_permlane32_swap_b32 v33, v35")
        E.i("v_add_f32 v32, v32, v34"); E.i("v_add_f32 v33, v33, v35")
        E.i("v_and_b32 v10, 31, v1"); E.i("v_lshlrev_b32 v10, 3, v10"); E.i(f"s_lshr_b32 s52, s{sW4+1}, 2"); E.i(f"s_add_u32 s52, s52, {AUXB + ph*1024}"); E.i("v_add_u32 v34, s52, v10")
        E.i("ds_write_b64 v34, v[32:33]")
        garrive(E, 0, 6, 7); GB[0] += 1
        E.i(f"s_lshl_b32 s52, s{sRB3}, 10"); E.i(f"s_lshl_b32 s53, s{sCT3}, 7"); E.i("s_add_u32 s52, s52, s53"); E.i(f"s_add_u32 s52, s52, {FH + ph*32768}")
        if ph == 0:
            Lsl, Lj_ = E.newlabel("slow"), E.newlabel("fj")
            E.i("s_mov_b32 s54, s52")
            E.wait_vm("aprobe")
            E.i("v_cmp_eq_u32 vcc, 0, v11")
            E.branch(f"s_cbranch_vccnz {Lsl}")
            with side(E):
                a3_all(E, 1)
                signal_last(E, 54, 4, 6, 7, 12)
            E.branch(f"s_branch {Lj_}")
            E.label(Lsl)
            signal_last(E, 54, 4, 6, 7)
            probe_o(E, 1, 6, 7, lambda: a3_all(E, 1))
            E.label(Lj_)
        else: signal_last(E, 52, 5, 6, 7)
        stamp(E, 17 + 3*ph, 6)
    gwait(E, 0, 4*GB[0], 6, 7)
    hst(E, 0, 2); hst(E, 1, 3)
    for j in range(W5_PRE): ld_unit(E, W5reg(j), sW5, j, ("w5", j))
    G0_DONE = 4*GB[0]
    gwait(E, 1, 12, 6, 7)
    E.i(f"s_setprio {G0_PRIO}")
    q = [(("w5", j), (lambda j=j: ld_unit(E, W5reg(j), sW5, j, ("w5", j)))) for j in range(W5_PRE, 22)]
    s4(E, 1, q)
    E.branch(f"s_branch {LJ}")
    E.label(LG1)
    E.vm = []; E.lg = []
    for u_ in W4U[W4_EARLY:]: w4_unit(E, u_)
    gwait(E, 3, 4, 6, 7)
    for i in range(7): w4_unit(E, 90 + 4*i)
    E.i("v_lshrrev_b32 v8, 1, v2")
    E.i("v_add_f32 v16, v200, v202"); E.i("v_add_f32 v17, v201, v203")
    for j in range(2, 10):
        E.i(f"v_add_f32 v16, v16, v{200+2*j}"); E.i(f"v_add_f32 v17, v17, v{201+2*j}")
    E.i(f"s_lshr_b32 s52, s{sW4+1}, 1"); E.i(f"s_add_u32 s52, s52, {CSX}"); E.i("v_add_u32 v9, s52, v8")
    E.i("ds_write_b64 v9, v[16:17]")
    gbar(E, 1, 6, 7)
    E.i(f"v_add_u32 v9, {CSX}, v8")
    for w in range(4): E.i(f"ds_read_b64 v[{16+2*w}:{17+2*w}], v9 offset:{w*512}")
    E.wait_lg()
    for w in range(1, 4):
        E.i(f"v_add_f32 v16, v16, v{16+2*w}"); E.i(f"v_add_f32 v17, v17, v{17+2*w}")
    E.i(f"ds_write_b64 v8, v[16:17] offset:{CSF}")
    gbar(E, 1, 6, 7)
    Lq = E.newlabel("w4q"); E.i("s_cmp_ge_u32 s3, 6"); E.branch(f"s_cbranch_scc1 {Lq}")
    with side(E): w4_unit(E, 118)
    E.label(Lq)
    E.vm = []
    for j in range(G1W5): ld_unit(E, W5reg(j), sW5, j, ("w5", j))
    E.i(f"s_waitcnt vmcnt({G1W5})")
    gbar(E, 1, 6, 7)
    s4(E, 0, [(("w5", j), (lambda j=j: ld_unit(E, W5reg(j), sW5, j, ("w5", j)))) for j in range(G1W5, 22)])
    gwait(E, 0, G0_DONE, 12, 13)
    E.label(LJ)
    E.vm = ["st"]; E.lg = []

def hst(E, ph, wv):
    Ls = E.newlabel("hst")
    E.i(f"s_cmp_lg_u32 s3, {wv}"); E.branch(f"s_cbranch_scc1 {Ls}")
    with side(E):
        E.i(f"v_add_u32 v11, {AUXB + ph*1024}, v10")
        for j in range(4): E.i(f"ds_read_b64 v[{148+2*j}:{149+2*j}], v11 offset:{j*256}")
        E.i("s_waitcnt lgkmcnt(0)")
        for j in range(1, 4):
            E.i(f"v_add_f32 v148, v148, v{148+2*j}"); E.i(f"v_add_f32 v149, v149, v{149+2*j}")
        E.i(f"s_lshl_b32 s52, s{sRB3}, 11"); E.i(f"s_lshl_b32 s53, s{sCT3}, 8"); E.i("s_add_u32 s52, s52, s53"); E.i(f"s_add_u32 s52, s52, {HSTB + ph*32*2048}")
        E.i("s_mov_b32 exec_hi, 0")
        E.i(f"buffer_store_dwordx2 v[148:149], v10, {WSR}, s52 offen{SC}")
        E.i("s_mov_b64 exec, -1")
        E.i(f"s_lshl_b32 s52, s{sRB3}, 10"); E.i(f"s_lshl_b32 s53, s{sCT3}, 7"); E.i("s_add_u32 s52, s52, s53"); E.i(f"s_add_u32 s52, s52, {FS + ph*32768}")
        signal(E, 52, 148)
    E.label(Ls)
W5_PRE = int(os.environ.get("W5_PRE", "22"))
WP_PRE = int(os.environ.get("WP_PRE", "8"))
A3B_LATE = int(os.environ.get("A3B_LATE", "1"))
A5_AT = int(os.environ.get("A5_AT", "40"))
G0_PRIO = int(os.environ.get("G0_PRIO", "0"))
G1W5 = int(os.environ.get("G1W5", "22"))
W4U = list(range(3, 87, 4)) + [86]
W4_EARLY = int(os.environ.get("W4_EARLY", "22"))
ATT_PRIO = int(os.environ.get("ATT_PRIO", "2"))
S4_INIT = int(os.environ.get("S4_INIT", "8"))
S4_FIRST = 5
WP_FIRST = int(os.environ.get("WP_FIRST", "14"))
W4_S2 = int(os.environ.get("W4_S2", "10"))
F1_AT = int(os.environ.get("F1_AT", "6"))

vA5 = 7
def a5_load(E, ph, f):
    k, u = f // 2, f % 2
    r = A5[ph](f); off = k*2048 + u*256
    E.i(f"s_add_u32 s100, s{sA5+ph}, {off - off % 4096}")
    E.i(f"buffer_load_dwordx4 v[{r}:{r+3}], v{vA5}, {WSR}, s100 offen offset:{off % 4096}{SC}", tag=("a5", ph, f))

def a4_touch(E, va, vd):
    E.i(f"s_and_b32 s52, s{sCG4}, 7"); E.i("s_lshl_b32 s52, s52, 7"); E.i(f"s_add_u32 s52, s52, s{sA4}"); E.i("s_add_u32 s52, s52, 8192")
    E.i(f"v_and_b32 v{va}, 31, v1"); E.i(f"v_lshlrev_b32 v{va}, 10, v{va}")
    E.i(f"buffer_load_dword v{vd}, v{va}, {WSR}, s52 offen{SC}")

def s4(E, g, q0):
    vWB, vWB2, vCSR, vM = 3, 4, 6, 5
    ST = 8; SX, SXX = 8, 9
    ACC = 16; WF = WF4
    stamp(E, 21 if g == 0 else 24, 15, wave=4*(1-g))
    if g == 0: E.i("s_setprio 1")
    E.i(f"v_add_u32 v{vWB2}, 61440, v2")
    E.i("v_lshrrev_b32 v8, 5, v1"); E.i("v_lshlrev_b32 v8, 4, v8"); E.i(f"v_add_u32 v{vCSR}, {CSF}, v8")
    E.i("v_lshrrev_b32 v8, 4, v1"); E.i("v_and_b32 v9, 15, v1"); E.i("v_lshlrev_b32 v8, 9, v8"); E.i(f"v_lshl_add_u32 v{vA5}, v9, 4, v8")
    K1, K2 = 78, 79
    k1 = -2.0 * 0.7978845608028654 * 1.4426950408889634
    E.i(f"s_mov_b32 s{K1}, {f2u(k1):#x}"); E.i(f"s_mov_b32 s{K2}, {f2u(k1*0.044715):#x}")
    def st_loads():
        E.i(f"v_lshrrev_b32 v{ST+6}, 1, v2")
        for i in range(4):
            E.i(f"buffer_load_dwordx2 v[{ST+2*i}:{ST+2*i+1}], v{ST+6}, {WSR}, s{sHS} offen offset:{i*512}{SC}", tag="hst")
    w4_first(E)
    probe_h(E, 8, 9, lambda: [a4_load(E, i) for i in range(S4_INIT)])
    if "touch" in OPT: a4_touch(E, 8, 9)
    Lb = E.newlabel("s4v"); Lh = E.newlabel("s4h")
    E.label(Lb)
    E.bg_period = 0
    def rd(i):
        for t in range(3):
            r = WF + (i%2)*12 + 4*t
            o = (i*3+t)*1024
            if o < 61440: E.i(f"ds_read_b128 v[{r}:{r+3}], v2 offset:{o}", tag=("w", i))
            else: E.i(f"ds_read_b128 v[{r}:{r+3}], v{vWB2} offset:{o-61440}", tag=("w", i))
    sched = [[] for _ in range(41)]
    nxt = S4_INIT
    for i in range(40):
        for _ in range(2 if nxt < 20 else 1):
            if nxt < 40 and nxt - 20 < i:
                sched[i].append(lambda n=nxt: a4_load(E, n)); nxt += 1
    assert nxt == 40
    q = list(q0)
    for n, (tg, fn) in enumerate(q): sched[min((8 if g else 18) + n, 40)].append(fn)
    if g == 1:
        for n in range(22, 30): sched[33 + n - 22].append(lambda n=n: ld_unit(E, W5reg(n), sW5, n, ("w5", n)))
    for i in range(40):
        if i + 1 < 40: rd(i + 1)
        E.wait_vm(("a4", i))
        if i > 0: E.wait_lg(("w", i))
        af = AFR + 4*(i % 20)
        ops = list(sched[i])
        for t in range(3):
            r = WF + (i%2)*12 + 4*t; a = ACC + 16*t
            c = "0" if i == 0 else f"v[{a}:{a+15}]"
            E.i(f"v_mfma_f32_32x32x16_bf16 v[{a}:{a+15}], v[{r}:{r+3}], v[{af}:{af+3}], {c}")
            if ops: ops.pop(0)()
        for o in ops: o()
        if i == 30: probe_s(E, 8, 9, st_loads)
        if i in (0, 9, 19, 29): stamp(E, 53 + 5*g + (i+1)//10, 3, wave=4*(1-g))
    stamp(E, 22 if g == 0 else 25, 87, wave=4*(1-g))
    for o in sched[40]: E.bg_push("x", o)
    if g == 0:
        for n in range(22, 30): E.bg_push(("w5", n), lambda n=n: ld_unit(E, W5reg(n), sW5, n, ("w5", n)))
    E.bg_period = BGP
    E.wait_vm("hst")
    E.i(f"v_add_f32 v{ST}, v{ST}, v{ST+2}"); E.i(f"v_add_f32 v{ST+1}, v{ST+1}, v{ST+3}")
    E.i(f"v_add_f32 v{ST+4}, v{ST+4}, v{ST+6}"); E.i(f"v_add_f32 v{ST+5}, v{ST+5}, v{ST+7}")
    E.i(f"v_add_f32 v{ST}, v{ST}, v{ST+4}"); E.i(f"v_add_f32 v{ST+1}, v{ST+1}, v{ST+5}")
    E.i(f"v_mov_b32 v{ST+2}, v{ST}"); E.i(f"v_mov_b32 v{ST+3}, v{ST+1}")
    E.i(f"v_permlane32_swap_b32 v{ST}, v{ST+2}"); E.i(f"v_permlane32_swap_b32 v{ST+1}, v{ST+3}")
    E.i(f"v_add_f32 v{ST}, v{ST}, v{ST+2}"); E.i(f"v_add_f32 v{ST+1}, v{ST+1}, v{ST+3}")
    stats_math(E, SX, SXX)
    E.i(f"v_mul_f32 v11, v{SXX}, v{SXX}"); E.i(f"v_mul_f32 v10, s{K1}, v{SXX}"); E.i(f"v_mul_f32 v12, v11, v{SXX}"); E.i(f"v_mul_f32 v12, s{K2}, v12"); E.i("v_rcp_f32 v11, v11")
    for q_ in range(4): E.i(f"ds_read_b128 v[{WF+4*q_}:{WF+4*q_+3}], v{vCSR} offset:{q_*32}")
    for t in range(3):
        a = ACC + 16*t; C = WF; G = WF + 16
        E.wait_lg()
        for r in range(16): E.i(f"v_fma_f32 v{a+r}, v{SX}, v{C+r}, v{a+r}")
        if t < 2:
            for q_ in range(4): E.i(f"ds_read_b128 v[{C+4*q_}:{C+4*q_+3}], v{vCSR} offset:{(t+1)*128 + q_*32}")
        for r in range(8): E.i(f"v_mul_f32 v{G+r}, v{a+r}, v{a+r}")
        for r in range(8): E.i(f"v_fma_f32 v{G+r}, v{G+r}, v12, v10")
        for r in range(8): E.i(f"v_mul_f32 v{G+r}, v{G+r}, v{a+r}")
        for r in range(8): E.i(f"v_exp_f32 v{G+r}, v{G+r}")
        for r in range(8): E.i(f"v_mul_f32 v{a+r}, v{a+r}, v{a+8+r}")
        for r in range(8): E.i(f"v_fma_f32 v{G+r}, v{G+r}, v11, v11")
        for r in range(8): E.i(f"v_rcp_f32 v{G+r}, v{G+r}")
        for r in range(8): E.i(f"v_mul_f32 v{a+r}, v{a+r}, v{G+r}")
        for r in range(4):
            E.i(f"v_cvt_pk_bf16_f32 v{a+8+r}, v{a+2*r}, v{a+2*r+1}")
        E.i(f"buffer_store_dwordx4 v[{a+8}:{a+11}], v2, {WSR}, s{sHH} offen offset:{t*1024}{SC}", tag="st")
    E.bg_flush()
    E.i(f"s_lshl_b32 s52, s{sTB4}, 12"); E.i(f"s_lshl_b32 s53, s{sCG4}, 7"); E.i("s_add_u32 s52, s52, s53"); E.i(f"s_add_u32 s52, s52, {FHH}")
    signal(E, 52, 8)
    if g == 0: E.i("s_setprio 0")
    probe_hh(E, 0, 8, 9, lambda: [a5_load(E, 0, f) for f in range(12)], 6 if g == 0 else 2)
    stamp(E, 23 if g == 0 else 26, 87, wave=4*(1-g))
G1_SLEEP = int(os.environ.get("G1_SLEEP", "8"))
G0_SLEEP = int(os.environ.get("G0_SLEEP", "8"))

def s4_rep(E):
    ACC = 16; WF = WF4
    for variant in range(3):
        E.i("s_waitcnt vmcnt(0) lgkmcnt(0)"); E.vm = []; E.lg = []
        E.i("s_barrier"); stamp(E, 53 + 2*variant, 15)
        def rd(i):
            for t in range(3):
                r = WF + (i%2)*12 + 4*t
                o = (max(i,1)*3+t)*1024
                if o < 61440: E.i(f"ds_read_b128 v[{r}:{r+3}], v2 offset:{o}", tag=("w", i))
                else: E.i(f"ds_read_b128 v[{r}:{r+3}], v4 offset:{o-61440}", tag=("w", i))
        if variant >= 1:
            for i in range(20): a4_load(E, i)
        rd(0)
        for i in range(40):
            if i + 1 < 40: rd(i + 1)
            E.wait_vm(("a4", i)); E.wait_lg(("w", i))
            af = AFR + 4*(i % 20)
            for t in range(3):
                r = WF + (i%2)*12 + 4*t; a = ACC + 16*t
                if "m16" in OPT:
                    af2 = AFR + 4*((i+1) % 20); a2 = a + 8*(i%2)
                    E.i(f"v_mfma_f32_16x16x32_bf16 v[{a2}:{a2+3}], v[{r}:{r+3}], v[{af}:{af+3}], v[{a2}:{a2+3}]")
                    E.i(f"v_mfma_f32_16x16x32_bf16 v[{a2+4}:{a2+7}], v[{r}:{r+3}], v[{af2}:{af2+3}], v[{a2+4}:{a2+7}]")
                else:
                    E.i(f"v_mfma_f32_32x32x16_bf16 v[{a}:{a+15}], v[{r}:{r+3}], v[{af}:{af+3}], v[{a}:{a+15}]")
                if t == 0 and variant >= 1 and 1 <= i <= 20: a4_load(E, i + 19)
                if t == 1 and variant == 2 and i < 22: ld_unit(E, W5reg(i), sW5, i, ("w5", i))
        E.i("s_barrier"); stamp(E, 54 + 2*variant, 15)

def s5(E):
    ACC = 16; vPW, vPR, vM, XR = 3, 4, 6, 15
    E.bg_period = 0
    lane_pr(E, 5, 12, 13); lane_xr(E, 14, 12, 13)
    E.i("s_mul_i32 s52, s3, 10240"); E.i("s_add_u32 s52, s52, 81920"); E.i(f"v_add_u32 v{vPW}, s52, v2")
    sHB, sOB = 74, 75
    E.i(f"s_mul_i32 s{sHB}, s{sRB3}, 40960"); E.i(f"s_mul_i32 s53, s{sCT3}, 5120"); E.i(f"s_add_u32 s{sHB}, s{sHB}, s53"); E.i(f"s_add_u32 s{sHB}, s{sHB}, {HF}")
    E.i(f"s_mul_i32 s{sOB}, s{sRB3}, 40960"); E.i(f"s_mul_i32 s53, s{sCT3}, 160"); E.i(f"s_add_u32 s{sOB}, s{sOB}, s53")
    def mm(ph):
        Lb = E.newlabel("s5v")
        E.label(Lb)
        for k in range(6):
            E.wait_vm(("a5", ph, 2*k+1))
            for u in range(2):
                af = A5[ph](2*k+u)
                for nt in range(5):
                    a = ACC + (u*5+nt)*4; wf = W5reg(k*5+nt)
                    c = "0" if k == 0 else f"v[{a}:{a+3}]"
                    E.i(f"v_mfma_f32_16x16x32_bf16 v[{a}:{a+3}], v[{wf}:{wf+3}], v[{af}:{af+3}], {c}")
    def wr():
        for j in range(10): E.i(f"ds_write_b128 v{vPW}, v[{ACC+4*j}:{ACC+4*j+3}] offset:{j*1024}")
        E.wait_lg()
    def res_load(ph, snt, r):
        E.i(f"s_lshl_b32 s52, s{snt}, 10"); E.i(f"s_add_u32 s52, s52, s{sHB}")
        if ph: E.i(f"s_add_u32 s52, s52, {32*40960}")
        E.i(f"buffer_load_dwordx4 v[{r}:{r+3}], v2, {WSR}, s52 offen{SC}", tag="res")
    def fin(ph, snt, r, T):
        E.i(f"s_lshl_b32 s52, s{snt}, 10"); E.i(f"s_add_u32 s52, s52, {81920 if ph == 0 else 0}"); E.i(f"v_add_u32 v{vPR}, s52, v5")
        final_sum(E, vPR, 8, T, 0, 12)
        add_res_pack(E, T, r, T + 8, 12, False)
        E.i(f"s_lshl_b32 s52, s{snt}, 5"); E.i(f"s_add_u32 s52, s52, s{sOB}")
        if ph: E.i("s_add_u32 s52, s52, 1310720")
        E.i(f"buffer_store_dwordx4 v[{T+8}:{T+11}], v14, s[{SRD_OUT}:{SRD_OUT+3}], s52 offen")
    a5b = lambda: [a5_load(E, 1, f) for f in range(12)]
    LG1, LJ = E.newlabel("s5g1"), E.newlabel("s5j")
    RA = AFR + 16
    E.i("s_sub_u32 s76, s3, 3"); E.i("s_max_i32 s76, s76, 0"); E.i("s_min_u32 s77, s3, 4")
    E.vm = [("a5", 0, f) for f in range(12)]
    mm(0); stamp(E, 28, 12)
    E.i("s_cmp_ge_u32 s3, 4"); E.branch(f"s_cbranch_scc1 {LG1}")
    E.i("s_barrier")
    wr()
    E.branch(f"s_branch {LJ}")
    E.label(LG1)
    wr()
    E.i("s_barrier")
    E.label(LJ)
    res_load(0, 76, RA); res_load(1, 77, 8)
    probe_hh(E, 1, 12, 13, a5b)
    E.i("s_barrier")
    stamp(E, 29, 12)
    L4 = E.newlabel("f4"); E.i("s_cmp_lt_u32 s3, 3"); E.branch(f"s_cbranch_scc1 {L4}")
    with side(E): fin(0, 76, RA, ACC)
    E.label(L4)
    stamp(E, 30, 12, wave=4)
    E.i(f"v_subrev_u32 v{vPW}, 81920, v{vPW}")
    mm(1); stamp(E, 31, 12)
    wr()
    E.i("s_barrier")
    stamp(E, 32, 12)
    Lsk = E.newlabel("s5sk")
    E.i("s_cmp_ge_u32 s3, 5"); E.branch(f"s_cbranch_scc1 {Lsk}")
    with side(E): fin(1, 3, 8, ACC)
    E.label(Lsk)
    stamp(E, 33, 12)

def prologue(E, kn):
    E.raw(f".globl {kn}\n.p2align 8\n.type {kn},@function\n{kn}:")
    E.i("s_cmp_ge_u32 s2, 256")
    E.branch(f"s_cbranch_scc1 L_exit_{kn}")
    if "scr" in OPT:
        E.i("s_and_b32 s52, s2, 7"); E.i("s_bfe_u32 s53, s2, 0x30003"); E.i("s_and_b32 s2, s2, 0xc0"); E.i("s_lshl_b32 s52, s52, 3"); E.i("s_or_b32 s2, s2, s52"); E.i("s_or_b32 s2, s2, s53")
    E.i("s_load_dwordx16 s[4:19], s[0:1], 0")
    if "tca" in OPT and kn == "ka_kernel":
        E.i("s_getpc_b64 s[70:71]")
        E.i("v_and_b32 v5, 0x7f, v0"); E.i("v_lshlrev_b32 v5, 7, v5")
        E.i("v_cmp_gt_u32 vcc, 128, v0"); E.i("s_and_saveexec_b64 s[72:73], vcc"); E.branch("s_cbranch_execz L_tca")
        E.raw("  global_load_dword v255, v5, s[70:71]")
        E.label("L_tca"); E.i("s_mov_b64 exec, -1")
    E.i("s_load_dwordx4 s[20:23], s[0:1], 64")
    E.i("s_memrealtime s[96:97]")
    E.i("v_and_b32 v1, 63, v0")
    E.i("v_lshrrev_b32 v2, 6, v0")
    E.i("v_readfirstlane_b32 s3, v2")
    E.i("v_lshlrev_b32 v2, 4, v1")
    E.i(f"s_mov_b32 s{sONE}, 0x3f803f80"); E.i(f"s_mov_b32 s{sRETRY}, 0"); E.i(f"s_mov_b32 s{sM1}, 0xfffffffe")
    E.i("s_waitcnt lgkmcnt(0)")
    E.i(f"s_mov_b32 s{sT0}, s96")
    srd(E, SRD_X, P_X, 2621440)
    srd(E, SRD_W1, P_W1, 2457600)
    srd(E, SRD_WS, P_WS, WS_BYTES)
    srd(E, SRD_OUT, P_OUT, 2621440)
    srd(E, SRD_DBG, P_DBG, 256)
def kdesc(kn):
    return f""".section .rodata,"a"
.p2align 6
.amdhsa_kernel {kn}
  .amdhsa_next_free_vgpr 256
  .amdhsa_next_free_sgpr 102
  .amdhsa_accum_offset 256
  .amdhsa_group_segment_fixed_size 0
  .amdhsa_kernarg_size 80
  .amdhsa_user_sgpr_count 2
  .amdhsa_user_sgpr_kernarg_segment_ptr 1
  .amdhsa_system_sgpr_workgroup_id_x 1
.end_amdhsa_kernel
"""
def build():
    E = Emitter()
    prologue(E, "ka_kernel")
    stamp(E, 0, 31)
    E.i("s_lshl_b32 s52, s2, 3"); E.i("s_or_b32 s52, s52, s3"); E.i("s_cmp_lg_u32 s52, 2047"); E.branch("s_cbranch_scc1 L_nonce_done")
    E.i(f"s_or_b32 s52, s{sT0}, 1"); E.i("s_mov_b64 exec, 1"); E.i("v_mov_b32 v3, s52")
    E.raw(f"  buffer_store_dword v3, off, s[{SRD_DBG}:{SRD_DBG+3}], 0{SC}")
    E.i("s_mov_b64 exec, -1")
    E.label("L_nonce_done")
    E.i("s_cmp_ge_u32 s2, 240"); E.branch("s_cbranch_scc1 L_idle")
    s1(E)
    E.branch("s_branch L_tail")
    E.label("L_idle")
    E.vm = []; E.lg = []
    idle(E)
    E.label("L_tail")
    E.vm = [("s0dma", 0)] + ["st"]*8; E.lg = []
    ka_tail(E)
    if CFG.stamps:
        E.i("s_waitcnt vmcnt(0)"); stamp(E, 3, 31); stamp(E, 4, 31, wave=7)
    E.label("L_exit_ka_kernel")
    E.raw("  s_endpgm")
    prologue(E, "kb_kernel")
    E.vm = []; E.lg = []; E.bg_period = 0
    s2(E)
    s3(E)
    s5(E)
    E.i("s_waitcnt vmcnt(0) lgkmcnt(0)")
    stamp(E, 40, 31)
    E.label("L_exit_kb_kernel")
    E.raw("  s_endpgm")
    E.raw("L_end_of_code:")
    hdr = ("; @launch kernel=ka_kernel grid=(256,1,1) block=(512,1,1) lds=163840\n; @launch kernel=kb_kernel grid=(256,1,1) block=(512,1,1) lds=163840\n"
           ".amdgcn_target \"amdgcn-amd-amdhsa--gfx950\"\n.text\n")
    return hdr + E.text() + kdesc("ka_kernel") + kdesc("kb_kernel")

if __name__ == "__main__":
    mode = sys.argv[2] if len(sys.argv) > 2 else ""
    CFG.stamps = mode == "stamps"; CFG.dbgst = mode == "dbg"
    open(sys.argv[1], "w").write(build())
```

```python
from k21a import *

sRB3, sCT3, sCG4, sRB4 = 86, 87, 88, 89
W3R = 156; A3 = [68, 108]; ACC3 = 28
W5P1 = 168
AFR = 88
W5reg = lambda j: (W5P1 + 4*j) if j < 22 else (AFR + 48 + 4*(j-22))
A5 = [lambda f: AFR + 4*f, lambda f: (56 + 4*f) if f < 8 else (AFR + 4*(f-8))]
vA3 = 3
S2B_AT = int(os.environ.get("S2B_AT", "5"))
S3A_AT = int(os.environ.get("S3A_AT", "6"))

MAP3 = int(os.environ.get("MAP3", "2"))
MAP4 = int(os.environ.get("MAP4", "3"))
def late_scalars(E):
    E.i("s_and_b32 s52, s2, 7"); E.i("s_lshr_b32 s53, s2, 3")
    c = MAP3
    E.i(f"s_lshr_b32 s{sRB3}, s52, {3-c}"); E.i(f"s_lshl_b32 s{sRB3}, s{sRB3}, {5-c}"); E.i(f"s_lshr_b32 s54, s53, {c}"); E.i(f"s_add_u32 s{sRB3}, s{sRB3}, s54")
    E.i(f"s_and_b32 s{sCT3}, s52, {(1 << (3-c)) - 1}"); E.i(f"s_lshl_b32 s{sCT3}, s{sCT3}, {c}"); E.i(f"s_and_b32 s54, s53, {(1 << c) - 1}"); E.i(f"s_add_u32 s{sCT3}, s{sCT3}, s54")
    c = MAP4
    E.i(f"s_lshr_b32 s{sRB4}, s52, {5-c}"); E.i(f"s_lshl_b32 s{sRB4}, s{sRB4}, {5-c}"); E.i(f"s_lshr_b32 s54, s53, {c}"); E.i(f"s_add_u32 s{sRB4}, s{sRB4}, s54")
    E.i(f"s_and_b32 s{sCG4}, s52, {(1 << (5-c)) - 1}"); E.i(f"s_lshl_b32 s{sCG4}, s{sCG4}, {c}"); E.i(f"s_and_b32 s54, s53, {(1 << c) - 1}"); E.i(f"s_add_u32 s{sCG4}, s{sCG4}, s54")

def ld_unit(E, r, sbase, j, tag, vaddr=2, unit=1024):
    off = j * unit
    if off < 4096:
        E.i(f"buffer_load_dwordx4 v[{r}:{r+3}], v{vaddr}, {WSR}, s{sbase} offen offset:{off}{SC}", tag=tag)
    else:
        E.i(f"s_add_u32 s100, s{sbase}, {off - off % 4096}")
        E.i(f"buffer_load_dwordx4 v[{r}:{r+3}], v{vaddr}, {WSR}, s100 offen offset:{off % 4096}{SC}", tag=tag)

sWP, sW4, sW5, sA3, sA4, sA5, sHS, sHH = 56, 57, 59, 60, 62, 63, 65, 66
def bases(E):
    E.i(f"s_mul_i32 s{sW5}, s{sCT3}, 245760"); E.i("s_mul_i32 s53, s3, 30720"); E.i(f"s_add_u32 s{sW5}, s{sW5}, s53"); E.i(f"s_add_u32 s{sW5}, s{sW5}, {W5F}")
    E.i(f"s_mul_i32 s52, s{sCT3}, 102400"); E.i("s_mul_i32 s53, s3, 25600"); E.i("s_add_u32 s52, s52, s53"); E.i(f"s_add_u32 s52, s52, {W3F}")
    E.i(f"s_sub_u32 s53, s{sW5}, 3072")
    E.i("s_cmp_lt_u32 s3, 4"); E.i(f"s_cselect_b32 s{sWP}, s52, s53")
    E.i(f"s_mul_i32 s{sW4}, s{sCG4}, 122880"); E.i(f"s_add_u32 s{sW4}, s{sW4}, {W4F}"); E.i(f"s_lshl_b32 s{sW4+1}, s3, 10"); E.i(f"s_add_u32 s{sW4}, s{sW4}, s{sW4+1}")
    E.i(f"s_mul_i32 s{sA3}, s{sRB3}, 40960"); E.i(f"s_add_u32 s{sA3}, s{sA3}, {OF}")
    E.i("s_and_b32 s53, s3, 3"); E.i("s_lshl_b32 s72, s53, 12"); E.i("s_lshl_b32 s73, s53, 10"); E.i("s_add_u32 s73, s73, 16384")
    E.i(f"s_add_u32 s{sA3+1}, s{sA3}, {64*20480}")
    E.i("s_lshr_b32 s52, s3, 2"); E.i("s_xor_b32 s52, s52, 1"); E.i("s_lshl_b32 s52, s52, 3"); E.i(f"s_add_u32 s52, s52, s{sRB4}"); E.i("s_lshl_b32 s52, s52, 2"); E.i("s_and_b32 s53, s3, 3"); E.i("s_add_u32 s52, s52, s53")
    E.i(f"s_mov_b32 s90, s52")
    E.i(f"s_mul_i32 s{sA4}, s52, 40960"); E.i(f"s_add_u32 s{sA4}, s{sA4}, {HF}")
    E.i(f"s_lshl_b32 s{sHS}, s52, 11"); E.i(f"s_add_u32 s{sHS}, s{sHS}, {HSTB}")
    E.i(f"s_mul_i32 s{sHH}, s52, 98304"); E.i(f"s_mul_i32 s53, s{sCG4}, 3072"); E.i(f"s_add_u32 s{sHH}, s{sHH}, s53"); E.i(f"s_add_u32 s{sHH}, s{sHH}, {HHF}")
    E.i(f"s_mul_i32 s{sA5}, s{sRB3}, 98304"); E.i("s_mul_i32 s53, s3, 12288"); E.i(f"s_add_u32 s{sA5}, s{sA5}, s53"); E.i(f"s_add_u32 s{sA5}, s{sA5}, {HHF}")
    E.i(f"s_add_u32 s{sA5+1}, s{sA5}, {32*98304}")

def w4_unit(E, base):
    E.i(f"s_add_u32 m0, s{sW4+1}, {base*1024}"); E.i(f"s_add_u32 s100, s{sW4}, {base*1024}")
    E.i(f"buffer_load_dwordx4 v2, {WSR}, s100 offen{SC} lds", tag="w4")

def a3_all(E, ph):
    for k in range(5):
        for u in range(2):
            r = A3[ph] + (2*k + u)*4
            if k < 4:
                E.i(f"s_add_u32 s100, s{sA3+ph}, s72")
                if u: E.i("s_add_u32 s100, s100, 20480")
                E.i(f"buffer_load_dwordx4 v[{r}:{r+3}], v2, {WSR}, s100 offen offset:{k*1024}{SC}", tag=("a3", ph, k))
            else:
                E.i(f"s_add_u32 s100, s{sA3+ph}, s73")
                if u: E.i("s_add_u32 s100, s100, 20480")
                for h in range(2):
                    E.i(f"buffer_load_dwordx2 v[{r+2*h}:{r+2*h+1}], v{vA3}, {WSR}, s100 offen offset:{h*128}{SC}", tag=("a3", ph, k))

PSL = int(os.environ.get('PSL', '6'))
def probe(E, sbase, n, va, vd, loads=None, sleep=PSL):
    L, Lok = E.newlabel("prb"), E.newlabel("prbok")
    E.bg_lock += 1
    E.i(f"v_and_b32 v{va}, {n-1}, v1"); E.i(f"v_lshlrev_b32 v{va}, 7, v{va}")
    E.label(L)
    E.i(f"buffer_load_dword v{vd}, v{va}, {WSR}, s{sbase} offen{SC}", tag="probe")
    E.wait_vm("probe")
    E.i(f"v_cmp_eq_u32 vcc, 0, v{vd}")
    E.branch(f"s_cbranch_vccz {Lok}")
    E.i(f"s_sleep {sleep}")
    E.i(f"s_add_u32 s{sRETRY}, s{sRETRY}, 1"); E.i(f"s_cmp_gt_u32 s{sRETRY}, {RETRY_MAX}")
    E.branch(f"s_cbranch_scc0 {L}")
    E.label(Lok)
    if loads: loads()
    E.bg_lock -= 1
def signal(E, sreg, vt):
    E.bg_lock += 1
    E.i("s_waitcnt vmcnt(0)"); E.vm = []
    E.i(f"v_mov_b32 v{vt}, 1"); E.i("s_mov_b64 exec, 1")
    E.i(f"buffer_store_dword v{vt}, off, {WSR}, s{sreg}{SC}")
    E.i("s_mov_b64 exec, -1")
    E.bg_lock -= 1
def signal_last(E, sreg, idx, va, vt, nwait=0):
    L = E.newlabel("sl")
    E.bg_lock += 1
    E.i(f"s_waitcnt vmcnt({nwait})")
    if nwait == 0: E.vm = []
    E.i(f"v_mov_b32 v{va}, {CNT + 4*idx}"); E.i(f"v_mov_b32 v{vt}, 1"); E.i("s_mov_b64 exec, 1")
    E.i(f"ds_add_rtn_u32 v{va}, v{va}, v{vt}")
    E.i("s_waitcnt lgkmcnt(0)"); E.lg = []
    E.i(f"v_readfirstlane_b32 s53, v{va}")
    E.i("s_cmp_lg_u32 s53, 3"); E.branch(f"s_cbranch_scc1 {L}")
    with side(E): E.i(f"buffer_store_dword v{vt}, off, {WSR}, s{sreg}{SC}")
    E.label(L)
    E.i("s_mov_b64 exec, -1")
    E.bg_lock -= 1
sTB4 = 90
def probe_o(E, ph, va, vd, loads=None, sleep=PSL):
    E.i(f"s_lshl_b32 s101, s{sRB3}, 12"); E.i("s_lshl_b32 s52, s3, 10"); E.i("s_add_u32 s101, s101, s52"); E.i(f"s_add_u32 s101, s101, {FO + ph*131072}")
    probe(E, 101, 8, va, vd, loads, sleep)
def probe_h(E, va, vd, loads=None):
    E.i(f"s_lshl_b32 s101, s{sTB4}, 10"); E.i(f"s_add_u32 s101, s101, {FH}")
    probe(E, 101, 8, va, vd, loads)
def probe_s(E, va, vd, loads=None):
    E.i(f"s_lshl_b32 s101, s{sTB4}, 10"); E.i(f"s_add_u32 s101, s101, {FS}")
    probe(E, 101, 8, va, vd, loads)
def probe_hh(E, ph, va, vd, loads=None, sleep=PSL):
    E.i(f"s_lshl_b32 s101, s{sRB3}, 12"); E.i("s_lshl_b32 s52, s3, 9"); E.i("s_add_u32 s101, s101, s52"); E.i(f"s_add_u32 s101, s101, {FHH + ph*131072}")
    probe(E, 101, 4, va, vd, loads, sleep)

CNT = 2816
def gwait(E, idx, target, va, vt):
    L, Lok = E.newlabel("gw"), E.newlabel("gwok")
    E.bg_lock += 1
    E.i(f"v_mov_b32 v{va}, {CNT + 4*idx}")
    E.label(L)
    E.i(f"ds_read_b32 v{vt}, v{va}")
    E.i("s_waitcnt lgkmcnt(0)"); E.lg = []
    E.i(f"v_readfirstlane_b32 s52, v{vt}")
    E.i(f"s_cmp_ge_u32 s52, {target}")
    E.branch(f"s_cbranch_scc1 {Lok}")
    E.i("s_sleep 1")
    E.i(f"s_add_u32 s{sRETRY}, s{sRETRY}, 1"); E.i(f"s_cmp_gt_u32 s{sRETRY}, {RETRY_MAX*50}")
    E.branch(f"s_cbranch_scc0 {L}")
    E.label(Lok)
    E.bg_lock -= 1
def garrive(E, idx, va, vt):
    E.bg_lock += 1
    E.i("s_waitcnt lgkmcnt(0)"); E.lg = []
    E.i(f"v_mov_b32 v{va}, {CNT + 4*idx}"); E.i(f"v_mov_b32 v{vt}, 1")
    E.i("s_mov_b64 exec, 1")
    E.i(f"ds_add_u32 v{va}, v{vt}")
    E.i("s_mov_b64 exec, -1")
    E.bg_lock -= 1
GB = [0, 0]
def gbar(E, g, va, vt):
    GB[g] += 1
    garrive(E, g, va, vt); gwait(E, g, 4*GB[g], va, vt)

CSX = 118*1024
ONESL = 2688
def s2(E):
    KV = [122880, 92160]
    stamp(E, 6, 31)
    vD = 34
    s2_scalars(E)
    s2_loads(E, 0, 0, vD, 0, 0, KV[0])
    LO, LO4, K1, K2, VA, VS, vO1, vO2, M0_, M1_ = 4, 5, 6, 7, 8, 9, 10, 11, 32, 33
    QF = 12; BM = 20; KF = 36; VF = 52; PP = 68; S = [84, 100]; NM = 116; OA = 132
    E.i("v_and_b32 v24, 15, v1"); E.i("v_bfe_u32 v25, v1, 4, 1"); E.i("v_lshrrev_b32 v26, 5, v1")
    E.i("v_mul_u32_u24 v27, 640, v25")
    E.i("v_lshlrev_b32 v28, 3, v26"); E.i("v_xor_b32 v28, v28, v24"); E.i(f"v_lshl_add_u32 v{LO}, v28, 3, v27"); E.i(f"v_lshl_add_u32 v{LO}, v26, 8, v{LO}")
    E.i(f"v_lshl_add_u32 v{LO4}, v24, 3, v27"); E.i(f"v_add_u32 v{LO4}, 512, v{LO4}")
    for r in range(4, 8): E.i(f"v_mov_b32 v{QF+r}, 0")
    E.i(f"buffer_load_dwordx2 v[{QF}:{QF+1}], v{LO}, {WSR}, s{sQo} offen", tag="q")
    E.i(f"buffer_load_dwordx2 v[{QF+2}:{QF+3}], v{LO}, {WSR}, s{sQo} offen offset:128", tag="q")
    E.i("s_mov_b32 exec_hi, 0")
    E.i(f"buffer_load_dwordx2 v[{QF+4}:{QF+5}], v{LO4}, {WSR}, s{sQo} offen", tag="q")
    E.i("s_mov_b64 exec, -1")
    s2_loads(E, 0, 1, vD, 0, 0, KV[1])
    late_scalars(E); bases(E)
    E.i("s_and_b32 s52, s3, 3"); E.i("s_mul_i32 s52, s52, 1280"); E.i("s_lshr_b32 s53, s3, 2"); E.i(f"s_mul_i32 s53, s53, {KV[0]-KV[1]}"); E.i(f"s_add_u32 s52, s52, {KV[0]}"); E.i("s_sub_u32 s52, s52, s53")
    E.i(f"v_add_u32 v{K1}, s52, v{LO}"); E.i(f"v_add_u32 v{K2}, s52, v{LO4}")
    E.i("v_bfe_u32 v27, v1, 2, 2"); E.i("v_lshl_add_u32 v27, v26, 2, v27")
    E.i("v_and_b32 v28, 3, v1")
    E.i("v_lshlrev_b32 v29, 7, v28"); E.i("v_lshl_add_u32 v29, v27, 3, v29")
    E.i("v_and_b32 v30, 2, v28"); E.i("v_lshlrev_b32 v30, 5, v30")
    E.i("v_lshlrev_b32 v31, 3, v27"); E.i("v_add_u32 v31, 512, v31")
    E.i("v_cmp_eq_u32 vcc, 1, v25")
    E.i("v_cndmask_b32 v29, v29, v31, vcc"); E.i("v_cndmask_b32 v30, v30, 0, vcc")
    E.i("s_add_u32 s52, s52, 15360")
    E.i("v_add_u32 v29, s52, v29")
    E.i("v_cmp_ne_u32 s[54:55], 0, v28"); E.i("s_and_b64 vcc, vcc, s[54:55]")
    E.i(f"v_mov_b32 v31, {ONESL}"); E.i("v_cndmask_b32 v29, v29, v31, vcc")
    E.i(f"v_mov_b32 v31, 640"); E.i(f"v_cndmask_b32 v{VS}, v31, 0, vcc")
    VA2 = 35
    E.i(f"v_add_u32 v{VA}, v29, v30"); E.i("v_xor_b32 v30, 64, v30"); E.i(f"v_add_u32 v{VA2}, v29, v30")
    E.i("v_mul_u32_u24 v27, 20480, v25"); E.i(f"v_lshl_add_u32 v{vO2}, v24, 3, v27"); E.i(f"v_lshl_add_u32 v{vO1}, v24, 4, v27"); E.i(f"v_lshl_add_u32 v{vO1}, v26, 8, v{vO1}")
    E.i("v_lshrrev_b32 v27, 4, v1"); E.i(f"v_lshlrev_b32 v{vA3}, 8, v27"); E.i(f"v_lshl_add_u32 v{vA3}, v24, 3, v{vA3}")
    MS = [4,6,8,10,12,14,16,18,20,22,28,30,40,42,44,46]
    E.i("v_and_b32 v27, 31, v1"); E.i("v_lshlrev_b32 v28, 2, v26"); E.i("v_sub_u32 v27, v27, v28")
    E.i("v_mov_b32 v28, 0xffff"); E.i("v_mov_b32 v29, 0xffff0000")
    for r in range(16):
        E.i(f"v_cmp_le_i32 s[{MS[r]}:{MS[r]+1}], {8*(r//4) + r%4}, v27")
    for j in range(8):
        E.i(f"v_cndmask_b32 v30, 0, v28, s[{MS[2*j]}:{MS[2*j]+1}]"); E.i(f"v_cndmask_b32 v31, 0, v29, s[{MS[2*j+1]}:{MS[2*j+1]+1}]")
        E.i(f"v_or_b32 v{BM+j}, v30, v31")
    E.i("v_mov_b32 v142, 0"); E.i("v_mov_b32 v143, 0"); E.i(f"v_mov_b32 v37, {CNT}"); E.i("ds_write_b64 v37, v[142:143]"); E.i("ds_write_b64 v37, v[142:143] offset:8"); E.i("ds_write_b64 v37, v[142:143] offset:16")
    E.i(f"v_mov_b32 v142, s{sONE}"); E.i("v_and_b32 v37, 31, v1"); E.i("v_lshlrev_b32 v37, 2, v37"); E.i(f"ds_write_b32 v37, v142 offset:{ONESL}")
    for r in (KF+6, KF+7, KF+14, KF+15): E.i(f"v_mov_b32 v{r}, 0")
    E.wait_lg(); E.wait_vm()
    stamp(E, 7, 30)
    E.i("s_barrier")
    Lw = E.newlabel("g1pre")
    E.i("s_cmp_ge_u32 s3, 4"); E.branch(f"s_cbranch_scc1 {Lw}")
    E.i(f"s_setprio {ATT_PRIO}")
    E.branch(f"s_branch {Lw}_j")
    E.label(Lw)
    with side(E):
        E.i(f"s_sub_u32 s{sW4}, s{sW4}, 4096"); E.i(f"s_sub_u32 s{sW4+1}, s{sW4+1}, 4096")
        for u_ in W4U[:W4_EARLY]: w4_unit(E, u_)
        E.i("v_lshrrev_b32 v30, 1, v2"); E.i(f"s_mul_i32 s52, s{sW4+1}, 120"); E.i(f"s_mul_i32 s53, s{sCG4}, 384"); E.i("s_add_u32 s52, s52, s53"); E.i(f"s_add_u32 s52, s52, {CSP4}")
        for j in range(10):
            E.i(f"buffer_load_dwordx2 v[{200+2*j}:{201+2*j}], v30, {WSR}, s52 offen")
            E.i("s_add_u32 s52, s52, 12288")
    E.label(f"{Lw}_j")
    stamp(E, 8, 30); stamp(E, 10, 30, wave=4)
    E.i("s_cmp_lt_u32 s3, 4"); E.i("s_cselect_b64 vcc, -1, 0")
    def wpg(j):
        L = E.newlabel("wps")
        E.i(f"s_cbranch_vccz {L}")
        h = list(E.hist)
        ld_unit(E, W3R + 4*j, sWP, j, "wp")
        E.hist = h
        E.raw(f"{L}:")
    WPQ = [(lambda j=j: wpg(j)) for j in range(25)]
    order = [0, 8, 7, 6, 5, 4, 3, 2, 1]
    def rdk(n):
        b = order[n]; r = KF + 8*(n % 2)
        E.i(f"ds_read2_b64 v[{r}:{r+3}], v{K1} offset0:{(b*1280//8) % 256} offset1:{(b*1280//8 + 16) % 256}", tag=("k", n)) if b*1280//8 + 16 < 256 else (
            E.i(f"ds_read_b64 v[{r}:{r+1}], v{K1} offset:{b*1280}", tag=("k", n)), E.i(f"ds_read_b64 v[{r+2}:{r+3}], v{K1} offset:{b*1280+128}", tag=("k", n)))
        E.i(f"ds_read_b64 v[{r+4}:{r+5}], v{K2} offset:{b*1280}", tag=("k", n))
    def weave(big, small):
        nb = len(big); per = -(-len(small) // max(nb, 1))
        for f in big:
            f()
            for _ in range(per):
                if small: E.i(small.pop(0))
        while small: E.i(small.pop(0))
    def qk_parts(n, c):
        r = KF + 8*(n % 2); d = S[n % 2]
        def a():
            E.wait_lg(("k", n))
            E.i(f"v_mfma_f32_32x32x16_bf16 v[{d}:{d+15}], v[{r}:{r+3}], v[{QF}:{QF+3}], {c}")
        def b_():
            E.i(f"v_mfma_f32_32x32x16_bf16 v[{d}:{d+15}], v[{r+4}:{r+7}], v[{QF+4}:{QF+7}], v[{d}:{d+15}]")
            if n + 2 < 9: rdk(n + 2)
        return [a, b_]
    pads = []
    def exit_if_invalid(b, target):
        Lp = E.newlabel("pad"); pads.append((Lp, target))
        E.i(f"s_cmp_lt_u32 s{sTQ}, {16 - 2*b}"); E.branch_nf(f"s_cbranch_scc1 {Lp}")
    def merge():
        Lf = E.newlabel("fv"); pads.append((Lf, None))
        E.i(f"s_cmp_lt_u32 s{sTQ}, 16"); E.branch_nf(f"s_cbranch_scc1 {Lf}")
        E.raw(f"{Lf}_r:")
        for r in range(16): E.i(f"v_cndmask_b32 v{S[1]+r}, v{S[0]+r}, v{S[1]+r}, s[{MS[r]}:{MS[r]+1}]")
    if "rep2" in OPT:
        E.i("s_mov_b32 s77, 0"); E.label("L_rep2")
    Lp1 = E.newlabel("p1done")
    rdk(0); rdk(1)
    for f in qk_parts(0, "0") + qk_parts(1, "0"): f()
    merge()
    for n in range(1, 9):
        d = S[n % 2]
        if n >= 2: exit_if_invalid(order[n], Lp1)
        sm = []
        for j in range(0, 16, 4):
            if n == 1 and j == 0:
                sm += [f"v_max_f32 v{M0_}, v{d}, v{d+1}", f"v_max_f32 v{M1_}, v{d+2}, v{d+3}"]
            else:
                sm += [f"v_max3_f32 v{M0_}, v{d+j}, v{d+j+1}, v{M0_}", f"v_max3_f32 v{M1_}, v{d+j+2}, v{d+j+3}, v{M1_}"]
        weave(qk_parts(n + 1, "0") if n + 1 < 9 else [], sm)
        WPQ[n - 1]()
    E.label(Lp1)
    E.i("s_waitcnt lgkmcnt(0)"); E.lg = []
    rdk(0); rdk(1)
    E.i(f"v_max_f32 v{M0_}, v{M0_}, v{M1_}")
    E.i(f"v_mov_b32 v{M1_}, v{M0_}"); E.i(f"v_permlane32_swap_b32 v{M0_}, v{M1_}"); E.i(f"v_max_f32 v{M0_}, v{M0_}, v{M1_}")
    for r in range(16): E.i(f"v_sub_f32 v{NM+r}, 0, v{M0_}")
    vT1, vT2 = 30, 31
    def rdv(b, slot):
        for ks in range(2):
            tb = 2*b + ks
            E.i(f"v_mad_u32_u24 v{vT1}, v{VS}, {tb}, v{VA}"); E.i(f"v_mad_u32_u24 v{vT2}, v{VS}, {tb}, v{VA2}")
            r = VF + 8*slot + 4*ks
            E.i(f"ds_read_b64_tr_b16 v[{r}:{r+1}], v{vT1}", tag=("v", b)); E.i(f"ds_read_b64_tr_b16 v[{r+2}:{r+3}], v{vT2}", tag=("v", b))
    def pv_parts(b, slot, P, first, nxt=None):
        def mk(ks):
            def f():
                if ks == 0: E.wait_lg(("v", b))
                r = VF + 8*slot + 4*ks
                c = "0" if (first and ks == 0) else f"v[{OA}:{OA+15}]"
                E.i(f"v_mfma_f32_32x32x16_bf16 v[{OA}:{OA+15}], v[{r}:{r+3}], v[{P+4*ks}:{P+4*ks+3}], {c}")
                if ks == 1 and nxt is not None: rdv(nxt, slot)
            return f
        return [mk(0), mk(1)]
    nm = f"v[{NM}:{NM+15}]"
    Lp2 = E.newlabel("p2done")
    PF0 = 148
    for f in qk_parts(0, nm) + qk_parts(1, nm): f()
    rdv(0, 0); rdv(8, 1)
    merge()
    pend = []
    tails = []
    for n in range(1, 9):
        d = S[n % 2]; b = order[n]; P = PP + 8*(n % 2)
        if n >= 2:
            Lt = E.newlabel("p2t"); tails.append((Lt, n - 1))
            exit_if_invalid(b, Lt)
        sm = [f"v_exp_f32 v{d+j}, v{d+j}" for j in range(16)]
        weave((qk_parts(n + 1, nm) if n + 1 < 9 else []) + pend, sm)
        WPQ[8 + 2*(n-1)]()
        for j in range(8): E.i(f"v_cvt_pk_bf16_f32 v{P+j}, v{d+2*j}, v{d+2*j+1}")
        WPQ[9 + 2*(n-1)]()
        if n == 1:
            for j in range(8): E.i(f"v_bfi_b32 v{PF0+j}, v{BM+j}, 0, v{P+j}")
            for j in range(8): E.i(f"v_and_b32 v{P+j}, v{BM+j}, v{P+j}")
            pend = pv_parts(0, 0, PF0, True, order[2]) + pv_parts(8, 1, P, False, order[3])
        else:
            pend = pv_parts(b, n % 2, P, False, order[n + 2] if n + 2 < 9 else None)
    WPQ[24]()
    for f in pend: f()
    E.branch(f"s_branch {Lp2}")
    for Lp, target in pads:
        E.pad_label(Lp)
        if target is None:
            for r in range(16): E.i(f"v_mov_b32 v{S[0]+r}, {NEG:#x}")
            E.branch(f"s_branch {Lp}_r")
        else: E.branch(f"s_branch {target}")
    for Lt, m in tails:
        E.label(Lt)
        E.i("s_waitcnt lgkmcnt(0)"); E.lg = []
        P = PP + 8*(m % 2)
        parts = (pv_parts(0, 0, PF0, True) + pv_parts(8, 1, P, False)) if m == 1 else pv_parts(order[m], m % 2, P, False)
        for f in parts: f()
        E.branch(f"s_branch {Lp2}_w")
    E.label(f"{Lp2}_w")
    E.label(Lp2)
    if "rep2" in OPT:
        E.i("s_waitcnt lgkmcnt(0)"); E.lg = []
        E.i("s_cmp_eq_u32 s77, 1"); E.branch("s_cbranch_scc1 L_rep2_done")
        stamp(E, 12, 30); stamp(E, 13, 30, wave=4)
        E.i("s_barrier"); stamp(E, 37, 30)
        E.i("s_mov_b32 s77, 1"); E.branch("s_branch L_rep2")
        E.label("L_rep2_done")
    stamp(E, 9, 30); stamp(E, 11, 30, wave=4)
    E.i("s_lshr_b32 s52, s3, 2"); E.i("s_lshl_b32 s52, s52, 2"); E.i(f"s_add_u32 s52, s52, {CNT + 8}")
    E.i("s_waitcnt lgkmcnt(0)"); E.lg = []
    E.i("v_mov_b32 v30, s52"); E.i("v_mov_b32 v31, 1"); E.i("s_mov_b64 exec, 1"); E.i("ds_add_u32 v30, v31"); E.i("s_mov_b64 exec, -1")
    E.i(f"v_rcp_f32 v{M0_}, v{OA+12}")
    for r in range(12): E.i(f"v_mul_f32 v{OA+r}, v{OA+r}, v{M0_}")
    for j in range(6): E.i(f"v_cvt_pk_bf16_f32 v{PP+j}, v{OA+2*j}, v{OA+2*j+1}")
    E.i(f"v_permlane32_swap_b32 v{PP}, v{PP+2}"); E.i(f"v_permlane32_swap_b32 v{PP+1}, v{PP+3}")
    E.i(f"s_lshl_b32 s52, s{sHD}, 9"); E.i(f"s_add_u32 s52, s52, s{sOo}")
    E.i(f"s_lshl_b32 s53, s{sHD}, 7"); E.i(f"s_add_u32 s53, s53, s{sOo}"); E.i("s_add_u32 s53, s53, 16384")
    E.i(f"buffer_store_dwordx4 v[{PP}:{PP+3}], v{vO1}, {WSR}, s52 offen{SC}", tag="st")
    E.i("s_mov_b32 exec_hi, 0")
    E.i(f"buffer_store_dwordx2 v[{PP+4}:{PP+5}], v{vO2}, {WSR}, s53 offen{SC}", tag="st")
    E.i("s_mov_b64 exec, -1")
    E.i(f"s_lshl_b32 s52, s{sTQ}, 11"); E.i(f"s_lshl_b32 s53, s{sHD}, 7"); E.i("s_add_u32 s52, s52, s53"); E.i(f"s_add_u32 s52, s52, {FO}")
    signal(E, 52, 30)
    Lw = E.newlabel("wpre")
    E.i(f"s_cmp_ge_u32 s{sTQ}, 14"); E.branch(f"s_cbranch_scc1 {Lw}")
    with side(E):
        for j in range(25): ld_unit(E, W3R + 4*j, sWP, j, "wp")
    E.label(Lw)
W4_PRE = int(os.environ.get("W4_PRE", "8"))

def final_sum(E, vPR, nslots, T, off0, vt):
    for half in range(nslots // 4):
        for w in range(4):
            off = off0 + (half*4 + w)*10240
            for g in range(2):
                o = off + g*256
                r = T + 8 + (w*2+g)*4
                if o > 65535:
                    E.i(f"v_add_u32 v{vt}, 40960, v{vPR}"); E.i(f"ds_read_b128 v[{r}:{r+3}], v{vt} offset:{o-40960}")
                else:
                    E.i(f"ds_read_b128 v[{r}:{r+3}], v{vPR} offset:{o}")
        E.wait_lg()
        for j in range(8):
            g, b = j // 4, j % 4
            sr = [T + 8 + (w*2+g)*4 + b for w in range(4)]
            E.i(f"v_add_f32 v{sr[0]}, v{sr[0]}, v{sr[1]}"); E.i(f"v_add_f32 v{sr[2]}, v{sr[2]}, v{sr[3]}")
            if half == 0: E.i(f"v_add_f32 v{T+j}, v{sr[0]}, v{sr[2]}")
            else:
                E.i(f"v_add_f32 v{T+j}, v{T+j}, v{sr[0]}"); E.i(f"v_add_f32 v{T+j}, v{T+j}, v{sr[2]}")

def add_res_pack(E, T, RES, OUT, vt, clamp):
    for j in range(4):
        E.i(f"v_lshlrev_b32 v{vt}, 16, v{RES+j}"); E.i(f"v_add_f32 v{T+2*j}, v{T+2*j}, v{vt}")
        E.i(f"v_and_b32 v{vt}, 0xffff0000, v{RES+j}"); E.i(f"v_add_f32 v{T+2*j+1}, v{T+2*j+1}, v{vt}")
    for j in range(4):
        E.i(f"v_cvt_pk_bf16_f32 v{OUT+j}, v{T+2*j}, v{T+2*j+1}")
        if clamp: E.i(f"v_min_u32 v{OUT+j}, s{sM1}, v{OUT+j}")

def lane_pr(E, dst, t0, t1):
    E.i(f"v_bfe_u32 v{t0}, v1, 4, 1"); E.i(f"v_mul_u32_u24 v{t0}, 5120, v{t0}"); E.i(f"v_lshrrev_b32 v{t1}, 5, v1"); E.i(f"v_lshl_add_u32 v{t0}, v{t1}, 9, v{t0}")
    E.i(f"v_and_b32 v{t1}, 15, v1"); E.i(f"v_lshl_add_u32 v{dst}, v{t1}, 4, v{t0}")
def lane_xr(E, dst, t0, t1):
    E.i(f"v_and_b32 v{t0}, 31, v1"); E.i(f"v_mul_u32_u24 v{t0}, 1280, v{t0}"); E.i(f"v_lshrrev_b32 v{t1}, 5, v1"); E.i(f"v_lshl_add_u32 v{dst}, v{t1}, 4, v{t0}")

def a4_load(E, i):
    ld_unit(E, AFR + 4*(i % 20), sA4, i, ("a4", i))

AUXB = 0
CSF = 2048
WF4 = 64
def w4_first(E):
    E.i(f"s_sub_u32 s52, s{sW4}, s{sW4+1}")
    for t in range(3): ld_unit(E, WF4 + 4*t, 52, t, "w40")
def s3(E):
    stamp(E, 14, 35); stamp(E, 36, 35, wave=4)
    LG1, LJ = E.newlabel("s3g1"), E.newlabel("s3j")
    E.i("s_cmp_ge_u32 s3, 4"); E.branch(f"s_cbranch_scc1 {LG1}")
    E.vm = []
    E.i("s_setprio 2")
    vPW, vM, vPR, vXR = 4, 5, 8, 9
    RES = 12
    T = 68
    E.i("s_mul_i32 s52, s3, 10240"); E.i(f"s_add_u32 s52, s52, {SCR}"); E.i(f"v_add_u32 v{vPW}, s52, v2")
    lane_pr(E, vPR, 6, 7); lane_xr(E, vXR, 6, 7)
    E.i(f"v_add_u32 v{vPR}, s{sW4+1}, v{vPR}"); E.i(f"v_add_u32 v{vPR}, {SCR}, v{vPR}")
    E.i(f"s_lshr_b32 s52, s{sW4+1}, 5"); E.i(f"v_add_u32 v{vXR}, s52, v{vXR}")
    E.i(f"s_mul_i32 s52, s{sRB3}, 40960"); E.i(f"s_mul_i32 s53, s{sCT3}, 160"); E.i("s_add_u32 s52, s52, s53"); E.i("s_add_u32 s53, s52, 1310720")
    for ph in range(2):
        E.i(f"buffer_load_dwordx4 v[{RES+8*ph}:{RES+8*ph+3}], v{vXR}, s[{SRD_X}:{SRD_X+3}], s{52+ph} offen", tag="res")
        E.i(f"buffer_load_dwordx4 v[{RES+8*ph+4}:{RES+8*ph+7}], v{vXR}, s[{SRD_X}:{SRD_X+3}], s{52+ph} offen offset:128", tag="res")
    sHW = 67
    E.i(f"s_mul_i32 s{sHW}, s{sRB3}, 40960"); E.i(f"s_mul_i32 s53, s{sCT3}, 5120"); E.i(f"s_add_u32 s{sHW}, s{sHW}, s53"); E.i(f"s_add_u32 s{sHW}, s{sHW}, s{sW4+1}"); E.i(f"s_add_u32 s{sHW}, s{sHW}, {HF}")
    E.i(f"s_add_u32 s{sHW+1}, s{sHW}, {32*40960}")
    for ph in range(2):
        if ph == 0: probe_o(E, 0, 6, 7, lambda: a3_all(E, 0))
        Lb = E.newlabel("s3v")
        E.label(Lb)
        for k in range(5):
            E.wait_vm(("a3", ph, k))
            for u in range(2):
                af = A3[ph] + (2*k+u)*4
                for nt in range(5):
                    a = ACC3 + (u*5+nt)*4; wf = W3R + (k*5+nt)*4
                    c = "0" if k == 0 else f"v[{a}:{a+3}]"
                    E.i(f"v_mfma_f32_16x16x32_bf16 v[{a}:{a+3}], v[{wf}:{wf+3}], v[{af}:{af+3}], {c}")
        stamp(E, 15 + 3*ph, 6)
        if ph == 0: gwait(E, 2, 4, 6, 7)
        else: gwait(E, 0, 4*GB[0], 6, 7)
        for j in range(10): E.i(f"ds_write_b128 v{vPW}, v[{ACC3+4*j}:{ACC3+4*j+3}] offset:{j*1024}")
        GB[0] += 1; garrive(E, 0, 6, 7)
        if ph == 0:
            E.i(f"s_lshl_b32 s101, s{sRB3}, 12"); E.i("s_lshl_b32 s52, s3, 10"); E.i("s_add_u32 s101, s101, s52"); E.i(f"s_add_u32 s101, s101, {FO + 131072}")
            E.i("v_and_b32 v11, 7, v1"); E.i("v_lshlrev_b32 v11, 7, v11")
        gwait(E, 0, 4*GB[0], 6, 7)
        if ph == 0: E.i(f"buffer_load_dword v11, v11, {WSR}, s101 offen{SC}", tag="aprobe")
        stamp(E, 16 + 3*ph, 6)
        E.wait_vm("res")
        for unit in range(2):
            Lu = None
            if unit == 1:
                Lu = E.newlabel("fin4"); E.i("s_cmp_lg_u32 s3, 0"); E.branch(f"s_cbranch_scc1 {Lu}")
                cm = side(E); cm.__enter__()
            final_sum(E, vPR, 4, T, unit*4096, 6)
            add_res_pack(E, T, RES + 8*ph + 4*unit, 28, 6, False)
            if unit == 0: E.i(f"buffer_store_dwordx4 v[28:31], v2, {WSR}, s{sHW+ph} offen{SC}", tag="st")
            else:
                E.i(f"s_add_u32 s52, s{sHW+ph}, 4096"); E.i(f"buffer_store_dwordx4 v[28:31], v2, {WSR}, s52 offen{SC}")
            if unit == 0:
                E.i(f"v_add_f32 v32, v{T}, v{T+1}"); E.i(f"v_mul_f32 v33, v{T}, v{T}"); E.i(f"v_mul_f32 v35, v{T+1}, v{T+1}"); E.i(f"v_add_f32 v34, v{T+2}, v{T+3}")
                for j in range(2, 8): E.i(f"v_fmac_f32 v{33 if j&1 else 35}, v{T+j}, v{T+j}")
                for j in range(4, 8): E.i(f"v_add_f32 v{32 if j&1 else 34}, v{32 if j&1 else 34}, v{T+j}")
            else:
                for j in range(8):
                    E.i(f"v_fmac_f32 v{33 if j&1 else 35}, v{T+j}, v{T+j}"); E.i(f"v_add_f32 v{32 if j&1 else 34}, v{32 if j&1 else 34}, v{T+j}")
                cm.__exit__(); E.label(Lu)
        E.i("v_add_f32 v32, v32, v34"); E.i("v_add_f32 v33, v33, v35")
        E.i("v_mov_b32 v34, v32"); E.i("v_mov_b32 v35, v33")
        E.i("v_permlane32_swap_b32 v32, v34"); E.i("v_permlane32_swap_b32 v33, v35")
        E.i("v_add_f32 v32, v32, v34"); E.i("v_add_f32 v33, v33, v35")
        E.i("v_and_b32 v10, 31, v1"); E.i("v_lshlrev_b32 v10, 3, v10"); E.i(f"s_lshr_b32 s52, s{sW4+1}, 2"); E.i(f"s_add_u32 s52, s52, {AUXB + ph*1024}"); E.i("v_add_u32 v34, s52, v10")
        E.i("ds_write_b64 v34, v[32:33]")
        garrive(E, 0, 6, 7); GB[0] += 1
        E.i(f"s_lshl_b32 s52, s{sRB3}, 10"); E.i(f"s_lshl_b32 s53, s{sCT3}, 7"); E.i("s_add_u32 s52, s52, s53"); E.i(f"s_add_u32 s52, s52, {FH + ph*32768}")
        if ph == 0:
            Lsl, Lj_ = E.newlabel("slow"), E.newlabel("fj")
            E.i("s_mov_b32 s54, s52")
            E.wait_vm("aprobe")
            E.i("v_cmp_eq_u32 vcc, 0, v11")
            E.branch(f"s_cbranch_vccnz {Lsl}")
            with side(E):
                a3_all(E, 1)
                signal_last(E, 54, 4, 6, 7, 12)
            E.branch(f"s_branch {Lj_}")
            E.label(Lsl)
            signal_last(E, 54, 4, 6, 7)
            probe_o(E, 1, 6, 7, lambda: a3_all(E, 1))
            E.label(Lj_)
        else: signal_last(E, 52, 5, 6, 7)
        stamp(E, 17 + 3*ph, 6)
    gwait(E, 0, 4*GB[0], 6, 7)
    hst(E, 0, 2); hst(E, 1, 3)
    for j in range(W5_PRE): ld_unit(E, W5reg(j), sW5, j, ("w5", j))
    G0_DONE = 4*GB[0]
    gwait(E, 1, 12, 6, 7)
    E.i(f"s_setprio {G0_PRIO}")
    q = [(("w5", j), (lambda j=j: ld_unit(E, W5reg(j), sW5, j, ("w5", j)))) for j in range(W5_PRE, 22)]
    s4(E, 1, q)
    E.branch(f"s_branch {LJ}")
    E.label(LG1)
    E.vm = []; E.lg = []
    for u_ in W4U[W4_EARLY:]: w4_unit(E, u_)
    gwait(E, 3, 4, 6, 7)
    for i in range(7): w4_unit(E, 90 + 4*i)
    E.i("v_lshrrev_b32 v8, 1, v2")
    E.i("v_add_f32 v16, v200, v202"); E.i("v_add_f32 v17, v201, v203")
    for j in range(2, 10):
        E.i(f"v_add_f32 v16, v16, v{200+2*j}"); E.i(f"v_add_f32 v17, v17, v{201+2*j}")
    E.i(f"s_lshr_b32 s52, s{sW4+1}, 1"); E.i(f"s_add_u32 s52, s52, {CSX}"); E.i("v_add_u32 v9, s52, v8")
    E.i("ds_write_b64 v9, v[16:17]")
    gbar(E, 1, 6, 7)
    E.i(f"v_add_u32 v9, {CSX}, v8")
    for w in range(4): E.i(f"ds_read_b64 v[{16+2*w}:{17+2*w}], v9 offset:{w*512}")
    E.wait_lg()
    for w in range(1, 4):
        E.i(f"v_add_f32 v16, v16, v{16+2*w}"); E.i(f"v_add_f32 v17, v17, v{17+2*w}")
    E.i(f"ds_write_b64 v8, v[16:17] offset:{CSF}")
    gbar(E, 1, 6, 7)
    Lq = E.newlabel("w4q"); E.i("s_cmp_ge_u32 s3, 6"); E.branch(f"s_cbranch_scc1 {Lq}")
    with side(E): w4_unit(E, 118)
    E.label(Lq)
    E.vm = []
    for j in range(G1W5): ld_unit(E, W5reg(j), sW5, j, ("w5", j))
    E.i(f"s_waitcnt vmcnt({G1W5})")
    gbar(E, 1, 6, 7)
    s4(E, 0, [(("w5", j), (lambda j=j: ld_unit(E, W5reg(j), sW5, j, ("w5", j)))) for j in range(G1W5, 22)])
    gwait(E, 0, G0_DONE, 12, 13)
    E.label(LJ)
    E.vm = ["st"]; E.lg = []

def hst(E, ph, wv):
    Ls = E.newlabel("hst")
    E.i(f"s_cmp_lg_u32 s3, {wv}"); E.branch(f"s_cbranch_scc1 {Ls}")
    with side(E):
        E.i(f"v_add_u32 v11, {AUXB + ph*1024}, v10")
        for j in range(4): E.i(f"ds_read_b64 v[{148+2*j}:{149+2*j}], v11 offset:{j*256}")
        E.i("s_waitcnt lgkmcnt(0)")
        for j in range(1, 4):
            E.i(f"v_add_f32 v148, v148, v{148+2*j}"); E.i(f"v_add_f32 v149, v149, v{149+2*j}")
        E.i(f"s_lshl_b32 s52, s{sRB3}, 11"); E.i(f"s_lshl_b32 s53, s{sCT3}, 8"); E.i("s_add_u32 s52, s52, s53"); E.i(f"s_add_u32 s52, s52, {HSTB + ph*32*2048}")
        E.i("s_mov_b32 exec_hi, 0")
        E.i(f"buffer_store_dwordx2 v[148:149], v10, {WSR}, s52 offen{SC}")
        E.i("s_mov_b64 exec, -1")
        E.i(f"s_lshl_b32 s52, s{sRB3}, 10"); E.i(f"s_lshl_b32 s53, s{sCT3}, 7"); E.i("s_add_u32 s52, s52, s53"); E.i(f"s_add_u32 s52, s52, {FS + ph*32768}")
        signal(E, 52, 148)
    E.label(Ls)
W5_PRE = int(os.environ.get("W5_PRE", "22"))
WP_PRE = int(os.environ.get("WP_PRE", "8"))
A3B_LATE = int(os.environ.get("A3B_LATE", "1"))
A5_AT = int(os.environ.get("A5_AT", "40"))
G0_PRIO = int(os.environ.get("G0_PRIO", "0"))
G1W5 = int(os.environ.get("G1W5", "22"))
W4U = list(range(3, 87, 4)) + [86]
W4_EARLY = int(os.environ.get("W4_EARLY", "22"))
ATT_PRIO = int(os.environ.get("ATT_PRIO", "2"))
S4_INIT = int(os.environ.get("S4_INIT", "8"))
S4_FIRST = 5
WP_FIRST = int(os.environ.get("WP_FIRST", "14"))
W4_S2 = int(os.environ.get("W4_S2", "10"))
F1_AT = int(os.environ.get("F1_AT", "6"))

vA5 = 7
def a5_load(E, ph, f):
    k, u = f // 2, f % 2
    r = A5[ph](f); off = k*2048 + u*256
    E.i(f"s_add_u32 s100, s{sA5+ph}, {off - off % 4096}")
    E.i(f"buffer_load_dwordx4 v[{r}:{r+3}], v{vA5}, {WSR}, s100 offen offset:{off % 4096}{SC}", tag=("a5", ph, f))

def a4_touch(E, va, vd):
    E.i(f"s_and_b32 s52, s{sCG4}, 7"); E.i("s_lshl_b32 s52, s52, 7"); E.i(f"s_add_u32 s52, s52, s{sA4}"); E.i("s_add_u32 s52, s52, 8192")
    E.i(f"v_and_b32 v{va}, 31, v1"); E.i(f"v_lshlrev_b32 v{va}, 10, v{va}")
    E.i(f"buffer_load_dword v{vd}, v{va}, {WSR}, s52 offen{SC}")

def s4(E, g, q0):
    vWB, vWB2, vCSR, vM = 3, 4, 6, 5
    ST = 8; SX, SXX = 8, 9
    ACC = 16; WF = WF4
    stamp(E, 21 if g == 0 else 24, 15, wave=4*(1-g))
    if g == 0: E.i("s_setprio 1")
    E.i(f"v_add_u32 v{vWB2}, 61440, v2")
    E.i("v_lshrrev_b32 v8, 5, v1"); E.i("v_lshlrev_b32 v8, 4, v8"); E.i(f"v_add_u32 v{vCSR}, {CSF}, v8")
    E.i("v_lshrrev_b32 v8, 4, v1"); E.i("v_and_b32 v9, 15, v1"); E.i("v_lshlrev_b32 v8, 9, v8"); E.i(f"v_lshl_add_u32 v{vA5}, v9, 4, v8")
    K1, K2 = 78, 79
    k1 = -2.0 * 0.7978845608028654 * 1.4426950408889634
    E.i(f"s_mov_b32 s{K1}, {f2u(k1):#x}"); E.i(f"s_mov_b32 s{K2}, {f2u(k1*0.044715):#x}")
    def st_loads():
        E.i(f"v_lshrrev_b32 v{ST+6}, 1, v2")
        for i in range(4):
            E.i(f"buffer_load_dwordx2 v[{ST+2*i}:{ST+2*i+1}], v{ST+6}, {WSR}, s{sHS} offen offset:{i*512}{SC}", tag="hst")
    w4_first(E)
    probe_h(E, 8, 9, lambda: [a4_load(E, i) for i in range(S4_INIT)])
    if "touch" in OPT: a4_touch(E, 8, 9)
    Lb = E.newlabel("s4v"); Lh = E.newlabel("s4h")
    E.label(Lb)
    E.bg_period = 0
    def rd(i):
        for t in range(3):
            r = WF + (i%2)*12 + 4*t
            o = (i*3+t)*1024
            if o < 61440: E.i(f"ds_read_b128 v[{r}:{r+3}], v2 offset:{o}", tag=("w", i))
            else: E.i(f"ds_read_b128 v[{r}:{r+3}], v{vWB2} offset:{o-61440}", tag=("w", i))
    sched = [[] for _ in range(41)]
    nxt = S4_INIT
    for i in range(40):
        for _ in range(2 if nxt < 20 else 1):
            if nxt < 40 and nxt - 20 < i:
                sched[i].append(lambda n=nxt: a4_load(E, n)); nxt += 1
    assert nxt == 40
    q = list(q0)
    for n, (tg, fn) in enumerate(q): sched[min((8 if g else 18) + n, 40)].append(fn)
    if g == 1:
        for n in range(22, 30): sched[33 + n - 22].append(lambda n=n: ld_unit(E, W5reg(n), sW5, n, ("w5", n)))
    for i in range(40):
        if i + 1 < 40: rd(i + 1)
        E.wait_vm(("a4", i))
        if i > 0: E.wait_lg(("w", i))
        af = AFR + 4*(i % 20)
        ops = list(sched[i])
        for t in range(3):
            r = WF + (i%2)*12 + 4*t; a = ACC + 16*t
            c = "0" if i == 0 else f"v[{a}:{a+15}]"
            E.i(f"v_mfma_f32_32x32x16_bf16 v[{a}:{a+15}], v[{r}:{r+3}], v[{af}:{af+3}], {c}")
            if ops: ops.pop(0)()
        for o in ops: o()
        if i == 30: probe_s(E, 8, 9, st_loads)
        if i in (0, 9, 19, 29): stamp(E, 53 + 5*g + (i+1)//10, 3, wave=4*(1-g))
    stamp(E, 22 if g == 0 else 25, 87, wave=4*(1-g))
    for o in sched[40]: E.bg_push("x", o)
    if g == 0:
        for n in range(22, 30): E.bg_push(("w5", n), lambda n=n: ld_unit(E, W5reg(n), sW5, n, ("w5", n)))
    E.bg_period = BGP
    E.wait_vm("hst")
    E.i(f"v_add_f32 v{ST}, v{ST}, v{ST+2}"); E.i(f"v_add_f32 v{ST+1}, v{ST+1}, v{ST+3}")
    E.i(f"v_add_f32 v{ST+4}, v{ST+4}, v{ST+6}"); E.i(f"v_add_f32 v{ST+5}, v{ST+5}, v{ST+7}")
    E.i(f"v_add_f32 v{ST}, v{ST}, v{ST+4}"); E.i(f"v_add_f32 v{ST+1}, v{ST+1}, v{ST+5}")
    E.i(f"v_mov_b32 v{ST+2}, v{ST}"); E.i(f"v_mov_b32 v{ST+3}, v{ST+1}")
    E.i(f"v_permlane32_swap_b32 v{ST}, v{ST+2}"); E.i(f"v_permlane32_swap_b32 v{ST+1}, v{ST+3}")
    E.i(f"v_add_f32 v{ST}, v{ST}, v{ST+2}"); E.i(f"v_add_f32 v{ST+1}, v{ST+1}, v{ST+3}")
    stats_math(E, SX, SXX)
    E.i(f"v_mul_f32 v11, v{SXX}, v{SXX}"); E.i(f"v_mul_f32 v10, s{K1}, v{SXX}"); E.i(f"v_mul_f32 v12, v11, v{SXX}"); E.i(f"v_mul_f32 v12, s{K2}, v12"); E.i("v_rcp_f32 v11, v11")
    for q_ in range(4): E.i(f"ds_read_b128 v[{WF+4*q_}:{WF+4*q_+3}], v{vCSR} offset:{q_*32}")
    for t in range(3):
        a = ACC + 16*t; C = WF; G = WF + 16
        E.wait_lg()
        for r in range(16): E.i(f"v_fma_f32 v{a+r}, v{SX}, v{C+r}, v{a+r}")
        if t < 2:
            for q_ in range(4): E.i(f"ds_read_b128 v[{C+4*q_}:{C+4*q_+3}], v{vCSR} offset:{(t+1)*128 + q_*32}")
        for r in range(8): E.i(f"v_mul_f32 v{G+r}, v{a+r}, v{a+r}")
        for r in range(8): E.i(f"v_fma_f32 v{G+r}, v{G+r}, v12, v10")
        for r in range(8): E.i(f"v_mul_f32 v{G+r}, v{G+r}, v{a+r}")
        for r in range(8): E.i(f"v_exp_f32 v{G+r}, v{G+r}")
        for r in range(8): E.i(f"v_mul_f32 v{a+r}, v{a+r}, v{a+8+r}")
        for r in range(8): E.i(f"v_fma_f32 v{G+r}, v{G+r}, v11, v11")
        for r in range(8): E.i(f"v_rcp_f32 v{G+r}, v{G+r}")
        for r in range(8): E.i(f"v_mul_f32 v{a+r}, v{a+r}, v{G+r}")
        for r in range(4):
            E.i(f"v_cvt_pk_bf16_f32 v{a+8+r}, v{a+2*r}, v{a+2*r+1}")
        E.i(f"buffer_store_dwordx4 v[{a+8}:{a+11}], v2, {WSR}, s{sHH} offen offset:{t*1024}{SC}", tag="st")
    E.bg_flush()
    E.i(f"s_lshl_b32 s52, s{sTB4}, 12"); E.i(f"s_lshl_b32 s53, s{sCG4}, 7"); E.i("s_add_u32 s52, s52, s53"); E.i(f"s_add_u32 s52, s52, {FHH}")
    signal(E, 52, 8)
    if g == 0: E.i("s_setprio 0")
    probe_hh(E, 0, 8, 9, lambda: [a5_load(E, 0, f) for f in range(12)], 6 if g == 0 else 2)
    stamp(E, 23 if g == 0 else 26, 87, wave=4*(1-g))
G1_SLEEP = int(os.environ.get("G1_SLEEP", "8"))
G0_SLEEP = int(os.environ.get("G0_SLEEP", "8"))

def s4_rep(E):
    ACC = 16; WF = WF4
    for variant in range(3):
        E.i("s_waitcnt vmcnt(0) lgkmcnt(0)"); E.vm = []; E.lg = []
        E.i("s_barrier"); stamp(E, 53 + 2*variant, 15)
        def rd(i):
            for t in range(3):
                r = WF + (i%2)*12 + 4*t
                o = (max(i,1)*3+t)*1024
                if o < 61440: E.i(f"ds_read_b128 v[{r}:{r+3}], v2 offset:{o}", tag=("w", i))
                else: E.i(f"ds_read_b128 v[{r}:{r+3}], v4 offset:{o-61440}", tag=("w", i))
        if variant >= 1:
            for i in range(20): a4_load(E, i)
        rd(0)
        for i in range(40):
            if i + 1 < 40: rd(i + 1)
            E.wait_vm(("a4", i)); E.wait_lg(("w", i))
            af = AFR + 4*(i % 20)
            for t in range(3):
                r = WF + (i%2)*12 + 4*t; a = ACC + 16*t
                if "m16" in OPT:
                    af2 = AFR + 4*((i+1) % 20); a2 = a + 8*(i%2)
                    E.i(f"v_mfma_f32_16x16x32_bf16 v[{a2}:{a2+3}], v[{r}:{r+3}], v[{af}:{af+3}], v[{a2}:{a2+3}]")
                    E.i(f"v_mfma_f32_16x16x32_bf16 v[{a2+4}:{a2+7}], v[{r}:{r+3}], v[{af2}:{af2+3}], v[{a2+4}:{a2+7}]")
                else:
                    E.i(f"v_mfma_f32_32x32x16_bf16 v[{a}:{a+15}], v[{r}:{r+3}], v[{af}:{af+3}], v[{a}:{a+15}]")
                if t == 0 and variant >= 1 and 1 <= i <= 20: a4_load(E, i + 19)
                if t == 1 and variant == 2 and i < 22: ld_unit(E, W5reg(i), sW5, i, ("w5", i))
        E.i("s_barrier"); stamp(E, 54 + 2*variant, 15)

def s5(E):
    ACC = 16; vPW, vPR, vM, XR = 3, 4, 6, 15
    E.bg_period = 0
    lane_pr(E, 5, 12, 13); lane_xr(E, 14, 12, 13)
    E.i("s_mul_i32 s52, s3, 10240"); E.i("s_add_u32 s52, s52, 81920"); E.i(f"v_add_u32 v{vPW}, s52, v2")
    sHB, sOB = 74, 75
    E.i(f"s_mul_i32 s{sHB}, s{sRB3}, 40960"); E.i(f"s_mul_i32 s53, s{sCT3}, 5120"); E.i(f"s_add_u32 s{sHB}, s{sHB}, s53"); E.i(f"s_add_u32 s{sHB}, s{sHB}, {HF}")
    E.i(f"s_mul_i32 s{sOB}, s{sRB3}, 40960"); E.i(f"s_mul_i32 s53, s{sCT3}, 160"); E.i(f"s_add_u32 s{sOB}, s{sOB}, s53")
    def mm(ph):
        Lb = E.newlabel("s5v")
        E.label(Lb)
        for k in range(6):
            E.wait_vm(("a5", ph, 2*k+1))
            for u in range(2):
                af = A5[ph](2*k+u)
                for nt in range(5):
                    a = ACC + (u*5+nt)*4; wf = W5reg(k*5+nt)
                    c = "0" if k == 0 else f"v[{a}:{a+3}]"
                    E.i(f"v_mfma_f32_16x16x32_bf16 v[{a}:{a+3}], v[{wf}:{wf+3}], v[{af}:{af+3}], {c}")
    def wr():
        for j in range(10): E.i(f"ds_write_b128 v{vPW}, v[{ACC+4*j}:{ACC+4*j+3}] offset:{j*1024}")
        E.wait_lg()
    def res_load(ph, snt, r):
        E.i(f"s_lshl_b32 s52, s{snt}, 10"); E.i(f"s_add_u32 s52, s52, s{sHB}")
        if ph: E.i(f"s_add_u32 s52, s52, {32*40960}")
        E.i(f"buffer_load_dwordx4 v[{r}:{r+3}], v2, {WSR}, s52 offen{SC}", tag="res")
    def fin(ph, snt, r, T):
        E.i(f"s_lshl_b32 s52, s{snt}, 10"); E.i(f"s_add_u32 s52, s52, {81920 if ph == 0 else 0}"); E.i(f"v_add_u32 v{vPR}, s52, v5")
        final_sum(E, vPR, 8, T, 0, 12)
        add_res_pack(E, T, r, T + 8, 12, False)
        E.i(f"s_lshl_b32 s52, s{snt}, 5"); E.i(f"s_add_u32 s52, s52, s{sOB}")
        if ph: E.i("s_add_u32 s52, s52, 1310720")
        E.i(f"buffer_store_dwordx4 v[{T+8}:{T+11}], v14, s[{SRD_OUT}:{SRD_OUT+3}], s52 offen")
    a5b = lambda: [a5_load(E, 1, f) for f in range(12)]
    LG1, LJ = E.newlabel("s5g1"), E.newlabel("s5j")
    RA = AFR + 16
    E.i("s_sub_u32 s76, s3, 3"); E.i("s_max_i32 s76, s76, 0"); E.i("s_min_u32 s77, s3, 4")
    E.vm = [("a5", 0, f) for f in range(12)]
    mm(0); stamp(E, 28, 12)
    E.i("s_cmp_ge_u32 s3, 4"); E.branch(f"s_cbranch_scc1 {LG1}")
    E.i("s_barrier")
    wr()
    E.branch(f"s_branch {LJ}")
    E.label(LG1)
    wr()
    E.i("s_barrier")
    E.label(LJ)
    res_load(0, 76, RA); res_load(1, 77, 8)
    probe_hh(E, 1, 12, 13, a5b)
    E.i("s_barrier")
    stamp(E, 29, 12)
    L4 = E.newlabel("f4"); E.i("s_cmp_lt_u32 s3, 3"); E.branch(f"s_cbranch_scc1 {L4}")
    with side(E): fin(0, 76, RA, ACC)
    E.label(L4)
    stamp(E, 30, 12, wave=4)
    E.i(f"v_subrev_u32 v{vPW}, 81920, v{vPW}")
    mm(1); stamp(E, 31, 12)
    wr()
    E.i("s_barrier")
    stamp(E, 32, 12)
    Lsk = E.newlabel("s5sk")
    E.i("s_cmp_ge_u32 s3, 5"); E.branch(f"s_cbranch_scc1 {Lsk}")
    with side(E): fin(1, 3, 8, ACC)
    E.label(Lsk)
    stamp(E, 33, 12)

def prologue(E, kn):
    E.raw(f".globl {kn}\n.p2align 8\n.type {kn},@function\n{kn}:")
    E.i("s_cmp_ge_u32 s2, 256")
    E.branch(f"s_cbranch_scc1 L_exit_{kn}")
    if "scr" in OPT:
        E.i("s_and_b32 s52, s2, 7"); E.i("s_bfe_u32 s53, s2, 0x30003"); E.i("s_and_b32 s2, s2, 0xc0"); E.i("s_lshl_b32 s52, s52, 3"); E.i("s_or_b32 s2, s2, s52"); E.i("s_or_b32 s2, s2, s53")
    E.i("s_load_dwordx16 s[4:19], s[0:1], 0")
    if kn == "ka_kernel" or "tcb" in OPT:
        nl = 128 if kn == "ka_kernel" else 256
        E.i("s_getpc_b64 s[70:71]")
        E.raw(f"L_tpc_{kn}:")
        E.i("v_lshlrev_b32 v5, 7, v0"); E.i(f"v_min_u32 v5, L_end_of_code-L_tpc_{kn}-4, v5")
        E.i(f"v_cmp_gt_u32 vcc, {nl}, v0"); E.i("s_and_saveexec_b64 s[72:73], vcc"); E.branch(f"s_cbranch_execz L_tca_{kn}")
        E.raw("  global_load_dword v255, v5, s[70:71]")
        E.label(f"L_tca_{kn}"); E.i("s_mov_b64 exec, -1")
    E.i("s_load_dwordx4 s[20:23], s[0:1], 64")
    E.i("s_memrealtime s[96:97]")
    E.i("v_and_b32 v1, 63, v0")
    E.i("v_lshrrev_b32 v2, 6, v0")
    E.i("v_readfirstlane_b32 s3, v2")
    E.i("v_lshlrev_b32 v2, 4, v1")
    E.i(f"s_mov_b32 s{sONE}, 0x3f803f80"); E.i(f"s_mov_b32 s{sRETRY}, 0"); E.i(f"s_mov_b32 s{sM1}, 0xfffffffe")
    E.i("s_waitcnt lgkmcnt(0)")
    E.i(f"s_mov_b32 s{sT0}, s96")
    srd(E, SRD_X, P_X, 2621440)
    srd(E, SRD_W1, P_W1, 2457600)
    srd(E, SRD_WS, P_WS, WS_BYTES)
    srd(E, SRD_OUT, P_OUT, 2621440)
    srd(E, SRD_DBG, P_DBG, 256)
def kdesc(kn):
    return f""".section .rodata,"a"
.p2align 6
.amdhsa_kernel {kn}
  .amdhsa_next_free_vgpr 256
  .amdhsa_next_free_sgpr 102
  .amdhsa_accum_offset 256
  .amdhsa_group_segment_fixed_size 0
  .amdhsa_kernarg_size 80
  .amdhsa_user_sgpr_count 2
  .amdhsa_user_sgpr_kernarg_segment_ptr 1
  .amdhsa_system_sgpr_workgroup_id_x 1
.end_amdhsa_kernel
"""
def build():
    E = Emitter()
    prologue(E, "ka_kernel")
    stamp(E, 0, 31)
    E.i("s_lshl_b32 s52, s2, 3"); E.i("s_or_b32 s52, s52, s3"); E.i("s_cmp_lg_u32 s52, 2047"); E.branch("s_cbranch_scc1 L_nonce_done")
    E.i(f"s_or_b32 s52, s{sT0}, 1"); E.i("s_mov_b64 exec, 1"); E.i("v_mov_b32 v3, s52")
    E.raw(f"  buffer_store_dword v3, off, s[{SRD_DBG}:{SRD_DBG+3}], 0{SC}")
    E.i("s_mov_b64 exec, -1")
    E.label("L_nonce_done")
    E.i("s_cmp_ge_u32 s2, 240"); E.branch("s_cbranch_scc1 L_idle")
    s1(E)
    E.branch("s_branch L_tail")
    E.label("L_idle")
    E.vm = []; E.lg = []
    idle(E)
    E.label("L_tail")
    E.vm = [("s0dma", 0)] + ["st"]*8; E.lg = []
    ka_tail(E)
    if CFG.stamps:
        E.i("s_waitcnt vmcnt(0)"); stamp(E, 3, 31); stamp(E, 4, 31, wave=7)
    E.label("L_exit_ka_kernel")
    E.raw("  s_endpgm")
    prologue(E, "kb_kernel")
    E.vm = []; E.lg = []; E.bg_period = 0
    s2(E)
    s3(E)
    s5(E)
    E.i("s_waitcnt vmcnt(0) lgkmcnt(0)")
    stamp(E, 40, 31)
    E.label("L_exit_kb_kernel")
    E.raw("  s_endpgm")
    E.raw("L_end_of_code:")
    hdr = ("; @launch kernel=ka_kernel grid=(256,1,1) block=(512,1,1) lds=163840\n; @launch kernel=kb_kernel grid=(256,1,1) block=(512,1,1) lds=163840\n"
           ".amdgcn_target \"amdgcn-amd-amdhsa--gfx950\"\n.text\n")
    return hdr + E.text() + kdesc("ka_kernel") + kdesc("kb_kernel")

if __name__ == "__main__":
    mode = sys.argv[2] if len(sys.argv) > 2 else ""
    CFG.stamps = mode == "stamps"; CFG.dbgst = mode == "dbg"
    open(sys.argv[1], "w").write(build())
```

```python
from k23a import *

sRB3, sCT3, sCG4, sRB4 = 86, 87, 88, 89
W3R = 156; A3 = [68, 108]; ACC3 = 28
W5P1 = 168
AFR = 88
W5reg = lambda j: (W5P1 + 4*j) if j < 22 else (AFR + 48 + 4*(j-22))
A5 = [lambda f: AFR + 4*f, lambda f: (56 + 4*f) if f < 8 else (AFR + 4*(f-8))]
vA3 = 3
S2B_AT = int(os.environ.get("S2B_AT", "5"))
S3A_AT = int(os.environ.get("S3A_AT", "6"))

MAP3 = int(os.environ.get("MAP3", "2"))
MAP4 = int(os.environ.get("MAP4", "3"))
def late_scalars(E):
    E.i("s_and_b32 s52, s2, 7"); E.i("s_lshr_b32 s53, s2, 3")
    c = MAP3
    E.i(f"s_lshr_b32 s{sRB3}, s52, {3-c}"); E.i(f"s_lshl_b32 s{sRB3}, s{sRB3}, {5-c}"); E.i(f"s_lshr_b32 s54, s53, {c}"); E.i(f"s_add_u32 s{sRB3}, s{sRB3}, s54")
    E.i(f"s_and_b32 s{sCT3}, s52, {(1 << (3-c)) - 1}"); E.i(f"s_lshl_b32 s{sCT3}, s{sCT3}, {c}"); E.i(f"s_and_b32 s54, s53, {(1 << c) - 1}"); E.i(f"s_add_u32 s{sCT3}, s{sCT3}, s54")
    c = MAP4
    E.i(f"s_lshr_b32 s{sRB4}, s52, {5-c}"); E.i(f"s_lshl_b32 s{sRB4}, s{sRB4}, {5-c}"); E.i(f"s_lshr_b32 s54, s53, {c}"); E.i(f"s_add_u32 s{sRB4}, s{sRB4}, s54")
    E.i(f"s_and_b32 s{sCG4}, s52, {(1 << (5-c)) - 1}"); E.i(f"s_lshl_b32 s{sCG4}, s{sCG4}, {c}"); E.i(f"s_and_b32 s54, s53, {(1 << c) - 1}"); E.i(f"s_add_u32 s{sCG4}, s{sCG4}, s54")

def ld_unit(E, r, sbase, j, tag, vaddr=2, unit=1024):
    off = j * unit
    if off < 4096:
        E.i(f"buffer_load_dwordx4 v[{r}:{r+3}], v{vaddr}, {WSR}, s{sbase} offen offset:{off}{SC}", tag=tag)
    else:
        E.i(f"s_add_u32 s100, s{sbase}, {off - off % 4096}")
        E.i(f"buffer_load_dwordx4 v[{r}:{r+3}], v{vaddr}, {WSR}, s100 offen offset:{off % 4096}{SC}", tag=tag)

sWP, sW4, sW5, sA3, sA4, sA5, sHS, sHH = 56, 57, 59, 60, 62, 63, 65, 66
def bases(E):
    E.i(f"s_mul_i32 s{sW5}, s{sCT3}, 245760"); E.i("s_mul_i32 s53, s3, 30720"); E.i(f"s_add_u32 s{sW5}, s{sW5}, s53"); E.i(f"s_add_u32 s{sW5}, s{sW5}, {W5F}")
    E.i(f"s_mul_i32 s52, s{sCT3}, 102400"); E.i("s_mul_i32 s53, s3, 25600"); E.i("s_add_u32 s52, s52, s53"); E.i(f"s_add_u32 s52, s52, {W3F}")
    E.i(f"s_sub_u32 s53, s{sW5}, 3072")
    E.i("s_cmp_lt_u32 s3, 4"); E.i(f"s_cselect_b32 s{sWP}, s52, s53")
    E.i(f"s_mul_i32 s{sW4}, s{sCG4}, 122880"); E.i(f"s_add_u32 s{sW4}, s{sW4}, {W4F}"); E.i(f"s_lshl_b32 s{sW4+1}, s3, 10"); E.i(f"s_add_u32 s{sW4}, s{sW4}, s{sW4+1}")
    E.i(f"s_mul_i32 s{sA3}, s{sRB3}, 40960"); E.i(f"s_add_u32 s{sA3}, s{sA3}, {OF}")
    E.i("s_and_b32 s53, s3, 3"); E.i("s_lshl_b32 s72, s53, 12"); E.i("s_lshl_b32 s73, s53, 10"); E.i("s_add_u32 s73, s73, 16384")
    E.i(f"s_add_u32 s{sA3+1}, s{sA3}, {64*20480}")
    E.i("s_lshr_b32 s52, s3, 2"); E.i("s_xor_b32 s52, s52, 1"); E.i("s_lshl_b32 s52, s52, 3"); E.i(f"s_add_u32 s52, s52, s{sRB4}"); E.i("s_lshl_b32 s52, s52, 2"); E.i("s_and_b32 s53, s3, 3"); E.i("s_add_u32 s52, s52, s53")
    E.i(f"s_mov_b32 s90, s52")
    E.i(f"s_mul_i32 s{sA4}, s52, 40960"); E.i(f"s_add_u32 s{sA4}, s{sA4}, {HF}")
    E.i(f"s_lshl_b32 s{sHS}, s52, 11"); E.i(f"s_add_u32 s{sHS}, s{sHS}, {HSTB}")
    E.i(f"s_mul_i32 s{sHH}, s52, 98304"); E.i(f"s_mul_i32 s53, s{sCG4}, 3072"); E.i(f"s_add_u32 s{sHH}, s{sHH}, s53"); E.i(f"s_add_u32 s{sHH}, s{sHH}, {HHF}")
    E.i(f"s_mul_i32 s{sA5}, s{sRB3}, 98304"); E.i("s_mul_i32 s53, s3, 12288"); E.i(f"s_add_u32 s{sA5}, s{sA5}, s53"); E.i(f"s_add_u32 s{sA5}, s{sA5}, {HHF}")
    E.i(f"s_add_u32 s{sA5+1}, s{sA5}, {32*98304}")

def w4_unit(E, base):
    E.i(f"s_add_u32 m0, s{sW4+1}, {base*1024}"); E.i(f"s_add_u32 s100, s{sW4}, {base*1024}")
    E.i(f"buffer_load_dwordx4 v2, {WSR}, s100 offen{SC} lds", tag="w4")

def a3_all(E, ph):
    for k in range(5):
        for u in range(2):
            r = A3[ph] + (2*k + u)*4
            if k < 4:
                E.i(f"s_add_u32 s100, s{sA3+ph}, s72")
                if u: E.i("s_add_u32 s100, s100, 20480")
                E.i(f"buffer_load_dwordx4 v[{r}:{r+3}], v2, {WSR}, s100 offen offset:{k*1024}{SC}", tag=("a3", ph, k))
            else:
                E.i(f"s_add_u32 s100, s{sA3+ph}, s73")
                if u: E.i("s_add_u32 s100, s100, 20480")
                for h in range(2):
                    E.i(f"buffer_load_dwordx2 v[{r+2*h}:{r+2*h+1}], v{vA3}, {WSR}, s100 offen offset:{h*128}{SC}", tag=("a3", ph, k))

PSL = int(os.environ.get('PSL', '6'))
def probe(E, sbase, n, va, vd, loads=None, sleep=PSL):
    L, Lok = E.newlabel("prb"), E.newlabel("prbok")
    E.bg_lock += 1
    E.i(f"v_and_b32 v{va}, {n-1}, v1"); E.i(f"v_lshlrev_b32 v{va}, 7, v{va}")
    E.label(L)
    E.i(f"buffer_load_dword v{vd}, v{va}, {WSR}, s{sbase} offen{SC}", tag="probe")
    E.wait_vm("probe")
    E.i(f"v_cmp_eq_u32 vcc, 0, v{vd}")
    E.branch(f"s_cbranch_vccz {Lok}")
    E.i(f"s_sleep {sleep}")
    E.i(f"s_add_u32 s{sRETRY}, s{sRETRY}, 1"); E.i(f"s_cmp_gt_u32 s{sRETRY}, {RETRY_MAX}")
    E.branch(f"s_cbranch_scc0 {L}")
    E.label(Lok)
    if loads: loads()
    E.bg_lock -= 1
def signal(E, sreg, vt):
    E.bg_lock += 1
    E.i("s_waitcnt vmcnt(0)"); E.vm = []
    E.i(f"v_mov_b32 v{vt}, 1"); E.i("s_mov_b64 exec, 1")
    E.i(f"buffer_store_dword v{vt}, off, {WSR}, s{sreg}{SC}")
    E.i("s_mov_b64 exec, -1")
    E.bg_lock -= 1
def signal_last(E, sreg, idx, va, vt, nwait=0):
    L = E.newlabel("sl")
    E.bg_lock += 1
    E.i(f"s_waitcnt vmcnt({nwait})")
    if nwait == 0: E.vm = []
    E.i(f"v_mov_b32 v{va}, {CNT + 4*idx}"); E.i(f"v_mov_b32 v{vt}, 1"); E.i("s_mov_b64 exec, 1")
    E.i(f"ds_add_rtn_u32 v{va}, v{va}, v{vt}")
    E.i("s_waitcnt lgkmcnt(0)"); E.lg = []
    E.i(f"v_readfirstlane_b32 s53, v{va}")
    E.i("s_cmp_lg_u32 s53, 3"); E.branch(f"s_cbranch_scc1 {L}")
    with side(E): E.i(f"buffer_store_dword v{vt}, off, {WSR}, s{sreg}{SC}")
    E.label(L)
    E.i("s_mov_b64 exec, -1")
    E.bg_lock -= 1
sTB4 = 90
def probe_o(E, ph, va, vd, loads=None, sleep=PSL):
    E.i(f"s_lshl_b32 s101, s{sRB3}, 12"); E.i("s_lshl_b32 s52, s3, 10"); E.i("s_add_u32 s101, s101, s52"); E.i(f"s_add_u32 s101, s101, {FO + ph*131072}")
    probe(E, 101, 8, va, vd, loads, sleep)
def probe_h(E, va, vd, loads=None):
    E.i(f"s_lshl_b32 s101, s{sTB4}, 10"); E.i(f"s_add_u32 s101, s101, {FH}")
    probe(E, 101, 8, va, vd, loads)
def probe_s(E, va, vd, loads=None):
    E.i(f"s_lshl_b32 s101, s{sTB4}, 10"); E.i(f"s_add_u32 s101, s101, {FS}")
    probe(E, 101, 8, va, vd, loads)
def probe_hh(E, ph, va, vd, loads=None, sleep=PSL):
    E.i(f"s_lshl_b32 s101, s{sRB3}, 12"); E.i("s_lshl_b32 s52, s3, 9"); E.i("s_add_u32 s101, s101, s52"); E.i(f"s_add_u32 s101, s101, {FHH + ph*131072}")
    probe(E, 101, 4, va, vd, loads, sleep)

CNT = 2816
def gwait(E, idx, target, va, vt):
    L, Lok = E.newlabel("gw"), E.newlabel("gwok")
    E.bg_lock += 1
    E.i(f"v_mov_b32 v{va}, {CNT + 4*idx}")
    E.label(L)
    E.i(f"ds_read_b32 v{vt}, v{va}")
    E.i("s_waitcnt lgkmcnt(0)"); E.lg = []
    E.i(f"v_readfirstlane_b32 s52, v{vt}")
    E.i(f"s_cmp_ge_u32 s52, {target}")
    E.branch(f"s_cbranch_scc1 {Lok}")
    E.i("s_sleep 1")
    E.i(f"s_add_u32 s{sRETRY}, s{sRETRY}, 1"); E.i(f"s_cmp_gt_u32 s{sRETRY}, {RETRY_MAX*50}")
    E.branch(f"s_cbranch_scc0 {L}")
    E.label(Lok)
    E.bg_lock -= 1
def garrive(E, idx, va, vt):
    E.bg_lock += 1
    E.i("s_waitcnt lgkmcnt(0)"); E.lg = []
    E.i(f"v_mov_b32 v{va}, {CNT + 4*idx}"); E.i(f"v_mov_b32 v{vt}, 1")
    E.i("s_mov_b64 exec, 1")
    E.i(f"ds_add_u32 v{va}, v{vt}")
    E.i("s_mov_b64 exec, -1")
    E.bg_lock -= 1
GB = [0, 0]
def gbar(E, g, va, vt):
    GB[g] += 1
    garrive(E, g, va, vt); gwait(E, g, 4*GB[g], va, vt)

CSX = 118*1024
ONESL = 2688
def s2(E):
    KV = [122880, 92160]
    stamp(E, 6, 31)
    vD = 34
    s2_scalars(E)
    s2_loads(E, 0, 0, vD, 0, 0, KV[0])
    LO, LO4, K1, K2, VA, VS, vO1, vO2, M0_, M1_ = 4, 5, 6, 7, 8, 9, 10, 11, 32, 33
    QF = 12; BM = 20; KF = 36; VF = 52; PP = 68; S = [84, 100]; NM = 116; OA = 132
    E.i("v_and_b32 v24, 15, v1"); E.i("v_bfe_u32 v25, v1, 4, 1"); E.i("v_lshrrev_b32 v26, 5, v1")
    E.i("v_mul_u32_u24 v27, 640, v25")
    E.i("v_lshlrev_b32 v28, 3, v26"); E.i("v_xor_b32 v28, v28, v24"); E.i(f"v_lshl_add_u32 v{LO}, v28, 3, v27"); E.i(f"v_lshl_add_u32 v{LO}, v26, 8, v{LO}")
    E.i(f"v_lshl_add_u32 v{LO4}, v24, 3, v27"); E.i(f"v_add_u32 v{LO4}, 512, v{LO4}")
    for r in range(4, 8): E.i(f"v_mov_b32 v{QF+r}, 0")
    E.i(f"buffer_load_dwordx2 v[{QF}:{QF+1}], v{LO}, {WSR}, s{sQo} offen", tag="q")
    E.i(f"buffer_load_dwordx2 v[{QF+2}:{QF+3}], v{LO}, {WSR}, s{sQo} offen offset:128", tag="q")
    E.i("s_mov_b32 exec_hi, 0")
    E.i(f"buffer_load_dwordx2 v[{QF+4}:{QF+5}], v{LO4}, {WSR}, s{sQo} offen", tag="q")
    E.i("s_mov_b64 exec, -1")
    s2_loads(E, 0, 1, vD, 0, 0, KV[1])
    late_scalars(E); bases(E)
    E.i("s_and_b32 s52, s3, 3"); E.i("s_mul_i32 s52, s52, 1280"); E.i("s_lshr_b32 s53, s3, 2"); E.i(f"s_mul_i32 s53, s53, {KV[0]-KV[1]}"); E.i(f"s_add_u32 s52, s52, {KV[0]}"); E.i("s_sub_u32 s52, s52, s53")
    E.i(f"v_add_u32 v{K1}, s52, v{LO}"); E.i(f"v_add_u32 v{K2}, s52, v{LO4}")
    E.i("v_bfe_u32 v27, v1, 2, 2"); E.i("v_lshl_add_u32 v27, v26, 2, v27")
    E.i("v_and_b32 v28, 3, v1")
    E.i("v_lshlrev_b32 v29, 7, v28"); E.i("v_lshl_add_u32 v29, v27, 3, v29")
    E.i("v_and_b32 v30, 2, v28"); E.i("v_lshlrev_b32 v30, 5, v30")
    E.i("v_lshlrev_b32 v31, 3, v27"); E.i("v_add_u32 v31, 512, v31")
    E.i("v_cmp_eq_u32 vcc, 1, v25")
    E.i("v_cndmask_b32 v29, v29, v31, vcc"); E.i("v_cndmask_b32 v30, v30, 0, vcc")
    E.i("s_add_u32 s52, s52, 15360")
    E.i("v_add_u32 v29, s52, v29")
    E.i("v_cmp_ne_u32 s[54:55], 0, v28"); E.i("s_and_b64 vcc, vcc, s[54:55]")
    E.i(f"v_mov_b32 v31, {ONESL}"); E.i("v_cndmask_b32 v29, v29, v31, vcc")
    E.i(f"v_mov_b32 v31, 640"); E.i(f"v_cndmask_b32 v{VS}, v31, 0, vcc")
    VA2 = 35
    E.i(f"v_add_u32 v{VA}, v29, v30"); E.i("v_xor_b32 v30, 64, v30"); E.i(f"v_add_u32 v{VA2}, v29, v30")
    E.i("v_mul_u32_u24 v27, 20480, v25"); E.i(f"v_lshl_add_u32 v{vO2}, v24, 3, v27"); E.i(f"v_lshl_add_u32 v{vO1}, v24, 4, v27"); E.i(f"v_lshl_add_u32 v{vO1}, v26, 8, v{vO1}")
    E.i("v_lshrrev_b32 v27, 4, v1"); E.i(f"v_lshlrev_b32 v{vA3}, 8, v27"); E.i(f"v_lshl_add_u32 v{vA3}, v24, 3, v{vA3}")
    MS = [4,6,8,10,12,14,16,18,20,22,28,30,40,42,44,46]
    E.i("v_and_b32 v27, 31, v1"); E.i("v_lshlrev_b32 v28, 2, v26"); E.i("v_sub_u32 v27, v27, v28")
    E.i("v_mov_b32 v28, 0xffff"); E.i("v_mov_b32 v29, 0xffff0000")
    for r in range(16):
        E.i(f"v_cmp_le_i32 s[{MS[r]}:{MS[r]+1}], {8*(r//4) + r%4}, v27")
    for j in range(8):
        E.i(f"v_cndmask_b32 v30, 0, v28, s[{MS[2*j]}:{MS[2*j]+1}]"); E.i(f"v_cndmask_b32 v31, 0, v29, s[{MS[2*j+1]}:{MS[2*j+1]+1}]")
        E.i(f"v_or_b32 v{BM+j}, v30, v31")
    E.i("v_mov_b32 v142, 0"); E.i("v_mov_b32 v143, 0"); E.i(f"v_mov_b32 v37, {CNT}"); E.i("ds_write_b64 v37, v[142:143]"); E.i("ds_write_b64 v37, v[142:143] offset:8"); E.i("ds_write_b64 v37, v[142:143] offset:16")
    E.i(f"v_mov_b32 v142, s{sONE}"); E.i("v_and_b32 v37, 31, v1"); E.i("v_lshlrev_b32 v37, 2, v37"); E.i(f"ds_write_b32 v37, v142 offset:{ONESL}")
    for r in (KF+6, KF+7, KF+14, KF+15): E.i(f"v_mov_b32 v{r}, 0")
    E.wait_lg(); E.wait_vm()
    stamp(E, 7, 30)
    E.i("s_barrier")
    Lw = E.newlabel("g1pre")
    E.i("s_cmp_ge_u32 s3, 4"); E.branch(f"s_cbranch_scc1 {Lw}")
    E.i(f"s_setprio {ATT_PRIO}")
    E.branch(f"s_branch {Lw}_j")
    E.label(Lw)
    with side(E):
        E.i(f"s_sub_u32 s{sW4}, s{sW4}, 4096"); E.i(f"s_sub_u32 s{sW4+1}, s{sW4+1}, 4096")
        for u_ in W4U[:W4_EARLY]: w4_unit(E, u_)
    E.label(f"{Lw}_j")
    stamp(E, 8, 30); stamp(E, 10, 30, wave=4)
    E.i("s_cmp_lt_u32 s3, 4"); E.i("s_cselect_b64 vcc, -1, 0")
    def wpg(j):
        L = E.newlabel("wps")
        E.i(f"s_cbranch_vccz {L}")
        h = list(E.hist)
        ld_unit(E, W3R + 4*j, sWP, j, "wp")
        E.hist = h
        E.raw(f"{L}:")
    WPQ = [(lambda j=j: (wpg(j) if j < 3 else ld_unit(E, W3R + 4*j, sWP, j, "wp"))) for j in range(25)]
    order = [0, 8, 7, 6, 5, 4, 3, 2, 1]
    def rdk(n):
        b = order[n]; r = KF + 8*(n % 2)
        E.i(f"ds_read2_b64 v[{r}:{r+3}], v{K1} offset0:{(b*1280//8) % 256} offset1:{(b*1280//8 + 16) % 256}", tag=("k", n)) if b*1280//8 + 16 < 256 else (
            E.i(f"ds_read_b64 v[{r}:{r+1}], v{K1} offset:{b*1280}", tag=("k", n)), E.i(f"ds_read_b64 v[{r+2}:{r+3}], v{K1} offset:{b*1280+128}", tag=("k", n)))
        E.i(f"ds_read_b64 v[{r+4}:{r+5}], v{K2} offset:{b*1280}", tag=("k", n))
    def weave(big, small):
        nb = len(big); per = -(-len(small) // max(nb, 1))
        for f in big:
            f()
            for _ in range(per):
                if small: E.i(small.pop(0))
        while small: E.i(small.pop(0))
    def qk_parts(n, c):
        r = KF + 8*(n % 2); d = S[n % 2]
        def a():
            E.wait_lg(("k", n))
            E.i(f"v_mfma_f32_32x32x16_bf16 v[{d}:{d+15}], v[{r}:{r+3}], v[{QF}:{QF+3}], {c}")
        def b_():
            E.i(f"v_mfma_f32_32x32x16_bf16 v[{d}:{d+15}], v[{r+4}:{r+7}], v[{QF+4}:{QF+7}], v[{d}:{d+15}]")
            if n + 2 < 9: rdk(n + 2)
        return [a, b_]
    pads = []
    def exit_if_invalid(b, target):
        Lp = E.newlabel("pad"); pads.append((Lp, target))
        E.i(f"s_cmp_lt_u32 s{sTQ}, {16 - 2*b}"); E.branch_nf(f"s_cbranch_scc1 {Lp}")
    def merge():
        Lf = E.newlabel("fv"); pads.append((Lf, None))
        E.i(f"s_cmp_lt_u32 s{sTQ}, 16"); E.branch_nf(f"s_cbranch_scc1 {Lf}")
        E.raw(f"{Lf}_r:")
        for r in range(16): E.i(f"v_cndmask_b32 v{S[1]+r}, v{S[0]+r}, v{S[1]+r}, s[{MS[r]}:{MS[r]+1}]")
    if "rep2" in OPT:
        E.i("s_mov_b32 s77, 0"); E.label("L_rep2")
    Lp1 = E.newlabel("p1done")
    rdk(0); rdk(1)
    for f in qk_parts(0, "0") + qk_parts(1, "0"): f()
    merge()
    for n in range(1, 9):
        d = S[n % 2]
        if n >= 2: exit_if_invalid(order[n], Lp1)
        sm = []
        for j in range(0, 16, 4):
            if n == 1 and j == 0:
                sm += [f"v_max_f32 v{M0_}, v{d}, v{d+1}", f"v_max_f32 v{M1_}, v{d+2}, v{d+3}"]
            else:
                sm += [f"v_max3_f32 v{M0_}, v{d+j}, v{d+j+1}, v{M0_}", f"v_max3_f32 v{M1_}, v{d+j+2}, v{d+j+3}, v{M1_}"]
        weave(qk_parts(n + 1, "0") if n + 1 < 9 else [], sm)
        WPQ[n - 1]()
    E.label(Lp1)
    E.i("s_waitcnt lgkmcnt(0)"); E.lg = []
    rdk(0); rdk(1)
    E.i(f"v_max_f32 v{M0_}, v{M0_}, v{M1_}")
    E.i(f"v_mov_b32 v{M1_}, v{M0_}"); E.i(f"v_permlane32_swap_b32 v{M0_}, v{M1_}"); E.i(f"v_max_f32 v{M0_}, v{M0_}, v{M1_}")
    for r in range(16): E.i(f"v_sub_f32 v{NM+r}, 0, v{M0_}")
    vT1, vT2 = 30, 31
    def rdv(b, slot):
        for ks in range(2):
            tb = 2*b + ks
            E.i(f"v_mad_u32_u24 v{vT1}, v{VS}, {tb}, v{VA}"); E.i(f"v_mad_u32_u24 v{vT2}, v{VS}, {tb}, v{VA2}")
            r = VF + 8*slot + 4*ks
            E.i(f"ds_read_b64_tr_b16 v[{r}:{r+1}], v{vT1}", tag=("v", b)); E.i(f"ds_read_b64_tr_b16 v[{r+2}:{r+3}], v{vT2}", tag=("v", b))
    def pv_parts(b, slot, P, first, nxt=None):
        def mk(ks):
            def f():
                if ks == 0: E.wait_lg(("v", b))
                r = VF + 8*slot + 4*ks
                c = "0" if (first and ks == 0) else f"v[{OA}:{OA+15}]"
                E.i(f"v_mfma_f32_32x32x16_bf16 v[{OA}:{OA+15}], v[{r}:{r+3}], v[{P+4*ks}:{P+4*ks+3}], {c}")
                if ks == 1 and nxt is not None: rdv(nxt, slot)
            return f
        return [mk(0), mk(1)]
    nm = f"v[{NM}:{NM+15}]"
    Lp2 = E.newlabel("p2done")
    PF0 = 148
    for f in qk_parts(0, nm) + qk_parts(1, nm): f()
    rdv(0, 0); rdv(8, 1)
    merge()
    pend = []
    tails = []
    for n in range(1, 9):
        d = S[n % 2]; b = order[n]; P = PP + 8*(n % 2)
        if n >= 2:
            Lt = E.newlabel("p2t"); tails.append((Lt, n - 1))
            exit_if_invalid(b, Lt)
        sm = [f"v_exp_f32 v{d+j}, v{d+j}" for j in range(16)]
        weave((qk_parts(n + 1, nm) if n + 1 < 9 else []) + pend, sm)
        WPQ[8 + 2*(n-1)]()
        for j in range(8): E.i(f"v_cvt_pk_bf16_f32 v{P+j}, v{d+2*j}, v{d+2*j+1}")
        WPQ[9 + 2*(n-1)]()
        if n == 1:
            for j in range(8): E.i(f"v_bfi_b32 v{PF0+j}, v{BM+j}, 0, v{P+j}")
            for j in range(8): E.i(f"v_and_b32 v{P+j}, v{BM+j}, v{P+j}")
            pend = pv_parts(0, 0, PF0, True, order[2]) + pv_parts(8, 1, P, False, order[3])
        else:
            pend = pv_parts(b, n % 2, P, False, order[n + 2] if n + 2 < 9 else None)
    WPQ[24]()
    for f in pend: f()
    E.branch(f"s_branch {Lp2}")
    for Lp, target in pads:
        E.pad_label(Lp)
        if target is None:
            for r in range(16): E.i(f"v_mov_b32 v{S[0]+r}, {NEG:#x}")
            E.branch(f"s_branch {Lp}_r")
        else: E.branch(f"s_branch {target}")
    for Lt, m in tails:
        E.label(Lt)
        E.i("s_waitcnt lgkmcnt(0)"); E.lg = []
        P = PP + 8*(m % 2)
        parts = (pv_parts(0, 0, PF0, True) + pv_parts(8, 1, P, False)) if m == 1 else pv_parts(order[m], m % 2, P, False)
        for f in parts: f()
        E.branch(f"s_branch {Lp2}_w")
    E.label(f"{Lp2}_w")
    E.label(Lp2)
    if "rep2" in OPT:
        E.i("s_waitcnt lgkmcnt(0)"); E.lg = []
        E.i("s_cmp_eq_u32 s77, 1"); E.branch("s_cbranch_scc1 L_rep2_done")
        stamp(E, 12, 30); stamp(E, 13, 30, wave=4)
        E.i("s_barrier"); stamp(E, 37, 30)
        E.i("s_mov_b32 s77, 1"); E.branch("s_branch L_rep2")
        E.label("L_rep2_done")
    stamp(E, 9, 30); stamp(E, 11, 30, wave=4)
    E.i("s_lshr_b32 s52, s3, 2"); E.i("s_lshl_b32 s52, s52, 2"); E.i(f"s_add_u32 s52, s52, {CNT + 8}")
    E.i("s_waitcnt lgkmcnt(0)"); E.lg = []
    E.i("v_mov_b32 v30, s52"); E.i("v_mov_b32 v31, 1"); E.i("s_mov_b64 exec, 1"); E.i("ds_add_u32 v30, v31"); E.i("s_mov_b64 exec, -1")
    E.i(f"v_rcp_f32 v{M0_}, v{OA+12}")
    for r in range(12): E.i(f"v_mul_f32 v{OA+r}, v{OA+r}, v{M0_}")
    for j in range(6): E.i(f"v_cvt_pk_bf16_f32 v{PP+j}, v{OA+2*j}, v{OA+2*j+1}")
    E.i(f"v_permlane32_swap_b32 v{PP}, v{PP+2}"); E.i(f"v_permlane32_swap_b32 v{PP+1}, v{PP+3}")
    E.i(f"s_lshl_b32 s52, s{sHD}, 9"); E.i(f"s_add_u32 s52, s52, s{sOo}")
    E.i(f"s_lshl_b32 s53, s{sHD}, 7"); E.i(f"s_add_u32 s53, s53, s{sOo}"); E.i("s_add_u32 s53, s53, 16384")
    E.i(f"buffer_store_dwordx4 v[{PP}:{PP+3}], v{vO1}, {WSR}, s52 offen{SC}", tag="st")
    E.i("s_mov_b32 exec_hi, 0")
    E.i(f"buffer_store_dwordx2 v[{PP+4}:{PP+5}], v{vO2}, {WSR}, s53 offen{SC}", tag="st")
    E.i("s_mov_b64 exec, -1")
    E.i(f"s_lshl_b32 s52, s{sTQ}, 11"); E.i(f"s_lshl_b32 s53, s{sHD}, 7"); E.i("s_add_u32 s52, s52, s53"); E.i(f"s_add_u32 s52, s52, {FO}")
    signal(E, 52, 30)
    Lw = E.newlabel("wpre")
    E.i(f"s_cmp_ge_u32 s{sTQ}, 14"); E.branch(f"s_cbranch_scc1 {Lw}")
    with side(E):
        for j in range(25): ld_unit(E, W3R + 4*j, sWP, j, "wp")
    E.label(Lw)
W4_PRE = int(os.environ.get("W4_PRE", "8"))

def final_sum(E, vPR, nslots, T, off0, vt):
    for half in range(nslots // 4):
        for w in range(4):
            off = off0 + (half*4 + w)*10240
            for g in range(2):
                o = off + g*256
                r = T + 8 + (w*2+g)*4
                if o > 65535:
                    E.i(f"v_add_u32 v{vt}, 40960, v{vPR}"); E.i(f"ds_read_b128 v[{r}:{r+3}], v{vt} offset:{o-40960}")
                else:
                    E.i(f"ds_read_b128 v[{r}:{r+3}], v{vPR} offset:{o}")
        E.wait_lg()
        for j in range(8):
            g, b = j // 4, j % 4
            sr = [T + 8 + (w*2+g)*4 + b for w in range(4)]
            E.i(f"v_add_f32 v{sr[0]}, v{sr[0]}, v{sr[1]}"); E.i(f"v_add_f32 v{sr[2]}, v{sr[2]}, v{sr[3]}")
            if half == 0: E.i(f"v_add_f32 v{T+j}, v{sr[0]}, v{sr[2]}")
            else:
                E.i(f"v_add_f32 v{T+j}, v{T+j}, v{sr[0]}"); E.i(f"v_add_f32 v{T+j}, v{T+j}, v{sr[2]}")

def add_res_pack(E, T, RES, OUT, vt, clamp):
    for j in range(4):
        E.i(f"v_lshlrev_b32 v{vt}, 16, v{RES+j}"); E.i(f"v_add_f32 v{T+2*j}, v{T+2*j}, v{vt}")
        E.i(f"v_and_b32 v{vt}, 0xffff0000, v{RES+j}"); E.i(f"v_add_f32 v{T+2*j+1}, v{T+2*j+1}, v{vt}")
    for j in range(4):
        E.i(f"v_cvt_pk_bf16_f32 v{OUT+j}, v{T+2*j}, v{T+2*j+1}")
        if clamp: E.i(f"v_min_u32 v{OUT+j}, s{sM1}, v{OUT+j}")

def lane_pr(E, dst, t0, t1):
    E.i(f"v_bfe_u32 v{t0}, v1, 4, 1"); E.i(f"v_mul_u32_u24 v{t0}, 5120, v{t0}"); E.i(f"v_lshrrev_b32 v{t1}, 5, v1"); E.i(f"v_lshl_add_u32 v{t0}, v{t1}, 9, v{t0}")
    E.i(f"v_and_b32 v{t1}, 15, v1"); E.i(f"v_lshl_add_u32 v{dst}, v{t1}, 4, v{t0}")
def lane_xr(E, dst, t0, t1):
    E.i(f"v_and_b32 v{t0}, 31, v1"); E.i(f"v_mul_u32_u24 v{t0}, 1280, v{t0}"); E.i(f"v_lshrrev_b32 v{t1}, 5, v1"); E.i(f"v_lshl_add_u32 v{dst}, v{t1}, 4, v{t0}")

def a4_load(E, i):
    ld_unit(E, AFR + 4*(i % 20), sA4, i, ("a4", i))

AUXB = 0
CSF = 2048
WF4 = 64
def w4_first(E):
    E.i(f"s_sub_u32 s52, s{sW4}, s{sW4+1}")
    for t in range(3): ld_unit(E, WF4 + 4*t, 52, t, "w40")
def s3(E):
    stamp(E, 14, 35); stamp(E, 36, 35, wave=4)
    LG1, LJ = E.newlabel("s3g1"), E.newlabel("s3j")
    E.i("s_cmp_ge_u32 s3, 4"); E.branch(f"s_cbranch_scc1 {LG1}")
    E.vm = []
    E.i("s_setprio 2")
    vPW, vM, vPR, vXR = 4, 5, 8, 9
    RES = 12
    T = 68
    E.i("s_mul_i32 s52, s3, 10240"); E.i(f"s_add_u32 s52, s52, {SCR}"); E.i(f"v_add_u32 v{vPW}, s52, v2")
    lane_pr(E, vPR, 6, 7); lane_xr(E, vXR, 6, 7)
    E.i(f"v_add_u32 v{vPR}, s{sW4+1}, v{vPR}"); E.i(f"v_add_u32 v{vPR}, {SCR}, v{vPR}")
    E.i(f"s_lshr_b32 s52, s{sW4+1}, 5"); E.i(f"v_add_u32 v{vXR}, s52, v{vXR}")
    E.i(f"s_mul_i32 s52, s{sRB3}, 40960"); E.i(f"s_mul_i32 s53, s{sCT3}, 160"); E.i("s_add_u32 s52, s52, s53"); E.i("s_add_u32 s53, s52, 1310720")
    for ph in range(2):
        E.i(f"buffer_load_dwordx4 v[{RES+8*ph}:{RES+8*ph+3}], v{vXR}, s[{SRD_X}:{SRD_X+3}], s{52+ph} offen", tag="res")
        E.i(f"buffer_load_dwordx4 v[{RES+8*ph+4}:{RES+8*ph+7}], v{vXR}, s[{SRD_X}:{SRD_X+3}], s{52+ph} offen offset:128", tag="res")
    sHW = 67
    E.i(f"s_mul_i32 s{sHW}, s{sRB3}, 40960"); E.i(f"s_mul_i32 s53, s{sCT3}, 5120"); E.i(f"s_add_u32 s{sHW}, s{sHW}, s53"); E.i(f"s_add_u32 s{sHW}, s{sHW}, s{sW4+1}"); E.i(f"s_add_u32 s{sHW}, s{sHW}, {HF}")
    E.i(f"s_add_u32 s{sHW+1}, s{sHW}, {32*40960}")
    for ph in range(2):
        if ph == 0: probe_o(E, 0, 6, 7, lambda: a3_all(E, 0))
        Lb = E.newlabel("s3v")
        E.label(Lb)
        for k in range(5):
            E.wait_vm(("a3", ph, k))
            for u in range(2):
                af = A3[ph] + (2*k+u)*4
                for nt in range(5):
                    a = ACC3 + (u*5+nt)*4; wf = W3R + (k*5+nt)*4
                    c = "0" if k == 0 else f"v[{a}:{a+3}]"
                    E.i(f"v_mfma_f32_16x16x32_bf16 v[{a}:{a+3}], v[{wf}:{wf+3}], v[{af}:{af+3}], {c}")
        stamp(E, 15 + 3*ph, 6)
        if ph == 0: gwait(E, 2, 4, 6, 7)
        else: gwait(E, 0, 4*GB[0], 6, 7)
        for j in range(10): E.i(f"ds_write_b128 v{vPW}, v[{ACC3+4*j}:{ACC3+4*j+3}] offset:{j*1024}")
        GB[0] += 1; garrive(E, 0, 6, 7)
        if ph == 0:
            E.i(f"s_lshl_b32 s101, s{sRB3}, 12"); E.i("s_lshl_b32 s52, s3, 10"); E.i("s_add_u32 s101, s101, s52"); E.i(f"s_add_u32 s101, s101, {FO + 131072}")
            E.i("v_and_b32 v11, 7, v1"); E.i("v_lshlrev_b32 v11, 7, v11")
        gwait(E, 0, 4*GB[0], 6, 7)
        if ph == 0: E.i(f"buffer_load_dword v11, v11, {WSR}, s101 offen{SC}", tag="aprobe")
        stamp(E, 16 + 3*ph, 6)
        E.wait_vm("res")
        for unit in range(2):
            Lu = None
            if unit == 1:
                Lu = E.newlabel("fin4"); E.i("s_cmp_lg_u32 s3, 0"); E.branch(f"s_cbranch_scc1 {Lu}")
                cm = side(E); cm.__enter__()
            final_sum(E, vPR, 4, T, unit*4096, 6)
            add_res_pack(E, T, RES + 8*ph + 4*unit, 28, 6, False)
            if unit == 0: E.i(f"buffer_store_dwordx4 v[28:31], v2, {WSR}, s{sHW+ph} offen{SC}", tag="st")
            else:
                E.i(f"s_add_u32 s52, s{sHW+ph}, 4096"); E.i(f"buffer_store_dwordx4 v[28:31], v2, {WSR}, s52 offen{SC}")
            if unit == 0:
                E.i(f"v_add_f32 v32, v{T}, v{T+1}"); E.i(f"v_mul_f32 v33, v{T}, v{T}"); E.i(f"v_mul_f32 v35, v{T+1}, v{T+1}"); E.i(f"v_add_f32 v34, v{T+2}, v{T+3}")
                for j in range(2, 8): E.i(f"v_fmac_f32 v{33 if j&1 else 35}, v{T+j}, v{T+j}")
                for j in range(4, 8): E.i(f"v_add_f32 v{32 if j&1 else 34}, v{32 if j&1 else 34}, v{T+j}")
            else:
                for j in range(8):
                    E.i(f"v_fmac_f32 v{33 if j&1 else 35}, v{T+j}, v{T+j}"); E.i(f"v_add_f32 v{32 if j&1 else 34}, v{32 if j&1 else 34}, v{T+j}")
                cm.__exit__(); E.label(Lu)
        E.i("v_add_f32 v32, v32, v34"); E.i("v_add_f32 v33, v33, v35")
        E.i("v_mov_b32 v34, v32"); E.i("v_mov_b32 v35, v33")
        E.i("v_permlane32_swap_b32 v32, v34"); E.i("v_permlane32_swap_b32 v33, v35")
        E.i("v_add_f32 v32, v32, v34"); E.i("v_add_f32 v33, v33, v35")
        E.i("v_and_b32 v10, 31, v1"); E.i("v_lshlrev_b32 v10, 3, v10"); E.i(f"s_lshr_b32 s52, s{sW4+1}, 2"); E.i(f"s_add_u32 s52, s52, {AUXB + ph*1024}"); E.i("v_add_u32 v34, s52, v10")
        E.i("ds_write_b64 v34, v[32:33]")
        garrive(E, 0, 6, 7); GB[0] += 1
        E.i(f"s_lshl_b32 s52, s{sRB3}, 10"); E.i(f"s_lshl_b32 s53, s{sCT3}, 7"); E.i("s_add_u32 s52, s52, s53"); E.i(f"s_add_u32 s52, s52, {FH + ph*32768}")
        if ph == 0:
            Lsl, Lj_ = E.newlabel("slow"), E.newlabel("fj")
            E.i("s_mov_b32 s54, s52")
            E.wait_vm("aprobe")
            E.i("v_cmp_eq_u32 vcc, 0, v11")
            E.branch(f"s_cbranch_vccnz {Lsl}")
            with side(E):
                a3_all(E, 1)
                signal_last(E, 54, 4, 6, 7, 12)
            E.branch(f"s_branch {Lj_}")
            E.label(Lsl)
            signal_last(E, 54, 4, 6, 7)
            probe_o(E, 1, 6, 7, lambda: a3_all(E, 1))
            E.label(Lj_)
        else: signal_last(E, 52, 5, 6, 7)
        stamp(E, 17 + 3*ph, 6)
    gwait(E, 0, 4*GB[0], 6, 7)
    hst(E, 0, 2); hst(E, 1, 3)
    for j in range(W5_PRE): ld_unit(E, W5reg(j), sW5, j, ("w5", j))
    G0_DONE = 4*GB[0]
    gwait(E, 1, 12, 6, 7)
    E.i(f"s_setprio {G0_PRIO}")
    q = [(("w5", j), (lambda j=j: ld_unit(E, W5reg(j), sW5, j, ("w5", j)))) for j in range(W5_PRE, 22)]
    s4(E, 1, q)
    E.branch(f"s_branch {LJ}")
    E.label(LG1)
    E.vm = []; E.lg = []
    E.i("v_lshrrev_b32 v8, 1, v2"); E.i(f"s_mul_i32 s52, s{sW4+1}, 120"); E.i(f"s_mul_i32 s53, s{sCG4}, 384"); E.i("s_add_u32 s52, s52, s53"); E.i(f"s_add_u32 s52, s52, {CSP4}")
    for j in range(10):
        E.i(f"buffer_load_dwordx2 v[{16+2*j}:{17+2*j}], v8, {WSR}, s52 offen", tag="cs")
        E.i("s_add_u32 s52, s52, 12288")
    for u_ in W4U[W4_EARLY:]: w4_unit(E, u_)
    gwait(E, 3, 4, 6, 7)
    for i in range(7): w4_unit(E, 90 + 4*i)
    E.wait_vm("cs")
    for j in range(1, 10):
        E.i(f"v_add_f32 v16, v16, v{16+2*j}"); E.i(f"v_add_f32 v17, v17, v{17+2*j}")
    E.i(f"s_lshr_b32 s52, s{sW4+1}, 1"); E.i(f"s_add_u32 s52, s52, {CSX}"); E.i("v_add_u32 v9, s52, v8")
    E.i("ds_write_b64 v9, v[16:17]")
    gbar(E, 1, 6, 7)
    E.i(f"v_add_u32 v9, {CSX}, v8")
    for w in range(4): E.i(f"ds_read_b64 v[{16+2*w}:{17+2*w}], v9 offset:{w*512}")
    E.wait_lg()
    for w in range(1, 4):
        E.i(f"v_add_f32 v16, v16, v{16+2*w}"); E.i(f"v_add_f32 v17, v17, v{17+2*w}")
    E.i(f"ds_write_b64 v8, v[16:17] offset:{CSF}")
    gbar(E, 1, 6, 7)
    Lq = E.newlabel("w4q"); E.i("s_cmp_ge_u32 s3, 6"); E.branch(f"s_cbranch_scc1 {Lq}")
    with side(E): w4_unit(E, 118)
    E.label(Lq)
    E.vm = []
    E.i("s_waitcnt vmcnt(0)")
    gbar(E, 1, 6, 7)
    s4(E, 0, [(("w5", j), (lambda j=j: ld_unit(E, W5reg(j), sW5, j, ("w5", j)))) for j in range(0)])
    gwait(E, 0, G0_DONE, 12, 13)
    E.label(LJ)
    E.vm = ["st"]; E.lg = []

def hst(E, ph, wv):
    Ls = E.newlabel("hst")
    E.i(f"s_cmp_lg_u32 s3, {wv}"); E.branch(f"s_cbranch_scc1 {Ls}")
    with side(E):
        E.i(f"v_add_u32 v11, {AUXB + ph*1024}, v10")
        for j in range(4): E.i(f"ds_read_b64 v[{148+2*j}:{149+2*j}], v11 offset:{j*256}")
        E.i("s_waitcnt lgkmcnt(0)")
        for j in range(1, 4):
            E.i(f"v_add_f32 v148, v148, v{148+2*j}"); E.i(f"v_add_f32 v149, v149, v{149+2*j}")
        E.i(f"s_lshl_b32 s52, s{sRB3}, 11"); E.i(f"s_lshl_b32 s53, s{sCT3}, 8"); E.i("s_add_u32 s52, s52, s53"); E.i(f"s_add_u32 s52, s52, {HSTB + ph*32*2048}")
        E.i("s_mov_b32 exec_hi, 0")
        E.i(f"buffer_store_dwordx2 v[148:149], v10, {WSR}, s52 offen{SC}")
        E.i("s_mov_b64 exec, -1")
        E.i(f"s_lshl_b32 s52, s{sRB3}, 10"); E.i(f"s_lshl_b32 s53, s{sCT3}, 7"); E.i("s_add_u32 s52, s52, s53"); E.i(f"s_add_u32 s52, s52, {FS + ph*32768}")
        signal(E, 52, 148)
    E.label(Ls)
W5_PRE = int(os.environ.get("W5_PRE", "22"))
WP_PRE = int(os.environ.get("WP_PRE", "8"))
A3B_LATE = int(os.environ.get("A3B_LATE", "1"))
A5_AT = int(os.environ.get("A5_AT", "40"))
G0_PRIO = int(os.environ.get("G0_PRIO", "0"))
G1W5 = int(os.environ.get("G1W5", "22"))
W4U = list(range(3, 87, 4)) + [86]
W4_EARLY = int(os.environ.get("W4_EARLY", "22"))
ATT_PRIO = int(os.environ.get("ATT_PRIO", "0"))
S4_INIT = int(os.environ.get("S4_INIT", "8"))
S4_FIRST = 5
WP_FIRST = int(os.environ.get("WP_FIRST", "14"))
W4_S2 = int(os.environ.get("W4_S2", "10"))
F1_AT = int(os.environ.get("F1_AT", "6"))

vA5 = 7
def a5_load(E, ph, f):
    k, u = f // 2, f % 2
    r = A5[ph](f); off = k*2048 + u*256
    E.i(f"s_add_u32 s100, s{sA5+ph}, {off - off % 4096}")
    E.i(f"buffer_load_dwordx4 v[{r}:{r+3}], v{vA5}, {WSR}, s100 offen offset:{off % 4096}{SC}", tag=("a5", ph, f))

def a4_touch(E, va, vd):
    E.i(f"s_and_b32 s52, s{sCG4}, 7"); E.i("s_lshl_b32 s52, s52, 7"); E.i(f"s_add_u32 s52, s52, s{sA4}"); E.i("s_add_u32 s52, s52, 8192")
    E.i(f"v_and_b32 v{va}, 31, v1"); E.i(f"v_lshlrev_b32 v{va}, 10, v{va}")
    E.i(f"buffer_load_dword v{vd}, v{va}, {WSR}, s52 offen{SC}")

def s4(E, g, q0):
    vWB, vWB2, vCSR, vM = 3, 4, 6, 5
    ST = 8; SX, SXX = 8, 9
    ACC = 16; WF = WF4
    stamp(E, 21 if g == 0 else 24, 15, wave=4*(1-g))
    if g == 0: E.i("s_setprio 1")
    E.i(f"v_add_u32 v{vWB2}, 61440, v2")
    E.i("v_lshrrev_b32 v8, 5, v1"); E.i("v_lshlrev_b32 v8, 4, v8"); E.i(f"v_add_u32 v{vCSR}, {CSF}, v8")
    E.i("v_lshrrev_b32 v8, 4, v1"); E.i("v_and_b32 v9, 15, v1"); E.i("v_lshlrev_b32 v8, 9, v8"); E.i(f"v_lshl_add_u32 v{vA5}, v9, 4, v8")
    K1, K2 = 78, 79
    k1 = -2.0 * 0.7978845608028654 * 1.4426950408889634
    E.i(f"s_mov_b32 s{K1}, {f2u(k1):#x}"); E.i(f"s_mov_b32 s{K2}, {f2u(k1*0.044715):#x}")
    def st_loads():
        E.i(f"v_lshrrev_b32 v{ST+6}, 1, v2")
        for i in range(4):
            E.i(f"buffer_load_dwordx2 v[{ST+2*i}:{ST+2*i+1}], v{ST+6}, {WSR}, s{sHS} offen offset:{i*512}{SC}", tag="hst")
    w4_first(E)
    probe_h(E, 8, 9, lambda: [a4_load(E, i) for i in range(S4_INIT)])
    if "touch" in OPT: a4_touch(E, 8, 9)
    Lb = E.newlabel("s4v"); Lh = E.newlabel("s4h")
    E.label(Lb)
    E.bg_period = 0
    def rd(i):
        for t in range(3):
            r = WF + (i%2)*12 + 4*t
            o = (i*3+t)*1024
            if o < 61440: E.i(f"ds_read_b128 v[{r}:{r+3}], v2 offset:{o}", tag=("w", i))
            else: E.i(f"ds_read_b128 v[{r}:{r+3}], v{vWB2} offset:{o-61440}", tag=("w", i))
    sched = [[] for _ in range(41)]
    nxt = S4_INIT
    for i in range(40):
        for _ in range(2 if nxt < 20 else 1):
            if nxt < 40 and nxt - 20 < i:
                sched[i].append(lambda n=nxt: a4_load(E, n)); nxt += 1
    assert nxt == 40
    q = list(q0)
    for n, (tg, fn) in enumerate(q): sched[min((8 if g else 18) + n, 40)].append(fn)
    if g == 1:
        for n in range(22, 30): sched[33 + n - 22].append(lambda n=n: ld_unit(E, W5reg(n), sW5, n, ("w5", n)))
    for i in range(40):
        if i + 1 < 40: rd(i + 1)
        E.wait_vm(("a4", i))
        if i > 0: E.wait_lg(("w", i))
        af = AFR + 4*(i % 20)
        ops = list(sched[i])
        for t in range(3):
            r = WF + (i%2)*12 + 4*t; a = ACC + 16*t
            c = "0" if i == 0 else f"v[{a}:{a+15}]"
            E.i(f"v_mfma_f32_32x32x16_bf16 v[{a}:{a+15}], v[{r}:{r+3}], v[{af}:{af+3}], {c}")
            if ops: ops.pop(0)()
        for o in ops: o()
        if i == 30: probe_s(E, 8, 9, st_loads)
        if i in (0, 9, 19, 29): stamp(E, 53 + 5*g + (i+1)//10, 3, wave=4*(1-g))
    stamp(E, 22 if g == 0 else 25, 87, wave=4*(1-g))
    for o in sched[40]: E.bg_push("x", o)
    if g == 0:
        for n in range(22, 30): E.bg_push(("w5", n), lambda n=n: ld_unit(E, W5reg(n), sW5, n, ("w5", n)))
    E.bg_period = BGP
    E.wait_vm("hst")
    E.i(f"v_add_f32 v{ST}, v{ST}, v{ST+2}"); E.i(f"v_add_f32 v{ST+1}, v{ST+1}, v{ST+3}")
    E.i(f"v_add_f32 v{ST+4}, v{ST+4}, v{ST+6}"); E.i(f"v_add_f32 v{ST+5}, v{ST+5}, v{ST+7}")
    E.i(f"v_add_f32 v{ST}, v{ST}, v{ST+4}"); E.i(f"v_add_f32 v{ST+1}, v{ST+1}, v{ST+5}")
    E.i(f"v_mov_b32 v{ST+2}, v{ST}"); E.i(f"v_mov_b32 v{ST+3}, v{ST+1}")
    E.i(f"v_permlane32_swap_b32 v{ST}, v{ST+2}"); E.i(f"v_permlane32_swap_b32 v{ST+1}, v{ST+3}")
    E.i(f"v_add_f32 v{ST}, v{ST}, v{ST+2}"); E.i(f"v_add_f32 v{ST+1}, v{ST+1}, v{ST+3}")
    stats_math(E, SX, SXX)
    E.i(f"v_mul_f32 v11, v{SXX}, v{SXX}"); E.i(f"v_mul_f32 v10, s{K1}, v{SXX}"); E.i(f"v_mul_f32 v12, v11, v{SXX}"); E.i(f"v_mul_f32 v12, s{K2}, v12"); E.i("v_rcp_f32 v11, v11")
    for q_ in range(4): E.i(f"ds_read_b128 v[{WF+4*q_}:{WF+4*q_+3}], v{vCSR} offset:{q_*32}")
    for t in range(3):
        a = ACC + 16*t; C = WF; G = WF + 16
        E.wait_lg()
        for r in range(16): E.i(f"v_fma_f32 v{a+r}, v{SX}, v{C+r}, v{a+r}")
        if t < 2:
            for q_ in range(4): E.i(f"ds_read_b128 v[{C+4*q_}:{C+4*q_+3}], v{vCSR} offset:{(t+1)*128 + q_*32}")
        for r in range(8): E.i(f"v_mul_f32 v{G+r}, v{a+r}, v{a+r}")
        for r in range(8): E.i(f"v_fma_f32 v{G+r}, v{G+r}, v12, v10")
        for r in range(8): E.i(f"v_mul_f32 v{G+r}, v{G+r}, v{a+r}")
        for r in range(8): E.i(f"v_exp_f32 v{G+r}, v{G+r}")
        for r in range(8): E.i(f"v_mul_f32 v{a+r}, v{a+r}, v{a+8+r}")
        for r in range(8): E.i(f"v_fma_f32 v{G+r}, v{G+r}, v11, v11")
        for r in range(8): E.i(f"v_rcp_f32 v{G+r}, v{G+r}")
        for r in range(8): E.i(f"v_mul_f32 v{a+r}, v{a+r}, v{G+r}")
        for r in range(4):
            E.i(f"v_cvt_pk_bf16_f32 v{a+8+r}, v{a+2*r}, v{a+2*r+1}")
        E.i(f"buffer_store_dwordx4 v[{a+8}:{a+11}], v2, {WSR}, s{sHH} offen offset:{t*1024}{SC}", tag="st")
    E.bg_flush()
    E.i(f"s_lshl_b32 s52, s{sTB4}, 12"); E.i(f"s_lshl_b32 s53, s{sCG4}, 7"); E.i("s_add_u32 s52, s52, s53"); E.i(f"s_add_u32 s52, s52, {FHH}")
    signal(E, 52, 8)
    if g == 0: E.i("s_setprio 0")
    probe_hh(E, 0, 8, 9, lambda: [a5_load(E, 0, f) for f in range(12)], 6 if g == 0 else 2)
    stamp(E, 23 if g == 0 else 26, 87, wave=4*(1-g))
G1_SLEEP = int(os.environ.get("G1_SLEEP", "8"))
G0_SLEEP = int(os.environ.get("G0_SLEEP", "8"))

def s4_rep(E):
    ACC = 16; WF = WF4
    for variant in range(3):
        E.i("s_waitcnt vmcnt(0) lgkmcnt(0)"); E.vm = []; E.lg = []
        E.i("s_barrier"); stamp(E, 53 + 2*variant, 15)
        def rd(i):
            for t in range(3):
                r = WF + (i%2)*12 + 4*t
                o = (max(i,1)*3+t)*1024
                if o < 61440: E.i(f"ds_read_b128 v[{r}:{r+3}], v2 offset:{o}", tag=("w", i))
                else: E.i(f"ds_read_b128 v[{r}:{r+3}], v4 offset:{o-61440}", tag=("w", i))
        if variant >= 1:
            for i in range(20): a4_load(E, i)
        rd(0)
        for i in range(40):
            if i + 1 < 40: rd(i + 1)
            E.wait_vm(("a4", i)); E.wait_lg(("w", i))
            af = AFR + 4*(i % 20)
            for t in range(3):
                r = WF + (i%2)*12 + 4*t; a = ACC + 16*t
                if "m16" in OPT:
                    af2 = AFR + 4*((i+1) % 20); a2 = a + 8*(i%2)
                    E.i(f"v_mfma_f32_16x16x32_bf16 v[{a2}:{a2+3}], v[{r}:{r+3}], v[{af}:{af+3}], v[{a2}:{a2+3}]")
                    E.i(f"v_mfma_f32_16x16x32_bf16 v[{a2+4}:{a2+7}], v[{r}:{r+3}], v[{af2}:{af2+3}], v[{a2+4}:{a2+7}]")
                else:
                    E.i(f"v_mfma_f32_32x32x16_bf16 v[{a}:{a+15}], v[{r}:{r+3}], v[{af}:{af+3}], v[{a}:{a+15}]")
                if t == 0 and variant >= 1 and 1 <= i <= 20: a4_load(E, i + 19)
                if t == 1 and variant == 2 and i < 22: ld_unit(E, W5reg(i), sW5, i, ("w5", i))
        E.i("s_barrier"); stamp(E, 54 + 2*variant, 15)

def s5(E):
    ACC = 16; vPW, vPR, vM, XR = 3, 4, 6, 15
    E.bg_period = 0
    lane_pr(E, 5, 12, 13); lane_xr(E, 14, 12, 13)
    E.i("s_mul_i32 s52, s3, 10240"); E.i("s_add_u32 s52, s52, 81920"); E.i(f"v_add_u32 v{vPW}, s52, v2")
    sHB, sOB = 74, 75
    E.i(f"s_mul_i32 s{sHB}, s{sRB3}, 40960"); E.i(f"s_mul_i32 s53, s{sCT3}, 5120"); E.i(f"s_add_u32 s{sHB}, s{sHB}, s53"); E.i(f"s_add_u32 s{sHB}, s{sHB}, {HF}")
    E.i(f"s_mul_i32 s{sOB}, s{sRB3}, 40960"); E.i(f"s_mul_i32 s53, s{sCT3}, 160"); E.i(f"s_add_u32 s{sOB}, s{sOB}, s53")
    def mm(ph):
        Lb = E.newlabel("s5v")
        E.label(Lb)
        for k in range(6):
            E.wait_vm(("a5", ph, 2*k+1))
            for u in range(2):
                af = A5[ph](2*k+u)
                for nt in range(5):
                    a = ACC + (u*5+nt)*4; wf = W5reg(k*5+nt)
                    c = "0" if k == 0 else f"v[{a}:{a+3}]"
                    E.i(f"v_mfma_f32_16x16x32_bf16 v[{a}:{a+3}], v[{wf}:{wf+3}], v[{af}:{af+3}], {c}")
    def wr():
        for j in range(10): E.i(f"ds_write_b128 v{vPW}, v[{ACC+4*j}:{ACC+4*j+3}] offset:{j*1024}")
        E.wait_lg()
    def res_load(ph, snt, r):
        E.i(f"s_lshl_b32 s52, s{snt}, 10"); E.i(f"s_add_u32 s52, s52, s{sHB}")
        if ph: E.i(f"s_add_u32 s52, s52, {32*40960}")
        E.i(f"buffer_load_dwordx4 v[{r}:{r+3}], v2, {WSR}, s52 offen{SC}", tag="res")
    def fin(ph, snt, r, T):
        E.i(f"s_lshl_b32 s52, s{snt}, 10"); E.i(f"s_add_u32 s52, s52, {81920 if ph == 0 else 0}"); E.i(f"v_add_u32 v{vPR}, s52, v5")
        final_sum(E, vPR, 8, T, 0, 12)
        add_res_pack(E, T, r, T + 8, 12, False)
        E.i(f"s_lshl_b32 s52, s{snt}, 5"); E.i(f"s_add_u32 s52, s52, s{sOB}")
        if ph: E.i("s_add_u32 s52, s52, 1310720")
        E.i(f"buffer_store_dwordx4 v[{T+8}:{T+11}], v14, s[{SRD_OUT}:{SRD_OUT+3}], s52 offen")
    a5b = lambda: [a5_load(E, 1, f) for f in range(12)]
    LG1, LJ = E.newlabel("s5g1"), E.newlabel("s5j")
    RA = AFR + 16
    E.i("s_sub_u32 s76, s3, 3"); E.i("s_max_i32 s76, s76, 0"); E.i("s_min_u32 s77, s3, 4")
    E.vm = [("a5", 0, f) for f in range(12)]
    mm(0); stamp(E, 28, 12)
    E.i("s_cmp_ge_u32 s3, 4"); E.branch(f"s_cbranch_scc1 {LG1}")
    E.i("s_barrier")
    wr()
    E.branch(f"s_branch {LJ}")
    E.label(LG1)
    wr()
    E.i("s_barrier")
    E.label(LJ)
    res_load(0, 76, RA); res_load(1, 77, 8)
    probe_hh(E, 1, 12, 13, a5b)
    E.i("s_barrier")
    stamp(E, 29, 12)
    L4 = E.newlabel("f4"); E.i("s_cmp_lt_u32 s3, 3"); E.branch(f"s_cbranch_scc1 {L4}")
    with side(E): fin(0, 76, RA, ACC)
    E.label(L4)
    stamp(E, 30, 12, wave=4)
    E.i(f"v_subrev_u32 v{vPW}, 81920, v{vPW}")
    mm(1); stamp(E, 31, 12)
    wr()
    E.i("s_barrier")
    stamp(E, 32, 12)
    Lsk = E.newlabel("s5sk")
    E.i("s_cmp_ge_u32 s3, 5"); E.branch(f"s_cbranch_scc1 {Lsk}")
    with side(E): fin(1, 3, 8, ACC)
    E.label(Lsk)
    stamp(E, 33, 12)

def prologue(E, kn):
    E.raw(f".globl {kn}\n.p2align 8\n.type {kn},@function\n{kn}:")
    E.i("s_cmp_ge_u32 s2, 256")
    E.branch(f"s_cbranch_scc1 L_exit_{kn}")
    if "scr" in OPT:
        E.i("s_and_b32 s52, s2, 7"); E.i("s_bfe_u32 s53, s2, 0x30003"); E.i("s_and_b32 s2, s2, 0xc0"); E.i("s_lshl_b32 s52, s52, 3"); E.i("s_or_b32 s2, s2, s52"); E.i("s_or_b32 s2, s2, s53")
    E.i("s_load_dwordx16 s[4:19], s[0:1], 0")
    if kn == "ka_kernel" or "tcb" in OPT:
        nl = 128 if kn == "ka_kernel" else 256
        E.i("s_getpc_b64 s[70:71]")
        E.raw(f"L_tpc_{kn}:")
        E.i("v_lshlrev_b32 v5, 7, v0"); E.i(f"v_min_u32 v5, L_end_of_code-L_tpc_{kn}-4, v5")
        E.i(f"v_cmp_gt_u32 vcc, {nl}, v0"); E.i("s_and_saveexec_b64 s[72:73], vcc"); E.branch(f"s_cbranch_execz L_tca_{kn}")
        E.raw("  global_load_dword v255, v5, s[70:71]")
        E.label(f"L_tca_{kn}"); E.i("s_mov_b64 exec, -1")
    E.i("s_load_dwordx4 s[20:23], s[0:1], 64")
    E.i("s_memrealtime s[96:97]")
    E.i("v_and_b32 v1, 63, v0")
    E.i("v_lshrrev_b32 v2, 6, v0")
    E.i("v_readfirstlane_b32 s3, v2")
    E.i("v_lshlrev_b32 v2, 4, v1")
    E.i(f"s_mov_b32 s{sONE}, 0x3f803f80"); E.i(f"s_mov_b32 s{sRETRY}, 0"); E.i(f"s_mov_b32 s{sM1}, 0xfffffffe")
    E.i("s_waitcnt lgkmcnt(0)")
    E.i(f"s_mov_b32 s{sT0}, s96")
    srd(E, SRD_X, P_X, 2621440)
    srd(E, SRD_W1, P_W1, 2457600)
    srd(E, SRD_WS, P_WS, WS_BYTES)
    srd(E, SRD_OUT, P_OUT, 2621440)
    srd(E, SRD_DBG, P_DBG, 256)
def kdesc(kn):
    return f""".section .rodata,"a"
.p2align 6
.amdhsa_kernel {kn}
  .amdhsa_next_free_vgpr 256
  .amdhsa_next_free_sgpr 102
  .amdhsa_accum_offset 256
  .amdhsa_group_segment_fixed_size 0
  .amdhsa_kernarg_size 80
  .amdhsa_user_sgpr_count 2
  .amdhsa_user_sgpr_kernarg_segment_ptr 1
  .amdhsa_system_sgpr_workgroup_id_x 1
.end_amdhsa_kernel
"""
def build():
    E = Emitter()
    prologue(E, "ka_kernel")
    stamp(E, 0, 31)
    E.i("s_lshl_b32 s52, s2, 3"); E.i("s_or_b32 s52, s52, s3"); E.i("s_cmp_lg_u32 s52, 2047"); E.branch("s_cbranch_scc1 L_nonce_done")
    E.i(f"s_or_b32 s52, s{sT0}, 1"); E.i("s_mov_b64 exec, 1"); E.i("v_mov_b32 v3, s52")
    E.raw(f"  buffer_store_dword v3, off, s[{SRD_DBG}:{SRD_DBG+3}], 0{SC}")
    E.i("s_mov_b64 exec, -1")
    E.label("L_nonce_done")
    E.i("s_cmp_ge_u32 s2, 240"); E.branch("s_cbranch_scc1 L_idle")
    s1(E)
    E.branch("s_branch L_tail")
    E.label("L_idle")
    E.vm = []; E.lg = []
    idle(E)
    E.label("L_tail")
    E.vm = [("s0dma", 0)] + ["st"]*8; E.lg = []
    ka_tail(E)
    if CFG.stamps:
        E.i("s_waitcnt vmcnt(0)"); stamp(E, 3, 31); stamp(E, 4, 31, wave=7)
    E.label("L_exit_ka_kernel")
    E.raw("  s_endpgm")
    prologue(E, "kb_kernel")
    E.vm = []; E.lg = []; E.bg_period = 0
    s2(E)
    s3(E)
    s5(E)
    E.i("s_waitcnt vmcnt(0) lgkmcnt(0)")
    stamp(E, 40, 31)
    E.label("L_exit_kb_kernel")
    E.raw("  s_endpgm")
    E.raw("L_end_of_code:")
    hdr = ("; @launch kernel=ka_kernel grid=(256,1,1) block=(512,1,1) lds=163840\n; @launch kernel=kb_kernel grid=(256,1,1) block=(512,1,1) lds=163840\n"
           ".amdgcn_target \"amdgcn-amd-amdhsa--gfx950\"\n.text\n")
    return hdr + E.text() + kdesc("ka_kernel") + kdesc("kb_kernel")

if __name__ == "__main__":
    mode = sys.argv[2] if len(sys.argv) > 2 else ""
    CFG.stamps = mode == "stamps"; CFG.dbgst = mode == "dbg"
    open(sys.argv[1], "w").write(build())
```

```python
from k21a import *

sRB3, sCT3, sCG4, sRB4 = 86, 87, 88, 89
W3R = 156; A3 = [68, 108]; ACC3 = 28
W5P1 = 168
AFR = 88
W5reg = lambda j: (W5P1 + 4*j) if j < 22 else (AFR + 48 + 4*(j-22))
A5 = [lambda f: AFR + 4*f, lambda f: (56 + 4*f) if f < 8 else (AFR + 4*(f-8))]
vA3 = 3
S2B_AT = int(os.environ.get("S2B_AT", "5"))
S3A_AT = int(os.environ.get("S3A_AT", "6"))

MAP3 = int(os.environ.get("MAP3", "2"))
MAP4 = int(os.environ.get("MAP4", "3"))
def late_scalars(E):
    E.i("s_and_b32 s52, s2, 7"); E.i("s_lshr_b32 s53, s2, 3")
    c = MAP3
    E.i(f"s_lshr_b32 s{sRB3}, s52, {3-c}"); E.i(f"s_lshl_b32 s{sRB3}, s{sRB3}, {5-c}"); E.i(f"s_lshr_b32 s54, s53, {c}"); E.i(f"s_add_u32 s{sRB3}, s{sRB3}, s54")
    E.i(f"s_and_b32 s{sCT3}, s52, {(1 << (3-c)) - 1}"); E.i(f"s_lshl_b32 s{sCT3}, s{sCT3}, {c}"); E.i(f"s_and_b32 s54, s53, {(1 << c) - 1}"); E.i(f"s_add_u32 s{sCT3}, s{sCT3}, s54")
    c = MAP4
    E.i(f"s_lshr_b32 s{sRB4}, s52, {5-c}"); E.i(f"s_lshl_b32 s{sRB4}, s{sRB4}, {5-c}"); E.i(f"s_lshr_b32 s54, s53, {c}"); E.i(f"s_add_u32 s{sRB4}, s{sRB4}, s54")
    E.i(f"s_and_b32 s{sCG4}, s52, {(1 << (5-c)) - 1}"); E.i(f"s_lshl_b32 s{sCG4}, s{sCG4}, {c}"); E.i(f"s_and_b32 s54, s53, {(1 << c) - 1}"); E.i(f"s_add_u32 s{sCG4}, s{sCG4}, s54")

def ld_unit(E, r, sbase, j, tag, vaddr=2, unit=1024):
    off = j * unit
    if off < 4096:
        E.i(f"buffer_load_dwordx4 v[{r}:{r+3}], v{vaddr}, {WSR}, s{sbase} offen offset:{off}{SC}", tag=tag)
    else:
        E.i(f"s_add_u32 s100, s{sbase}, {off - off % 4096}")
        E.i(f"buffer_load_dwordx4 v[{r}:{r+3}], v{vaddr}, {WSR}, s100 offen offset:{off % 4096}{SC}", tag=tag)

sWP, sW4, sW5, sA3, sA4, sA5, sHS, sHH = 56, 57, 59, 60, 62, 63, 65, 66
def bases(E):
    E.i(f"s_mul_i32 s{sW5}, s{sCT3}, 245760"); E.i("s_mul_i32 s53, s3, 30720"); E.i(f"s_add_u32 s{sW5}, s{sW5}, s53"); E.i(f"s_add_u32 s{sW5}, s{sW5}, {W5F}")
    E.i(f"s_mul_i32 s52, s{sCT3}, 102400"); E.i("s_mul_i32 s53, s3, 25600"); E.i("s_add_u32 s52, s52, s53"); E.i(f"s_add_u32 s52, s52, {W3F}")
    E.i(f"s_sub_u32 s53, s{sW5}, 3072")
    E.i("s_cmp_lt_u32 s3, 4"); E.i(f"s_cselect_b32 s{sWP}, s52, s53")
    E.i(f"s_mul_i32 s{sW4}, s{sCG4}, 122880"); E.i(f"s_add_u32 s{sW4}, s{sW4}, {W4F}"); E.i(f"s_lshl_b32 s{sW4+1}, s3, 10"); E.i(f"s_add_u32 s{sW4}, s{sW4}, s{sW4+1}")
    E.i(f"s_mul_i32 s{sA3}, s{sRB3}, 40960"); E.i(f"s_add_u32 s{sA3}, s{sA3}, {OF}")
    E.i("s_and_b32 s53, s3, 3"); E.i("s_lshl_b32 s72, s53, 12"); E.i("s_lshl_b32 s73, s53, 10"); E.i("s_add_u32 s73, s73, 16384")
    E.i(f"s_add_u32 s{sA3+1}, s{sA3}, {64*20480}")
    E.i("s_lshr_b32 s52, s3, 2"); E.i("s_xor_b32 s52, s52, 1"); E.i("s_lshl_b32 s52, s52, 3"); E.i(f"s_add_u32 s52, s52, s{sRB4}"); E.i("s_lshl_b32 s52, s52, 2"); E.i("s_and_b32 s53, s3, 3"); E.i("s_add_u32 s52, s52, s53")
    E.i(f"s_mov_b32 s90, s52")
    E.i(f"s_mul_i32 s{sA4}, s52, 40960"); E.i(f"s_add_u32 s{sA4}, s{sA4}, {HF}")
    E.i(f"s_lshl_b32 s{sHS}, s52, 11"); E.i(f"s_add_u32 s{sHS}, s{sHS}, {HSTB}")
    E.i(f"s_mul_i32 s{sHH}, s52, 98304"); E.i(f"s_mul_i32 s53, s{sCG4}, 3072"); E.i(f"s_add_u32 s{sHH}, s{sHH}, s53"); E.i(f"s_add_u32 s{sHH}, s{sHH}, {HHF}")
    E.i(f"s_mul_i32 s{sA5}, s{sRB3}, 98304"); E.i("s_mul_i32 s53, s3, 12288"); E.i(f"s_add_u32 s{sA5}, s{sA5}, s53"); E.i(f"s_add_u32 s{sA5}, s{sA5}, {HHF}")
    E.i(f"s_add_u32 s{sA5+1}, s{sA5}, {32*98304}")

def w4_unit(E, base):
    E.i(f"s_add_u32 m0, s{sW4+1}, {base*1024}"); E.i(f"s_add_u32 s100, s{sW4}, {base*1024}")
    E.i(f"buffer_load_dwordx4 v2, {WSR}, s100 offen{SC} lds", tag="w4")

def a3_all(E, ph):
    for k in range(5):
        for u in range(2):
            r = A3[ph] + (2*k + u)*4
            if k < 4:
                E.i(f"s_add_u32 s100, s{sA3+ph}, s72")
                if u: E.i("s_add_u32 s100, s100, 20480")
                E.i(f"buffer_load_dwordx4 v[{r}:{r+3}], v2, {WSR}, s100 offen offset:{k*1024}{SC}", tag=("a3", ph, k))
            else:
                E.i(f"s_add_u32 s100, s{sA3+ph}, s73")
                if u: E.i("s_add_u32 s100, s100, 20480")
                for h in range(2):
                    E.i(f"buffer_load_dwordx2 v[{r+2*h}:{r+2*h+1}], v{vA3}, {WSR}, s100 offen offset:{h*128}{SC}", tag=("a3", ph, k))

PSL = int(os.environ.get('PSL', '6'))
def probe(E, sbase, n, va, vd, loads=None, sleep=PSL):
    L, Lok = E.newlabel("prb"), E.newlabel("prbok")
    E.bg_lock += 1
    E.i(f"v_and_b32 v{va}, {n-1}, v1"); E.i(f"v_lshlrev_b32 v{va}, 7, v{va}")
    E.label(L)
    E.i(f"buffer_load_dword v{vd}, v{va}, {WSR}, s{sbase} offen{SC}", tag="probe")
    E.wait_vm("probe")
    E.i(f"v_cmp_eq_u32 vcc, 0, v{vd}")
    E.branch(f"s_cbranch_vccz {Lok}")
    E.i(f"s_sleep {sleep}")
    E.i(f"s_add_u32 s{sRETRY}, s{sRETRY}, 1"); E.i(f"s_cmp_gt_u32 s{sRETRY}, {RETRY_MAX}")
    E.branch(f"s_cbranch_scc0 {L}")
    E.label(Lok)
    if loads: loads()
    E.bg_lock -= 1
def signal(E, sreg, vt):
    E.bg_lock += 1
    E.i("s_waitcnt vmcnt(0)"); E.vm = []
    E.i(f"v_mov_b32 v{vt}, 1"); E.i("s_mov_b64 exec, 1")
    E.i(f"buffer_store_dword v{vt}, off, {WSR}, s{sreg}{SC}")
    E.i("s_mov_b64 exec, -1")
    E.bg_lock -= 1
def signal_last(E, sreg, idx, va, vt, nwait=0):
    L = E.newlabel("sl")
    E.bg_lock += 1
    E.i(f"s_waitcnt vmcnt({nwait})")
    if nwait == 0: E.vm = []
    E.i(f"v_mov_b32 v{va}, {CNT + 4*idx}"); E.i(f"v_mov_b32 v{vt}, 1"); E.i("s_mov_b64 exec, 1")
    E.i(f"ds_add_rtn_u32 v{va}, v{va}, v{vt}")
    E.i("s_waitcnt lgkmcnt(0)"); E.lg = []
    E.i(f"v_readfirstlane_b32 s53, v{va}")
    E.i("s_cmp_lg_u32 s53, 3"); E.branch(f"s_cbranch_scc1 {L}")
    with side(E): E.i(f"buffer_store_dword v{vt}, off, {WSR}, s{sreg}{SC}")
    E.label(L)
    E.i("s_mov_b64 exec, -1")
    E.bg_lock -= 1
sTB4 = 90
def probe_o(E, ph, va, vd, loads=None, sleep=PSL):
    E.i(f"s_lshl_b32 s101, s{sRB3}, 12"); E.i("s_lshl_b32 s52, s3, 10"); E.i("s_add_u32 s101, s101, s52"); E.i(f"s_add_u32 s101, s101, {FO + ph*131072}")
    probe(E, 101, 8, va, vd, loads, sleep)
def probe_h(E, va, vd, loads=None):
    E.i(f"s_lshl_b32 s101, s{sTB4}, 10"); E.i(f"s_add_u32 s101, s101, {FH}")
    probe(E, 101, 8, va, vd, loads)
def probe_s(E, va, vd, loads=None):
    E.i(f"s_lshl_b32 s101, s{sTB4}, 10"); E.i(f"s_add_u32 s101, s101, {FS}")
    probe(E, 101, 8, va, vd, loads)
def probe_hh(E, ph, va, vd, loads=None, sleep=PSL):
    E.i(f"s_lshl_b32 s101, s{sRB3}, 12"); E.i("s_lshl_b32 s52, s3, 9"); E.i("s_add_u32 s101, s101, s52"); E.i(f"s_add_u32 s101, s101, {FHH + ph*131072}")
    probe(E, 101, 4, va, vd, loads, sleep)

CNT = 2816
def gwait(E, idx, target, va, vt):
    L, Lok = E.newlabel("gw"), E.newlabel("gwok")
    E.bg_lock += 1
    E.i(f"v_mov_b32 v{va}, {CNT + 4*idx}")
    E.label(L)
    E.i(f"ds_read_b32 v{vt}, v{va}")
    E.i("s_waitcnt lgkmcnt(0)"); E.lg = []
    E.i(f"v_readfirstlane_b32 s52, v{vt}")
    E.i(f"s_cmp_ge_u32 s52, {target}")
    E.branch(f"s_cbranch_scc1 {Lok}")
    E.i("s_sleep 1")
    E.i(f"s_add_u32 s{sRETRY}, s{sRETRY}, 1"); E.i(f"s_cmp_gt_u32 s{sRETRY}, {RETRY_MAX*50}")
    E.branch(f"s_cbranch_scc0 {L}")
    E.label(Lok)
    E.bg_lock -= 1
def garrive(E, idx, va, vt):
    E.bg_lock += 1
    E.i("s_waitcnt lgkmcnt(0)"); E.lg = []
    E.i(f"v_mov_b32 v{va}, {CNT + 4*idx}"); E.i(f"v_mov_b32 v{vt}, 1")
    E.i("s_mov_b64 exec, 1")
    E.i(f"ds_add_u32 v{va}, v{vt}")
    E.i("s_mov_b64 exec, -1")
    E.bg_lock -= 1
GB = [0, 0]
def gbar(E, g, va, vt):
    GB[g] += 1
    garrive(E, g, va, vt); gwait(E, g, 4*GB[g], va, vt)

CSX = 118*1024
ONESL = 2688
def s2(E):
    KV = [122880, 92160]
    stamp(E, 6, 31)
    vD = 34
    s2_scalars(E)
    s2_loads(E, 0, 0, vD, 0, 0, KV[0])
    LO, LO4, K1, K2, VA, VS, vO1, vO2, M0_, M1_ = 4, 5, 6, 7, 8, 9, 10, 11, 32, 33
    QF = 12; BM = 20; KF = 36; VF = 52; PP = 68; S = [84, 100]; NM = 116; OA = 132
    E.i("v_and_b32 v24, 15, v1"); E.i("v_bfe_u32 v25, v1, 4, 1"); E.i("v_lshrrev_b32 v26, 5, v1")
    E.i("v_mul_u32_u24 v27, 640, v25")
    E.i("v_lshlrev_b32 v28, 3, v26"); E.i("v_xor_b32 v28, v28, v24"); E.i(f"v_lshl_add_u32 v{LO}, v28, 3, v27"); E.i(f"v_lshl_add_u32 v{LO}, v26, 8, v{LO}")
    E.i(f"v_lshl_add_u32 v{LO4}, v24, 3, v27"); E.i(f"v_add_u32 v{LO4}, 512, v{LO4}")
    for r in range(4, 8): E.i(f"v_mov_b32 v{QF+r}, 0")
    E.i(f"buffer_load_dwordx2 v[{QF}:{QF+1}], v{LO}, {WSR}, s{sQo} offen", tag="q")
    E.i(f"buffer_load_dwordx2 v[{QF+2}:{QF+3}], v{LO}, {WSR}, s{sQo} offen offset:128", tag="q")
    E.i("s_mov_b32 exec_hi, 0")
    E.i(f"buffer_load_dwordx2 v[{QF+4}:{QF+5}], v{LO4}, {WSR}, s{sQo} offen", tag="q")
    E.i("s_mov_b64 exec, -1")
    s2_loads(E, 0, 1, vD, 0, 0, KV[1])
    late_scalars(E); bases(E)
    E.i("s_and_b32 s52, s3, 3"); E.i("s_mul_i32 s52, s52, 1280"); E.i("s_lshr_b32 s53, s3, 2"); E.i(f"s_mul_i32 s53, s53, {KV[0]-KV[1]}"); E.i(f"s_add_u32 s52, s52, {KV[0]}"); E.i("s_sub_u32 s52, s52, s53")
    E.i(f"v_add_u32 v{K1}, s52, v{LO}"); E.i(f"v_add_u32 v{K2}, s52, v{LO4}")
    E.i("v_bfe_u32 v27, v1, 2, 2"); E.i("v_lshl_add_u32 v27, v26, 2, v27")
    E.i("v_and_b32 v28, 3, v1")
    E.i("v_lshlrev_b32 v29, 7, v28"); E.i("v_lshl_add_u32 v29, v27, 3, v29")
    E.i("v_and_b32 v30, 2, v28"); E.i("v_lshlrev_b32 v30, 5, v30")
    E.i("v_lshlrev_b32 v31, 3, v27"); E.i("v_add_u32 v31, 512, v31")
    E.i("v_cmp_eq_u32 vcc, 1, v25")
    E.i("v_cndmask_b32 v29, v29, v31, vcc"); E.i("v_cndmask_b32 v30, v30, 0, vcc")
    E.i("s_add_u32 s52, s52, 15360")
    E.i("v_add_u32 v29, s52, v29")
    E.i("v_cmp_ne_u32 s[54:55], 0, v28"); E.i("s_and_b64 vcc, vcc, s[54:55]")
    E.i(f"v_mov_b32 v31, {ONESL}"); E.i("v_cndmask_b32 v29, v29, v31, vcc")
    E.i(f"v_mov_b32 v31, 640"); E.i(f"v_cndmask_b32 v{VS}, v31, 0, vcc")
    VA2 = 35
    E.i(f"v_add_u32 v{VA}, v29, v30"); E.i("v_xor_b32 v30, 64, v30"); E.i(f"v_add_u32 v{VA2}, v29, v30")
    E.i("v_mul_u32_u24 v27, 20480, v25"); E.i(f"v_lshl_add_u32 v{vO2}, v24, 3, v27"); E.i(f"v_lshl_add_u32 v{vO1}, v24, 4, v27"); E.i(f"v_lshl_add_u32 v{vO1}, v26, 8, v{vO1}")
    E.i("v_lshrrev_b32 v27, 4, v1"); E.i(f"v_lshlrev_b32 v{vA3}, 8, v27"); E.i(f"v_lshl_add_u32 v{vA3}, v24, 3, v{vA3}")
    MS = [4,6,8,10,12,14,16,18,20,22,28,30,40,42,44,46]
    E.i("v_and_b32 v27, 31, v1"); E.i("v_lshlrev_b32 v28, 2, v26"); E.i("v_sub_u32 v27, v27, v28")
    E.i("v_mov_b32 v28, 0xffff"); E.i("v_mov_b32 v29, 0xffff0000")
    for r in range(16):
        E.i(f"v_cmp_le_i32 s[{MS[r]}:{MS[r]+1}], {8*(r//4) + r%4}, v27")
    for j in range(8):
        E.i(f"v_cndmask_b32 v30, 0, v28, s[{MS[2*j]}:{MS[2*j]+1}]"); E.i(f"v_cndmask_b32 v31, 0, v29, s[{MS[2*j+1]}:{MS[2*j+1]+1}]")
        E.i(f"v_or_b32 v{BM+j}, v30, v31")
    E.i("v_mov_b32 v142, 0"); E.i("v_mov_b32 v143, 0"); E.i(f"v_mov_b32 v37, {CNT}"); E.i("ds_write_b64 v37, v[142:143]"); E.i("ds_write_b64 v37, v[142:143] offset:8"); E.i("ds_write_b64 v37, v[142:143] offset:16")
    E.i(f"v_mov_b32 v142, s{sONE}"); E.i("v_and_b32 v37, 31, v1"); E.i("v_lshlrev_b32 v37, 2, v37"); E.i(f"ds_write_b32 v37, v142 offset:{ONESL}")
    for r in (KF+6, KF+7, KF+14, KF+15): E.i(f"v_mov_b32 v{r}, 0")
    E.wait_lg(); E.wait_vm()
    stamp(E, 7, 30)
    E.i("s_barrier")
    Lw = E.newlabel("g1pre")
    E.i("s_cmp_ge_u32 s3, 4"); E.branch(f"s_cbranch_scc1 {Lw}")
    E.i(f"s_setprio {ATT_PRIO}")
    E.branch(f"s_branch {Lw}_j")
    E.label(Lw)
    with side(E):
        E.i(f"s_sub_u32 s{sW4}, s{sW4}, 4096"); E.i(f"s_sub_u32 s{sW4+1}, s{sW4+1}, 4096")
        for u_ in W4U[:W4_EARLY]: w4_unit(E, u_)
        E.i("v_lshrrev_b32 v30, 1, v2"); E.i(f"s_mul_i32 s52, s{sW4+1}, 120"); E.i(f"s_mul_i32 s53, s{sCG4}, 384"); E.i("s_add_u32 s52, s52, s53"); E.i(f"s_add_u32 s52, s52, {CSP4}")
        for j in range(10):
            E.i(f"buffer_load_dwordx2 v[{200+2*j}:{201+2*j}], v30, {WSR}, s52 offen")
            E.i("s_add_u32 s52, s52, 12288")
    E.label(f"{Lw}_j")
    stamp(E, 8, 30); stamp(E, 10, 30, wave=4)
    E.i("s_cmp_lt_u32 s3, 4"); E.i("s_cselect_b64 vcc, -1, 0")
    def wpg(j):
        L = E.newlabel("wps")
        E.i(f"s_cbranch_vccz {L}")
        h = list(E.hist)
        ld_unit(E, W3R + 4*j, sWP, j, "wp")
        E.hist = h
        E.raw(f"{L}:")
    WPQ = [(lambda j=j: wpg(j)) for j in range(25)]
    order = [0, 8, 7, 6, 5, 4, 3, 2, 1]
    def rdk(n):
        b = order[n]; r = KF + 8*(n % 2)
        E.i(f"ds_read2_b64 v[{r}:{r+3}], v{K1} offset0:{(b*1280//8) % 256} offset1:{(b*1280//8 + 16) % 256}", tag=("k", n)) if b*1280//8 + 16 < 256 else (
            E.i(f"ds_read_b64 v[{r}:{r+1}], v{K1} offset:{b*1280}", tag=("k", n)), E.i(f"ds_read_b64 v[{r+2}:{r+3}], v{K1} offset:{b*1280+128}", tag=("k", n)))
        E.i(f"ds_read_b64 v[{r+4}:{r+5}], v{K2} offset:{b*1280}", tag=("k", n))
    def weave(big, small):
        nb = len(big); per = -(-len(small) // max(nb, 1))
        for f in big:
            f()
            for _ in range(per):
                if small: E.i(small.pop(0))
        while small: E.i(small.pop(0))
    def qk_parts(n, c):
        r = KF + 8*(n % 2); d = S[n % 2]
        def a():
            E.wait_lg(("k", n))
            E.i(f"v_mfma_f32_32x32x16_bf16 v[{d}:{d+15}], v[{r}:{r+3}], v[{QF}:{QF+3}], {c}")
        def b_():
            E.i(f"v_mfma_f32_32x32x16_bf16 v[{d}:{d+15}], v[{r+4}:{r+7}], v[{QF+4}:{QF+7}], v[{d}:{d+15}]")
            if n + 2 < 9: rdk(n + 2)
        return [a, b_]
    pads = []
    def exit_if_invalid(b, target):
        Lp = E.newlabel("pad"); pads.append((Lp, target))
        E.i(f"s_cmp_lt_u32 s{sTQ}, {16 - 2*b}"); E.branch_nf(f"s_cbranch_scc1 {Lp}")
    def merge():
        Lf = E.newlabel("fv"); pads.append((Lf, None))
        E.i(f"s_cmp_lt_u32 s{sTQ}, 16"); E.branch_nf(f"s_cbranch_scc1 {Lf}")
        E.raw(f"{Lf}_r:")
        for r in range(16): E.i(f"v_cndmask_b32 v{S[1]+r}, v{S[0]+r}, v{S[1]+r}, s[{MS[r]}:{MS[r]+1}]")
    if "rep2" in OPT:
        E.i("s_mov_b32 s77, 0"); E.label("L_rep2")
    Lp1 = E.newlabel("p1done")
    rdk(0); rdk(1)
    for f in qk_parts(0, "0") + qk_parts(1, "0"): f()
    merge()
    for n in range(1, 9):
        d = S[n % 2]
        if n >= 2: exit_if_invalid(order[n], Lp1)
        sm = []
        for j in range(0, 16, 4):
            if n == 1 and j == 0:
                sm += [f"v_max_f32 v{M0_}, v{d}, v{d+1}", f"v_max_f32 v{M1_}, v{d+2}, v{d+3}"]
            else:
                sm += [f"v_max3_f32 v{M0_}, v{d+j}, v{d+j+1}, v{M0_}", f"v_max3_f32 v{M1_}, v{d+j+2}, v{d+j+3}, v{M1_}"]
        weave(qk_parts(n + 1, "0") if n + 1 < 9 else [], sm)
        WPQ[n - 1]()
    E.label(Lp1)
    E.i("s_waitcnt lgkmcnt(0)"); E.lg = []
    rdk(0); rdk(1)
    E.i(f"v_max_f32 v{M0_}, v{M0_}, v{M1_}")
    E.i(f"v_mov_b32 v{M1_}, v{M0_}"); E.i(f"v_permlane32_swap_b32 v{M0_}, v{M1_}"); E.i(f"v_max_f32 v{M0_}, v{M0_}, v{M1_}")
    for r in range(16): E.i(f"v_sub_f32 v{NM+r}, 0, v{M0_}")
    vT1, vT2 = 30, 31
    def rdv(b, slot):
        for ks in range(2):
            tb = 2*b + ks
            E.i(f"v_mad_u32_u24 v{vT1}, v{VS}, {tb}, v{VA}"); E.i(f"v_mad_u32_u24 v{vT2}, v{VS}, {tb}, v{VA2}")
            r = VF + 8*slot + 4*ks
            E.i(f"ds_read_b64_tr_b16 v[{r}:{r+1}], v{vT1}", tag=("v", b)); E.i(f"ds_read_b64_tr_b16 v[{r+2}:{r+3}], v{vT2}", tag=("v", b))
    def pv_parts(b, slot, P, first, nxt=None):
        def mk(ks):
            def f():
                if ks == 0: E.wait_lg(("v", b))
                r = VF + 8*slot + 4*ks
                c = "0" if (first and ks == 0) else f"v[{OA}:{OA+15}]"
                E.i(f"v_mfma_f32_32x32x16_bf16 v[{OA}:{OA+15}], v[{r}:{r+3}], v[{P+4*ks}:{P+4*ks+3}], {c}")
                if ks == 1 and nxt is not None: rdv(nxt, slot)
            return f
        return [mk(0), mk(1)]
    nm = f"v[{NM}:{NM+15}]"
    Lp2 = E.newlabel("p2done")
    PF0 = 148
    for f in qk_parts(0, nm) + qk_parts(1, nm): f()
    rdv(0, 0); rdv(8, 1)
    merge()
    pend = []
    tails = []
    for n in range(1, 9):
        d = S[n % 2]; b = order[n]; P = PP + 8*(n % 2)
        if n >= 2:
            Lt = E.newlabel("p2t"); tails.append((Lt, n - 1))
            exit_if_invalid(b, Lt)
        sm = [f"v_exp_f32 v{d+j}, v{d+j}" for j in range(16)]
        weave((qk_parts(n + 1, nm) if n + 1 < 9 else []) + pend, sm)
        WPQ[8 + 2*(n-1)]()
        for j in range(8): E.i(f"v_cvt_pk_bf16_f32 v{P+j}, v{d+2*j}, v{d+2*j+1}")
        WPQ[9 + 2*(n-1)]()
        if n == 1:
            for j in range(8): E.i(f"v_bfi_b32 v{PF0+j}, v{BM+j}, 0, v{P+j}")
            for j in range(8): E.i(f"v_and_b32 v{P+j}, v{BM+j}, v{P+j}")
            pend = pv_parts(0, 0, PF0, True, order[2]) + pv_parts(8, 1, P, False, order[3])
        else:
            pend = pv_parts(b, n % 2, P, False, order[n + 2] if n + 2 < 9 else None)
    WPQ[24]()
    for f in pend: f()
    E.branch(f"s_branch {Lp2}")
    for Lp, target in pads:
        E.pad_label(Lp)
        if target is None:
            for r in range(16): E.i(f"v_mov_b32 v{S[0]+r}, {NEG:#x}")
            E.branch(f"s_branch {Lp}_r")
        else: E.branch(f"s_branch {target}")
    for Lt, m in tails:
        E.label(Lt)
        E.i("s_waitcnt lgkmcnt(0)"); E.lg = []
        P = PP + 8*(m % 2)
        parts = (pv_parts(0, 0, PF0, True) + pv_parts(8, 1, P, False)) if m == 1 else pv_parts(order[m], m % 2, P, False)
        for f in parts: f()
        E.branch(f"s_branch {Lp2}_w")
    E.label(f"{Lp2}_w")
    E.label(Lp2)
    if "rep2" in OPT:
        E.i("s_waitcnt lgkmcnt(0)"); E.lg = []
        E.i("s_cmp_eq_u32 s77, 1"); E.branch("s_cbranch_scc1 L_rep2_done")
        stamp(E, 12, 30); stamp(E, 13, 30, wave=4)
        E.i("s_barrier"); stamp(E, 37, 30)
        E.i("s_mov_b32 s77, 1"); E.branch("s_branch L_rep2")
        E.label("L_rep2_done")
    stamp(E, 9, 30); stamp(E, 11, 30, wave=4)
    E.i("s_lshr_b32 s52, s3, 2"); E.i("s_lshl_b32 s52, s52, 2"); E.i(f"s_add_u32 s52, s52, {CNT + 8}")
    E.i("s_waitcnt lgkmcnt(0)"); E.lg = []
    E.i("v_mov_b32 v30, s52"); E.i("v_mov_b32 v31, 1"); E.i("s_mov_b64 exec, 1"); E.i("ds_add_u32 v30, v31"); E.i("s_mov_b64 exec, -1")
    E.i(f"v_rcp_f32 v{M0_}, v{OA+12}")
    for r in range(12): E.i(f"v_mul_f32 v{OA+r}, v{OA+r}, v{M0_}")
    for j in range(6): E.i(f"v_cvt_pk_bf16_f32 v{PP+j}, v{OA+2*j}, v{OA+2*j+1}")
    E.i(f"v_permlane32_swap_b32 v{PP}, v{PP+2}"); E.i(f"v_permlane32_swap_b32 v{PP+1}, v{PP+3}")
    E.i(f"s_lshl_b32 s52, s{sHD}, 9"); E.i(f"s_add_u32 s52, s52, s{sOo}")
    E.i(f"s_lshl_b32 s53, s{sHD}, 7"); E.i(f"s_add_u32 s53, s53, s{sOo}"); E.i("s_add_u32 s53, s53, 16384")
    E.i(f"buffer_store_dwordx4 v[{PP}:{PP+3}], v{vO1}, {WSR}, s52 offen{SC}", tag="st")
    E.i("s_mov_b32 exec_hi, 0")
    E.i(f"buffer_store_dwordx2 v[{PP+4}:{PP+5}], v{vO2}, {WSR}, s53 offen{SC}", tag="st")
    E.i("s_mov_b64 exec, -1")
    E.i(f"s_lshl_b32 s52, s{sTQ}, 11"); E.i(f"s_lshl_b32 s53, s{sHD}, 7"); E.i("s_add_u32 s52, s52, s53"); E.i(f"s_add_u32 s52, s52, {FO}")
    signal(E, 52, 30)
    Lw = E.newlabel("wpre")
    E.i(f"s_cmp_ge_u32 s{sTQ}, 14"); E.branch(f"s_cbranch_scc1 {Lw}")
    with side(E):
        for j in range(25): ld_unit(E, W3R + 4*j, sWP, j, "wp")
    E.label(Lw)
W4_PRE = int(os.environ.get("W4_PRE", "8"))

def final_sum(E, vPR, nslots, T, off0, vt):
    for half in range(nslots // 4):
        for w in range(4):
            off = off0 + (half*4 + w)*10240
            for g in range(2):
                o = off + g*256
                r = T + 8 + (w*2+g)*4
                if o > 65535:
                    E.i(f"v_add_u32 v{vt}, 40960, v{vPR}"); E.i(f"ds_read_b128 v[{r}:{r+3}], v{vt} offset:{o-40960}")
                else:
                    E.i(f"ds_read_b128 v[{r}:{r+3}], v{vPR} offset:{o}")
        E.wait_lg()
        for j in range(8):
            g, b = j // 4, j % 4
            sr = [T + 8 + (w*2+g)*4 + b for w in range(4)]
            E.i(f"v_add_f32 v{sr[0]}, v{sr[0]}, v{sr[1]}"); E.i(f"v_add_f32 v{sr[2]}, v{sr[2]}, v{sr[3]}")
            if half == 0: E.i(f"v_add_f32 v{T+j}, v{sr[0]}, v{sr[2]}")
            else:
                E.i(f"v_add_f32 v{T+j}, v{T+j}, v{sr[0]}"); E.i(f"v_add_f32 v{T+j}, v{T+j}, v{sr[2]}")

def add_res_pack(E, T, RES, OUT, vt, clamp):
    for j in range(4):
        E.i(f"v_lshlrev_b32 v{vt}, 16, v{RES+j}"); E.i(f"v_add_f32 v{T+2*j}, v{T+2*j}, v{vt}")
        E.i(f"v_and_b32 v{vt}, 0xffff0000, v{RES+j}"); E.i(f"v_add_f32 v{T+2*j+1}, v{T+2*j+1}, v{vt}")
    for j in range(4):
        E.i(f"v_cvt_pk_bf16_f32 v{OUT+j}, v{T+2*j}, v{T+2*j+1}")
        if clamp: E.i(f"v_min_u32 v{OUT+j}, s{sM1}, v{OUT+j}")

def lane_pr(E, dst, t0, t1):
    E.i(f"v_bfe_u32 v{t0}, v1, 4, 1"); E.i(f"v_mul_u32_u24 v{t0}, 5120, v{t0}"); E.i(f"v_lshrrev_b32 v{t1}, 5, v1"); E.i(f"v_lshl_add_u32 v{t0}, v{t1}, 9, v{t0}")
    E.i(f"v_and_b32 v{t1}, 15, v1"); E.i(f"v_lshl_add_u32 v{dst}, v{t1}, 4, v{t0}")
def lane_xr(E, dst, t0, t1):
    E.i(f"v_and_b32 v{t0}, 31, v1"); E.i(f"v_mul_u32_u24 v{t0}, 1280, v{t0}"); E.i(f"v_lshrrev_b32 v{t1}, 5, v1"); E.i(f"v_lshl_add_u32 v{dst}, v{t1}, 4, v{t0}")

def a4_load(E, i):
    ld_unit(E, AFR + 4*(i % 20), sA4, i, ("a4", i))

AUXB = 0
CSF = 2048
WF4 = 64
def w4_first(E):
    E.i(f"s_sub_u32 s52, s{sW4}, s{sW4+1}")
    for t in range(3): ld_unit(E, WF4 + 4*t, 52, t, "w40")
def s3(E):
    stamp(E, 14, 35); stamp(E, 36, 35, wave=4)
    LG1, LJ = E.newlabel("s3g1"), E.newlabel("s3j")
    E.i("s_cmp_ge_u32 s3, 4"); E.branch(f"s_cbranch_scc1 {LG1}")
    E.vm = []
    E.i("s_setprio 2")
    vPW, vM, vPR, vXR = 4, 5, 8, 9
    RES = 12
    T = 68
    E.i("s_mul_i32 s52, s3, 10240"); E.i(f"s_add_u32 s52, s52, {SCR}"); E.i(f"v_add_u32 v{vPW}, s52, v2")
    lane_pr(E, vPR, 6, 7); lane_xr(E, vXR, 6, 7)
    E.i(f"v_add_u32 v{vPR}, s{sW4+1}, v{vPR}"); E.i(f"v_add_u32 v{vPR}, {SCR}, v{vPR}")
    E.i(f"s_lshr_b32 s52, s{sW4+1}, 5"); E.i(f"v_add_u32 v{vXR}, s52, v{vXR}")
    E.i(f"s_mul_i32 s52, s{sRB3}, 40960"); E.i(f"s_mul_i32 s53, s{sCT3}, 160"); E.i("s_add_u32 s52, s52, s53"); E.i("s_add_u32 s53, s52, 1310720")
    for ph in range(2):
        E.i(f"buffer_load_dwordx4 v[{RES+8*ph}:{RES+8*ph+3}], v{vXR}, s[{SRD_X}:{SRD_X+3}], s{52+ph} offen", tag="res")
        E.i(f"buffer_load_dwordx4 v[{RES+8*ph+4}:{RES+8*ph+7}], v{vXR}, s[{SRD_X}:{SRD_X+3}], s{52+ph} offen offset:128", tag="res")
    sHW = 67
    E.i(f"s_mul_i32 s{sHW}, s{sRB3}, 40960"); E.i(f"s_mul_i32 s53, s{sCT3}, 5120"); E.i(f"s_add_u32 s{sHW}, s{sHW}, s53"); E.i(f"s_add_u32 s{sHW}, s{sHW}, s{sW4+1}"); E.i(f"s_add_u32 s{sHW}, s{sHW}, {HF}")
    E.i(f"s_add_u32 s{sHW+1}, s{sHW}, {32*40960}")
    for ph in range(2):
        if ph == 0: probe_o(E, 0, 6, 7, lambda: a3_all(E, 0))
        Lb = E.newlabel("s3v")
        E.label(Lb)
        for k in range(5):
            E.wait_vm(("a3", ph, k))
            for u in range(2):
                af = A3[ph] + (2*k+u)*4
                for nt in range(5):
                    a = ACC3 + (u*5+nt)*4; wf = W3R + (k*5+nt)*4
                    c = "0" if k == 0 else f"v[{a}:{a+3}]"
                    E.i(f"v_mfma_f32_16x16x32_bf16 v[{a}:{a+3}], v[{wf}:{wf+3}], v[{af}:{af+3}], {c}")
        stamp(E, 15 + 3*ph, 6)
        if ph == 0: gwait(E, 2, 4, 6, 7)
        else: gwait(E, 0, 4*GB[0], 6, 7)
        for j in range(10): E.i(f"ds_write_b128 v{vPW}, v[{ACC3+4*j}:{ACC3+4*j+3}] offset:{j*1024}")
        GB[0] += 1; garrive(E, 0, 6, 7)
        if ph == 0:
            E.i(f"s_lshl_b32 s101, s{sRB3}, 12"); E.i("s_lshl_b32 s52, s3, 10"); E.i("s_add_u32 s101, s101, s52"); E.i(f"s_add_u32 s101, s101, {FO + 131072}")
            E.i("v_and_b32 v11, 7, v1"); E.i("v_lshlrev_b32 v11, 7, v11")
        gwait(E, 0, 4*GB[0], 6, 7)
        if ph == 0: E.i(f"buffer_load_dword v11, v11, {WSR}, s101 offen{SC}", tag="aprobe")
        stamp(E, 16 + 3*ph, 6)
        E.wait_vm("res")
        for unit in range(2):
            Lu = None
            if unit == 1:
                Lu = E.newlabel("fin4"); E.i("s_cmp_lg_u32 s3, 0"); E.branch(f"s_cbranch_scc1 {Lu}")
                cm = side(E); cm.__enter__()
            final_sum(E, vPR, 4, T, unit*4096, 6)
            add_res_pack(E, T, RES + 8*ph + 4*unit, 28, 6, False)
            if unit == 0: E.i(f"buffer_store_dwordx4 v[28:31], v2, {WSR}, s{sHW+ph} offen{SC}", tag="st")
            else:
                E.i(f"s_add_u32 s52, s{sHW+ph}, 4096"); E.i(f"buffer_store_dwordx4 v[28:31], v2, {WSR}, s52 offen{SC}")
            if unit == 0:
                E.i(f"v_add_f32 v32, v{T}, v{T+1}"); E.i(f"v_mul_f32 v33, v{T}, v{T}"); E.i(f"v_mul_f32 v35, v{T+1}, v{T+1}"); E.i(f"v_add_f32 v34, v{T+2}, v{T+3}")
                for j in range(2, 8): E.i(f"v_fmac_f32 v{33 if j&1 else 35}, v{T+j}, v{T+j}")
                for j in range(4, 8): E.i(f"v_add_f32 v{32 if j&1 else 34}, v{32 if j&1 else 34}, v{T+j}")
            else:
                for j in range(8):
                    E.i(f"v_fmac_f32 v{33 if j&1 else 35}, v{T+j}, v{T+j}"); E.i(f"v_add_f32 v{32 if j&1 else 34}, v{32 if j&1 else 34}, v{T+j}")
                cm.__exit__(); E.label(Lu)
        E.i("v_add_f32 v32, v32, v34"); E.i("v_add_f32 v33, v33, v35")
        E.i("v_mov_b32 v34, v32"); E.i("v_mov_b32 v35, v33")
        E.i("v_permlane32_swap_b32 v32, v34"); E.i("v_permlane32_swap_b32 v33, v35")
        E.i("v_add_f32 v32, v32, v34"); E.i("v_add_f32 v33, v33, v35")
        E.i("v_and_b32 v10, 31, v1"); E.i("v_lshlrev_b32 v10, 3, v10"); E.i(f"s_lshr_b32 s52, s{sW4+1}, 2"); E.i(f"s_add_u32 s52, s52, {AUXB + ph*1024}"); E.i("v_add_u32 v34, s52, v10")
        E.i("ds_write_b64 v34, v[32:33]")
        garrive(E, 0, 6, 7); GB[0] += 1
        E.i(f"s_lshl_b32 s52, s{sRB3}, 10"); E.i(f"s_lshl_b32 s53, s{sCT3}, 7"); E.i("s_add_u32 s52, s52, s53"); E.i(f"s_add_u32 s52, s52, {FH + ph*32768}")
        if ph == 0:
            Lsl, Lj_ = E.newlabel("slow"), E.newlabel("fj")
            E.i("s_mov_b32 s54, s52")
            E.wait_vm("aprobe")
            E.i("v_cmp_eq_u32 vcc, 0, v11")
            E.branch(f"s_cbranch_vccnz {Lsl}")
            with side(E):
                a3_all(E, 1)
                signal_last(E, 54, 4, 6, 7, 12)
            E.branch(f"s_branch {Lj_}")
            E.label(Lsl)
            signal_last(E, 54, 4, 6, 7)
            probe_o(E, 1, 6, 7, lambda: a3_all(E, 1))
            E.label(Lj_)
        else: signal_last(E, 52, 5, 6, 7)
        stamp(E, 17 + 3*ph, 6)
    gwait(E, 0, 4*GB[0], 6, 7)
    hst(E, 0, 2); hst(E, 1, 3)
    for j in range(W5_PRE): ld_unit(E, W5reg(j), sW5, j, ("w5", j))
    G0_DONE = 4*GB[0]
    gwait(E, 1, 12, 6, 7)
    E.i(f"s_setprio {G0_PRIO}")
    q = [(("w5", j), (lambda j=j: ld_unit(E, W5reg(j), sW5, j, ("w5", j)))) for j in range(W5_PRE, 22)]
    s4(E, 1, q)
    E.branch(f"s_branch {LJ}")
    E.label(LG1)
    E.vm = []; E.lg = []
    for u_ in W4U[W4_EARLY:]: w4_unit(E, u_)
    gwait(E, 3, 4, 6, 7)
    for i in range(7): w4_unit(E, 90 + 4*i)
    E.i("v_lshrrev_b32 v8, 1, v2")
    E.i("v_add_f32 v16, v200, v202"); E.i("v_add_f32 v17, v201, v203")
    for j in range(2, 10):
        E.i(f"v_add_f32 v16, v16, v{200+2*j}"); E.i(f"v_add_f32 v17, v17, v{201+2*j}")
    E.i(f"s_lshr_b32 s52, s{sW4+1}, 1"); E.i(f"s_add_u32 s52, s52, {CSX}"); E.i("v_add_u32 v9, s52, v8")
    E.i("ds_write_b64 v9, v[16:17]")
    gbar(E, 1, 6, 7)
    E.i(f"v_add_u32 v9, {CSX}, v8")
    for w in range(4): E.i(f"ds_read_b64 v[{16+2*w}:{17+2*w}], v9 offset:{w*512}")
    E.wait_lg()
    for w in range(1, 4):
        E.i(f"v_add_f32 v16, v16, v{16+2*w}"); E.i(f"v_add_f32 v17, v17, v{17+2*w}")
    E.i(f"ds_write_b64 v8, v[16:17] offset:{CSF}")
    gbar(E, 1, 6, 7)
    Lq = E.newlabel("w4q"); E.i("s_cmp_ge_u32 s3, 6"); E.branch(f"s_cbranch_scc1 {Lq}")
    with side(E): w4_unit(E, 118)
    E.label(Lq)
    E.vm = []
    for j in range(G1W5): ld_unit(E, W5reg(j), sW5, j, ("w5", j))
    E.i(f"s_waitcnt vmcnt({G1W5})")
    gbar(E, 1, 6, 7)
    s4(E, 0, [(("w5", j), (lambda j=j: ld_unit(E, W5reg(j), sW5, j, ("w5", j)))) for j in range(G1W5, 22)])
    gwait(E, 0, G0_DONE, 12, 13)
    E.label(LJ)
    E.vm = ["st"]; E.lg = []

def hst(E, ph, wv):
    Ls = E.newlabel("hst")
    E.i(f"s_cmp_lg_u32 s3, {wv}"); E.branch(f"s_cbranch_scc1 {Ls}")
    with side(E):
        E.i(f"v_add_u32 v11, {AUXB + ph*1024}, v10")
        for j in range(4): E.i(f"ds_read_b64 v[{148+2*j}:{149+2*j}], v11 offset:{j*256}")
        E.i("s_waitcnt lgkmcnt(0)")
        for j in range(1, 4):
            E.i(f"v_add_f32 v148, v148, v{148+2*j}"); E.i(f"v_add_f32 v149, v149, v{149+2*j}")
        E.i(f"s_lshl_b32 s52, s{sRB3}, 11"); E.i(f"s_lshl_b32 s53, s{sCT3}, 8"); E.i("s_add_u32 s52, s52, s53"); E.i(f"s_add_u32 s52, s52, {HSTB + ph*32*2048}")
        E.i("s_mov_b32 exec_hi, 0")
        E.i(f"buffer_store_dwordx2 v[148:149], v10, {WSR}, s52 offen{SC}")
        E.i("s_mov_b64 exec, -1")
        E.i(f"s_lshl_b32 s52, s{sRB3}, 10"); E.i(f"s_lshl_b32 s53, s{sCT3}, 7"); E.i("s_add_u32 s52, s52, s53"); E.i(f"s_add_u32 s52, s52, {FS + ph*32768}")
        signal(E, 52, 148)
    E.label(Ls)
W5_PRE = int(os.environ.get("W5_PRE", "22"))
WP_PRE = int(os.environ.get("WP_PRE", "8"))
A3B_LATE = int(os.environ.get("A3B_LATE", "1"))
A5_AT = int(os.environ.get("A5_AT", "40"))
G0_PRIO = int(os.environ.get("G0_PRIO", "0"))
G1W5 = int(os.environ.get("G1W5", "22"))
W4U = list(range(3, 87, 4)) + [86]
W4_EARLY = int(os.environ.get("W4_EARLY", "22"))
ATT_PRIO = int(os.environ.get("ATT_PRIO", "0"))
G1_PRIO = int(os.environ.get("G1_PRIO", "1"))
G1E_PRIO = int(os.environ.get("G1E_PRIO", "1"))
S4_INIT = int(os.environ.get("S4_INIT", "8"))
S4_FIRST = 5
WP_FIRST = int(os.environ.get("WP_FIRST", "14"))
W4_S2 = int(os.environ.get("W4_S2", "10"))
F1_AT = int(os.environ.get("F1_AT", "6"))

vA5 = 7
def a5_load(E, ph, f):
    k, u = f // 2, f % 2
    r = A5[ph](f); off = k*2048 + u*256
    E.i(f"s_add_u32 s100, s{sA5+ph}, {off - off % 4096}")
    E.i(f"buffer_load_dwordx4 v[{r}:{r+3}], v{vA5}, {WSR}, s100 offen offset:{off % 4096}{SC}", tag=("a5", ph, f))

def a4_touch(E, va, vd):
    E.i(f"s_and_b32 s52, s{sCG4}, 7"); E.i("s_lshl_b32 s52, s52, 7"); E.i(f"s_add_u32 s52, s52, s{sA4}"); E.i("s_add_u32 s52, s52, 8192")
    E.i(f"v_and_b32 v{va}, 31, v1"); E.i(f"v_lshlrev_b32 v{va}, 10, v{va}")
    E.i(f"buffer_load_dword v{vd}, v{va}, {WSR}, s52 offen{SC}")

def s4(E, g, q0):
    vWB, vWB2, vCSR, vM = 3, 4, 6, 5
    ST = 8; SX, SXX = 8, 9
    ACC = 16; WF = WF4
    stamp(E, 21 if g == 0 else 24, 15, wave=4*(1-g))
    if g == 0: E.i(f"s_setprio {G1_PRIO}")
    E.i(f"v_add_u32 v{vWB2}, 61440, v2")
    E.i("v_lshrrev_b32 v8, 5, v1"); E.i("v_lshlrev_b32 v8, 4, v8"); E.i(f"v_add_u32 v{vCSR}, {CSF}, v8")
    E.i("v_lshrrev_b32 v8, 4, v1"); E.i("v_and_b32 v9, 15, v1"); E.i("v_lshlrev_b32 v8, 9, v8"); E.i(f"v_lshl_add_u32 v{vA5}, v9, 4, v8")
    K1, K2 = 78, 79
    k1 = -2.0 * 0.7978845608028654 * 1.4426950408889634
    E.i(f"s_mov_b32 s{K1}, {f2u(k1):#x}"); E.i(f"s_mov_b32 s{K2}, {f2u(k1*0.044715):#x}")
    def st_loads():
        E.i(f"v_lshrrev_b32 v{ST+6}, 1, v2")
        for i in range(4):
            E.i(f"buffer_load_dwordx2 v[{ST+2*i}:{ST+2*i+1}], v{ST+6}, {WSR}, s{sHS} offen offset:{i*512}{SC}", tag="hst")
    w4_first(E)
    probe_h(E, 8, 9, lambda: [a4_load(E, i) for i in range(S4_INIT)])
    if "touch" in OPT: a4_touch(E, 8, 9)
    SPS = []
    Lb = E.newlabel("s4v"); Lh = E.newlabel("s4h")
    E.label(Lb)
    E.bg_period = 0
    def rd(i):
        for t in range(3):
            r = WF + (i%2)*12 + 4*t
            o = (i*3+t)*1024
            if o < 61440: E.i(f"ds_read_b128 v[{r}:{r+3}], v2 offset:{o}", tag=("w", i))
            else: E.i(f"ds_read_b128 v[{r}:{r+3}], v{vWB2} offset:{o-61440}", tag=("w", i))
    sched = [[] for _ in range(41)]
    nxt = S4_INIT
    for i in range(40):
        for _ in range(2 if nxt < 20 else 1):
            if nxt < 40 and nxt - 20 < i:
                sched[i].append(lambda n=nxt: a4_load(E, n)); nxt += 1
    assert nxt == 40
    q = list(q0)
    for n, (tg, fn) in enumerate(q): sched[min((8 if g else 18) + n, 40)].append(fn)
    if g == 1:
        for n in range(22, 30): sched[33 + n - 22].append(lambda n=n: ld_unit(E, W5reg(n), sW5, n, ("w5", n)))
    for i in range(40):
        if i + 1 < 40: rd(i + 1)
        E.wait_vm(("a4", i))
        if i > 0: E.wait_lg(("w", i))
        af = AFR + 4*(i % 20)
        ops = list(sched[i])
        for t in range(3):
            r = WF + (i%2)*12 + 4*t; a = ACC + 16*t
            c = "0" if i == 0 else f"v[{a}:{a+15}]"
            E.i(f"v_mfma_f32_32x32x16_bf16 v[{a}:{a+15}], v[{r}:{r+3}], v[{af}:{af+3}], {c}")
            if ops: ops.pop(0)()
        for o in ops: o()
        if i == 22:
            E.i(f"s_lshl_b32 s101, s{sTB4}, 10"); E.i(f"s_add_u32 s101, s101, {FS}")
            E.i("v_and_b32 v8, 7, v1"); E.i("v_lshlrev_b32 v8, 7, v8")
            E.i(f"buffer_load_dword v9, v8, {WSR}, s101 offen{SC}", tag="sprobe")
        if i == 30:
            E.wait_vm("sprobe")
            E.i("v_cmp_eq_u32 vcc, 0, v9")
        if i == 31:
            Lsp = E.newlabel("sps"); SPS.append(Lsp)
            E.branch_nf(f"s_cbranch_vccnz {Lsp}")
            E.raw(f"{Lsp}_r:")
            st_loads()
        if i in (0, 9, 19, 29): stamp(E, 53 + 5*g + (i+1)//10, 3, wave=4*(1-g))
    Lsk_ = E.newlabel("spk")
    E.branch(f"s_branch {Lsk_}")
    E.pad_label(SPS[0])
    with side(E): probe_s(E, 8, 9)
    E.branch(f"s_branch {SPS[0]}_r")
    E.label(Lsk_)
    stamp(E, 22 if g == 0 else 25, 87, wave=4*(1-g))
    if g == 0: E.i(f"s_setprio {G1E_PRIO}")
    for o in sched[40]: E.bg_push("x", o)
    if g == 0:
        for n in range(22, 30): E.bg_push(("w5", n), lambda n=n: ld_unit(E, W5reg(n), sW5, n, ("w5", n)))
    E.bg_period = BGP
    E.wait_vm("hst")
    E.i(f"v_add_f32 v{ST}, v{ST}, v{ST+2}"); E.i(f"v_add_f32 v{ST+1}, v{ST+1}, v{ST+3}")
    E.i(f"v_add_f32 v{ST+4}, v{ST+4}, v{ST+6}"); E.i(f"v_add_f32 v{ST+5}, v{ST+5}, v{ST+7}")
    E.i(f"v_add_f32 v{ST}, v{ST}, v{ST+4}"); E.i(f"v_add_f32 v{ST+1}, v{ST+1}, v{ST+5}")
    E.i(f"v_mov_b32 v{ST+2}, v{ST}"); E.i(f"v_mov_b32 v{ST+3}, v{ST+1}")
    E.i(f"v_permlane32_swap_b32 v{ST}, v{ST+2}"); E.i(f"v_permlane32_swap_b32 v{ST+1}, v{ST+3}")
    E.i(f"v_add_f32 v{ST}, v{ST}, v{ST+2}"); E.i(f"v_add_f32 v{ST+1}, v{ST+1}, v{ST+3}")
    stats_math(E, SX, SXX)
    E.i(f"v_mul_f32 v11, v{SXX}, v{SXX}"); E.i(f"v_mul_f32 v10, s{K1}, v{SXX}"); E.i(f"v_mul_f32 v12, v11, v{SXX}"); E.i(f"v_mul_f32 v12, s{K2}, v12"); E.i("v_rcp_f32 v11, v11")
    for q_ in range(4): E.i(f"ds_read_b128 v[{WF+4*q_}:{WF+4*q_+3}], v{vCSR} offset:{q_*32}")
    for t in range(3):
        a = ACC + 16*t; C = WF; G = WF + 16
        E.wait_lg()
        for r in range(16): E.i(f"v_fma_f32 v{a+r}, v{SX}, v{C+r}, v{a+r}")
        if t < 2:
            for q_ in range(4): E.i(f"ds_read_b128 v[{C+4*q_}:{C+4*q_+3}], v{vCSR} offset:{(t+1)*128 + q_*32}")
        for r in range(8): E.i(f"v_mul_f32 v{G+r}, v{a+r}, v{a+r}")
        for r in range(8): E.i(f"v_fma_f32 v{G+r}, v{G+r}, v12, v10")
        for r in range(8): E.i(f"v_mul_f32 v{G+r}, v{G+r}, v{a+r}")
        for r in range(8): E.i(f"v_exp_f32 v{G+r}, v{G+r}")
        for r in range(8): E.i(f"v_mul_f32 v{a+r}, v{a+r}, v{a+8+r}")
        for r in range(8): E.i(f"v_fma_f32 v{G+r}, v{G+r}, v11, v11")
        for r in range(8): E.i(f"v_rcp_f32 v{G+r}, v{G+r}")
        for r in range(8): E.i(f"v_mul_f32 v{a+r}, v{a+r}, v{G+r}")
        for r in range(4):
            E.i(f"v_cvt_pk_bf16_f32 v{a+8+r}, v{a+2*r}, v{a+2*r+1}")
        E.i(f"buffer_store_dwordx4 v[{a+8}:{a+11}], v2, {WSR}, s{sHH} offen offset:{t*1024}{SC}", tag="st")
    E.bg_flush()
    E.i(f"s_lshl_b32 s52, s{sTB4}, 12"); E.i(f"s_lshl_b32 s53, s{sCG4}, 7"); E.i("s_add_u32 s52, s52, s53"); E.i(f"s_add_u32 s52, s52, {FHH}")
    signal(E, 52, 8)
    if g == 0: E.i("s_setprio 0")
    probe_hh(E, 0, 8, 9, lambda: [a5_load(E, 0, f) for f in range(12)], 6 if g == 0 else 2)
    stamp(E, 23 if g == 0 else 26, 87, wave=4*(1-g))
G1_SLEEP = int(os.environ.get("G1_SLEEP", "8"))
G0_SLEEP = int(os.environ.get("G0_SLEEP", "8"))

def s4_rep(E):
    ACC = 16; WF = WF4
    for variant in range(3):
        E.i("s_waitcnt vmcnt(0) lgkmcnt(0)"); E.vm = []; E.lg = []
        E.i("s_barrier"); stamp(E, 53 + 2*variant, 15)
        def rd(i):
            for t in range(3):
                r = WF + (i%2)*12 + 4*t
                o = (max(i,1)*3+t)*1024
                if o < 61440: E.i(f"ds_read_b128 v[{r}:{r+3}], v2 offset:{o}", tag=("w", i))
                else: E.i(f"ds_read_b128 v[{r}:{r+3}], v4 offset:{o-61440}", tag=("w", i))
        if variant >= 1:
            for i in range(20): a4_load(E, i)
        rd(0)
        for i in range(40):
            if i + 1 < 40: rd(i + 1)
            E.wait_vm(("a4", i)); E.wait_lg(("w", i))
            af = AFR + 4*(i % 20)
            for t in range(3):
                r = WF + (i%2)*12 + 4*t; a = ACC + 16*t
                if "m16" in OPT:
                    af2 = AFR + 4*((i+1) % 20); a2 = a + 8*(i%2)
                    E.i(f"v_mfma_f32_16x16x32_bf16 v[{a2}:{a2+3}], v[{r}:{r+3}], v[{af}:{af+3}], v[{a2}:{a2+3}]")
                    E.i(f"v_mfma_f32_16x16x32_bf16 v[{a2+4}:{a2+7}], v[{r}:{r+3}], v[{af2}:{af2+3}], v[{a2+4}:{a2+7}]")
                else:
                    E.i(f"v_mfma_f32_32x32x16_bf16 v[{a}:{a+15}], v[{r}:{r+3}], v[{af}:{af+3}], v[{a}:{a+15}]")
                if t == 0 and variant >= 1 and 1 <= i <= 20: a4_load(E, i + 19)
                if t == 1 and variant == 2 and i < 22: ld_unit(E, W5reg(i), sW5, i, ("w5", i))
        E.i("s_barrier"); stamp(E, 54 + 2*variant, 15)

def s5(E):
    ACC = 16; vPW, vPR, vM, XR = 3, 4, 6, 15
    E.bg_period = 0
    lane_pr(E, 5, 12, 13); lane_xr(E, 14, 12, 13)
    E.i("s_mul_i32 s52, s3, 10240"); E.i("s_add_u32 s52, s52, 81920"); E.i(f"v_add_u32 v{vPW}, s52, v2")
    sHB, sOB = 74, 75
    E.i(f"s_mul_i32 s{sHB}, s{sRB3}, 40960"); E.i(f"s_mul_i32 s53, s{sCT3}, 5120"); E.i(f"s_add_u32 s{sHB}, s{sHB}, s53"); E.i(f"s_add_u32 s{sHB}, s{sHB}, {HF}")
    E.i(f"s_mul_i32 s{sOB}, s{sRB3}, 40960"); E.i(f"s_mul_i32 s53, s{sCT3}, 160"); E.i(f"s_add_u32 s{sOB}, s{sOB}, s53")
    def mm(ph):
        Lb = E.newlabel("s5v")
        E.label(Lb)
        for k in range(6):
            E.wait_vm(("a5", ph, 2*k+1))
            for u in range(2):
                af = A5[ph](2*k+u)
                for nt in range(5):
                    a = ACC + (u*5+nt)*4; wf = W5reg(k*5+nt)
                    c = "0" if k == 0 else f"v[{a}:{a+3}]"
                    E.i(f"v_mfma_f32_16x16x32_bf16 v[{a}:{a+3}], v[{wf}:{wf+3}], v[{af}:{af+3}], {c}")
    def wr():
        for j in range(10): E.i(f"ds_write_b128 v{vPW}, v[{ACC+4*j}:{ACC+4*j+3}] offset:{j*1024}")
        E.wait_lg()
    def res_load(ph, snt, r):
        E.i(f"s_lshl_b32 s52, s{snt}, 10"); E.i(f"s_add_u32 s52, s52, s{sHB}")
        if ph: E.i(f"s_add_u32 s52, s52, {32*40960}")
        E.i(f"buffer_load_dwordx4 v[{r}:{r+3}], v2, {WSR}, s52 offen{SC}", tag="res")
    def fin(ph, snt, r, T):
        E.i(f"s_lshl_b32 s52, s{snt}, 10"); E.i(f"s_add_u32 s52, s52, {81920 if ph == 0 else 0}"); E.i(f"v_add_u32 v{vPR}, s52, v5")
        final_sum(E, vPR, 8, T, 0, 12)
        add_res_pack(E, T, r, T + 8, 12, False)
        E.i(f"s_lshl_b32 s52, s{snt}, 5"); E.i(f"s_add_u32 s52, s52, s{sOB}")
        if ph: E.i("s_add_u32 s52, s52, 1310720")
        E.i(f"buffer_store_dwordx4 v[{T+8}:{T+11}], v14, s[{SRD_OUT}:{SRD_OUT+3}], s52 offen")
    a5b = lambda: [a5_load(E, 1, f) for f in range(12)]
    LG1, LJ = E.newlabel("s5g1"), E.newlabel("s5j")
    RA = AFR + 16
    E.i("s_sub_u32 s76, s3, 3"); E.i("s_max_i32 s76, s76, 0"); E.i("s_min_u32 s77, s3, 4")
    E.vm = [("a5", 0, f) for f in range(12)]
    mm(0); stamp(E, 28, 12)
    E.i("s_cmp_ge_u32 s3, 4"); E.branch(f"s_cbranch_scc1 {LG1}")
    E.i("s_barrier")
    wr()
    E.branch(f"s_branch {LJ}")
    E.label(LG1)
    wr()
    E.i("s_barrier")
    E.label(LJ)
    res_load(0, 76, RA); res_load(1, 77, 8)
    probe_hh(E, 1, 12, 13, a5b)
    E.i("s_barrier")
    stamp(E, 29, 12)
    L4 = E.newlabel("f4"); E.i("s_cmp_lt_u32 s3, 3"); E.branch(f"s_cbranch_scc1 {L4}")
    with side(E): fin(0, 76, RA, ACC)
    E.label(L4)
    stamp(E, 30, 12, wave=4)
    E.i(f"v_subrev_u32 v{vPW}, 81920, v{vPW}")
    mm(1); stamp(E, 31, 12)
    wr()
    E.i("s_barrier")
    stamp(E, 32, 12)
    Lsk = E.newlabel("s5sk")
    E.i("s_cmp_ge_u32 s3, 5"); E.branch(f"s_cbranch_scc1 {Lsk}")
    with side(E): fin(1, 3, 8, ACC)
    E.label(Lsk)
    stamp(E, 33, 12)

def prologue(E, kn):
    E.raw(f".globl {kn}\n.p2align 8\n.type {kn},@function\n{kn}:")
    E.i("s_cmp_ge_u32 s2, 256")
    E.branch(f"s_cbranch_scc1 L_exit_{kn}")
    if "scr" in OPT:
        E.i("s_and_b32 s52, s2, 7"); E.i("s_bfe_u32 s53, s2, 0x30003"); E.i("s_and_b32 s2, s2, 0xc0"); E.i("s_lshl_b32 s52, s52, 3"); E.i("s_or_b32 s2, s2, s52"); E.i("s_or_b32 s2, s2, s53")
    E.i("s_load_dwordx16 s[4:19], s[0:1], 0")
    if kn == "ka_kernel" or "tcb" in OPT:
        nl = 128 if kn == "ka_kernel" else 256
        E.i("s_getpc_b64 s[70:71]")
        E.raw(f"L_tpc_{kn}:")
        E.i("v_lshlrev_b32 v5, 7, v0"); E.i(f"v_min_u32 v5, L_end_of_code-L_tpc_{kn}-4, v5")
        E.i(f"v_cmp_gt_u32 vcc, {nl}, v0"); E.i("s_and_saveexec_b64 s[72:73], vcc"); E.branch(f"s_cbranch_execz L_tca_{kn}")
        E.raw("  global_load_dword v255, v5, s[70:71]")
        E.label(f"L_tca_{kn}"); E.i("s_mov_b64 exec, -1")
    E.i("s_load_dwordx4 s[20:23], s[0:1], 64")
    E.i("s_memrealtime s[96:97]")
    E.i("v_and_b32 v1, 63, v0")
    E.i("v_lshrrev_b32 v2, 6, v0")
    E.i("v_readfirstlane_b32 s3, v2")
    E.i("v_lshlrev_b32 v2, 4, v1")
    E.i(f"s_mov_b32 s{sONE}, 0x3f803f80"); E.i(f"s_mov_b32 s{sRETRY}, 0"); E.i(f"s_mov_b32 s{sM1}, 0xfffffffe")
    E.i("s_waitcnt lgkmcnt(0)")
    E.i(f"s_mov_b32 s{sT0}, s96")
    srd(E, SRD_X, P_X, 2621440)
    srd(E, SRD_W1, P_W1, 2457600)
    srd(E, SRD_WS, P_WS, WS_BYTES)
    srd(E, SRD_OUT, P_OUT, 2621440)
    srd(E, SRD_DBG, P_DBG, 256)
def kdesc(kn):
    return f""".section .rodata,"a"
.p2align 6
.amdhsa_kernel {kn}
  .amdhsa_next_free_vgpr 256
  .amdhsa_next_free_sgpr 102
  .amdhsa_accum_offset 256
  .amdhsa_group_segment_fixed_size 0
  .amdhsa_kernarg_size 80
  .amdhsa_user_sgpr_count 2
  .amdhsa_user_sgpr_kernarg_segment_ptr 1
  .amdhsa_system_sgpr_workgroup_id_x 1
.end_amdhsa_kernel
"""
def build():
    E = Emitter()
    prologue(E, "ka_kernel")
    stamp(E, 0, 31)
    E.i("s_lshl_b32 s52, s2, 3"); E.i("s_or_b32 s52, s52, s3"); E.i("s_cmp_lg_u32 s52, 2047"); E.branch("s_cbranch_scc1 L_nonce_done")
    E.i(f"s_or_b32 s52, s{sT0}, 1"); E.i("s_mov_b64 exec, 1"); E.i("v_mov_b32 v3, s52")
    E.raw(f"  buffer_store_dword v3, off, s[{SRD_DBG}:{SRD_DBG+3}], 0{SC}")
    E.i("s_mov_b64 exec, -1")
    E.label("L_nonce_done")
    E.i("s_cmp_ge_u32 s2, 240"); E.branch("s_cbranch_scc1 L_idle")
    s1(E)
    E.branch("s_branch L_tail")
    E.label("L_idle")
    E.vm = []; E.lg = []
    idle(E)
    E.label("L_tail")
    E.vm = [("s0dma", 0)] + ["st"]*8; E.lg = []
    ka_tail(E)
    if CFG.stamps:
        E.i("s_waitcnt vmcnt(0)"); stamp(E, 3, 31); stamp(E, 4, 31, wave=7)
    E.label("L_exit_ka_kernel")
    E.raw("  s_endpgm")
    prologue(E, "kb_kernel")
    E.vm = []; E.lg = []; E.bg_period = 0
    s2(E)
    s3(E)
    s5(E)
    E.i("s_waitcnt vmcnt(0) lgkmcnt(0)")
    stamp(E, 40, 31)
    E.label("L_exit_kb_kernel")
    E.raw("  s_endpgm")
    E.raw("L_end_of_code:")
    hdr = ("; @launch kernel=ka_kernel grid=(256,1,1) block=(512,1,1) lds=163840\n; @launch kernel=kb_kernel grid=(256,1,1) block=(512,1,1) lds=163840\n"
           ".amdgcn_target \"amdgcn-amd-amdhsa--gfx950\"\n.text\n")
    return hdr + E.text() + kdesc("ka_kernel") + kdesc("kb_kernel")

if __name__ == "__main__":
    mode = sys.argv[2] if len(sys.argv) > 2 else ""
    CFG.stamps = mode == "stamps"; CFG.dbgst = mode == "dbg"
    open(sys.argv[1], "w").write(build())
```
